```python
import torch

def _softmax(x, axis=-1):
    return torch.softmax(x, dim=axis)
def _gelu(x):
    return torch.nn.functional.gelu(x, approximate="tanh")
def _silu(x):
    return torch.nn.functional.silu(x)
def _sigmoid(x):
    return torch.sigmoid(x)
def _layernorm(x, axis=-1, eps=1e-5):
    m = x.mean(dim=axis, keepdim=True)
    v = x.var(dim=axis, keepdim=True, unbiased=False)
    return (x - m) / torch.sqrt(v + eps)
def _scatter_add(tgt, idx, src, axis=0):
    return tgt.clone().index_add_(axis, idx, src)
def _segment_sum(src, seg, n):
    out = torch.zeros((n,) + src.shape[1:], dtype=src.dtype)
    return out.index_add_(0, seg, src)
def _pad(x, pw):
    flat = tuple(v for pair in reversed(pw) for v in pair)
    return torch.nn.functional.pad(x, flat)

kernel_name = 'parallel_sum__mha_block__glu_gated_swiglu__prompt'

def setup_inputs():

    _w = (lambda a: (lambda t: t.to(torch.bfloat16) if t.is_floating_point() else t)(torch.as_tensor(a)))
    def _A_setup():
        B, S, D, H = 1, 2048, 576, 32
        return {
            "x": _w((lambda *s: torch.randn(*s, dtype=torch.bfloat16) * 0.05)(B, S, D)),
            "wqkv": _w((lambda *s: torch.randn(*s, dtype=torch.bfloat16) * 0.05)(D, 3 * D)),
            "wo": _w((lambda *s: torch.randn(*s, dtype=torch.bfloat16) * 0.05)(D, D)),
        }
    _A_in = _A_setup()

    def _B_setup():
        B, S, D, F = 1, 2048, 576, 4608
        return {
            "x": _w((lambda *s: torch.randn(*s, dtype=torch.bfloat16) * 0.05)(B, S, D)),
            "w1": _w((lambda *s: torch.randn(*s, dtype=torch.bfloat16) * 0.4)(D, F) * (2.0 / D) ** 0.5),
            "w3": _w((lambda *s: torch.randn(*s, dtype=torch.bfloat16) * 0.4)(D, F) * (2.0 / D) ** 0.5),
            "w2": _w((lambda *s: torch.randn(*s, dtype=torch.bfloat16) * 0.4)(F, D) * (2.0 / F) ** 0.5),
        }
    _B_in = _B_setup()

    return {
        "A_x": _A_in["x"],
        "A_wqkv": _A_in["wqkv"],
        "A_wo": _A_in["wo"],
        "B_x": _B_in["x"],
        "B_w1": _B_in["w1"],
        "B_w3": _B_in["w3"],
        "B_w2": _B_in["w2"],
    }

def reference(A_x, A_wqkv, A_wo, B_x, B_w1, B_w3, B_w2):
    def _A_ref(x, wqkv, wo):
        B, S, D = x.shape
        H = 32
        Dh = D // H
        qkv = (lambda x, *d: x.permute(*d))((x @ wqkv).reshape(B, S, 3, H, Dh), 2, 0, 3, 1, 4)
        q, k, v = qkv[0], qkv[1], qkv[2]
        scores = torch.einsum("bhqd,bhkd->bhqk", q, k) * (Dh ** -0.5)
        p = _softmax(scores, axis=-1)
        o = torch.einsum("bhqk,bhkd->bhqd", p, v)
        return (lambda x, *d: x.permute(*d))(o, 0, 2, 1, 3).reshape(B, S, D) @ wo

    def _B_ref(x, w1, w3, w2):
        gate = torch.einsum("bsd,df->bsf", x, w1)
        up = torch.einsum("bsd,df->bsf", x, w3)
        h = _silu(gate) * up
        out = torch.einsum("bsf,fd->bsd", h, w2)
        return out

    x = A_x
    xn = _layernorm(x, axis=-1)
    return x + _A_ref(xn, A_wqkv, A_wo) + _B_ref(xn, B_w1, B_w3, B_w2)
```

```python
import sys
OUT = "parallel_sum__mha_block__glu_gated_swiglu__prompt.s"

MB = 1 << 20
WS_XN = 0
WS_QP = 4 * MB
WS_KP = 8 * MB
WS_VT = 12 * MB
WS_H = 16 * MB
WS_O = 40 * MB
WS_SIZE = 268435456

S_, D_, F_, H_ = 2048, 576, 4608, 32
LOG2E = 1.4426950408889634
QSCALE = LOG2E * (18 ** -0.5)

import struct
def f2u(x):
    return struct.unpack("<I", struct.pack("<f", x))[0]

class E:
    def __init__(self):
        self.l = []
    def __call__(self, s):
        for ln in s.strip("\n").split("\n"):
            self.l.append("  " + ln.strip() if not ln.strip().endswith(":") else ln.strip())
    def text(self):
        return "\n".join(self.l) + "\n"

def srd(e, d, base_lo, base_hi, nbytes):
    e(f"s_mov_b32 s{d}, s{base_lo}")
    e(f"s_and_b32 s{d+1}, s{base_hi}, 0xffff")
    e(f"s_mov_b32 s{d+2}, {nbytes}")
    e(f"s_mov_b32 s{d+3}, 0x00020000")

def header(e, name):
    e(f".globl {name}\n.p2align 8\n.type {name},@function\n{name}:")

def kd(name, vgpr, sgpr=102):
    acc = (vgpr + 3) // 4 * 4
    return f""".section .rodata,"a"
.p2align 6
.amdhsa_kernel {name}
  .amdhsa_next_free_vgpr {vgpr}
  .amdhsa_next_free_sgpr {sgpr}
  .amdhsa_accum_offset {acc}
  .amdhsa_group_segment_fixed_size 0
  .amdhsa_kernarg_size 80
  .amdhsa_user_sgpr_count 2
  .amdhsa_user_sgpr_kernarg_segment_ptr 1
  .amdhsa_system_sgpr_workgroup_id_x 1
.end_amdhsa_kernel
"""

def gen_ln(e):
    header(e, "ln_kernel")
    e("""
    s_cmp_ge_u32 s2, 256
    s_cbranch_scc1 LN_END
    s_load_dwordx2 s[4:5], s[0:1], 0
    s_load_dwordx2 s[6:7], s[0:1], 72
    s_lshl_b32 s3, s2, 8
    v_add_u32 v1, s3, v0
    v_lshrrev_b32 v2, 5, v1
    v_and_b32 v3, 31, v1
    s_movk_i32 s20, 1152
    v_mul_lo_u32 v4, v2, s20
    v_lshl_add_u32 v4, v3, 2, v4
    s_waitcnt lgkmcnt(0)
    """)
    srd(e, 8, 4, 5, S_ * D_ * 2)
    srd(e, 12, 6, 7, WS_SIZE)
    for i in range(9):
        e(f"buffer_load_dword v{10+i}, v4, s[8:11], 0 offen offset:{128*i}")
    e(f"""
    v_mov_b32 v40, 0
    v_mov_b32 v41, 0
    v_mov_b32 v42, 0
    v_mov_b32 v43, 0
    v_lshlrev_b32 v5, 6, v1
    v_add_u32 v6, {WS_QP}, v5
    v_add_u32 v7, {WS_KP}, v5
    buffer_store_dword v40, v6, s[12:15], 0 offen offset:36
    buffer_store_dwordx2 v[40:41], v6, s[12:15], 0 offen offset:40
    buffer_store_dwordx4 v[40:43], v6, s[12:15], 0 offen offset:48
    buffer_store_dword v40, v7, s[12:15], 0 offen offset:36
    buffer_store_dwordx2 v[40:41], v7, s[12:15], 0 offen offset:40
    buffer_store_dwordx4 v[40:43], v7, s[12:15], 0 offen offset:48
    """)
    for rep in range(2):
        e(f"v_add_u32 v30, {rep*65536}, v1")
        magic = -(-(1 << 32) // 3584)
        e(f"""
        s_mov_b32 s21, {magic}
        v_mul_hi_u32 v31, v30, s21
        s_movk_i32 s21, 3584
        v_mul_lo_u32 v32, v31, s21
        v_sub_u32 v32, v30, v32
        v_lshrrev_b32 v33, 8, v32
        v_and_b32 v34, 255, v32
        v_add_u32 v33, 18, v33
        v_lshl_add_u32 v35, v31, 5, v33
        v_lshlrev_b32 v35, 12, v35
        v_lshl_add_u32 v35, v34, 4, v35
        v_add_u32 v35, {WS_VT}, v35
        v_cmp_eq_u32 vcc, 18, v33
        v_cmp_eq_u32 s[22:23], 22, v33
        s_or_b64 vcc, vcc, s[22:23]
        v_mov_b32 v36, 0x3f803f80
        s_nop 1
        v_cndmask_b32 v44, 0, v36, vcc
        v_mov_b32 v45, v44
        v_mov_b32 v46, v44
        v_mov_b32 v47, v44
        v_cmp_gt_u32 vcc, 114688, v30
        s_and_saveexec_b64 s[24:25], vcc
        s_cbranch_execz LN_SK{rep}
        buffer_store_dwordx4 v[44:47], v35, s[12:15], 0 offen
        LN_SK{rep}:
        s_or_b64 exec, exec, s[24:25]
        s_nop 2
        """)
    e("s_waitcnt vmcnt(0)")
    for i in range(9):
        e(f"v_lshlrev_b32 v{50+2*i}, 16, v{10+i}")
        e(f"v_and_b32 v{51+2*i}, 0xffff0000, v{10+i}")
    e("v_add_f32 v20, v50, v51")
    for i in range(2, 18):
        e(f"v_add_f32 v20, v20, v{50+i}")
    def red(v):
        for x in (1, 2, 4, 8, 16):
            e(f"ds_swizzle_b32 v21, v{v} offset:{(x<<10)|0x1f}")
            e("s_waitcnt lgkmcnt(0)")
            e(f"v_add_f32 v{v}, v{v}, v21")
    red(20)
    e(f"v_mul_f32 v20, {hex(f2u(1.0/576))}, v20")
    for i in range(18):
        e(f"v_sub_f32 v{50+i}, v{50+i}, v20")
    e("v_mul_f32 v22, v50, v50")
    for i in range(1, 18):
        e(f"v_fmac_f32 v22, v{50+i}, v{50+i}")
    red(22)
    e(f"v_mov_b32 v23, {hex(f2u(1e-5))}")
    e(f"v_fmac_f32 v23, {hex(f2u(1.0/576))}, v22")
    e("v_rsq_f32 v23, v23")
    e("s_nop 1")
    for i in range(18):
        e(f"v_mul_f32 v{50+i}, v{50+i}, v23")
    for i in range(9):
        e(f"v_cvt_pk_bf16_f32 v{10+i}, v{50+2*i}, v{51+2*i}")
    for i in range(9):
        e(f"buffer_store_dword v{10+i}, v4, s[12:15], 0 offen offset:{128*i}")
    e("LN_END:\ns_endpgm")

ACC = 0
def acc(p, t):
    b = ACC + p * 32 + t * 16
    return f"v[{b}:{b+15}]"

def gemm_dma(e, buf):
    sb = buf * 32768
    for i in range(4):
        e(f"s_add_u32 m0, s54, {sb + i*1024}")
        e("s_nop 0")
        e(f"buffer_load_dwordx4 v{96+i}, s[40:43], s52 offen lds")
    for p in range(2):
        for j in range(2):
            e(f"s_add_u32 m0, s55, {sb + p*8192 + j*1024}")
            e("s_nop 0")
            e(f"buffer_load_dwordx4 v{100+j}, s[{44+4*p}:{47+4*p}], s53 offen lds")

def gemm_reads(e, buf, ks):
    fs = 64 + (ks & 1) * 16
    sb = buf * 32768
    for p in range(2):
        for h2 in range(2):
            e(f"ds_read_b64_tr_b16 v[{fs+4*p+2*h2}:{fs+4*p+2*h2+1}], v106 offset:{sb + p*8192 + ks*2048 + h2*512}")
    for t in range(2):
        e(f"ds_read_b128 v[{fs+8+4*t}:{fs+11+4*t}], v{102+ks} offset:{sb + t*4096}")

def gemm_compute(e, buf):
    gemm_reads(e, buf, 0)
    for ks in range(4):
        if ks < 3:
            gemm_reads(e, buf, ks + 1)
            e("s_waitcnt lgkmcnt(6)")
        else:
            e("s_waitcnt lgkmcnt(0)")
        fs = 64 + (ks & 1) * 16
        for p in range(2):
            for t in range(2):
                e(f"v_mfma_f32_32x32x16_bf16 {acc(p,t)}, v[{fs+4*p}:{fs+4*p+3}], v[{fs+8+4*t}:{fs+11+4*t}], {acc(p,t)}")

def gemm_setup_common(e, m0_sreg):
    e("""
    v_and_b32 v107, 63, v0
    v_lshrrev_b32 v108, 6, v0
    s_nop 0
    v_readfirstlane_b32 s56, v108
    """)
    for i in range(64):
        e(f"v_mov_b32 v{i}, 0")
    e("""
    s_lshr_b32 s57, s56, 1
    s_and_b32 s58, s56, 1
    v_and_b32 v108, 31, v107
    v_lshrrev_b32 v109, 5, v107
    v_bfe_u32 v110, v107, 1, 3
    s_lshl_b32 s59, s57, 13
    v_lshlrev_b32 v111, 7, v108
    v_add_u32 v111, s59, v111
    """)
    for ks in range(4):
        e(f"v_or_b32 v112, {2*ks}, v109")
        e("v_xor_b32 v112, v112, v110")
        e(f"v_lshl_add_u32 v{102+ks}, v112, 4, v111")
    e("""
    v_bfe_u32 v108, v107, 2, 2
    v_lshl_add_u32 v108, v109, 3, v108
    v_lshlrev_b32 v108, 7, v108
    v_bfe_u32 v110, v107, 3, 1
    v_xor_b32 v110, s58, v110
    v_lshl_add_u32 v108, v110, 6, v108
    v_bfe_u32 v110, v107, 4, 1
    v_lshl_add_u32 v108, v110, 5, v108
    v_and_b32 v110, 3, v107
    v_lshl_add_u32 v108, v110, 3, v108
    v_add_u32 v106, 16384, v108
    s_lshl_b32 s54, s56, 12
    s_lshl_b32 s55, s56, 11
    s_add_u32 s55, s55, 16384
    """)

def gemm_setup_x(e, m0_sreg, stride_sreg):
    e(f"""
    s_lshl_b32 s59, s56, 5
    s_add_u32 s59, s59, s{m0_sreg}
    v_lshrrev_b32 v108, 3, v107
    v_add_u32 v108, s59, v108
    v_and_b32 v109, 7, v107
    v_lshrrev_b32 v110, 4, v107
    """)
    for i in range(4):
        e(f"v_add_u32 v111, {8*i}, v108")
        e(f"v_mul_lo_u32 v111, v111, s{stride_sreg}")
        e(f"v_add_u32 v112, {4*i}, v110")
        e("v_and_b32 v112, 7, v112")
        e("v_xor_b32 v112, v112, v109")
        e(f"v_lshl_add_u32 v{96+i}, v112, 4, v111")

def gemm_setup_w(e, ncol_sreg, stride_sreg):
    e(f"""
    s_lshl_b32 s59, s56, 4
    v_lshrrev_b32 v108, 3, v107
    v_add_u32 v108, s59, v108
    v_and_b32 v109, 7, v107
    v_bfe_u32 v110, v107, 4, 1
    v_lshlrev_b32 v110, 2, v110
    v_xor_b32 v109, v109, v110
    v_lshlrev_b32 v109, 4, v109
    s_lshl_b32 s59, s{ncol_sreg}, 1
    v_add_u32 v109, s59, v109
    """)
    for j in range(2):
        e(f"v_add_u32 v111, {8*j}, v108")
        e(f"v_mul_lo_u32 v111, v111, s{stride_sreg}")
        e(f"v_add_u32 v{100+j}, v111, v109")

def gemm_stage(e, s, nst, adv):
    buf = s & 1
    if s + 1 < nst:
        adv(e)
        gemm_dma(e, buf ^ 1)
        e("s_waitcnt vmcnt(8)")
    else:
        e("s_waitcnt vmcnt(0)")
    e("s_barrier")
    gemm_compute(e, buf)
    e("s_barrier")

NT1 = 14 + 72
def gen_gemm1(e):
    header(e, "gemm1_kernel")
    e(f"""
    s_cmp_ge_u32 s2, {16*NT1}
    s_cbranch_scc1 G1_END
    s_load_dwordx2 s[4:5], s[0:1], 8
    s_load_dwordx2 s[6:7], s[0:1], 32
    s_load_dwordx2 s[8:9], s[0:1], 40
    s_load_dwordx2 s[10:11], s[0:1], 72
    s_and_b32 s12, s2, 15
    s_lshr_b32 s13, s2, 4
    s_lshl_b32 s12, s12, 7
    """)
    gemm_setup_common(e, 12)
    e("s_waitcnt lgkmcnt(0)")
    srd(e, 40, 10, 11, S_ * D_ * 2)
    srd(e, 60, 10, 11, WS_SIZE)
    e(f"""
    s_movk_i32 s14, 1152
    s_cmp_ge_u32 s13, 14
    s_cbranch_scc1 G1_FFN_SETUP
    """)
    srd(e, 44, 4, 5, D_ * 1728 * 2)
    e(f"""
    s_add_u32 s48, s4, 128
    s_addc_u32 s49, s5, 0
    s_and_b32 s49, s49, 0xffff
    s_mov_b32 s50, {D_*1728*2-128}
    s_mov_b32 s51, 0x00020000
    s_lshl_b32 s15, s13, 7
    s_movk_i32 s16, 3456
    s_branch G1_SETUP_DONE
    G1_FFN_SETUP:
    """)
    srd(e, 44, 6, 7, D_ * F_ * 2)
    srd(e, 48, 8, 9, D_ * F_ * 2)
    e(f"""
    s_sub_u32 s15, s13, 14
    s_lshl_b32 s15, s15, 6
    s_movk_i32 s16, 9216
    G1_SETUP_DONE:
    s_lshl_b32 s17, s16, 6
    """)
    gemm_setup_x(e, 12, 14)
    gemm_setup_w(e, 15, 16)
    e("s_mov_b32 s52, 0\ns_mov_b32 s53, 0\ns_nop 4")
    gemm_dma(e, 0)
    def adv(e):
        e("s_add_u32 s52, s52, 128")
        e("s_add_u32 s53, s53, s17")
    for s in range(9):
        gemm_stage(e, s, 9, adv)
    e("s_nop 15")
    e("""
    v_and_b32 v108, 31, v107
    v_lshrrev_b32 v109, 5, v107
    s_lshl_b32 s59, s57, 6
    s_add_u32 s59, s59, s12
    v_add_u32 v108, s59, v108
    s_lshl_b32 s59, s58, 5
    s_add_u32 s59, s59, s15
    v_lshl_add_u32 v109, v109, 2, s59
    s_cmp_ge_u32 s13, 14
    s_cbranch_scc1 G1_FFN_EPI
    """)
    e(f"""
    v_and_b32 v110, 3, v108
    v_bfe_u32 v111, v108, 2, 1
    v_bfe_u32 v112, v108, 3, 1
    v_lshl_or_b32 v110, v111, 3, v110
    v_lshl_or_b32 v110, v112, 2, v110
    v_and_b32 v111, 0xfffffff0, v108
    v_or_b32 v110, v110, v111
    s_mov_b32 s20, {hex(f2u(QSCALE))}
    s_movk_i32 s21, 3641
    s_movk_i32 s26, 1152
    s_movk_i32 s27, 1728
    """)
    for p in range(2):
        for q in range(4):
            for j in range(4):
                noff = p * 64 + 8 * q + j
                e(f"v_add_u32 v112, {noff}, v109")
                e("v_cmp_le_u32 vcc, 576, v112")
                e("v_cmp_le_u32 s[22:23], s26, v112")
                e("s_nop 1")
                e("v_cndmask_b32 v113, 0, 1, vcc")
                e("v_cndmask_b32 v114, 0, 1, s[22:23]")
                e("v_add_u32 v113, v113, v114")
                e("v_mul_u32_u24 v114, 576, v113")
                e("v_sub_u32 v114, v112, v114")
                e("v_mul_u32_u24 v115, v114, s21")
                e("v_lshrrev_b32 v115, 16, v115")
                e("v_mul_u32_u24 v116, 18, v115")
                e("v_sub_u32 v116, v114, v116")
                e("v_lshl_add_u32 v117, v115, 11, v108")
                e("v_lshlrev_b32 v117, 6, v117")
                e("v_lshl_add_u32 v117, v116, 1, v117")
                e("v_lshl_add_u32 v117, v113, 22, v117")
                e(f"v_add_u32 v117, {WS_QP}, v117")
                e("v_lshl_add_u32 v118, v115, 5, v116")
                e("v_lshl_add_u32 v118, v118, 11, v110")
                e("v_lshlrev_b32 v118, 1, v118")
                e(f"v_add_u32 v118, {WS_VT}, v118")
                e("v_cndmask_b32 v117, v117, v118, s[22:23]")
                e("v_cmp_le_u32 s[24:25], s27, v112")
                e("v_mov_b32 v119, 0x7ffffff0")
                e("s_nop 0")
                e("v_cndmask_b32 v117, v117, v119, s[24:25]")
                e("v_mov_b32 v119, 2048")
                e("v_cndmask_b32 v119, v119, 64, s[22:23]")
                e("v_add_u32 v118, v117, v119")
                for t in range(2):
                    r = ACC + p * 32 + t * 16 + 4 * q + j
                    e(f"v_mul_f32 v120, s20, v{r}")
                    e(f"v_cndmask_b32 v120, v120, v{r}, vcc")
                    e("v_cvt_pk_bf16_f32 v120, v120, v120")
                    e(f"buffer_store_short v120, v{117+t}, s[60:63], 0 offen")
    e("s_branch G1_END")
    e("G1_FFN_EPI:")
    e(f"""
    s_movk_i32 s20, 9216
    v_mul_lo_u32 v110, v108, s20
    v_lshl_add_u32 v110, v109, 1, v110
    v_add_u32 v110, {WS_H}, v110
    s_mov_b32 s20, {hex(f2u(-LOG2E))}
    """)
    for t in range(2):
        for q in range(4):
            for j in range(4):
                g = ACC + 0 * 32 + t * 16 + 4 * q + j
                u = ACC + 1 * 32 + t * 16 + 4 * q + j
                e(f"v_mul_f32 v112, s20, v{g}")
                e("v_exp_f32 v112, v112")
                e(f"v_mul_f32 v{114+j}, v{g}, v{u}")
                e("v_add_f32 v112, 1.0, v112")
                e("v_rcp_f32 v112, v112")
                e("s_nop 0")
                e(f"v_mul_f32 v{114+j}, v{114+j}, v112")
            e("v_cvt_pk_bf16_f32 v112, v114, v115")
            e("v_cvt_pk_bf16_f32 v113, v116, v117")
            e(f"buffer_store_dwordx2 v[112:113], v110, s[60:63], 0 offen offset:{16*q}")
            e("s_nop 1")
        if t == 0:
            e(f"v_add_u32 v110, {32*9216}, v110")
    e("G1_END:\ns_endpgm")

def gen_gemm2(e):
    header(e, "gemm2_kernel")
    e(f"""
    s_cmp_ge_u32 s2, 80
    s_cbranch_scc1 G2_END
    s_load_dwordx2 s[4:5], s[0:1], 16
    s_load_dwordx2 s[6:7], s[0:1], 48
    s_load_dwordx2 s[8:9], s[0:1], 0
    s_load_dwordx2 s[10:11], s[0:1], 72
    s_load_dwordx2 s[18:19], s[0:1], 56
    s_and_b32 s12, s2, 15
    s_lshr_b32 s13, s2, 4
    s_lshl_b32 s12, s12, 7
    s_lshl_b32 s15, s13, 7
    """)
    gemm_setup_common(e, 12)
    e("s_waitcnt lgkmcnt(0)")
    e(f"s_add_u32 s40, s10, {WS_O}\ns_addc_u32 s41, s11, 0\ns_and_b32 s41, s41, 0xffff")
    e(f"s_mov_b32 s42, {S_*D_*2}\ns_mov_b32 s43, 0x00020000")
    srd(e, 44, 4, 5, D_ * D_ * 2)
    e(f"""
    s_add_u32 s48, s4, 128
    s_addc_u32 s49, s5, 0
    s_and_b32 s49, s49, 0xffff
    s_mov_b32 s50, {D_*D_*2-128}
    s_mov_b32 s51, 0x00020000
    s_movk_i32 s14, 1152
    s_movk_i32 s16, 1152
    s_lshl_b32 s17, s16, 6
    """)
    gemm_setup_x(e, 12, 14)
    gemm_setup_w(e, 15, 16)
    e("s_mov_b32 s52, 0\ns_mov_b32 s53, 0\ns_nop 4")
    gemm_dma(e, 0)
    def adv(e):
        e("s_add_u32 s52, s52, 128")
        e("s_add_u32 s53, s53, s17")
    def adv_switch(e):
        e(f"s_add_u32 s40, s10, {WS_H}\ns_addc_u32 s41, s11, 0\ns_and_b32 s41, s41, 0xffff")
        e(f"s_mov_b32 s42, {S_*F_*2}")
        srd(e, 44, 6, 7, F_ * D_ * 2)
        e(f"""
        s_add_u32 s48, s6, 128
        s_addc_u32 s49, s7, 0
        s_and_b32 s49, s49, 0xffff
        s_mov_b32 s50, {F_*D_*2-128}
        s_movk_i32 s14, 9216
        """)
        gemm_setup_x(e, 12, 14)
        e("s_mov_b32 s52, 0\ns_mov_b32 s53, 0\ns_nop 4")
    NST = 81
    for s in range(8):
        gemm_stage(e, s, NST, adv)
    gemm_stage(e, 8, NST, adv_switch)
    e("s_mov_b32 s30, 0\nG2_LOOP:")
    gemm_stage(e, 9, NST, adv)
    gemm_stage(e, 10, NST, adv)
    e("s_add_u32 s30, s30, 1\ns_cmp_lt_u32 s30, 35\ns_cbranch_scc1 G2_LOOP")
    gemm_stage(e, 79, NST, adv)
    gemm_stage(e, 80, NST, adv)
    e("s_nop 15")
    srd(e, 60, 8, 9, S_ * D_ * 2)
    srd(e, 64, 18, 19, S_ * D_ * 2)
    e("""
    v_and_b32 v108, 31, v107
    v_lshrrev_b32 v109, 5, v107
    s_lshl_b32 s59, s57, 6
    s_add_u32 s59, s59, s12
    v_add_u32 v108, s59, v108
    s_lshl_b32 s59, s58, 5
    s_add_u32 s59, s59, s15
    v_lshl_add_u32 v109, v109, 2, s59
    s_movk_i32 s20, 1152
    v_mul_lo_u32 v110, v108, s20
    v_lshl_add_u32 v110, v109, 1, v110
    """)
    for p in range(2):
        if p == 1:
            e("s_cmp_ge_u32 s13, 4\ns_cbranch_scc1 G2_END")
        for t in range(2):
            for q in range(4):
                e(f"buffer_load_dwordx2 v[{64+8*t+2*q}:{65+8*t+2*q}], v110, s[60:63], 0 offen offset:{p*128+16*q}" if t == 0 else "")
            if t == 0:
                e(f"v_add_u32 v111, {32*1152}, v110")
                for q in range(4):
                    e(f"buffer_load_dwordx2 v[{72+2*q}:{73+2*q}], v111, s[60:63], 0 offen offset:{p*128+16*q}")
        e("s_waitcnt vmcnt(0)")
        for t in range(2):
            for q in range(4):
                xr = 64 + 8 * t + 2 * q
                for j in range(4):
                    r = ACC + p * 32 + t * 16 + 4 * q + j
                    src = xr + j // 2
                    if j % 2 == 0:
                        e(f"v_lshlrev_b32 v112, 16, v{src}")
                    else:
                        e(f"v_and_b32 v112, 0xffff0000, v{src}")
                    e(f"v_add_f32 v{114+j}, v{r}, v112")
                e("v_cvt_pk_bf16_f32 v112, v114, v115")
                e("v_cvt_pk_bf16_f32 v113, v116, v117")
                e(f"buffer_store_dwordx2 v[112:113], v{110+t}, s[64:67], 0 offen offset:{p*128+16*q}")
                e("s_nop 1")
    e("G2_END:\ns_endpgm")

def gen_attn(e):
    header(e, "attn_kernel")
    e(f"""
    s_cmp_ge_u32 s2, 256
    s_cbranch_scc1 AT_END
    s_load_dwordx2 s[10:11], s[0:1], 72
    s_and_b32 s4, s2, 7
    s_lshl_b32 s4, s4, 2
    s_bfe_u32 s5, s2, 0x20003
    s_add_u32 s4, s4, s5          ; head
    s_lshr_b32 s5, s2, 5          ; qblock
    v_and_b32 v107, 63, v0
    v_lshrrev_b32 v108, 6, v0
    s_nop 0
    v_readfirstlane_b32 s56, v108
    v_and_b32 v108, 31, v107      ; l32
    v_lshrrev_b32 v109, 5, v107   ; h
    s_waitcnt lgkmcnt(0)
    """)
    srd(e, 40, 10, 11, WS_SIZE)
    e(f"""
    s_lshl_b32 s6, s4, 11
    s_lshl_b32 s7, s5, 8
    s_add_u32 s6, s6, s7
    s_lshl_b32 s7, s56, 5
    s_add_u32 s6, s6, s7          ; head*2048 + q0
    v_add_u32 v110, s6, v108
    v_lshlrev_b32 v110, 6, v110
    v_lshl_add_u32 v110, v109, 4, v110
    v_add_u32 v110, {WS_QP}, v110
    buffer_load_dwordx4 v[64:67], v110, s[40:43], 0 offen
    buffer_load_dwordx4 v[68:71], v110, s[40:43], 0 offen offset:32
    """)
    e(f"""
    s_lshl_b32 s7, s4, 17
    s_add_u32 s7, s7, {WS_KP}
    s_lshl_b32 s8, s56, 11
    s_add_u32 s7, s7, s8
    v_lshrrev_b32 v111, 2, v107
    v_lshlrev_b32 v111, 6, v111
    v_and_b32 v112, 3, v107
    v_bfe_u32 v113, v107, 4, 2
    v_xor_b32 v112, v112, v113
    v_lshl_add_u32 v111, v112, 4, v111
    v_add_u32 v96, s7, v111
    v_add_u32 v97, 1024, v96
    s_lshl_b32 s7, s4, 17
    s_add_u32 s7, s7, {WS_VT}
    s_lshl_b32 s8, s56, 2
    v_add_u32 v111, s8, v109
    """)
    for j in range(2):
        e(f"""
        v_add_u32 v112, {2*j}, v111
        v_and_b32 v113, 15, v112
        v_xor_b32 v113, v113, v108
        v_lshlrev_b32 v112, 12, v112
        v_lshl_add_u32 v112, v113, 4, v112
        v_add_u32 v{98+j}, s7, v112
        """)
    e("""
    v_bfe_u32 v111, v107, 2, 2
    v_lshlrev_b32 v112, 6, v108
    """)
    for ks in range(2):
        e(f"v_or_b32 v113, {2*ks}, v109")
        e("v_xor_b32 v113, v113, v111")
        e(f"v_lshl_add_u32 v{100+ks}, v113, 4, v112")
    e("v_and_b32 v111, 15, v107\nv_lshlrev_b32 v112, 9, v108\nv_add_u32 v112, 16384, v112")
    for c in range(16):
        e(f"v_or_b32 v113, {2*c}, v109")
        e("v_xor_b32 v113, v113, v111")
        e(f"v_lshl_add_u32 v{112+1+c+8}, v113, 4, v112")
    VA = 121
    e("s_lshl_b32 s54, s56, 11\ns_mov_b32 s52, 0\ns_mov_b32 s53, 0")
    for i in range(16):
        e(f"v_mov_b32 v{i}, 0")
    e("v_mov_b32 v102, 0xff800000")
    def dma(buf):
        sb = buf * 32768
        for j in range(2):
            e(f"s_add_u32 m0, s54, {sb + j*1024}\ns_nop 0")
            e(f"buffer_load_dwordx4 v{96+j}, s[40:43], s52 offen lds")
        for j in range(2):
            e(f"s_add_u32 m0, s54, {sb + 16384 + j*1024}\ns_nop 0")
            e(f"buffer_load_dwordx4 v{98+j}, s[40:43], s53 offen lds")
    dma(0)
    e("s_mov_b32 s30, 0\nAT_LOOP:")
    for buf in range(2):
        sb = buf * 32768
        e("s_add_u32 s52, s52, 16384\ns_add_u32 s53, s53, 512")
        dma(buf ^ 1)
        e("s_waitcnt vmcnt(4)\ns_barrier")
        for tile in range(8):
            for ks in range(2):
                e(f"ds_read_b128 v[{72+4*ks}:{75+4*ks}], v{100+ks} offset:{sb + tile*2048}")
            for c in range(2):
                e(f"ds_read_b128 v[{80+4*c}:{83+4*c}], v{VA+2*tile+c} offset:{sb}")
            e("s_waitcnt lgkmcnt(2)")
            e("v_mfma_f32_32x32x16_bf16 v[16:31], v[72:75], v[64:67], 0")
            e("v_mfma_f32_32x32x16_bf16 v[16:31], v[76:79], v[68:71], v[16:31]")
            e("s_nop 15")
            e("v_max3_f32 v103, v16, v17, v18")
            for i in range(19, 31, 2):
                e(f"v_max3_f32 v103, v103, v{i}, v{i+1}")
            e("v_max_f32 v103, v103, v31")
            e("v_mov_b32 v104, v103\ns_nop 1")
            e("v_permlane32_swap_b32 v103, v104")
            e("s_nop 1")
            e("v_max3_f32 v103, v103, v104, v102")
            e("v_sub_f32 v104, v102, v103")
            e("v_exp_f32 v104, v104")
            e("v_mov_b32 v102, v103")
            for i in range(16):
                e(f"v_sub_f32 v{16+i}, v{16+i}, v103")
            for i in range(16):
                e(f"v_exp_f32 v{16+i}, v{16+i}")
            for i in range(16):
                e(f"v_mul_f32 v{i}, v{i}, v104")
            for i in range(8):
                e(f"v_cvt_pk_bf16_f32 v{88+i}, v{16+2*i}, v{17+2*i}")
            e("s_waitcnt lgkmcnt(0)\ns_nop 1")
            e("v_mfma_f32_32x32x16_bf16 v[0:15], v[80:83], v[88:91], v[0:15]")
            e("v_mfma_f32_32x32x16_bf16 v[0:15], v[84:87], v[92:95], v[0:15]")
        e("s_barrier")
    e("s_add_u32 s30, s30, 1\ns_cmp_lt_u32 s30, 4\ns_cbranch_scc1 AT_LOOP")
    e("s_nop 15")
    e(f"""
    v_rcp_f32 v103, v10
    s_lshl_b32 s6, s5, 8
    s_lshl_b32 s7, s56, 5
    s_add_u32 s6, s6, s7
    v_add_u32 v110, s6, v108
    s_movk_i32 s8, 1152
    v_mul_lo_u32 v110, v110, s8
    s_mul_i32 s8, s4, 36
    s_add_u32 s8, s8, {WS_O}
    v_add_u32 v110, s8, v110
    v_lshl_add_u32 v110, v109, 3, v110
    """)
    for i in range(10):
        e(f"v_mul_f32 v{i}, v{i}, v103")
    for q in range(2):
        e(f"v_cvt_pk_bf16_f32 v{104+2*q}, v{4*q}, v{4*q+1}")
        e(f"v_cvt_pk_bf16_f32 v{105+2*q}, v{4*q+2}, v{4*q+3}")
        e(f"buffer_store_dword v{104+2*q}, v110, s[40:43], 0 offen offset:{16*q}")
        e(f"buffer_store_dword v{105+2*q}, v110, s[40:43], 0 offen offset:{16*q+4}")
    e("""
    v_cvt_pk_bf16_f32 v111, v8, v9
    v_cmp_eq_u32 vcc, 0, v109
    s_and_saveexec_b64 s[24:25], vcc
    s_cbranch_execz AT_SK
    buffer_store_dword v111, v110, s[40:43], 0 offen offset:32
    AT_SK:
    s_or_b64 exec, exec, s[24:25]
    AT_END:
    s_endpgm
    """)

def main():
    e = E()
    hdr = open("parallel_sum__mha_block__glu_gated_swiglu__prompt.s.ref").read().split("; Override")[0]
    txt = hdr
    txt += "; @launch kernel=ln_kernel grid=(256,1,1) block=(256,1,1) lds=0\n"
    txt += f"; @launch kernel=gemm1_kernel grid=({16*NT1},1,1) block=(256,1,1) lds=65536\n"
    txt += "; @launch kernel=attn_kernel grid=(256,1,1) block=(512,1,1) lds=65536\n"
    txt += "; @launch kernel=gemm2_kernel grid=(80,1,1) block=(256,1,1) lds=65536\n"
    txt += '.amdgcn_target "amdgcn-amd-amdhsa--gfx950"\n.text\n'
    gen_ln(e); gen_gemm1(e); gen_attn(e); gen_gemm2(e)
    txt += e.text()
    txt += kd("ln_kernel", 72) + kd("gemm1_kernel", 128) + kd("attn_kernel", 140) + kd("gemm2_kernel", 128)
    open(OUT, "w").write(txt)
    print("wrote", len(txt))
main()
```

```python
import sys
OUT = "parallel_sum__mha_block__glu_gated_swiglu__prompt.s" if len(sys.argv)<2 else "var_"+sys.argv[1]+".s"

MB = 1 << 20
WS_XN = 0
WS_QP = 4 * MB
WS_KP = 8 * MB
WS_VT = 12 * MB
WS_H = 16 * MB
WS_O = 40 * MB
WS_SIZE = 268435456

S_, D_, F_, H_ = 2048, 576, 4608, 32
LOG2E = 1.4426950408889634
QSCALE = LOG2E * (18 ** -0.5)

import struct
def f2u(x):
    return struct.unpack("<I", struct.pack("<f", x))[0]

class E:
    def __init__(self):
        self.l = []
    def __call__(self, s):
        for ln in s.strip("\n").split("\n"):
            self.l.append("  " + ln.strip() if not ln.strip().endswith(":") else ln.strip())
    def text(self):
        return "\n".join(self.l) + "\n"

def srd(e, d, base_lo, base_hi, nbytes):
    e(f"s_mov_b32 s{d}, s{base_lo}")
    e(f"s_and_b32 s{d+1}, s{base_hi}, 0xffff")
    e(f"s_mov_b32 s{d+2}, {nbytes}")
    e(f"s_mov_b32 s{d+3}, 0x00020000")

def header(e, name):
    e(f".globl {name}\n.p2align 8\n.type {name},@function\n{name}:")

def kd(name, vgpr, sgpr=102):
    acc = (vgpr + 3) // 4 * 4
    return f""".section .rodata,"a"
.p2align 6
.amdhsa_kernel {name}
  .amdhsa_next_free_vgpr {vgpr}
  .amdhsa_next_free_sgpr {sgpr}
  .amdhsa_accum_offset {acc}
  .amdhsa_group_segment_fixed_size 0
  .amdhsa_kernarg_size 80
  .amdhsa_user_sgpr_count 2
  .amdhsa_user_sgpr_kernarg_segment_ptr 1
  .amdhsa_system_sgpr_workgroup_id_x 1
.end_amdhsa_kernel
"""

def gen_ln(e):
    header(e, "ln_kernel")
    e("""
    s_cmp_ge_u32 s2, 256
    s_cbranch_scc1 LN_END
    s_load_dwordx2 s[4:5], s[0:1], 0
    s_load_dwordx2 s[6:7], s[0:1], 72
    s_lshl_b32 s3, s2, 8
    v_add_u32 v1, s3, v0
    v_lshrrev_b32 v2, 5, v1
    v_and_b32 v3, 31, v1
    s_movk_i32 s20, 1152
    v_mul_lo_u32 v4, v2, s20
    v_lshl_add_u32 v4, v3, 2, v4
    s_waitcnt lgkmcnt(0)
    """)
    srd(e, 8, 4, 5, S_ * D_ * 2)
    srd(e, 12, 6, 7, WS_SIZE)
    for i in range(9):
        e(f"buffer_load_dword v{10+i}, v4, s[8:11], 0 offen offset:{128*i}")
    e(f"""
    v_mov_b32 v40, 0
    v_mov_b32 v41, 0
    v_mov_b32 v42, 0
    v_mov_b32 v43, 0
    v_lshlrev_b32 v5, 6, v1
    v_add_u32 v6, {WS_QP}, v5
    v_add_u32 v7, {WS_KP}, v5
    buffer_store_dword v40, v6, s[12:15], 0 offen offset:36
    buffer_store_dwordx2 v[40:41], v6, s[12:15], 0 offen offset:40
    buffer_store_dwordx4 v[40:43], v6, s[12:15], 0 offen offset:48
    buffer_store_dword v40, v7, s[12:15], 0 offen offset:36
    buffer_store_dwordx2 v[40:41], v7, s[12:15], 0 offen offset:40
    buffer_store_dwordx4 v[40:43], v7, s[12:15], 0 offen offset:48
    """)
    for rep in range(2):
        e(f"v_add_u32 v30, {rep*65536}, v1")
        magic = -(-(1 << 32) // 3584)
        e(f"""
        s_mov_b32 s21, {magic}
        v_mul_hi_u32 v31, v30, s21
        s_movk_i32 s21, 3584
        v_mul_lo_u32 v32, v31, s21
        v_sub_u32 v32, v30, v32
        v_lshrrev_b32 v33, 8, v32
        v_and_b32 v34, 255, v32
        v_add_u32 v33, 18, v33
        v_lshl_add_u32 v35, v31, 5, v33
        v_lshlrev_b32 v35, 12, v35
        v_lshl_add_u32 v35, v34, 4, v35
        v_add_u32 v35, {WS_VT}, v35
        v_cmp_eq_u32 vcc, 18, v33
        v_cmp_eq_u32 s[22:23], 22, v33
        s_or_b64 vcc, vcc, s[22:23]
        v_mov_b32 v36, 0x3f803f80
        s_nop 1
        v_cndmask_b32 v44, 0, v36, vcc
        v_mov_b32 v45, v44
        v_mov_b32 v46, v44
        v_mov_b32 v47, v44
        v_cmp_gt_u32 vcc, 114688, v30
        s_and_saveexec_b64 s[24:25], vcc
        s_cbranch_execz LN_SK{rep}
        buffer_store_dwordx4 v[44:47], v35, s[12:15], 0 offen
        LN_SK{rep}:
        s_or_b64 exec, exec, s[24:25]
        s_nop 2
        """)
    e("s_waitcnt vmcnt(0)")
    for i in range(9):
        e(f"v_lshlrev_b32 v{50+2*i}, 16, v{10+i}")
        e(f"v_and_b32 v{51+2*i}, 0xffff0000, v{10+i}")
    e("v_add_f32 v20, v50, v51")
    for i in range(2, 18):
        e(f"v_add_f32 v20, v20, v{50+i}")
    def red(v):
        for x in (1, 2, 4, 8, 16):
            e(f"ds_swizzle_b32 v21, v{v} offset:{(x<<10)|0x1f}")
            e("s_waitcnt lgkmcnt(0)")
            e(f"v_add_f32 v{v}, v{v}, v21")
    red(20)
    e(f"v_mul_f32 v20, {hex(f2u(1.0/576))}, v20")
    for i in range(18):
        e(f"v_sub_f32 v{50+i}, v{50+i}, v20")
    e("v_mul_f32 v22, v50, v50")
    for i in range(1, 18):
        e(f"v_fmac_f32 v22, v{50+i}, v{50+i}")
    red(22)
    e(f"v_mov_b32 v23, {hex(f2u(1e-5))}")
    e(f"v_fmac_f32 v23, {hex(f2u(1.0/576))}, v22")
    e("v_rsq_f32 v23, v23")
    e("s_nop 1")
    for i in range(18):
        e(f"v_mul_f32 v{50+i}, v{50+i}, v23")
    for i in range(9):
        e(f"v_cvt_pk_bf16_f32 v{10+i}, v{50+2*i}, v{51+2*i}")
    for i in range(9):
        e(f"buffer_store_dword v{10+i}, v4, s[12:15], 0 offen offset:{128*i}")
    e("LN_END:\ns_endpgm")

ACC = 0
def acc(p, t):
    b = ACC + p * 32 + t * 16
    return f"v[{b}:{b+15}]"

def gemm_dma(e, buf):
    if "NODMA" in sys.argv: return
    sb = buf * 32768
    for i in range(4):
        e(f"s_add_u32 m0, s54, {sb + i*1024}")
        e("s_nop 0")
        e(f"buffer_load_dwordx4 v{96+i}, s[40:43], s52 offen lds")
    for p in range(2):
        for j in range(2):
            e(f"s_add_u32 m0, s55, {sb + p*8192 + j*1024}")
            e("s_nop 0")
            e(f"buffer_load_dwordx4 v{100+j}, s[{44+4*p}:{47+4*p}], s53 offen lds")

def gemm_reads(e, buf, ks):
    if "NORD" in sys.argv: return
    fs = 64 + (ks & 1) * 16
    sb = buf * 32768
    for p in range(2):
        for h2 in range(2):
            e(f"ds_read_b64_tr_b16 v[{fs+4*p+2*h2}:{fs+4*p+2*h2+1}], v106 offset:{sb + p*8192 + ks*2048 + h2*512}")
    for t in range(2):
        e(f"ds_read_b128 v[{fs+8+4*t}:{fs+11+4*t}], v{102+ks} offset:{sb + t*4096}")

SWAP = [False]
def gemm_compute(e, buf):
    gemm_reads(e, buf, 0)
    for ks in range(4):
        if ks < 3:
            gemm_reads(e, buf, ks + 1)
            e("s_waitcnt lgkmcnt(6)")
        else:
            e("s_waitcnt lgkmcnt(0)")
        fs = 64 + (ks & 1) * 16
        for p in range(2):
            for t in range(2):
                wfr = f"v[{fs+4*p}:{fs+4*p+3}]"; xfr = f"v[{fs+8+4*t}:{fs+11+4*t}]"
                if SWAP[0]: wfr, xfr = xfr, wfr
                if "NOMF" not in sys.argv: e(f"v_mfma_f32_32x32x16_bf16 {acc(p,t)}, {wfr}, {xfr}, {acc(p,t)}")

def gemm_setup_common(e, m0_sreg):
    e("""
    v_and_b32 v107, 63, v0
    v_lshrrev_b32 v108, 6, v0
    s_nop 0
    v_readfirstlane_b32 s56, v108
    """)
    for i in range(64):
        e(f"v_mov_b32 v{i}, 0")
    e("""
    s_lshr_b32 s57, s56, 1
    s_and_b32 s58, s56, 1
    v_and_b32 v108, 31, v107
    v_lshrrev_b32 v109, 5, v107
    v_bfe_u32 v110, v107, 1, 3
    s_lshl_b32 s59, s57, 13
    v_lshlrev_b32 v111, 7, v108
    v_add_u32 v111, s59, v111
    """)
    for ks in range(4):
        e(f"v_or_b32 v112, {2*ks}, v109")
        e("v_xor_b32 v112, v112, v110")
        e(f"v_lshl_add_u32 v{102+ks}, v112, 4, v111")
    e("""
    v_bfe_u32 v108, v107, 2, 2
    v_lshl_add_u32 v108, v109, 3, v108
    v_lshlrev_b32 v108, 7, v108
    v_bfe_u32 v110, v107, 3, 1
    v_xor_b32 v110, s58, v110
    v_lshl_add_u32 v108, v110, 6, v108
    v_bfe_u32 v110, v107, 4, 1
    v_lshl_add_u32 v108, v110, 5, v108
    v_and_b32 v110, 3, v107
    v_lshl_add_u32 v108, v110, 3, v108
    v_add_u32 v106, 16384, v108
    s_lshl_b32 s54, s56, 12
    s_lshl_b32 s55, s56, 11
    s_add_u32 s55, s55, 16384
    """)

def gemm_setup_x(e, m0_sreg, stride_sreg):
    e(f"""
    s_lshl_b32 s59, s56, 5
    s_add_u32 s59, s59, s{m0_sreg}
    v_lshrrev_b32 v108, 3, v107
    v_add_u32 v108, s59, v108
    v_and_b32 v109, 7, v107
    v_lshrrev_b32 v110, 4, v107
    """)
    for i in range(4):
        e(f"v_add_u32 v111, {8*i}, v108")
        e(f"v_mul_lo_u32 v111, v111, s{stride_sreg}")
        e(f"v_add_u32 v112, {4*i}, v110")
        e("v_and_b32 v112, 7, v112")
        e("v_xor_b32 v112, v112, v109")
        e(f"v_lshl_add_u32 v{96+i}, v112, 4, v111")

def gemm_setup_w(e, ncol_sreg, stride_sreg):
    e(f"""
    s_lshl_b32 s59, s56, 4
    v_lshrrev_b32 v108, 3, v107
    v_add_u32 v108, s59, v108
    v_and_b32 v109, 7, v107
    v_bfe_u32 v110, v107, 4, 1
    v_lshlrev_b32 v110, 2, v110
    v_xor_b32 v109, v109, v110
    v_lshlrev_b32 v109, 4, v109
    s_lshl_b32 s59, s{ncol_sreg}, 1
    v_add_u32 v109, s59, v109
    """)
    for j in range(2):
        e(f"v_add_u32 v111, {8*j}, v108")
        e(f"v_mul_lo_u32 v111, v111, s{stride_sreg}")
        e(f"v_add_u32 v{100+j}, v111, v109")

def gemm_stage(e, s, nst, adv):
    buf = s & 1
    if s + 1 < nst:
        adv(e)
        gemm_dma(e, buf ^ 1)
        e("s_waitcnt vmcnt(8)")
    else:
        e("s_waitcnt vmcnt(0)")
    e("s_barrier")
    gemm_compute(e, buf)
    e("s_barrier")

NT1 = 14 + 72
def gen_gemm1(e):
    header(e, "gemm1_kernel")
    e(f"""
    s_cmp_ge_u32 s2, 1408
    s_cbranch_scc1 G1_END
    s_load_dwordx2 s[4:5], s[0:1], 8
    s_load_dwordx2 s[6:7], s[0:1], 32
    s_load_dwordx2 s[8:9], s[0:1], 40
    s_load_dwordx2 s[10:11], s[0:1], 72
    s_bfe_u32 s12, s2, 0x40003
    s_lshr_b32 s13, s2, 7
    s_lshl_b32 s13, s13, 3
    s_and_b32 s14, s2, 7
    s_add_u32 s13, s13, s14
    s_lshl_b32 s12, s12, 7
    s_cmp_ge_u32 s13, {NT1}
    s_cbranch_scc1 G1_END
    """)
    gemm_setup_common(e, 12)
    e("s_waitcnt lgkmcnt(0)")
    srd(e, 40, 10, 11, S_ * D_ * 2)
    srd(e, 60, 10, 11, WS_SIZE)
    e(f"""
    s_movk_i32 s14, 1152
    s_cmp_ge_u32 s13, 14
    s_cbranch_scc1 G1_FFN_SETUP
    """)
    srd(e, 44, 4, 5, D_ * 1728 * 2)
    e(f"""
    s_add_u32 s48, s4, 128
    s_addc_u32 s49, s5, 0
    s_and_b32 s49, s49, 0xffff
    s_mov_b32 s50, {D_*1728*2-128}
    s_mov_b32 s51, 0x00020000
    s_lshl_b32 s15, s13, 7
    s_movk_i32 s16, 3456
    s_branch G1_SETUP_DONE
    G1_FFN_SETUP:
    """)
    srd(e, 44, 6, 7, D_ * F_ * 2)
    srd(e, 48, 8, 9, D_ * F_ * 2)
    e(f"""
    s_sub_u32 s15, s13, 14
    s_lshl_b32 s15, s15, 6
    s_movk_i32 s16, 9216
    G1_SETUP_DONE:
    s_lshl_b32 s17, s16, 6
    """)
    gemm_setup_x(e, 12, 14)
    gemm_setup_w(e, 15, 16)
    e("s_mov_b32 s52, 0\ns_mov_b32 s53, 0\ns_nop 4")
    gemm_dma(e, 0)
    def adv(e):
        e("s_add_u32 s52, s52, 128")
        e("s_add_u32 s53, s53, s17")
    e("s_cmp_lt_u32 s13, 9\ns_cbranch_scc1 G1_MAIN\ns_cmp_ge_u32 s13, 14\ns_cbranch_scc1 G1_MAIN")
    SWAP[0] = True
    for s in range(9):
        gemm_stage(e, s, 9, adv)
    SWAP[0] = False
    e("s_nop 15")
    e(f"""
    v_and_b32 v108, 31, v107
    v_lshrrev_b32 v109, 5, v107
    s_lshl_b32 s59, s58, 5
    s_add_u32 s59, s59, s15
    s_sub_u32 s59, s59, 1152
    v_add_u32 v108, s59, v108
    s_lshl_b32 s59, s57, 6
    s_add_u32 s59, s59, s12
    v_lshl_add_u32 v109, v109, 3, s59
    s_movk_i32 s21, 3641
    """)
    for p in range(2):
        if p == 1:
            e("s_cmp_ge_u32 s13, 13\ns_cbranch_scc1 G1_END")
        e(f"""
        v_add_u32 v112, {64*p}, v108
        v_mul_u32_u24 v115, v112, s21
        v_lshrrev_b32 v115, 16, v115
        v_mul_u32_u24 v116, 18, v115
        v_sub_u32 v116, v112, v116
        v_lshl_add_u32 v118, v115, 5, v116
        v_lshl_add_u32 v118, v118, 11, v109
        v_lshlrev_b32 v118, 1, v118
        v_add_u32 v118, {WS_VT}, v118
        """)
        for t in range(2):
            for q in range(4):
                r = ACC + p * 32 + t * 16 + 4 * q
                e(f"v_cvt_pk_bf16_f32 v112, v{r}, v{r+1}")
                e(f"v_cvt_pk_bf16_f32 v113, v{r+2}, v{r+3}")
                e(f"buffer_store_dwordx2 v[112:113], v118, s[60:63], 0 offen offset:{(32*t+16*(q>>1)+4*(q&1))*2}")
                e("s_nop 1")
    e("s_branch G1_END\nG1_MAIN:")
    for s in range(9):
        gemm_stage(e, s, 9, adv)
    e("s_nop 15")
    e("""
    v_and_b32 v108, 31, v107
    v_lshrrev_b32 v109, 5, v107
    s_lshl_b32 s59, s57, 6
    s_add_u32 s59, s59, s12
    v_add_u32 v108, s59, v108
    s_lshl_b32 s59, s58, 5
    s_add_u32 s59, s59, s15
    v_lshl_add_u32 v109, v109, 2, s59
    s_cmp_ge_u32 s13, 14
    s_cbranch_scc1 G1_FFN_EPI
    """)
    e(f"""
    s_mov_b32 s20, {hex(f2u(QSCALE))}
    s_movk_i32 s21, 3641
    """)
    for p in range(2):
        for q in range(4):
            for j in (0, 2):
                noff = p * 64 + 8 * q + j
                e(f"v_add_u32 v112, {noff}, v109")
                e("v_cmp_le_u32 vcc, 576, v112")
                e("s_nop 1")
                e("v_cndmask_b32 v113, 0, 1, vcc")
                e("v_mul_u32_u24 v114, 576, v113")
                e("v_sub_u32 v114, v112, v114")
                e("v_mul_u32_u24 v115, v114, s21")
                e("v_lshrrev_b32 v115, 16, v115")
                e("v_mul_u32_u24 v116, 18, v115")
                e("v_sub_u32 v116, v114, v116")
                e("v_lshl_add_u32 v117, v115, 11, v108")
                e("v_lshlrev_b32 v117, 6, v117")
                e("v_lshl_add_u32 v117, v116, 1, v117")
                e("v_lshl_add_u32 v117, v113, 22, v117")
                e(f"v_add_u32 v117, {WS_QP}, v117")
                for t in range(2):
                    r = ACC + p * 32 + t * 16 + 4 * q + j
                    e(f"v_mul_f32 v120, s20, v{r}")
                    e(f"v_mul_f32 v121, s20, v{r+1}")
                    e(f"v_cndmask_b32 v120, v120, v{r}, vcc")
                    e(f"v_cndmask_b32 v121, v121, v{r+1}, vcc")
                    e("v_cvt_pk_bf16_f32 v120, v120, v121")
                    e(f"buffer_store_dword v120, v117, s[60:63], 0 offen offset:{2048*t}")
    e("s_branch G1_END")
    e("G1_FFN_EPI:")
    e(f"""
    v_and_b32 v108, 31, v107
    v_lshrrev_b32 v109, 5, v107
    s_lshl_b32 s59, s57, 6
    v_add_u32 v108, s59, v108
    v_mul_u32_u24 v110, 144, v108
    v_lshl_add_u32 v110, v109, 3, v110
    s_lshl_b32 s59, s58, 6
    v_add_u32 v110, s59, v110
    s_mov_b32 s20, {hex(f2u(-LOG2E))}
    """)
    for t in range(2):
        for q in range(4):
            for j in range(4):
                g = ACC + 0 * 32 + t * 16 + 4 * q + j
                u = ACC + 1 * 32 + t * 16 + 4 * q + j
                e(f"v_mul_f32 v{64+j}, s20, v{g}")
            for j in range(4):
                e(f"v_exp_f32 v{64+j}, v{64+j}")
            for j in range(4):
                g = ACC + 0 * 32 + t * 16 + 4 * q + j
                u = ACC + 1 * 32 + t * 16 + 4 * q + j
                e(f"v_mul_f32 v{114+j}, v{g}, v{u}")
            for j in range(4):
                e(f"v_add_f32 v{64+j}, 1.0, v{64+j}")
            for j in range(4):
                e(f"v_rcp_f32 v{64+j}, v{64+j}")
            e("s_nop 0")
            for j in range(4):
                e(f"v_mul_f32 v{114+j}, v{114+j}, v{64+j}")
            e("v_cvt_pk_bf16_f32 v112, v114, v115")
            e("v_cvt_pk_bf16_f32 v113, v116, v117")
            e(f"ds_write_b64 v110, v[112:113] offset:{t*32*144 + 16*q}")
    e(f"""
    s_lshl_b32 s59, s56, 6
    v_add_u32 v109, s59, v107
    v_lshrrev_b32 v108, 3, v109
    v_and_b32 v109, 7, v109
    v_mul_u32_u24 v110, 144, v108
    v_lshl_add_u32 v110, v109, 4, v110
    v_add_u32 v108, s12, v108
    s_movk_i32 s20, 9216
    v_mul_lo_u32 v111, v108, s20
    v_lshl_add_u32 v111, v109, 4, v111
    s_lshl_b32 s59, s15, 1
    s_add_u32 s59, s59, {WS_H}
    v_add_u32 v111, s59, v111
    s_waitcnt lgkmcnt(0)
    s_barrier
    """)
    for i in range(4):
        e(f"ds_read_b128 v[{64+4*i}:{67+4*i}], v110 offset:{i*32*144}")
    for i in range(4):
        e(f"s_waitcnt lgkmcnt({3-i})")
        e(f"s_mov_b32 s59, {i*32*9216}")
        e(f"buffer_store_dwordx4 v[{64+4*i}:{67+4*i}], v111, s[60:63], s59 offen")
    e("G1_END:\ns_endpgm")

WS_P = 48 * MB
def gen_gemm2(e):
    header(e, "gemm2_kernel")
    e(f"""
    s_cmp_ge_u32 s2, 320
    s_cbranch_scc1 G2_END
    s_load_dwordx2 s[4:5], s[0:1], 16
    s_load_dwordx2 s[6:7], s[0:1], 48
    s_load_dwordx2 s[10:11], s[0:1], 72
    s_bfe_u32 s28, s2, 0x20001
    s_and_b32 s12, s2, 1
    s_lshl_b32 s12, s12, 3
    s_bfe_u32 s13, s2, 0x30003
    s_add_u32 s12, s12, s13      ; mtile
    s_lshr_b32 s13, s2, 6        ; ntile
    s_lshl_b32 s12, s12, 7
    s_lshl_b32 s15, s13, 7
    """)
    gemm_setup_common(e, 12)
    e("s_waitcnt lgkmcnt(0)")
    e("s_movk_i32 s16, 1152\ns_lshl_b32 s17, s16, 6\ns_mov_b32 s43, 0x00020000\ns_mov_b32 s51, 0x00020000")
    gemm_setup_w(e, 15, 16)
    def adv(e):
        e("s_add_u32 s52, s52, 128")
        e("s_add_u32 s53, s53, s17")
    def adv_switch(e):
        e(f"s_add_u32 s40, s10, {WS_H}\ns_addc_u32 s41, s11, 0\ns_and_b32 s41, s41, 0xffff")
        e(f"s_mov_b32 s42, {S_*F_*2}")
        srd(e, 44, 6, 7, F_ * D_ * 2)
        e(f"""
        s_add_u32 s48, s6, 128
        s_addc_u32 s49, s7, 0
        s_and_b32 s49, s49, 0xffff
        s_mov_b32 s50, {F_*D_*2-128}
        s_movk_i32 s14, 9216
        """)
        gemm_setup_x(e, 12, 14)
    e("s_cmp_lg_u32 s28, 0\ns_cbranch_scc1 G2_S1")
    e(f"s_add_u32 s40, s10, {WS_O}\ns_addc_u32 s41, s11, 0\ns_and_b32 s41, s41, 0xffff")
    e(f"s_mov_b32 s42, {S_*D_*2}")
    srd(e, 44, 4, 5, D_ * D_ * 2)
    e(f"""
    s_add_u32 s48, s4, 128
    s_addc_u32 s49, s5, 0
    s_and_b32 s49, s49, 0xffff
    s_mov_b32 s50, {D_*D_*2-128}
    s_movk_i32 s14, 1152
    """)
    gemm_setup_x(e, 12, 14)
    e("s_mov_b32 s52, 0\ns_mov_b32 s53, 0\ns_nop 4")
    gemm_dma(e, 0)
    NST = 81
    for st in range(8):
        gemm_stage(e, st, NST, adv)
    def adv_sw0(e):
        adv_switch(e)
        e("s_mov_b32 s52, 0\ns_mov_b32 s53, 0\ns_nop 4")
    gemm_stage(e, 8, NST, adv_sw0)
    e("s_mov_b32 s30, 5\ns_branch G2_LOOP\nG2_S1:")
    adv_switch(e)
    e("""
    s_mul_i32 s29, s28, 20
    s_sub_u32 s29, s29, 8
    s_lshl_b32 s52, s29, 7
    s_mul_i32 s53, s29, s17
    s_mov_b32 s30, 9
    s_nop 4
    """)
    gemm_dma(e, 1)
    e("G2_LOOP:")
    gemm_stage(e, 9, NST, adv)
    gemm_stage(e, 10, NST, adv)
    e("s_sub_u32 s30, s30, 1\ns_cmp_lg_u32 s30, 0\ns_cbranch_scc1 G2_LOOP")
    gemm_stage(e, 79, NST, adv)
    gemm_stage(e, 80, NST, adv)
    e("s_nop 15")
    e(f"""
    s_mul_i32 s29, s28, {S_*D_*4}
    s_add_u32 s29, s29, {WS_P}
    s_add_u32 s60, s10, s29
    s_addc_u32 s61, s11, 0
    s_and_b32 s61, s61, 0xffff
    s_mov_b32 s62, {S_*D_*4}
    s_mov_b32 s63, 0x00020000
    v_and_b32 v108, 31, v107
    v_lshrrev_b32 v109, 5, v107
    s_lshl_b32 s59, s57, 6
    s_add_u32 s59, s59, s12
    v_add_u32 v108, s59, v108
    s_lshl_b32 s59, s58, 5
    s_add_u32 s59, s59, s15
    v_lshl_add_u32 v109, v109, 2, s59
    s_movk_i32 s20, 2304
    v_mul_lo_u32 v110, v108, s20
    v_lshl_add_u32 v110, v109, 2, v110
    v_add_u32 v111, {32*2304}, v110
    """)
    for p in range(2):
        if p == 1:
            e("s_cmp_ge_u32 s13, 4\ns_cbranch_scc1 G2_END")
        for t in range(2):
            for q in range(4):
                r = ACC + p * 32 + t * 16 + 4 * q
                e(f"buffer_store_dwordx4 v[{r}:{r+3}], v{110+t}, s[60:63], 0 offen offset:{p*256+32*q}")
    e("G2_END:\ns_endpgm")

def gen_red(e):
    header(e, "red_kernel")
    e(f"""
    s_cmp_ge_u32 s2, 1152
    s_cbranch_scc1 RD_END
    s_load_dwordx2 s[4:5], s[0:1], 0
    s_load_dwordx2 s[6:7], s[0:1], 56
    s_load_dwordx2 s[10:11], s[0:1], 72
    s_lshl_b32 s3, s2, 8
    v_add_u32 v1, s3, v0
    v_lshlrev_b32 v2, 4, v1
    v_lshlrev_b32 v3, 3, v1
    s_waitcnt lgkmcnt(0)
    s_add_u32 s10, s10, {WS_P}
    s_addc_u32 s11, s11, 0
    """)
    srd(e, 12, 4, 5, S_*D_*2); srd(e, 16, 6, 7, S_*D_*2); srd(e, 20, 10, 11, S_*D_*16)
    e("buffer_load_dwordx2 v[4:5], v3, s[12:15], 0 offen")
    for i in range(4):
        e(f"s_mov_b32 s24, {i*S_*D_*4}")
        e(f"buffer_load_dwordx4 v[{8+4*i}:{11+4*i}], v2, s[20:23], s24 offen")
    e("s_waitcnt vmcnt(4)")
    e("v_lshlrev_b32 v24, 16, v4\nv_and_b32 v25, 0xffff0000, v4\nv_lshlrev_b32 v26, 16, v5\nv_and_b32 v27, 0xffff0000, v5")
    for i in range(4):
        e(f"s_waitcnt vmcnt({3-i})")
        for j in range(4):
            e(f"v_add_f32 v{24+j}, v{24+j}, v{8+4*i+j}")
    e("v_cvt_pk_bf16_f32 v4, v24, v25\nv_cvt_pk_bf16_f32 v5, v26, v27")
    e("buffer_store_dwordx2 v[4:5], v3, s[16:19], 0 offen")
    e("RD_END:\ns_endpgm")

def gen_attn(e):
    header(e, "attn_kernel")
    e(f"""
    s_cmp_ge_u32 s2, 256
    s_cbranch_scc1 AT_END
    s_load_dwordx2 s[10:11], s[0:1], 72
    s_and_b32 s4, s2, 7
    s_lshl_b32 s4, s4, 2
    s_bfe_u32 s5, s2, 0x20003
    s_add_u32 s4, s4, s5          ; head
    s_lshr_b32 s5, s2, 5          ; qblock
    v_and_b32 v107, 63, v0
    v_lshrrev_b32 v108, 6, v0
    s_nop 0
    v_readfirstlane_b32 s56, v108
    v_and_b32 v108, 31, v107      ; l32
    v_lshrrev_b32 v109, 5, v107   ; h
    s_waitcnt lgkmcnt(0)
    """)
    srd(e, 40, 10, 11, WS_SIZE)
    e(f"""
    s_lshl_b32 s6, s4, 11
    s_lshl_b32 s7, s5, 8
    s_add_u32 s6, s6, s7
    s_lshl_b32 s7, s56, 5
    s_add_u32 s6, s6, s7          ; head*2048 + q0
    v_add_u32 v110, s6, v108
    v_lshlrev_b32 v110, 6, v110
    v_lshl_add_u32 v110, v109, 4, v110
    v_add_u32 v110, {WS_QP}, v110
    buffer_load_dwordx4 v[64:67], v110, s[40:43], 0 offen
    buffer_load_dwordx4 v[68:71], v110, s[40:43], 0 offen offset:32
    """)
    e(f"""
    s_lshl_b32 s7, s4, 17
    s_add_u32 s7, s7, {WS_KP}
    s_lshl_b32 s8, s56, 12
    s_add_u32 s7, s7, s8
    v_lshrrev_b32 v111, 2, v107
    v_lshlrev_b32 v111, 6, v111
    v_and_b32 v112, 3, v107
    v_bfe_u32 v113, v107, 4, 2
    v_xor_b32 v112, v112, v113
    v_lshl_add_u32 v111, v112, 4, v111
    v_add_u32 v96, s7, v111
    s_lshl_b32 s7, s4, 17
    s_add_u32 s7, s7, {WS_VT}
    s_lshl_b32 s8, s56, 2
    """)
    for j in range(4):
        e(f"""
        s_add_u32 s9, s8, {j}
        s_and_b32 s12, s9, 15
        v_xor_b32 v113, s12, v107
        s_lshl_b32 s9, s9, 12
        s_add_u32 s9, s9, s7
        v_lshl_add_u32 v{129+j}, v113, 4, s9
        """)
    e("""
    v_bfe_u32 v111, v107, 2, 2
    v_lshlrev_b32 v112, 6, v108
    """)
    for ks in range(2):
        e(f"v_or_b32 v113, {2*ks}, v109")
        e("v_xor_b32 v113, v113, v111")
        e(f"v_lshl_add_u32 v{100+ks}, v113, 4, v112")
    e("v_and_b32 v111, 15, v107\nv_lshlrev_b32 v112, 10, v108\nv_add_u32 v112, 32768, v112")
    VA = 121
    for c in range(8):
        e(f"v_or_b32 v113, {2*c}, v109")
        e("v_xor_b32 v113, v113, v111")
        e(f"v_lshl_add_u32 v{VA+c}, v113, 4, v112")
    e("s_lshl_b32 s54, s56, 12\ns_mov_b32 s52, 0\ns_mov_b32 s53, 0")
    for i in range(16):
        e(f"v_mov_b32 v{i}, 0")
        e(f"v_mov_b32 v{48+i}, 0")
    e("v_mov_b32 v102, 0xff800000\ns_mov_b64 s[34:35], -1")
    def dma(buf):
        sb = buf * 65536
        for j in range(4):
            e(f"s_add_u32 m0, s54, {sb + j*1024}\ns_nop 0")
            e(f"buffer_load_dwordx4 v96, s[40:43], s52 offen offset:0 lds" if j == 0 else
              f"buffer_load_dwordx4 v{133+j-1}, s[40:43], s52 offen lds")
        for j in range(4):
            e(f"s_add_u32 m0, s54, {sb + 32768 + j*1024}\ns_nop 0")
            e(f"buffer_load_dwordx4 v{129+j}, s[40:43], s53 offen lds")
    for j in range(1, 4):
        e(f"v_add_u32 v{133+j-1}, {1024*j}, v96")
    dma(0)
    KF = [72, 138]
    VF = [80, 146]
    SB = [16, 32]
    def kread(sb, tile):
        kf = KF[tile & 1]
        for ks in range(2):
            e(f"ds_read_b128 v[{kf+4*ks}:{kf+3+4*ks}], v{100+ks} offset:{sb + tile*2048}")
    def vread(sb, tile):
        vf = VF[tile & 1]
        for c in range(2):
            cc = 2*tile + c
            e(f"ds_read_b128 v[{vf+4*c}:{vf+3+4*c}], v{VA + (cc&7)} offset:{sb + (cc>>3)*256}")
    def smfma(tile):
        kf = KF[tile & 1]; S = SB[tile & 1]
        e(f"v_mfma_f32_32x32x16_bf16 v[{S}:{S+15}], v[{kf}:{kf+3}], v[64:67], v[48:63]")
        e(f"v_mfma_f32_32x32x16_bf16 v[{S}:{S+15}], v[{kf+4}:{kf+7}], v[68:71], v[{S}:{S+15}]")
    e("s_mov_b32 s30, 0\nAT_LOOP:")
    e("s_add_u32 s52, s52, 32768\ns_add_u32 s53, s53, 1024\ns_xor_b32 s54, s54, 0x10000")
    dma(0)
    e("s_waitcnt vmcnt(8)\ns_barrier")
    kread(0, 0); kread(0, 1); vread(0, 0)
    e("s_waitcnt lgkmcnt(4)")
    smfma(0)
    e("s_nop 7\ns_mov_b32 s31, 0\nAT_IN:")
    for tile in range(4):
        S = SB[tile & 1]; vf = VF[tile & 1]
        e("s_waitcnt lgkmcnt(2)")
        smfma(tile + 1)
        kread(0, tile + 2)
        vread(0, tile + 1)
        e(f"v_max3_f32 v103, v{S}, v{S+1}, v{S+2}")
        for i in range(3, 15, 2):
            e(f"v_max3_f32 v103, v103, v{S+i}, v{S+i+1}")
        e(f"v_max_f32 v103, v103, v{S+15}")
        e("v_cmp_lt_f32 vcc, 0x41000000, v103")
        e("s_or_b64 vcc, vcc, s[34:35]")
        e(f"s_cbranch_vccnz AT_SLOW{tile}")
        e(f"AT_F{tile}:")
        for i in range(16):
            if "NOEXP" not in sys.argv: e(f"v_exp_f32 v{S+i}, v{S+i}")
        for i in range(8):
            e(f"v_cvt_pk_bf16_f32 v{88+i}, v{S+2*i}, v{S+1+2*i}")
        e("s_waitcnt lgkmcnt(4)\ns_nop 1")
        e(f"v_mfma_f32_32x32x16_bf16 v[0:15], v[{vf}:{vf+3}], v[88:91], v[0:15]")
        e(f"v_mfma_f32_32x32x16_bf16 v[0:15], v[{vf+4}:{vf+7}], v[92:95], v[0:15]")
    e("v_add_u32 v100, 8192, v100\nv_add_u32 v101, 8192, v101")
    for r in range(VA, VA+8):
        e(f"v_add_u32 v{r}, 256, v{r}")
    e("s_add_u32 s31, s31, 1\ns_cmp_lt_u32 s31, 4\ns_cbranch_scc1 AT_IN")
    e("v_subrev_u32 v100, 32768, v100\nv_subrev_u32 v101, 32768, v101")
    for r in range(VA, VA+8):
        e(f"v_subrev_u32 v{r}, 1024, v{r}")
    for r in [100, 101] + list(range(VA, VA+8)):
        e(f"v_xor_b32 v{r}, 0x10000, v{r}")
    e("s_waitcnt lgkmcnt(0)\ns_barrier")
    e("s_add_u32 s30, s30, 1\ns_cmp_lt_u32 s30, 4\ns_cbranch_scc1 AT_LOOP")
    e("s_branch AT_FIN")
    for tile in range(4):
        S = SB[tile & 1]; S2 = SB[(tile & 1) ^ 1]
        e(f"AT_SLOW{tile}:")
        e("v_mov_b32 v104, v103\ns_nop 1")
        e("v_permlane32_swap_b32 v103, v104")
        e("s_nop 1")
        e("v_max3_f32 v103, v103, v104, v102")
        e("v_mov_b32 v102, 0\ns_mov_b64 s[34:35], 0")
        e("v_exp_f32 v104, -v103")
        e("s_nop 7\ns_nop 7")
        for i in range(16):
            e(f"v_sub_f32 v{S+i}, v{S+i}, v103")
            e(f"v_sub_f32 v{48+i}, v{48+i}, v103")
            e(f"v_mul_f32 v{i}, v{i}, v104")
            e(f"v_sub_f32 v{S2+i}, v{S2+i}, v103")
        e(f"s_branch AT_F{tile}")
    e("AT_FIN:")
    e("s_nop 15")
    e(f"""
    v_rcp_f32 v103, v10
    s_lshl_b32 s6, s5, 8
    s_lshl_b32 s7, s56, 5
    s_add_u32 s6, s6, s7
    v_add_u32 v110, s6, v108
    s_movk_i32 s8, 1152
    v_mul_lo_u32 v110, v110, s8
    s_mul_i32 s8, s4, 36
    s_add_u32 s8, s8, {WS_O}
    v_add_u32 v110, s8, v110
    v_lshl_add_u32 v110, v109, 3, v110
    """)
    for i in range(10):
        e(f"v_mul_f32 v{i}, v{i}, v103")
    for q in range(2):
        e(f"v_cvt_pk_bf16_f32 v{104+2*q}, v{4*q}, v{4*q+1}")
        e(f"v_cvt_pk_bf16_f32 v{105+2*q}, v{4*q+2}, v{4*q+3}")
        e(f"buffer_store_dword v{104+2*q}, v110, s[40:43], 0 offen offset:{16*q}")
        e(f"buffer_store_dword v{105+2*q}, v110, s[40:43], 0 offen offset:{16*q+4}")
    e("""
    v_cvt_pk_bf16_f32 v111, v8, v9
    v_cmp_eq_u32 vcc, 0, v109
    s_and_saveexec_b64 s[24:25], vcc
    s_cbranch_execz AT_SK
    buffer_store_dword v111, v110, s[40:43], 0 offen offset:32
    AT_SK:
    s_or_b64 exec, exec, s[24:25]
    AT_END:
    s_endpgm
    """)

def main():
    e = E()
    hdr = open("parallel_sum__mha_block__glu_gated_swiglu__prompt.s.ref").read().split("; Override")[0]
    txt = hdr
    txt += "; @launch kernel=ln_kernel grid=(256,1,1) block=(256,1,1) lds=0\n"
    txt += f"; @launch kernel=gemm1_kernel grid=(1408,1,1) block=(256,1,1) lds=65536\n"
    txt += "; @launch kernel=attn_kernel grid=(256,1,1) block=(512,1,1) lds=131072\n"
    txt += "; @launch kernel=gemm2_kernel grid=(320,1,1) block=(256,1,1) lds=65536\n"
    txt += "; @launch kernel=red_kernel grid=(1152,1,1) block=(256,1,1) lds=0\n"
    txt += '.amdgcn_target "amdgcn-amd-amdhsa--gfx950"\n.text\n'
    gen_ln(e); gen_gemm1(e); gen_attn(e); gen_gemm2(e); gen_red(e)
    txt += e.text()
    txt += kd("ln_kernel", 72) + kd("gemm1_kernel", 128) + kd("attn_kernel", 160) + kd("gemm2_kernel", 128) + kd("red_kernel", 32)
    open(OUT, "w").write(txt)
    print("wrote", len(txt))
main()
```

```python
import sys
OUT = "parallel_sum__mha_block__glu_gated_swiglu__prompt.s" if len(sys.argv)<2 else "var_"+sys.argv[1]+".s"

MB = 1 << 20
WS_XN = 0
WS_QP = 4 * MB
WS_KP = 8 * MB
WS_VT = 12 * MB
WS_H = 16 * MB
WS_O = 40 * MB
WS_SIZE = 268435456

S_, D_, F_, H_ = 2048, 576, 4608, 32
LOG2E = 1.4426950408889634
QSCALE = LOG2E * (18 ** -0.5)

import struct
def f2u(x):
    return struct.unpack("<I", struct.pack("<f", x))[0]

class E:
    def __init__(self):
        self.l = []
    def __call__(self, s):
        for ln in s.strip("\n").split("\n"):
            self.l.append("  " + ln.strip() if not ln.strip().endswith(":") else ln.strip())
    def text(self):
        return "\n".join(self.l) + "\n"

def srd(e, d, base_lo, base_hi, nbytes):
    e(f"s_mov_b32 s{d}, s{base_lo}")
    e(f"s_and_b32 s{d+1}, s{base_hi}, 0xffff")
    e(f"s_mov_b32 s{d+2}, {nbytes}")
    e(f"s_mov_b32 s{d+3}, 0x00020000")

def header(e, name):
    e(f".globl {name}\n.p2align 8\n.type {name},@function\n{name}:")

def kd(name, vgpr, sgpr=102):
    acc = (vgpr + 3) // 4 * 4
    return f""".section .rodata,"a"
.p2align 6
.amdhsa_kernel {name}
  .amdhsa_next_free_vgpr {vgpr}
  .amdhsa_next_free_sgpr {sgpr}
  .amdhsa_accum_offset {acc}
  .amdhsa_group_segment_fixed_size 0
  .amdhsa_kernarg_size 80
  .amdhsa_user_sgpr_count 2
  .amdhsa_user_sgpr_kernarg_segment_ptr 1
  .amdhsa_system_sgpr_workgroup_id_x 1
.end_amdhsa_kernel
"""

def gen_ln(e):
    header(e, "ln_kernel")
    e("""
    s_cmp_ge_u32 s2, 256
    s_cbranch_scc1 LN_END
    s_load_dwordx2 s[4:5], s[0:1], 0
    s_load_dwordx2 s[6:7], s[0:1], 72
    s_lshl_b32 s3, s2, 8
    v_add_u32 v1, s3, v0
    v_lshrrev_b32 v2, 5, v1
    v_and_b32 v3, 31, v1
    s_movk_i32 s20, 1152
    v_mul_lo_u32 v4, v2, s20
    v_lshl_add_u32 v4, v3, 2, v4
    s_waitcnt lgkmcnt(0)
    """)
    srd(e, 8, 4, 5, S_ * D_ * 2)
    srd(e, 12, 6, 7, WS_SIZE)
    for i in range(9):
        e(f"buffer_load_dword v{10+i}, v4, s[8:11], 0 offen offset:{128*i}")
    e(f"""
    v_mov_b32 v40, 0
    v_mov_b32 v41, 0
    v_mov_b32 v42, 0
    v_mov_b32 v43, 0
    v_lshlrev_b32 v5, 6, v1
    v_add_u32 v6, {WS_QP}, v5
    v_add_u32 v7, {WS_KP}, v5
    buffer_store_dword v40, v6, s[12:15], 0 offen offset:36
    buffer_store_dwordx2 v[40:41], v6, s[12:15], 0 offen offset:40
    buffer_store_dwordx4 v[40:43], v6, s[12:15], 0 offen offset:48
    buffer_store_dword v40, v7, s[12:15], 0 offen offset:36
    buffer_store_dwordx2 v[40:41], v7, s[12:15], 0 offen offset:40
    buffer_store_dwordx4 v[40:43], v7, s[12:15], 0 offen offset:48
    """)
    for rep in range(2):
        e(f"v_add_u32 v30, {rep*65536}, v1")
        magic = -(-(1 << 32) // 3584)
        e(f"""
        s_mov_b32 s21, {magic}
        v_mul_hi_u32 v31, v30, s21
        s_movk_i32 s21, 3584
        v_mul_lo_u32 v32, v31, s21
        v_sub_u32 v32, v30, v32
        v_lshrrev_b32 v33, 8, v32
        v_and_b32 v34, 255, v32
        v_add_u32 v33, 18, v33
        v_lshl_add_u32 v35, v31, 5, v33
        v_lshlrev_b32 v35, 12, v35
        v_lshl_add_u32 v35, v34, 4, v35
        v_add_u32 v35, {WS_VT}, v35
        v_cmp_eq_u32 vcc, 18, v33
        v_cmp_eq_u32 s[22:23], 22, v33
        s_or_b64 vcc, vcc, s[22:23]
        v_mov_b32 v36, 0x3f803f80
        s_nop 1
        v_cndmask_b32 v44, 0, v36, vcc
        v_mov_b32 v45, v44
        v_mov_b32 v46, v44
        v_mov_b32 v47, v44
        v_cmp_gt_u32 vcc, 114688, v30
        s_and_saveexec_b64 s[24:25], vcc
        s_cbranch_execz LN_SK{rep}
        buffer_store_dwordx4 v[44:47], v35, s[12:15], 0 offen
        LN_SK{rep}:
        s_or_b64 exec, exec, s[24:25]
        s_nop 2
        """)
    e("s_waitcnt vmcnt(0)")
    for i in range(9):
        e(f"v_lshlrev_b32 v{50+2*i}, 16, v{10+i}")
        e(f"v_and_b32 v{51+2*i}, 0xffff0000, v{10+i}")
    e("v_add_f32 v20, v50, v51")
    for i in range(2, 18):
        e(f"v_add_f32 v20, v20, v{50+i}")
    def red(v):
        for x in (1, 2, 4, 8, 16):
            e(f"ds_swizzle_b32 v21, v{v} offset:{(x<<10)|0x1f}")
            e("s_waitcnt lgkmcnt(0)")
            e(f"v_add_f32 v{v}, v{v}, v21")
    red(20)
    e(f"v_mul_f32 v20, {hex(f2u(1.0/576))}, v20")
    for i in range(18):
        e(f"v_sub_f32 v{50+i}, v{50+i}, v20")
    e("v_mul_f32 v22, v50, v50")
    for i in range(1, 18):
        e(f"v_fmac_f32 v22, v{50+i}, v{50+i}")
    red(22)
    e(f"v_mov_b32 v23, {hex(f2u(1e-5))}")
    e(f"v_fmac_f32 v23, {hex(f2u(1.0/576))}, v22")
    e("v_rsq_f32 v23, v23")
    e("s_nop 1")
    for i in range(18):
        e(f"v_mul_f32 v{50+i}, v{50+i}, v23")
    for i in range(9):
        e(f"v_cvt_pk_bf16_f32 v{10+i}, v{50+2*i}, v{51+2*i}")
    for i in range(9):
        e(f"buffer_store_dword v{10+i}, v4, s[12:15], 0 offen offset:{128*i}")
    e("LN_END:\ns_endpgm")

ACC = 0
def acc(p, t):
    b = ACC + p * 32 + t * 16
    return f"v[{b}:{b+15}]"

def gemm_dma(e, buf):
    if "NODMA" in sys.argv: return
    sb = buf * 16384
    for i in range(2):
        e(f"s_add_u32 m0, s54, {sb + i*1024}")
        e("s_nop 0")
        e(f"buffer_load_dwordx4 v{96+i}, s[40:43], s52 offen lds")
    for p in range(2):
        e(f"s_add_u32 m0, s55, {sb + p*4096}")
        e("s_nop 0")
        e(f"buffer_load_dwordx4 v100, s[{44+4*p}:{47+4*p}], s53 offen lds")

def gemm_reads(e, buf, ks):
    fs = 64 + (ks & 1) * 16
    sb = buf * 16384
    for p in range(2):
        for h2 in range(2):
            e(f"ds_read_b64_tr_b16 v[{fs+4*p+2*h2}:{fs+4*p+2*h2+1}], v106 offset:{sb + p*4096 + ks*2048 + h2*512}")
    for t in range(2):
        e(f"ds_read_b128 v[{fs+8+4*t}:{fs+11+4*t}], v{102+ks} offset:{sb + t*2048}")

SWAP = [False]
def gemm_compute(e, buf):
    gemm_reads(e, buf, 0)
    for ks in range(2):
        if ks < 1:
            gemm_reads(e, buf, ks + 1)
            e("s_waitcnt lgkmcnt(6)")
        else:
            e("s_waitcnt lgkmcnt(0)")
        fs = 64 + (ks & 1) * 16
        for p in range(2):
            for t in range(2):
                wfr = f"v[{fs+4*p}:{fs+4*p+3}]"; xfr = f"v[{fs+8+4*t}:{fs+11+4*t}]"
                if SWAP[0]: wfr, xfr = xfr, wfr
                if "NOMF" not in sys.argv: e(f"v_mfma_f32_32x32x16_bf16 {acc(p,t)}, {wfr}, {xfr}, {acc(p,t)}")

def gemm_setup_common(e, m0_sreg):
    e("""
    v_and_b32 v107, 63, v0
    v_lshrrev_b32 v108, 6, v0
    s_nop 0
    v_readfirstlane_b32 s56, v108
    """)
    for i in range(64):
        e(f"v_mov_b32 v{i}, 0")
    e("""
    s_lshr_b32 s57, s56, 1
    s_and_b32 s58, s56, 1
    v_and_b32 v108, 31, v107
    v_lshrrev_b32 v109, 5, v107
    v_bfe_u32 v110, v107, 2, 2
    s_lshl_b32 s59, s57, 12
    v_lshlrev_b32 v111, 6, v108
    v_add_u32 v111, s59, v111
    """)
    for ks in range(2):
        e(f"v_or_b32 v112, {2*ks}, v109")
        e("v_xor_b32 v112, v112, v110")
        e(f"v_lshl_add_u32 v{102+ks}, v112, 4, v111")
    e("""
    v_bfe_u32 v108, v107, 2, 2
    v_lshl_add_u32 v108, v109, 3, v108
    v_lshlrev_b32 v108, 7, v108
    v_bfe_u32 v110, v107, 3, 1
    v_xor_b32 v110, s58, v110
    v_lshl_add_u32 v108, v110, 6, v108
    v_bfe_u32 v110, v107, 4, 1
    v_lshl_add_u32 v108, v110, 5, v108
    v_and_b32 v110, 3, v107
    v_lshl_add_u32 v108, v110, 3, v108
    v_add_u32 v106, 8192, v108
    s_lshl_b32 s54, s56, 11
    s_lshl_b32 s55, s56, 10
    s_add_u32 s55, s55, 8192
    """)

def gemm_setup_x(e, m0_sreg, stride_sreg):
    e(f"""
    s_lshl_b32 s59, s56, 5
    s_add_u32 s59, s59, s{m0_sreg}
    v_lshrrev_b32 v108, 2, v107
    v_add_u32 v108, s59, v108
    v_and_b32 v109, 3, v107
    v_bfe_u32 v110, v107, 4, 2
    v_xor_b32 v112, v109, v110
    """)
    for i in range(2):
        e(f"v_add_u32 v111, {16*i}, v108")
        e(f"v_mul_lo_u32 v111, v111, s{stride_sreg}")
        e(f"v_lshl_add_u32 v{96+i}, v112, 4, v111")

def gemm_setup_w(e, ncol_sreg, stride_sreg):
    e(f"""
    s_lshl_b32 s59, s56, 3
    v_lshrrev_b32 v108, 3, v107
    v_add_u32 v108, s59, v108
    v_and_b32 v109, 7, v107
    v_bfe_u32 v110, v107, 4, 1
    v_lshlrev_b32 v110, 2, v110
    v_xor_b32 v109, v109, v110
    v_lshlrev_b32 v109, 4, v109
    s_lshl_b32 s59, s{ncol_sreg}, 1
    v_add_u32 v109, s59, v109
    v_mul_lo_u32 v111, v108, s{stride_sreg}
    v_add_u32 v100, v111, v109
    """)

def gemm_stage(e, s, nst, adv):
    buf = s & 1
    if s + 1 < nst:
        adv(e)
        gemm_dma(e, buf ^ 1)
        e("s_waitcnt vmcnt(4)")
    else:
        e("s_waitcnt vmcnt(0)")
    e("s_barrier")
    gemm_compute(e, buf)
    e("s_barrier")

NT1 = 14 + 72
def gen_gemm1(e):
    header(e, "gemm1_kernel")
    e(f"""
    s_cmp_ge_u32 s2, 1408
    s_cbranch_scc1 G1_END
    s_load_dwordx2 s[4:5], s[0:1], 8
    s_load_dwordx2 s[6:7], s[0:1], 32
    s_load_dwordx2 s[8:9], s[0:1], 40
    s_load_dwordx2 s[10:11], s[0:1], 72
    s_bfe_u32 s12, s2, 0x40003
    s_lshr_b32 s13, s2, 7
    s_lshl_b32 s13, s13, 3
    s_and_b32 s14, s2, 7
    s_add_u32 s13, s13, s14
    s_lshl_b32 s12, s12, 7
    s_cmp_ge_u32 s13, {NT1}
    s_cbranch_scc1 G1_END
    """)
    gemm_setup_common(e, 12)
    e("s_waitcnt lgkmcnt(0)")
    srd(e, 40, 10, 11, S_ * D_ * 2)
    srd(e, 60, 10, 11, WS_SIZE)
    e(f"""
    s_movk_i32 s14, 1152
    s_cmp_ge_u32 s13, 14
    s_cbranch_scc1 G1_FFN_SETUP
    """)
    srd(e, 44, 4, 5, D_ * 1728 * 2)
    e(f"""
    s_add_u32 s48, s4, 128
    s_addc_u32 s49, s5, 0
    s_and_b32 s49, s49, 0xffff
    s_mov_b32 s50, {D_*1728*2-128}
    s_mov_b32 s51, 0x00020000
    s_lshl_b32 s15, s13, 7
    s_movk_i32 s16, 3456
    s_branch G1_SETUP_DONE
    G1_FFN_SETUP:
    """)
    srd(e, 44, 6, 7, D_ * F_ * 2)
    srd(e, 48, 8, 9, D_ * F_ * 2)
    e(f"""
    s_sub_u32 s15, s13, 14
    s_lshl_b32 s15, s15, 6
    s_movk_i32 s16, 9216
    G1_SETUP_DONE:
    s_lshl_b32 s17, s16, 5
    """)
    gemm_setup_x(e, 12, 14)
    gemm_setup_w(e, 15, 16)
    e("s_mov_b32 s52, 0\ns_mov_b32 s53, 0\ns_nop 4")
    gemm_dma(e, 0)
    def adv(e):
        e("s_add_u32 s52, s52, 64")
        e("s_add_u32 s53, s53, s17")
    def mainloop(tag):
        e(f"s_mov_b32 s30, 8\nG1_L{tag}:")
        gemm_stage(e, 0, 18, adv)
        gemm_stage(e, 1, 18, adv)
        e(f"s_sub_u32 s30, s30, 1\ns_cmp_lg_u32 s30, 0\ns_cbranch_scc1 G1_L{tag}")
        gemm_stage(e, 16, 18, adv)
        gemm_stage(e, 17, 18, adv)
        e("s_nop 15")
        if "NOEPI" in sys.argv: e("s_branch G1_END")
    e("s_cmp_lt_u32 s13, 9\ns_cbranch_scc1 G1_MAIN\ns_cmp_ge_u32 s13, 14\ns_cbranch_scc1 G1_MAIN")
    SWAP[0] = True
    mainloop("V")
    SWAP[0] = False
    e(f"""
    v_and_b32 v108, 31, v107
    v_lshrrev_b32 v109, 5, v107
    s_lshl_b32 s59, s58, 5
    s_add_u32 s59, s59, s15
    s_sub_u32 s59, s59, 1152
    v_add_u32 v108, s59, v108
    s_lshl_b32 s59, s57, 6
    s_add_u32 s59, s59, s12
    v_lshl_add_u32 v109, v109, 3, s59
    s_movk_i32 s21, 3641
    """)
    for p in range(2):
        if p == 1:
            e("s_cmp_ge_u32 s13, 13\ns_cbranch_scc1 G1_END")
        e(f"""
        v_add_u32 v112, {64*p}, v108
        v_mul_u32_u24 v115, v112, s21
        v_lshrrev_b32 v115, 16, v115
        v_mul_u32_u24 v116, 18, v115
        v_sub_u32 v116, v112, v116
        v_lshl_add_u32 v118, v115, 5, v116
        v_lshl_add_u32 v118, v118, 11, v109
        v_lshlrev_b32 v118, 1, v118
        v_add_u32 v118, {WS_VT}, v118
        """)
        for t in range(2):
            for q in range(4):
                r = ACC + p * 32 + t * 16 + 4 * q
                e(f"v_cvt_pk_bf16_f32 v112, v{r}, v{r+1}")
                e(f"v_cvt_pk_bf16_f32 v113, v{r+2}, v{r+3}")
                e(f"buffer_store_dwordx2 v[112:113], v118, s[60:63], 0 offen offset:{(32*t+16*(q>>1)+4*(q&1))*2}")
                e("s_nop 1")
    e("s_branch G1_END\nG1_MAIN:")
    mainloop("M")
    e("""
    v_and_b32 v108, 31, v107
    v_lshrrev_b32 v109, 5, v107
    s_lshl_b32 s59, s57, 6
    s_add_u32 s59, s59, s12
    v_add_u32 v108, s59, v108
    s_lshl_b32 s59, s58, 5
    s_add_u32 s59, s59, s15
    v_lshl_add_u32 v109, v109, 2, s59
    s_cmp_ge_u32 s13, 14
    s_cbranch_scc1 G1_FFN_EPI
    """)
    e(f"""
    s_mov_b32 s20, {hex(f2u(QSCALE))}
    s_movk_i32 s21, 3641
    """)
    for p in range(2):
        for q in range(4):
            for j in (0, 2):
                noff = p * 64 + 8 * q + j
                e(f"v_add_u32 v112, {noff}, v109")
                e("v_cmp_le_u32 vcc, 576, v112")
                e("s_nop 1")
                e("v_cndmask_b32 v113, 0, 1, vcc")
                e("v_mul_u32_u24 v114, 576, v113")
                e("v_sub_u32 v114, v112, v114")
                e("v_mul_u32_u24 v115, v114, s21")
                e("v_lshrrev_b32 v115, 16, v115")
                e("v_mul_u32_u24 v116, 18, v115")
                e("v_sub_u32 v116, v114, v116")
                e("v_lshl_add_u32 v117, v115, 11, v108")
                e("v_lshlrev_b32 v117, 6, v117")
                e("v_lshl_add_u32 v117, v116, 1, v117")
                e("v_lshl_add_u32 v117, v113, 22, v117")
                e(f"v_add_u32 v117, {WS_QP}, v117")
                for t in range(2):
                    r = ACC + p * 32 + t * 16 + 4 * q + j
                    e(f"v_mul_f32 v120, s20, v{r}")
                    e(f"v_mul_f32 v121, s20, v{r+1}")
                    e(f"v_cndmask_b32 v120, v120, v{r}, vcc")
                    e(f"v_cndmask_b32 v121, v121, v{r+1}, vcc")
                    e("v_cvt_pk_bf16_f32 v120, v120, v121")
                    e(f"buffer_store_dword v120, v117, s[60:63], 0 offen offset:{2048*t}")
    e("s_branch G1_END")
    e("G1_FFN_EPI:")
    e(f"""
    v_and_b32 v108, 31, v107
    v_lshrrev_b32 v109, 5, v107
    s_lshl_b32 s59, s57, 6
    v_add_u32 v108, s59, v108
    v_mul_u32_u24 v110, 144, v108
    v_lshl_add_u32 v110, v109, 3, v110
    s_lshl_b32 s59, s58, 6
    v_add_u32 v110, s59, v110
    s_mov_b32 s20, {hex(f2u(-LOG2E))}
    """)
    for t in range(2):
        for q in range(4):
            for j in range(4):
                e(f"v_mul_f32 v{64+j}, s20, v{t*16+4*q+j}")
            for j in range(4):
                e(f"v_exp_f32 v{64+j}, v{64+j}")
            for j in range(4):
                e(f"v_mul_f32 v{114+j}, v{t*16+4*q+j}, v{32+t*16+4*q+j}")
            for j in range(4):
                e(f"v_add_f32 v{64+j}, 1.0, v{64+j}")
            for j in range(4):
                e(f"v_rcp_f32 v{64+j}, v{64+j}")
            e("s_nop 0")
            for j in range(4):
                e(f"v_mul_f32 v{114+j}, v{114+j}, v{64+j}")
            e("v_cvt_pk_bf16_f32 v112, v114, v115")
            e("v_cvt_pk_bf16_f32 v113, v116, v117")
            e(f"ds_write_b64 v110, v[112:113] offset:{t*32*144 + 16*q}")
    e(f"""
    s_lshl_b32 s59, s56, 6
    v_add_u32 v109, s59, v107
    v_lshrrev_b32 v108, 3, v109
    v_and_b32 v109, 7, v109
    v_mul_u32_u24 v110, 144, v108
    v_lshl_add_u32 v110, v109, 4, v110
    v_add_u32 v108, s12, v108
    s_movk_i32 s20, 9216
    v_mul_lo_u32 v111, v108, s20
    v_lshl_add_u32 v111, v109, 4, v111
    s_lshl_b32 s59, s15, 1
    s_add_u32 s59, s59, {WS_H}
    v_add_u32 v111, s59, v111
    s_waitcnt lgkmcnt(0)
    s_barrier
    """)
    for i in range(4):
        e(f"ds_read_b128 v[{64+4*i}:{67+4*i}], v110 offset:{i*32*144}")
    for i in range(4):
        e(f"s_waitcnt lgkmcnt({3-i})")
        e(f"s_mov_b32 s59, {i*32*9216}")
        e(f"buffer_store_dwordx4 v[{64+4*i}:{67+4*i}], v111, s[60:63], s59 offen")
    e("G1_END:\ns_endpgm")

WS_P = 48 * MB
def gen_gemm2(e):
    header(e, "gemm2_kernel")
    e(f"""
    s_cmp_ge_u32 s2, 320
    s_cbranch_scc1 G2_END
    s_load_dwordx2 s[4:5], s[0:1], 16
    s_load_dwordx2 s[6:7], s[0:1], 48
    s_load_dwordx2 s[10:11], s[0:1], 72
    s_bfe_u32 s28, s2, 0x20001
    s_and_b32 s12, s2, 1
    s_lshl_b32 s12, s12, 3
    s_bfe_u32 s13, s2, 0x30003
    s_add_u32 s12, s12, s13      ; mtile
    s_lshr_b32 s13, s2, 6        ; ntile
    s_lshl_b32 s12, s12, 7
    s_lshl_b32 s15, s13, 7
    """)
    gemm_setup_common(e, 12)
    e("s_waitcnt lgkmcnt(0)")
    e("s_movk_i32 s16, 1152\ns_lshl_b32 s17, s16, 5\ns_mov_b32 s43, 0x00020000\ns_mov_b32 s51, 0x00020000")
    gemm_setup_w(e, 15, 16)
    def adv(e):
        e("s_add_u32 s52, s52, 64")
        e("s_add_u32 s53, s53, s17")
    def adv_switch(e):
        e(f"s_add_u32 s40, s10, {WS_H}\ns_addc_u32 s41, s11, 0\ns_and_b32 s41, s41, 0xffff")
        e(f"s_mov_b32 s42, {S_*F_*2}")
        srd(e, 44, 6, 7, F_ * D_ * 2)
        e(f"""
        s_add_u32 s48, s6, 128
        s_addc_u32 s49, s7, 0
        s_and_b32 s49, s49, 0xffff
        s_mov_b32 s50, {F_*D_*2-128}
        s_movk_i32 s14, 9216
        """)
        gemm_setup_x(e, 12, 14)
    e("s_cmp_lg_u32 s28, 0\ns_cbranch_scc1 G2_S1")
    e(f"s_add_u32 s40, s10, {WS_O}\ns_addc_u32 s41, s11, 0\ns_and_b32 s41, s41, 0xffff")
    e(f"s_mov_b32 s42, {S_*D_*2}")
    srd(e, 44, 4, 5, D_ * D_ * 2)
    e(f"""
    s_add_u32 s48, s4, 128
    s_addc_u32 s49, s5, 0
    s_and_b32 s49, s49, 0xffff
    s_mov_b32 s50, {D_*D_*2-128}
    s_movk_i32 s14, 1152
    """)
    gemm_setup_x(e, 12, 14)
    e("s_mov_b32 s52, 0\ns_mov_b32 s53, 0\ns_nop 4")
    gemm_dma(e, 0)
    NST = 81
    for st in range(17):
        gemm_stage(e, st, NST, adv)
    def adv_sw0(e):
        adv_switch(e)
        e("s_mov_b32 s52, 0\ns_mov_b32 s53, 0\ns_nop 4")
    gemm_stage(e, 17, NST, adv_sw0)
    e("s_mov_b32 s30, 11\ns_branch G2_LOOP\nG2_S1:")
    adv_switch(e)
    e("""
    s_mul_i32 s29, s28, 40
    s_sub_u32 s29, s29, 16
    s_lshl_b32 s52, s29, 6
    s_mul_i32 s53, s29, s17
    s_mov_b32 s30, 19
    s_nop 4
    """)
    gemm_dma(e, 0)
    e("G2_LOOP:")
    gemm_stage(e, 18, NST, adv)
    gemm_stage(e, 19, NST, adv)
    e("s_sub_u32 s30, s30, 1\ns_cmp_lg_u32 s30, 0\ns_cbranch_scc1 G2_LOOP")
    gemm_stage(e, 78, 80, adv)
    gemm_stage(e, 79, 80, adv)
    e("s_nop 15")
    e(f"""
    s_mul_i32 s29, s28, {S_*D_*4}
    s_add_u32 s29, s29, {WS_P}
    s_add_u32 s60, s10, s29
    s_addc_u32 s61, s11, 0
    s_and_b32 s61, s61, 0xffff
    s_mov_b32 s62, {S_*D_*4}
    s_mov_b32 s63, 0x00020000
    v_and_b32 v108, 31, v107
    v_lshrrev_b32 v109, 5, v107
    s_lshl_b32 s59, s57, 6
    s_add_u32 s59, s59, s12
    v_add_u32 v108, s59, v108
    s_lshl_b32 s59, s58, 5
    s_add_u32 s59, s59, s15
    v_lshl_add_u32 v109, v109, 2, s59
    s_movk_i32 s20, 2304
    v_mul_lo_u32 v110, v108, s20
    v_lshl_add_u32 v110, v109, 2, v110
    v_add_u32 v111, {32*2304}, v110
    """)
    for p in range(2):
        if p == 1:
            e("s_cmp_ge_u32 s13, 4\ns_cbranch_scc1 G2_END")
        for t in range(2):
            for q in range(4):
                r = ACC + p * 32 + t * 16 + 4 * q
                e(f"buffer_store_dwordx4 v[{r}:{r+3}], v{110+t}, s[60:63], 0 offen offset:{p*256+32*q}")
    e("G2_END:\ns_endpgm")

def gen_red(e):
    header(e, "red_kernel")
    e(f"""
    s_cmp_ge_u32 s2, 1152
    s_cbranch_scc1 RD_END
    s_load_dwordx2 s[4:5], s[0:1], 0
    s_load_dwordx2 s[6:7], s[0:1], 56
    s_load_dwordx2 s[10:11], s[0:1], 72
    s_lshl_b32 s3, s2, 8
    v_add_u32 v1, s3, v0
    v_lshlrev_b32 v2, 4, v1
    v_lshlrev_b32 v3, 3, v1
    s_waitcnt lgkmcnt(0)
    s_add_u32 s10, s10, {WS_P}
    s_addc_u32 s11, s11, 0
    """)
    srd(e, 12, 4, 5, S_*D_*2); srd(e, 16, 6, 7, S_*D_*2); srd(e, 20, 10, 11, S_*D_*16)
    e("buffer_load_dwordx2 v[4:5], v3, s[12:15], 0 offen")
    for i in range(4):
        e(f"s_mov_b32 s24, {i*S_*D_*4}")
        e(f"buffer_load_dwordx4 v[{8+4*i}:{11+4*i}], v2, s[20:23], s24 offen")
    e("s_waitcnt vmcnt(4)")
    e("v_lshlrev_b32 v24, 16, v4\nv_and_b32 v25, 0xffff0000, v4\nv_lshlrev_b32 v26, 16, v5\nv_and_b32 v27, 0xffff0000, v5")
    for i in range(4):
        e(f"s_waitcnt vmcnt({3-i})")
        for j in range(4):
            e(f"v_add_f32 v{24+j}, v{24+j}, v{8+4*i+j}")
    e("v_cvt_pk_bf16_f32 v4, v24, v25\nv_cvt_pk_bf16_f32 v5, v26, v27")
    e("buffer_store_dwordx2 v[4:5], v3, s[16:19], 0 offen")
    e("RD_END:\ns_endpgm")

def gen_attn(e):
    header(e, "attn_kernel")
    e(f"""
    s_cmp_ge_u32 s2, 256
    s_cbranch_scc1 AT_END
    s_load_dwordx2 s[10:11], s[0:1], 72
    s_and_b32 s4, s2, 7
    s_lshl_b32 s4, s4, 2
    s_bfe_u32 s5, s2, 0x20003
    s_add_u32 s4, s4, s5          ; head
    s_lshr_b32 s5, s2, 5          ; qblock
    v_and_b32 v107, 63, v0
    v_lshrrev_b32 v108, 6, v0
    s_nop 0
    v_readfirstlane_b32 s56, v108
    v_and_b32 v108, 31, v107      ; l32
    v_lshrrev_b32 v109, 5, v107   ; h
    s_waitcnt lgkmcnt(0)
    """)
    srd(e, 40, 10, 11, WS_SIZE)
    e(f"""
    s_lshl_b32 s6, s4, 11
    s_lshl_b32 s7, s5, 8
    s_add_u32 s6, s6, s7
    s_lshl_b32 s7, s56, 5
    s_add_u32 s6, s6, s7          ; head*2048 + q0
    v_add_u32 v110, s6, v108
    v_lshlrev_b32 v110, 6, v110
    v_lshl_add_u32 v110, v109, 4, v110
    v_add_u32 v110, {WS_QP}, v110
    buffer_load_dwordx4 v[64:67], v110, s[40:43], 0 offen
    buffer_load_dwordx4 v[68:71], v110, s[40:43], 0 offen offset:32
    """)
    e(f"""
    s_lshl_b32 s7, s4, 17
    s_add_u32 s7, s7, {WS_KP}
    s_lshl_b32 s8, s56, 12
    s_add_u32 s7, s7, s8
    v_lshrrev_b32 v111, 2, v107
    v_lshlrev_b32 v111, 6, v111
    v_and_b32 v112, 3, v107
    v_bfe_u32 v113, v107, 4, 2
    v_xor_b32 v112, v112, v113
    v_lshl_add_u32 v111, v112, 4, v111
    v_add_u32 v96, s7, v111
    s_lshl_b32 s7, s4, 17
    s_add_u32 s7, s7, {WS_VT}
    s_lshl_b32 s8, s56, 2
    """)
    for j in range(4):
        e(f"""
        s_add_u32 s9, s8, {j}
        s_and_b32 s12, s9, 15
        v_xor_b32 v113, s12, v107
        s_lshl_b32 s9, s9, 12
        s_add_u32 s9, s9, s7
        v_lshl_add_u32 v{129+j}, v113, 4, s9
        """)
    e("""
    v_bfe_u32 v111, v107, 2, 2
    v_lshlrev_b32 v112, 6, v108
    """)
    for ks in range(2):
        e(f"v_or_b32 v113, {2*ks}, v109")
        e("v_xor_b32 v113, v113, v111")
        e(f"v_lshl_add_u32 v{100+ks}, v113, 4, v112")
    e("v_and_b32 v111, 15, v107\nv_lshlrev_b32 v112, 10, v108\nv_add_u32 v112, 32768, v112")
    VA = 121
    for c in range(8):
        e(f"v_or_b32 v113, {2*c}, v109")
        e("v_xor_b32 v113, v113, v111")
        e(f"v_lshl_add_u32 v{VA+c}, v113, 4, v112")
    e("s_lshl_b32 s54, s56, 12\ns_mov_b32 s52, 0\ns_mov_b32 s53, 0")
    for i in range(16):
        e(f"v_mov_b32 v{i}, 0")
        e(f"v_mov_b32 v{48+i}, 0")
    e("v_mov_b32 v102, 0xff800000\ns_mov_b64 s[34:35], -1")
    def dma(buf):
        sb = buf * 65536
        for j in range(4):
            e(f"s_add_u32 m0, s54, {sb + j*1024}\ns_nop 0")
            e(f"buffer_load_dwordx4 v96, s[40:43], s52 offen offset:0 lds" if j == 0 else
              f"buffer_load_dwordx4 v{133+j-1}, s[40:43], s52 offen lds")
        for j in range(4):
            e(f"s_add_u32 m0, s54, {sb + 32768 + j*1024}\ns_nop 0")
            e(f"buffer_load_dwordx4 v{129+j}, s[40:43], s53 offen lds")
    for j in range(1, 4):
        e(f"v_add_u32 v{133+j-1}, {1024*j}, v96")
    dma(0)
    KF = [72, 138]
    VF = [80, 146]
    SB = [16, 32]
    def kread(sb, tile):
        kf = KF[tile & 1]
        for ks in range(2):
            e(f"ds_read_b128 v[{kf+4*ks}:{kf+3+4*ks}], v{100+ks} offset:{sb + tile*2048}")
    def vread(sb, tile):
        vf = VF[tile & 1]
        for c in range(2):
            cc = 2*tile + c
            e(f"ds_read_b128 v[{vf+4*c}:{vf+3+4*c}], v{VA + (cc&7)} offset:{sb + (cc>>3)*256}")
    def smfma(tile):
        kf = KF[tile & 1]; S = SB[tile & 1]
        e(f"v_mfma_f32_32x32x16_bf16 v[{S}:{S+15}], v[{kf}:{kf+3}], v[64:67], v[48:63]")
        e(f"v_mfma_f32_32x32x16_bf16 v[{S}:{S+15}], v[{kf+4}:{kf+7}], v[68:71], v[{S}:{S+15}]")
    e("s_mov_b32 s30, 0\nAT_LOOP:")
    e("s_add_u32 s52, s52, 32768\ns_add_u32 s53, s53, 1024\ns_xor_b32 s54, s54, 0x10000")
    dma(0)
    e("s_waitcnt vmcnt(8)\ns_barrier")
    kread(0, 0); kread(0, 1); vread(0, 0)
    e("s_waitcnt lgkmcnt(4)")
    smfma(0)
    e("s_nop 7\ns_mov_b32 s31, 0\nAT_IN:")
    for tile in range(4):
        S = SB[tile & 1]; vf = VF[tile & 1]
        e("s_waitcnt lgkmcnt(2)")
        smfma(tile + 1)
        kread(0, tile + 2)
        vread(0, tile + 1)
        e(f"v_max3_f32 v103, v{S}, v{S+1}, v{S+2}")
        for i in range(3, 15, 2):
            e(f"v_max3_f32 v103, v103, v{S+i}, v{S+i+1}")
        e(f"v_max_f32 v103, v103, v{S+15}")
        e("v_cmp_lt_f32 vcc, 0x41000000, v103")
        e("s_or_b64 vcc, vcc, s[34:35]")
        e(f"s_cbranch_vccnz AT_SLOW{tile}")
        e(f"AT_F{tile}:")
        for i in range(16):
            if "NOEXP" not in sys.argv: e(f"v_exp_f32 v{S+i}, v{S+i}")
        for i in range(8):
            e(f"v_cvt_pk_bf16_f32 v{88+i}, v{S+2*i}, v{S+1+2*i}")
        e("s_waitcnt lgkmcnt(4)\ns_nop 1")
        e(f"v_mfma_f32_32x32x16_bf16 v[0:15], v[{vf}:{vf+3}], v[88:91], v[0:15]")
        e(f"v_mfma_f32_32x32x16_bf16 v[0:15], v[{vf+4}:{vf+7}], v[92:95], v[0:15]")
    e("v_add_u32 v100, 8192, v100\nv_add_u32 v101, 8192, v101")
    for r in range(VA, VA+8):
        e(f"v_add_u32 v{r}, 256, v{r}")
    e("s_add_u32 s31, s31, 1\ns_cmp_lt_u32 s31, 4\ns_cbranch_scc1 AT_IN")
    e("v_subrev_u32 v100, 32768, v100\nv_subrev_u32 v101, 32768, v101")
    for r in range(VA, VA+8):
        e(f"v_subrev_u32 v{r}, 1024, v{r}")
    for r in [100, 101] + list(range(VA, VA+8)):
        e(f"v_xor_b32 v{r}, 0x10000, v{r}")
    e("s_waitcnt lgkmcnt(0)\ns_barrier")
    e("s_add_u32 s30, s30, 1\ns_cmp_lt_u32 s30, 4\ns_cbranch_scc1 AT_LOOP")
    e("s_branch AT_FIN")
    for tile in range(4):
        S = SB[tile & 1]; S2 = SB[(tile & 1) ^ 1]
        e(f"AT_SLOW{tile}:")
        e("v_mov_b32 v104, v103\ns_nop 1")
        e("v_permlane32_swap_b32 v103, v104")
        e("s_nop 1")
        e("v_max3_f32 v103, v103, v104, v102")
        e("v_mov_b32 v102, 0\ns_mov_b64 s[34:35], 0")
        e("v_exp_f32 v104, -v103")
        e("s_nop 7\ns_nop 7")
        for i in range(16):
            e(f"v_sub_f32 v{S+i}, v{S+i}, v103")
            e(f"v_sub_f32 v{48+i}, v{48+i}, v103")
            e(f"v_mul_f32 v{i}, v{i}, v104")
            e(f"v_sub_f32 v{S2+i}, v{S2+i}, v103")
        e(f"s_branch AT_F{tile}")
    e("AT_FIN:")
    e("s_nop 15")
    e(f"""
    v_rcp_f32 v103, v10
    s_lshl_b32 s6, s5, 8
    s_lshl_b32 s7, s56, 5
    s_add_u32 s6, s6, s7
    v_add_u32 v110, s6, v108
    s_movk_i32 s8, 1152
    v_mul_lo_u32 v110, v110, s8
    s_mul_i32 s8, s4, 36
    s_add_u32 s8, s8, {WS_O}
    v_add_u32 v110, s8, v110
    v_lshl_add_u32 v110, v109, 3, v110
    """)
    for i in range(10):
        e(f"v_mul_f32 v{i}, v{i}, v103")
    for q in range(2):
        e(f"v_cvt_pk_bf16_f32 v{104+2*q}, v{4*q}, v{4*q+1}")
        e(f"v_cvt_pk_bf16_f32 v{105+2*q}, v{4*q+2}, v{4*q+3}")
        e(f"buffer_store_dword v{104+2*q}, v110, s[40:43], 0 offen offset:{16*q}")
        e(f"buffer_store_dword v{105+2*q}, v110, s[40:43], 0 offen offset:{16*q+4}")
    e("""
    v_cvt_pk_bf16_f32 v111, v8, v9
    v_cmp_eq_u32 vcc, 0, v109
    s_and_saveexec_b64 s[24:25], vcc
    s_cbranch_execz AT_SK
    buffer_store_dword v111, v110, s[40:43], 0 offen offset:32
    AT_SK:
    s_or_b64 exec, exec, s[24:25]
    AT_END:
    s_endpgm
    """)

def main():
    e = E()
    hdr = open("parallel_sum__mha_block__glu_gated_swiglu__prompt.s.ref").read().split("; Override")[0]
    txt = hdr
    txt += "; @launch kernel=ln_kernel grid=(256,1,1) block=(256,1,1) lds=0\n"
    txt += f"; @launch kernel=gemm1_kernel grid=(1408,1,1) block=(256,1,1) lds=32768\n"
    txt += "; @launch kernel=attn_kernel grid=(256,1,1) block=(512,1,1) lds=131072\n"
    txt += "; @launch kernel=gemm2_kernel grid=(320,1,1) block=(256,1,1) lds=32768\n"
    txt += "; @launch kernel=red_kernel grid=(1152,1,1) block=(256,1,1) lds=0\n"
    txt += '.amdgcn_target "amdgcn-amd-amdhsa--gfx950"\n.text\n'
    gen_ln(e); gen_gemm1(e); gen_attn(e); gen_gemm2(e); gen_red(e)
    txt += e.text()
    txt += kd("ln_kernel", 72) + kd("gemm1_kernel", 128) + kd("attn_kernel", 160) + kd("gemm2_kernel", 128) + kd("red_kernel", 32)
    open(OUT, "w").write(txt)
    print("wrote", len(txt))
main()
```

```python
import sys
OUT = "parallel_sum__mha_block__glu_gated_swiglu__prompt.s" if len(sys.argv)<2 else "var_"+sys.argv[1]+".s"

MB = 1 << 20
WS_XN = 0
WS_QP = 4 * MB
WS_KP = 8 * MB
WS_VT = 12 * MB
WS_H = 16 * MB
WS_O = 40 * MB
WS_SIZE = 268435456

S_, D_, F_, H_ = 2048, 576, 4608, 32
LOG2E = 1.4426950408889634
QSCALE = LOG2E * (18 ** -0.5)

import struct
def f2u(x):
    return struct.unpack("<I", struct.pack("<f", x))[0]

class E:
    def __init__(self):
        self.l = []
    def __call__(self, s):
        for ln in s.strip("\n").split("\n"):
            self.l.append("  " + ln.strip() if not ln.strip().endswith(":") else ln.strip())
    def text(self):
        return "\n".join(self.l) + "\n"

def srd(e, d, base_lo, base_hi, nbytes):
    e(f"s_mov_b32 s{d}, s{base_lo}")
    e(f"s_and_b32 s{d+1}, s{base_hi}, 0xffff")
    e(f"s_mov_b32 s{d+2}, {nbytes}")
    e(f"s_mov_b32 s{d+3}, 0x00020000")

def header(e, name):
    e(f".globl {name}\n.p2align 8\n.type {name},@function\n{name}:")

def kd(name, vgpr, sgpr=102):
    acc = (vgpr + 3) // 4 * 4
    return f""".section .rodata,"a"
.p2align 6
.amdhsa_kernel {name}
  .amdhsa_next_free_vgpr {vgpr}
  .amdhsa_next_free_sgpr {sgpr}
  .amdhsa_accum_offset {acc}
  .amdhsa_group_segment_fixed_size 0
  .amdhsa_kernarg_size 80
  .amdhsa_user_sgpr_count 2
  .amdhsa_user_sgpr_kernarg_segment_ptr 1
  .amdhsa_system_sgpr_workgroup_id_x 1
.end_amdhsa_kernel
"""

def gen_ln(e):
    header(e, "ln_kernel")
    e("""
    s_cmp_ge_u32 s2, 256
    s_cbranch_scc1 LN_END
    s_load_dwordx2 s[4:5], s[0:1], 0
    s_load_dwordx2 s[6:7], s[0:1], 72
    s_lshl_b32 s3, s2, 8
    v_add_u32 v1, s3, v0
    v_lshrrev_b32 v2, 5, v1
    v_and_b32 v3, 31, v1
    s_movk_i32 s20, 1152
    v_mul_lo_u32 v4, v2, s20
    v_lshl_add_u32 v4, v3, 2, v4
    s_waitcnt lgkmcnt(0)
    """)
    srd(e, 8, 4, 5, S_ * D_ * 2)
    srd(e, 12, 6, 7, WS_SIZE)
    for i in range(9):
        e(f"buffer_load_dword v{10+i}, v4, s[8:11], 0 offen offset:{128*i}")
    e(f"""
    v_mov_b32 v40, 0
    v_mov_b32 v41, 0
    v_mov_b32 v42, 0
    v_mov_b32 v43, 0
    v_lshlrev_b32 v5, 6, v1
    v_add_u32 v6, {WS_QP}, v5
    v_add_u32 v7, {WS_KP}, v5
    buffer_store_dword v40, v6, s[12:15], 0 offen offset:36
    buffer_store_dwordx2 v[40:41], v6, s[12:15], 0 offen offset:40
    buffer_store_dwordx4 v[40:43], v6, s[12:15], 0 offen offset:48
    buffer_store_dword v40, v7, s[12:15], 0 offen offset:36
    buffer_store_dwordx2 v[40:41], v7, s[12:15], 0 offen offset:40
    buffer_store_dwordx4 v[40:43], v7, s[12:15], 0 offen offset:48
    """)
    for rep in range(2):
        e(f"v_add_u32 v30, {rep*65536}, v1")
        magic = -(-(1 << 32) // 3584)
        e(f"""
        s_mov_b32 s21, {magic}
        v_mul_hi_u32 v31, v30, s21
        s_movk_i32 s21, 3584
        v_mul_lo_u32 v32, v31, s21
        v_sub_u32 v32, v30, v32
        v_lshrrev_b32 v33, 8, v32
        v_and_b32 v34, 255, v32
        v_add_u32 v33, 18, v33
        v_lshl_add_u32 v35, v31, 5, v33
        v_lshlrev_b32 v35, 12, v35
        v_lshl_add_u32 v35, v34, 4, v35
        v_add_u32 v35, {WS_VT}, v35
        v_cmp_eq_u32 vcc, 18, v33
        v_cmp_eq_u32 s[22:23], 22, v33
        s_or_b64 vcc, vcc, s[22:23]
        v_mov_b32 v36, 0x3f803f80
        s_nop 1
        v_cndmask_b32 v44, 0, v36, vcc
        v_mov_b32 v45, v44
        v_mov_b32 v46, v44
        v_mov_b32 v47, v44
        v_cmp_gt_u32 vcc, 114688, v30
        s_and_saveexec_b64 s[24:25], vcc
        s_cbranch_execz LN_SK{rep}
        buffer_store_dwordx4 v[44:47], v35, s[12:15], 0 offen
        LN_SK{rep}:
        s_or_b64 exec, exec, s[24:25]
        s_nop 2
        """)
    if "NOPF" not in sys.argv:
        e("s_load_dwordx2 s[26:27], s[0:1], 8\ns_load_dwordx2 s[28:29], s[0:1], 32\ns_load_dwordx2 s[30:31], s[0:1], 40\ns_load_dwordx2 s[38:39], s[0:1], 48\ns_load_dwordx2 s[44:45], s[0:1], 16\nv_lshlrev_b32 v70, 4, v1\ns_waitcnt lgkmcnt(0)")
        for (lo, nb) in ((26, D_*1728*2), (28, D_*F_*2), (30, D_*F_*2), (38, D_*F_*2), (44, D_*D_*2)):
            srd(e, 32, lo, lo+1, nb)
            for i in range((nb + (1<<20) - 1) >> 20):
                e(f"s_mov_b32 s36, {i<<20}")
                e(f"buffer_load_dword v71, v70, s[32:35], s36 offen")
    e("s_waitcnt vmcnt(0)")
    for i in range(9):
        e(f"v_lshlrev_b32 v{50+2*i}, 16, v{10+i}")
        e(f"v_and_b32 v{51+2*i}, 0xffff0000, v{10+i}")
    e("v_add_f32 v20, v50, v51")
    for i in range(2, 18):
        e(f"v_add_f32 v20, v20, v{50+i}")
    def red(v):
        for x in (1, 2, 4, 8, 16):
            e(f"ds_swizzle_b32 v21, v{v} offset:{(x<<10)|0x1f}")
            e("s_waitcnt lgkmcnt(0)")
            e(f"v_add_f32 v{v}, v{v}, v21")
    red(20)
    e(f"v_mul_f32 v20, {hex(f2u(1.0/576))}, v20")
    for i in range(18):
        e(f"v_sub_f32 v{50+i}, v{50+i}, v20")
    e("v_mul_f32 v22, v50, v50")
    for i in range(1, 18):
        e(f"v_fmac_f32 v22, v{50+i}, v{50+i}")
    red(22)
    e(f"v_mov_b32 v23, {hex(f2u(1e-5))}")
    e(f"v_fmac_f32 v23, {hex(f2u(1.0/576))}, v22")
    e("v_rsq_f32 v23, v23")
    e("s_nop 1")
    for i in range(18):
        e(f"v_mul_f32 v{50+i}, v{50+i}, v23")
    for i in range(9):
        e(f"v_cvt_pk_bf16_f32 v{10+i}, v{50+2*i}, v{51+2*i}")
    for i in range(9):
        e(f"buffer_store_dword v{10+i}, v4, s[12:15], 0 offen offset:{128*i}")
    e("LN_END:\ns_endpgm")

ACC = 0
def acc(p, t):
    b = ACC + p * 32 + t * 16
    return f"v[{b}:{b+15}]"

def gemm_dma(e, buf):
    if "NODMA" in sys.argv: return
    sb = buf * 16384
    for i in range(2):
        e(f"s_add_u32 m0, s54, {sb + i*1024}")
        e("s_nop 0")
        e(f"buffer_load_dwordx4 v{96+i}, s[40:43], s52 offen lds")
    for p in range(2):
        e(f"s_add_u32 m0, s55, {sb + p*4096}")
        e("s_nop 0")
        e(f"buffer_load_dwordx4 v100, s[{44+4*p}:{47+4*p}], s53 offen lds")

def gemm_reads(e, buf, ks):
    fs = 64 + (ks & 1) * 16
    sb = buf * 16384
    for p in range(2):
        for h2 in range(2):
            e(f"ds_read_b64_tr_b16 v[{fs+4*p+2*h2}:{fs+4*p+2*h2+1}], v106 offset:{sb + p*4096 + ks*2048 + h2*512}")
    for t in range(2):
        e(f"ds_read_b128 v[{fs+8+4*t}:{fs+11+4*t}], v{102+ks} offset:{sb + t*2048}")

SWAP = [False]
def gemm_compute(e, buf):
    gemm_reads(e, buf, 0)
    for ks in range(2):
        if ks < 1:
            gemm_reads(e, buf, ks + 1)
            e("s_waitcnt lgkmcnt(6)")
        else:
            e("s_waitcnt lgkmcnt(0)")
        fs = 64 + (ks & 1) * 16
        for p in range(2):
            for t in range(2):
                wfr = f"v[{fs+4*p}:{fs+4*p+3}]"; xfr = f"v[{fs+8+4*t}:{fs+11+4*t}]"
                if SWAP[0]: wfr, xfr = xfr, wfr
                if "NOMF" not in sys.argv: e(f"v_mfma_f32_32x32x16_bf16 {acc(p,t)}, {wfr}, {xfr}, {acc(p,t)}")

def gemm_setup_common(e, m0_sreg):
    e("""
    v_and_b32 v107, 63, v0
    v_lshrrev_b32 v108, 6, v0
    s_nop 0
    v_readfirstlane_b32 s56, v108
    """)
    for i in range(64):
        e(f"v_mov_b32 v{i}, 0")
    e("""
    s_lshr_b32 s57, s56, 1
    s_and_b32 s58, s56, 1
    v_and_b32 v108, 31, v107
    v_lshrrev_b32 v109, 5, v107
    v_bfe_u32 v110, v107, 2, 2
    s_lshl_b32 s59, s57, 12
    v_lshlrev_b32 v111, 6, v108
    v_add_u32 v111, s59, v111
    """)
    for ks in range(2):
        e(f"v_or_b32 v112, {2*ks}, v109")
        e("v_xor_b32 v112, v112, v110")
        e(f"v_lshl_add_u32 v{102+ks}, v112, 4, v111")
    e("""
    v_bfe_u32 v108, v107, 2, 2
    v_lshl_add_u32 v108, v109, 3, v108
    v_lshlrev_b32 v108, 7, v108
    v_bfe_u32 v110, v107, 3, 1
    v_xor_b32 v110, s58, v110
    v_lshl_add_u32 v108, v110, 6, v108
    v_bfe_u32 v110, v107, 4, 1
    v_lshl_add_u32 v108, v110, 5, v108
    v_and_b32 v110, 3, v107
    v_lshl_add_u32 v108, v110, 3, v108
    v_add_u32 v106, 8192, v108
    s_lshl_b32 s54, s56, 11
    s_lshl_b32 s55, s56, 10
    s_add_u32 s55, s55, 8192
    """)

def gemm_setup_x(e, m0_sreg, stride_sreg):
    e(f"""
    s_lshl_b32 s59, s56, 5
    s_add_u32 s59, s59, s{m0_sreg}
    v_lshrrev_b32 v108, 2, v107
    v_add_u32 v108, s59, v108
    v_and_b32 v109, 3, v107
    v_bfe_u32 v110, v107, 4, 2
    v_xor_b32 v112, v109, v110
    """)
    for i in range(2):
        e(f"v_add_u32 v111, {16*i}, v108")
        e(f"v_mul_lo_u32 v111, v111, s{stride_sreg}")
        e(f"v_lshl_add_u32 v{96+i}, v112, 4, v111")

def gemm_setup_w(e, ncol_sreg, stride_sreg):
    e(f"""
    s_lshl_b32 s59, s56, 3
    v_lshrrev_b32 v108, 3, v107
    v_add_u32 v108, s59, v108
    v_and_b32 v109, 7, v107
    v_bfe_u32 v110, v107, 4, 1
    v_lshlrev_b32 v110, 2, v110
    v_xor_b32 v109, v109, v110
    v_lshlrev_b32 v109, 4, v109
    s_lshl_b32 s59, s{ncol_sreg}, 1
    v_add_u32 v109, s59, v109
    v_mul_lo_u32 v111, v108, s{stride_sreg}
    v_add_u32 v100, v111, v109
    """)

def gemm_stage(e, s, nst, adv):
    buf = s & 1
    if s + 1 < nst:
        adv(e)
        gemm_dma(e, buf ^ 1)
        e("s_waitcnt vmcnt(4)")
    else:
        e("s_waitcnt vmcnt(0)")
    e("s_barrier")
    gemm_compute(e, buf)
    e("s_barrier")

NT1 = 14 + 72
def gen_gemm1(e):
    header(e, "gemm1_kernel")
    e(f"""
    s_cmp_ge_u32 s2, 1408
    s_cbranch_scc1 G1_END
    s_load_dwordx2 s[4:5], s[0:1], 8
    s_load_dwordx2 s[6:7], s[0:1], 32
    s_load_dwordx2 s[8:9], s[0:1], 40
    s_load_dwordx2 s[10:11], s[0:1], 72
    s_bfe_u32 s12, s2, 0x40003
    s_lshr_b32 s13, s2, 7
    s_lshl_b32 s13, s13, 3
    s_and_b32 s14, s2, 7
    s_add_u32 s13, s13, s14
    s_lshl_b32 s12, s12, 7
    s_cmp_ge_u32 s13, {NT1}
    s_cbranch_scc1 G1_END
    """)
    gemm_setup_common(e, 12)
    e("s_waitcnt lgkmcnt(0)")
    srd(e, 40, 10, 11, S_ * D_ * 2)
    srd(e, 60, 10, 11, WS_SIZE)
    e(f"""
    s_movk_i32 s14, 1152
    s_cmp_ge_u32 s13, 14
    s_cbranch_scc1 G1_FFN_SETUP
    """)
    srd(e, 44, 4, 5, D_ * 1728 * 2)
    e(f"""
    s_add_u32 s48, s4, 128
    s_addc_u32 s49, s5, 0
    s_and_b32 s49, s49, 0xffff
    s_mov_b32 s50, {D_*1728*2-128}
    s_mov_b32 s51, 0x00020000
    s_lshl_b32 s15, s13, 7
    s_movk_i32 s16, 3456
    s_branch G1_SETUP_DONE
    G1_FFN_SETUP:
    """)
    srd(e, 44, 6, 7, D_ * F_ * 2)
    srd(e, 48, 8, 9, D_ * F_ * 2)
    e(f"""
    s_sub_u32 s15, s13, 14
    s_lshl_b32 s15, s15, 6
    s_movk_i32 s16, 9216
    G1_SETUP_DONE:
    s_lshl_b32 s17, s16, 5
    """)
    gemm_setup_x(e, 12, 14)
    gemm_setup_w(e, 15, 16)
    e("s_mov_b32 s52, 0\ns_mov_b32 s53, 0\ns_nop 4")
    gemm_dma(e, 0)
    def adv(e):
        e("s_add_u32 s52, s52, 64")
        e("s_add_u32 s53, s53, s17")
    def mainloop(tag):
        e(f"s_mov_b32 s30, 8\nG1_L{tag}:")
        gemm_stage(e, 0, 18, adv)
        gemm_stage(e, 1, 18, adv)
        e(f"s_sub_u32 s30, s30, 1\ns_cmp_lg_u32 s30, 0\ns_cbranch_scc1 G1_L{tag}")
        gemm_stage(e, 16, 18, adv)
        gemm_stage(e, 17, 18, adv)
        e("s_nop 15")
        if "NOEPI" in sys.argv: e("s_branch G1_END")
    e("s_cmp_lt_u32 s13, 9\ns_cbranch_scc1 G1_MAIN\ns_cmp_ge_u32 s13, 14\ns_cbranch_scc1 G1_MAIN")
    SWAP[0] = True
    mainloop("V")
    SWAP[0] = False
    e(f"""
    v_and_b32 v108, 31, v107
    v_lshrrev_b32 v109, 5, v107
    s_lshl_b32 s59, s58, 5
    s_add_u32 s59, s59, s15
    s_sub_u32 s59, s59, 1152
    v_add_u32 v108, s59, v108
    s_lshl_b32 s59, s57, 6
    s_add_u32 s59, s59, s12
    v_lshl_add_u32 v109, v109, 3, s59
    s_movk_i32 s21, 3641
    """)
    for p in range(2):
        if p == 1:
            e("s_cmp_ge_u32 s13, 13\ns_cbranch_scc1 G1_END")
        e(f"""
        v_add_u32 v112, {64*p}, v108
        v_mul_u32_u24 v115, v112, s21
        v_lshrrev_b32 v115, 16, v115
        v_mul_u32_u24 v116, 18, v115
        v_sub_u32 v116, v112, v116
        v_lshl_add_u32 v118, v115, 5, v116
        v_lshl_add_u32 v118, v118, 11, v109
        v_lshlrev_b32 v118, 1, v118
        v_add_u32 v118, {WS_VT}, v118
        """)
        for t in range(2):
            for q in range(4):
                r = ACC + p * 32 + t * 16 + 4 * q
                e(f"v_cvt_pk_bf16_f32 v112, v{r}, v{r+1}")
                e(f"v_cvt_pk_bf16_f32 v113, v{r+2}, v{r+3}")
                e(f"buffer_store_dwordx2 v[112:113], v118, s[60:63], 0 offen offset:{(32*t+16*(q>>1)+4*(q&1))*2}")
                e("s_nop 1")
    e("s_branch G1_END\nG1_MAIN:")
    mainloop("M")
    e("""
    v_and_b32 v108, 31, v107
    v_lshrrev_b32 v109, 5, v107
    s_lshl_b32 s59, s57, 6
    s_add_u32 s59, s59, s12
    v_add_u32 v108, s59, v108
    s_lshl_b32 s59, s58, 5
    s_add_u32 s59, s59, s15
    v_lshl_add_u32 v109, v109, 2, s59
    s_cmp_ge_u32 s13, 14
    s_cbranch_scc1 G1_FFN_EPI
    """)
    e(f"""
    s_mov_b32 s20, {hex(f2u(QSCALE))}
    s_movk_i32 s21, 3641
    """)
    for p in range(2):
        for q in range(4):
            for j in (0, 2):
                noff = p * 64 + 8 * q + j
                e(f"v_add_u32 v112, {noff}, v109")
                e("v_cmp_le_u32 vcc, 576, v112")
                e("s_nop 1")
                e("v_cndmask_b32 v113, 0, 1, vcc")
                e("v_mul_u32_u24 v114, 576, v113")
                e("v_sub_u32 v114, v112, v114")
                e("v_mul_u32_u24 v115, v114, s21")
                e("v_lshrrev_b32 v115, 16, v115")
                e("v_mul_u32_u24 v116, 18, v115")
                e("v_sub_u32 v116, v114, v116")
                e("v_lshl_add_u32 v117, v115, 11, v108")
                e("v_lshlrev_b32 v117, 6, v117")
                e("v_lshl_add_u32 v117, v116, 1, v117")
                e("v_lshl_add_u32 v117, v113, 22, v117")
                e(f"v_add_u32 v117, {WS_QP}, v117")
                for t in range(2):
                    r = ACC + p * 32 + t * 16 + 4 * q + j
                    e(f"v_mul_f32 v120, s20, v{r}")
                    e(f"v_mul_f32 v121, s20, v{r+1}")
                    e(f"v_cndmask_b32 v120, v120, v{r}, vcc")
                    e(f"v_cndmask_b32 v121, v121, v{r+1}, vcc")
                    e("v_cvt_pk_bf16_f32 v120, v120, v121")
                    e(f"buffer_store_dword v120, v117, s[60:63], 0 offen offset:{2048*t}")
    e("s_branch G1_END")
    e("G1_FFN_EPI:")
    e(f"""
    v_and_b32 v108, 31, v107
    v_lshrrev_b32 v109, 5, v107
    s_lshl_b32 s59, s57, 6
    v_add_u32 v108, s59, v108
    v_mul_u32_u24 v110, 144, v108
    v_lshl_add_u32 v110, v109, 3, v110
    s_lshl_b32 s59, s58, 6
    v_add_u32 v110, s59, v110
    s_mov_b32 s20, {hex(f2u(-LOG2E))}
    """)
    for t in range(2):
        for q in range(4):
            for j in range(4):
                e(f"v_mul_f32 v{64+j}, s20, v{t*16+4*q+j}")
            for j in range(4):
                e(f"v_exp_f32 v{64+j}, v{64+j}")
            for j in range(4):
                e(f"v_mul_f32 v{114+j}, v{t*16+4*q+j}, v{32+t*16+4*q+j}")
            for j in range(4):
                e(f"v_add_f32 v{64+j}, 1.0, v{64+j}")
            for j in range(4):
                e(f"v_rcp_f32 v{64+j}, v{64+j}")
            e("s_nop 0")
            for j in range(4):
                e(f"v_mul_f32 v{114+j}, v{114+j}, v{64+j}")
            e("v_cvt_pk_bf16_f32 v112, v114, v115")
            e("v_cvt_pk_bf16_f32 v113, v116, v117")
            e(f"ds_write_b64 v110, v[112:113] offset:{t*32*144 + 16*q}")
    e(f"""
    s_lshl_b32 s59, s56, 6
    v_add_u32 v109, s59, v107
    v_lshrrev_b32 v108, 3, v109
    v_and_b32 v109, 7, v109
    v_mul_u32_u24 v110, 144, v108
    v_lshl_add_u32 v110, v109, 4, v110
    v_add_u32 v108, s12, v108
    s_movk_i32 s20, 9216
    v_mul_lo_u32 v111, v108, s20
    v_lshl_add_u32 v111, v109, 4, v111
    s_lshl_b32 s59, s15, 1
    s_add_u32 s59, s59, {WS_H}
    v_add_u32 v111, s59, v111
    s_waitcnt lgkmcnt(0)
    s_barrier
    """)
    for i in range(4):
        e(f"ds_read_b128 v[{64+4*i}:{67+4*i}], v110 offset:{i*32*144}")
    for i in range(4):
        e(f"s_waitcnt lgkmcnt({3-i})")
        e(f"s_mov_b32 s59, {i*32*9216}")
        e(f"buffer_store_dwordx4 v[{64+4*i}:{67+4*i}], v111, s[60:63], s59 offen")
    e("G1_END:\ns_endpgm")

WS_P = 48 * MB
def gen_gemm2(e):
    header(e, "gemm2_kernel")
    e(f"""
    s_cmp_ge_u32 s2, 320
    s_cbranch_scc1 G2_END
    s_load_dwordx2 s[4:5], s[0:1], 16
    s_load_dwordx2 s[6:7], s[0:1], 48
    s_load_dwordx2 s[10:11], s[0:1], 72
    s_bfe_u32 s28, s2, 0x20001
    s_and_b32 s12, s2, 1
    s_lshl_b32 s12, s12, 3
    s_bfe_u32 s13, s2, 0x30003
    s_add_u32 s12, s12, s13      ; mtile
    s_lshr_b32 s13, s2, 6        ; ntile
    s_lshl_b32 s12, s12, 7
    s_lshl_b32 s15, s13, 7
    """)
    gemm_setup_common(e, 12)
    e("s_waitcnt lgkmcnt(0)")
    e("s_movk_i32 s16, 1152\ns_lshl_b32 s17, s16, 5\ns_mov_b32 s43, 0x00020000\ns_mov_b32 s51, 0x00020000")
    gemm_setup_w(e, 15, 16)
    def adv(e):
        e("s_add_u32 s52, s52, 64")
        e("s_add_u32 s53, s53, s17")
    def adv_switch(e):
        e(f"s_add_u32 s40, s10, {WS_H}\ns_addc_u32 s41, s11, 0\ns_and_b32 s41, s41, 0xffff")
        e(f"s_mov_b32 s42, {S_*F_*2}")
        srd(e, 44, 6, 7, F_ * D_ * 2)
        e(f"""
        s_add_u32 s48, s6, 128
        s_addc_u32 s49, s7, 0
        s_and_b32 s49, s49, 0xffff
        s_mov_b32 s50, {F_*D_*2-128}
        s_movk_i32 s14, 9216
        """)
        gemm_setup_x(e, 12, 14)
    e("s_cmp_lg_u32 s28, 0\ns_cbranch_scc1 G2_S1")
    e(f"s_add_u32 s40, s10, {WS_O}\ns_addc_u32 s41, s11, 0\ns_and_b32 s41, s41, 0xffff")
    e(f"s_mov_b32 s42, {S_*D_*2}")
    srd(e, 44, 4, 5, D_ * D_ * 2)
    e(f"""
    s_add_u32 s48, s4, 128
    s_addc_u32 s49, s5, 0
    s_and_b32 s49, s49, 0xffff
    s_mov_b32 s50, {D_*D_*2-128}
    s_movk_i32 s14, 1152
    """)
    gemm_setup_x(e, 12, 14)
    e("s_mov_b32 s52, 0\ns_mov_b32 s53, 0\ns_nop 4")
    gemm_dma(e, 0)
    NST = 81
    for st in range(17):
        gemm_stage(e, st, NST, adv)
    def adv_sw0(e):
        adv_switch(e)
        e("s_mov_b32 s52, 0\ns_mov_b32 s53, 0\ns_nop 4")
    gemm_stage(e, 17, NST, adv_sw0)
    e("s_mov_b32 s30, 11\ns_branch G2_LOOP\nG2_S1:")
    adv_switch(e)
    e("""
    s_mul_i32 s29, s28, 40
    s_sub_u32 s29, s29, 16
    s_lshl_b32 s52, s29, 6
    s_mul_i32 s53, s29, s17
    s_mov_b32 s30, 19
    s_nop 4
    """)
    gemm_dma(e, 0)
    e("G2_LOOP:")
    gemm_stage(e, 18, NST, adv)
    gemm_stage(e, 19, NST, adv)
    e("s_sub_u32 s30, s30, 1\ns_cmp_lg_u32 s30, 0\ns_cbranch_scc1 G2_LOOP")
    gemm_stage(e, 78, 80, adv)
    gemm_stage(e, 79, 80, adv)
    e("s_nop 15")
    e(f"""
    s_mul_i32 s29, s28, {S_*D_*4}
    s_add_u32 s29, s29, {WS_P}
    s_add_u32 s60, s10, s29
    s_addc_u32 s61, s11, 0
    s_and_b32 s61, s61, 0xffff
    s_mov_b32 s62, {S_*D_*4}
    s_mov_b32 s63, 0x00020000
    v_and_b32 v108, 31, v107
    v_lshrrev_b32 v109, 5, v107
    s_lshl_b32 s59, s57, 6
    s_add_u32 s59, s59, s12
    v_add_u32 v108, s59, v108
    s_lshl_b32 s59, s58, 5
    s_add_u32 s59, s59, s15
    v_lshl_add_u32 v109, v109, 2, s59
    s_movk_i32 s20, 2304
    v_mul_lo_u32 v110, v108, s20
    v_lshl_add_u32 v110, v109, 2, v110
    v_add_u32 v111, {32*2304}, v110
    """)
    for p in range(2):
        if p == 1:
            e("s_cmp_ge_u32 s13, 4\ns_cbranch_scc1 G2_END")
        for t in range(2):
            for q in range(4):
                r = ACC + p * 32 + t * 16 + 4 * q
                e(f"buffer_store_dwordx4 v[{r}:{r+3}], v{110+t}, s[60:63], 0 offen offset:{p*256+32*q}")
    e("G2_END:\ns_endpgm")

def gen_red(e):
    header(e, "red_kernel")
    e(f"""
    s_cmp_ge_u32 s2, 1152
    s_cbranch_scc1 RD_END
    s_load_dwordx2 s[4:5], s[0:1], 0
    s_load_dwordx2 s[6:7], s[0:1], 56
    s_load_dwordx2 s[10:11], s[0:1], 72
    s_lshl_b32 s3, s2, 8
    v_add_u32 v1, s3, v0
    v_lshlrev_b32 v2, 4, v1
    v_lshlrev_b32 v3, 3, v1
    s_waitcnt lgkmcnt(0)
    s_add_u32 s10, s10, {WS_P}
    s_addc_u32 s11, s11, 0
    """)
    srd(e, 12, 4, 5, S_*D_*2); srd(e, 16, 6, 7, S_*D_*2); srd(e, 20, 10, 11, S_*D_*16)
    e("buffer_load_dwordx2 v[4:5], v3, s[12:15], 0 offen")
    for i in range(4):
        e(f"s_mov_b32 s24, {i*S_*D_*4}")
        e(f"buffer_load_dwordx4 v[{8+4*i}:{11+4*i}], v2, s[20:23], s24 offen")
    e("s_waitcnt vmcnt(4)")
    e("v_lshlrev_b32 v24, 16, v4\nv_and_b32 v25, 0xffff0000, v4\nv_lshlrev_b32 v26, 16, v5\nv_and_b32 v27, 0xffff0000, v5")
    for i in range(4):
        e(f"s_waitcnt vmcnt({3-i})")
        for j in range(4):
            e(f"v_add_f32 v{24+j}, v{24+j}, v{8+4*i+j}")
    e("v_cvt_pk_bf16_f32 v4, v24, v25\nv_cvt_pk_bf16_f32 v5, v26, v27")
    e("buffer_store_dwordx2 v[4:5], v3, s[16:19], 0 offen")
    e("RD_END:\ns_endpgm")

def gen_attn(e):
    header(e, "attn_kernel")
    KA = 112; VA = 114; DM = 122
    e(f"""
    s_cmp_ge_u32 s2, 256
    s_cbranch_scc1 AT_END
    s_load_dwordx2 s[10:11], s[0:1], 72
    s_and_b32 s4, s2, 7
    s_lshl_b32 s4, s4, 2
    s_bfe_u32 s5, s2, 0x20003
    s_add_u32 s4, s4, s5          ; head
    s_lshr_b32 s5, s2, 5          ; qblock
    v_and_b32 v127, 63, v0
    v_lshrrev_b32 v16, 6, v0
    s_nop 0
    v_readfirstlane_b32 s56, v16
    v_and_b32 v17, 31, v127      ; l32
    v_lshrrev_b32 v18, 5, v127   ; h
    s_and_b32 s57, s56, 7        ; qt
    s_lshr_b32 s58, s56, 3       ; kh
    s_waitcnt lgkmcnt(0)
    """)
    srd(e, 40, 10, 11, WS_SIZE)
    e(f"""
    s_lshl_b32 s6, s4, 11
    s_lshl_b32 s7, s5, 8
    s_add_u32 s6, s6, s7
    s_lshl_b32 s7, s57, 5
    s_add_u32 s6, s6, s7
    v_add_u32 v19, s6, v17
    v_lshlrev_b32 v19, 6, v19
    v_lshl_add_u32 v19, v18, 4, v19
    v_add_u32 v19, {WS_QP}, v19
    buffer_load_dwordx4 v[64:67], v19, s[40:43], 0 offen
    buffer_load_dwordx4 v[68:71], v19, s[40:43], 0 offen offset:32
    s_lshl_b32 s7, s4, 17
    s_add_u32 s7, s7, {WS_KP}
    s_lshl_b32 s8, s56, 11
    s_add_u32 s7, s7, s8
    v_lshrrev_b32 v20, 2, v127
    v_lshlrev_b32 v20, 6, v20
    v_and_b32 v21, 3, v127
    v_bfe_u32 v22, v127, 4, 2
    v_xor_b32 v21, v21, v22
    v_lshl_add_u32 v20, v21, 4, v20
    v_add_u32 v{DM}, s7, v20
    v_add_u32 v{DM+1}, 1024, v{DM}
    s_lshl_b32 s7, s4, 17
    s_add_u32 s7, s7, {WS_VT}
    s_lshl_b32 s8, s56, 1
    """)
    for j in range(2):
        e(f"""
        s_add_u32 s9, s8, {j}
        s_and_b32 s12, s9, 15
        v_xor_b32 v22, s12, v127
        s_lshl_b32 s9, s9, 12
        s_add_u32 s9, s9, s7
        v_lshl_add_u32 v{DM+2+j}, v22, 4, s9
        """)
    e("""
    v_bfe_u32 v20, v127, 2, 2
    v_lshlrev_b32 v21, 6, v17
    s_lshl_b32 s9, s58, 14
    v_add_u32 v21, s9, v21
    """)
    for ks in range(2):
        e(f"v_or_b32 v22, {2*ks}, v18")
        e("v_xor_b32 v22, v22, v20")
        e(f"v_lshl_add_u32 v{KA+ks}, v22, 4, v21")
    e("v_and_b32 v20, 15, v127\nv_lshlrev_b32 v21, 10, v17\ns_lshl_b32 s9, s58, 9\ns_add_u32 s9, s9, 32768\nv_add_u32 v21, s9, v21")
    for c in range(8):
        e(f"v_or_b32 v22, {2*c}, v18")
        e("v_xor_b32 v22, v22, v20")
        e(f"v_lshl_add_u32 v{VA+c}, v22, 4, v21")
    e("s_lshl_b32 s54, s56, 11\ns_mov_b32 s52, 0\ns_mov_b32 s53, 0")
    for i in range(16):
        e(f"v_mov_b32 v{i}, 0")
        e(f"v_mov_b32 v{48+i}, 0")
    e("v_mov_b32 v126, 0xff800000\ns_mov_b64 s[34:35], -1")
    def dma():
        for j in range(2):
            e(f"s_add_u32 m0, s54, {j*1024}\ns_nop 0")
            e(f"buffer_load_dwordx4 v{DM+j}, s[40:43], s52 offen lds")
        for j in range(2):
            e(f"s_add_u32 m0, s54, {32768 + j*1024}\ns_nop 0")
            e(f"buffer_load_dwordx4 v{DM+2+j}, s[40:43], s53 offen lds")
    dma()
    KF = [72, 80]; VF = [88, 96]; SB = [16, 32]; P = 104
    def kread(tile):
        kf = KF[tile & 1]
        for ks in range(2):
            e(f"ds_read_b128 v[{kf+4*ks}:{kf+3+4*ks}], v{KA+ks} offset:{tile*2048}")
    def vread(tile):
        vf = VF[tile & 1]
        for c in range(2):
            cc = 2*tile + c
            e(f"ds_read_b128 v[{vf+4*c}:{vf+3+4*c}], v{VA + (cc&7)} offset:{(cc>>3)*256}")
    def smfma(tile):
        kf = KF[tile & 1]; S = SB[tile & 1]
        e(f"v_mfma_f32_32x32x16_bf16 v[{S}:{S+15}], v[{kf}:{kf+3}], v[64:67], v[48:63]")
        e(f"v_mfma_f32_32x32x16_bf16 v[{S}:{S+15}], v[{kf+4}:{kf+7}], v[68:71], v[{S}:{S+15}]")
    AR = [KA, KA+1] + list(range(VA, VA+8))
    e("s_mov_b32 s30, 0\nAT_LOOP:")
    e("s_add_u32 s52, s52, 32768\ns_add_u32 s53, s53, 1024\ns_xor_b32 s54, s54, 0x10000")
    dma()
    e("s_waitcnt vmcnt(4)\ns_barrier")
    kread(0); kread(1); vread(0)
    e("s_waitcnt lgkmcnt(4)")
    smfma(0)
    e("s_nop 7\ns_mov_b32 s31, 0\nAT_IN:")
    for tile in range(4):
        S = SB[tile & 1]; vf = VF[tile & 1]
        e("s_waitcnt lgkmcnt(2)")
        smfma(tile + 1)
        kread(tile + 2)
        vread(tile + 1)
        e(f"v_max3_f32 v{P}, v{S}, v{S+1}, v{S+2}")
        for i in range(3, 15, 2):
            e(f"v_max3_f32 v{P}, v{P}, v{S+i}, v{S+i+1}")
        e(f"v_max_f32 v{P}, v{P}, v{S+15}")
        e(f"v_cmp_lt_f32 vcc, 0x41000000, v{P}")
        e("s_or_b64 vcc, vcc, s[34:35]")
        e(f"s_cbranch_vccnz AT_SLOW{tile}")
        e(f"AT_F{tile}:")
        for i in range(16):
            e(f"v_exp_f32 v{S+i}, v{S+i}")
        for i in range(8):
            e(f"v_cvt_pk_bf16_f32 v{P+i}, v{S+2*i}, v{S+1+2*i}")
        e("s_waitcnt lgkmcnt(4)\ns_nop 1")
        e(f"v_mfma_f32_32x32x16_bf16 v[0:15], v[{vf}:{vf+3}], v[{P}:{P+3}], v[0:15]")
        e(f"v_mfma_f32_32x32x16_bf16 v[0:15], v[{vf+4}:{vf+7}], v[{P+4}:{P+7}], v[0:15]")
    e(f"v_add_u32 v{KA}, 8192, v{KA}\nv_add_u32 v{KA+1}, 8192, v{KA+1}")
    for r in range(VA, VA+8):
        e(f"v_add_u32 v{r}, 256, v{r}")
    e("s_add_u32 s31, s31, 1\ns_cmp_lt_u32 s31, 2\ns_cbranch_scc1 AT_IN")
    e(f"v_subrev_u32 v{KA}, 16384, v{KA}\nv_subrev_u32 v{KA+1}, 16384, v{KA+1}")
    for r in range(VA, VA+8):
        e(f"v_subrev_u32 v{r}, 512, v{r}")
    for r in AR:
        e(f"v_xor_b32 v{r}, 0x10000, v{r}")
    e("s_waitcnt lgkmcnt(0)\ns_barrier")
    e("s_add_u32 s30, s30, 1\ns_cmp_lt_u32 s30, 4\ns_cbranch_scc1 AT_LOOP")
    e("s_branch AT_FIN")
    for tile in range(4):
        S = SB[tile & 1]; S2 = SB[(tile & 1) ^ 1]
        e(f"AT_SLOW{tile}:")
        e(f"v_mov_b32 v{P+1}, v{P}\ns_nop 1")
        e(f"v_permlane32_swap_b32 v{P}, v{P+1}")
        e("s_nop 1")
        e(f"v_max3_f32 v{P}, v{P}, v{P+1}, v126")
        e("v_mov_b32 v126, 0\ns_mov_b64 s[34:35], 0")
        e(f"v_exp_f32 v{P+1}, -v{P}")
        e("s_nop 7\ns_nop 7")
        for i in range(16):
            e(f"v_sub_f32 v{S+i}, v{S+i}, v{P}")
            e(f"v_sub_f32 v{48+i}, v{48+i}, v{P}")
            e(f"v_mul_f32 v{i}, v{i}, v{P+1}")
            e(f"v_sub_f32 v{S2+i}, v{S2+i}, v{P}")
        e(f"s_branch AT_F{tile}")
    e("AT_FIN:\ns_waitcnt vmcnt(0)\ns_nop 15")
    e("""
    s_lshl_b32 s6, s57, 6
    v_add_u32 v16, s6, v127
    v_lshlrev_b32 v16, 6, v16
    s_barrier
    s_cmp_eq_u32 s58, 0
    s_cbranch_scc1 AT_MRG
    ds_write_b128 v16, v[0:3]
    ds_write_b128 v16, v[4:7] offset:16
    ds_write_b128 v16, v[8:11] offset:32
    ds_write_b32 v16, v48 offset:48
    s_waitcnt lgkmcnt(0)
    s_barrier
    s_branch AT_END
    AT_MRG:
    s_barrier
    ds_read_b128 v[20:23], v16
    ds_read_b128 v[24:27], v16 offset:16
    ds_read_b128 v[28:31], v16 offset:32
    ds_read_b32 v32, v16 offset:48
    s_waitcnt lgkmcnt(0)
    v_min_f32 v33, v48, v32
    v_sub_f32 v34, v33, v48
    v_sub_f32 v35, v33, v32
    v_exp_f32 v34, v34
    v_exp_f32 v35, v35
    s_nop 1
    """)
    for i in range(12):
        e(f"v_mul_f32 v{i}, v{i}, v34")
        e(f"v_fmac_f32 v{i}, v{20+i}, v35")
    e(f"""
    v_and_b32 v17, 31, v127
    v_lshrrev_b32 v18, 5, v127
    v_rcp_f32 v33, v10
    s_lshl_b32 s6, s5, 8
    s_lshl_b32 s7, s57, 5
    s_add_u32 s6, s6, s7
    v_add_u32 v19, s6, v17
    s_movk_i32 s8, 1152
    v_mul_lo_u32 v19, v19, s8
    s_mul_i32 s8, s4, 36
    s_add_u32 s8, s8, {WS_O}
    v_add_u32 v19, s8, v19
    v_lshl_add_u32 v19, v18, 3, v19
    """)
    for i in range(10):
        e(f"v_mul_f32 v{i}, v{i}, v33")
    for q in range(2):
        e(f"v_cvt_pk_bf16_f32 v{36+2*q}, v{4*q}, v{4*q+1}")
        e(f"v_cvt_pk_bf16_f32 v{37+2*q}, v{4*q+2}, v{4*q+3}")
        e(f"buffer_store_dword v{36+2*q}, v19, s[40:43], 0 offen offset:{16*q}")
        e(f"buffer_store_dword v{37+2*q}, v19, s[40:43], 0 offen offset:{16*q+4}")
    e("""
    v_cvt_pk_bf16_f32 v40, v8, v9
    v_cmp_eq_u32 vcc, 0, v18
    s_and_saveexec_b64 s[24:25], vcc
    s_cbranch_execz AT_SK
    buffer_store_dword v40, v19, s[40:43], 0 offen offset:32
    AT_SK:
    s_or_b64 exec, exec, s[24:25]
    AT_END:
    s_endpgm
    """)

def main():
    e = E()
    hdr = open("parallel_sum__mha_block__glu_gated_swiglu__prompt.s.ref").read().split("; Override")[0]
    txt = hdr
    txt += "; @launch kernel=ln_kernel grid=(256,1,1) block=(256,1,1) lds=0\n"
    txt += f"; @launch kernel=gemm1_kernel grid=(1408,1,1) block=(256,1,1) lds=32768\n"
    txt += "; @launch kernel=attn_kernel grid=(256,1,1) block=(1024,1,1) lds=131072\n"
    txt += "; @launch kernel=gemm2_kernel grid=(320,1,1) block=(256,1,1) lds=32768\n"
    txt += "; @launch kernel=red_kernel grid=(1152,1,1) block=(256,1,1) lds=0\n"
    txt += '.amdgcn_target "amdgcn-amd-amdhsa--gfx950"\n.text\n'
    gen_ln(e); gen_gemm1(e); gen_attn(e); gen_gemm2(e); gen_red(e)
    txt += e.text()
    txt += kd("ln_kernel", 72) + kd("gemm1_kernel", 128) + kd("attn_kernel", 128) + kd("gemm2_kernel", 128) + kd("red_kernel", 32)
    open(OUT, "w").write(txt)
    print("wrote", len(txt))
main()
```

```python
import sys
OUT = "parallel_sum__mha_block__glu_gated_swiglu__prompt.s" if len(sys.argv)<2 else "var_"+sys.argv[1]+".s"

MB = 1 << 20
WS_XN = 0
WS_QP = 4 * MB
WS_KP = 8 * MB
WS_VT = 12 * MB
WS_H = 16 * MB
WS_O = 40 * MB
WS_SIZE = 268435456

S_, D_, F_, H_ = 2048, 576, 4608, 32
LOG2E = 1.4426950408889634
QSCALE = LOG2E * (18 ** -0.5)

import struct
def f2u(x):
    return struct.unpack("<I", struct.pack("<f", x))[0]

class E:
    def __init__(self):
        self.l = []
    def __call__(self, s):
        for ln in s.strip("\n").split("\n"):
            self.l.append("  " + ln.strip() if not ln.strip().endswith(":") else ln.strip())
    def text(self):
        return "\n".join(self.l) + "\n"

def srd(e, d, base_lo, base_hi, nbytes):
    e(f"s_mov_b32 s{d}, s{base_lo}")
    e(f"s_and_b32 s{d+1}, s{base_hi}, 0xffff")
    e(f"s_mov_b32 s{d+2}, {nbytes}")
    e(f"s_mov_b32 s{d+3}, 0x00020000")

def header(e, name):
    e(f".globl {name}\n.p2align 8\n.type {name},@function\n{name}:")

def kd(name, vgpr, sgpr=102):
    acc = (vgpr + 3) // 4 * 4
    return f""".section .rodata,"a"
.p2align 6
.amdhsa_kernel {name}
  .amdhsa_next_free_vgpr {vgpr}
  .amdhsa_next_free_sgpr {sgpr}
  .amdhsa_accum_offset {acc}
  .amdhsa_group_segment_fixed_size 0
  .amdhsa_kernarg_size 80
  .amdhsa_user_sgpr_count 2
  .amdhsa_user_sgpr_kernarg_segment_ptr 1
  .amdhsa_system_sgpr_workgroup_id_x 1
.end_amdhsa_kernel
"""

def gen_ln(e):
    header(e, "ln_kernel")
    e("""
    s_cmp_ge_u32 s2, 1024
    s_cbranch_scc1 LN_END
    s_load_dwordx2 s[26:27], s[0:1], 8
    s_load_dwordx2 s[28:29], s[0:1], 32
    s_load_dwordx2 s[30:31], s[0:1], 40
    s_load_dwordx2 s[38:39], s[0:1], 48
    s_load_dwordx2 s[44:45], s[0:1], 16
    s_lshl_b32 s3, s2, 8
    v_add_u32 v1, s3, v0
    v_lshlrev_b32 v70, 5, v1
    s_waitcnt lgkmcnt(0)
    """)
    for n_, (lo, nb) in enumerate(((28, D_*F_*2), (30, D_*F_*2), (26, D_*1728*2), (38, D_*F_*2), (44, D_*D_*2))):
        srd(e, 32, lo, lo+1, nb)
        e(f"buffer_load_dword v{71+n_}, v70, s[32:35], 0 offen")
    e("""
    s_cmp_ge_u32 s2, 256
    s_cbranch_scc1 LN_END
    s_load_dwordx2 s[4:5], s[0:1], 0
    s_load_dwordx2 s[6:7], s[0:1], 72
    s_lshl_b32 s3, s2, 8
    v_add_u32 v1, s3, v0
    v_lshrrev_b32 v2, 5, v1
    v_and_b32 v3, 31, v1
    s_movk_i32 s20, 1152
    v_mul_lo_u32 v4, v2, s20
    v_lshl_add_u32 v4, v3, 2, v4
    s_waitcnt lgkmcnt(0)
    """)
    srd(e, 8, 4, 5, S_ * D_ * 2)
    srd(e, 12, 6, 7, WS_SIZE)
    for i in range(9):
        e(f"buffer_load_dword v{10+i}, v4, s[8:11], 0 offen offset:{128*i}")
    e(f"""
    v_mov_b32 v40, 0
    v_mov_b32 v41, 0
    v_mov_b32 v42, 0
    v_mov_b32 v43, 0
    v_lshlrev_b32 v5, 6, v1
    v_add_u32 v6, {WS_QP}, v5
    v_add_u32 v7, {WS_KP}, v5
    buffer_store_dword v40, v6, s[12:15], 0 offen offset:36
    buffer_store_dwordx2 v[40:41], v6, s[12:15], 0 offen offset:40
    buffer_store_dwordx4 v[40:43], v6, s[12:15], 0 offen offset:48
    buffer_store_dword v40, v7, s[12:15], 0 offen offset:36
    buffer_store_dwordx2 v[40:41], v7, s[12:15], 0 offen offset:40
    buffer_store_dwordx4 v[40:43], v7, s[12:15], 0 offen offset:48
    """)
    for rep in range(2):
        e(f"v_add_u32 v30, {rep*65536}, v1")
        magic = -(-(1 << 32) // 3584)
        e(f"""
        s_mov_b32 s21, {magic}
        v_mul_hi_u32 v31, v30, s21
        s_movk_i32 s21, 3584
        v_mul_lo_u32 v32, v31, s21
        v_sub_u32 v32, v30, v32
        v_lshrrev_b32 v33, 8, v32
        v_and_b32 v34, 255, v32
        v_add_u32 v33, 18, v33
        v_lshl_add_u32 v35, v31, 5, v33
        v_lshlrev_b32 v35, 12, v35
        v_lshl_add_u32 v35, v34, 4, v35
        v_add_u32 v35, {WS_VT}, v35
        v_cmp_eq_u32 vcc, 18, v33
        v_cmp_eq_u32 s[22:23], 22, v33
        s_or_b64 vcc, vcc, s[22:23]
        v_mov_b32 v36, 0x3f803f80
        s_nop 1
        v_cndmask_b32 v44, 0, v36, vcc
        v_mov_b32 v45, v44
        v_mov_b32 v46, v44
        v_mov_b32 v47, v44
        v_cmp_gt_u32 vcc, 114688, v30
        s_and_saveexec_b64 s[24:25], vcc
        s_cbranch_execz LN_SK{rep}
        buffer_store_dwordx4 v[44:47], v35, s[12:15], 0 offen
        LN_SK{rep}:
        s_or_b64 exec, exec, s[24:25]
        s_nop 2
        """)
    e("s_waitcnt vmcnt(0)")
    for i in range(9):
        e(f"v_lshlrev_b32 v{50+2*i}, 16, v{10+i}")
        e(f"v_and_b32 v{51+2*i}, 0xffff0000, v{10+i}")
    e("v_add_f32 v20, v50, v51")
    for i in range(2, 18):
        e(f"v_add_f32 v20, v20, v{50+i}")
    def red(v):
        for x in (1, 2, 4, 8, 16):
            e(f"ds_swizzle_b32 v21, v{v} offset:{(x<<10)|0x1f}")
            e("s_waitcnt lgkmcnt(0)")
            e(f"v_add_f32 v{v}, v{v}, v21")
    red(20)
    e(f"v_mul_f32 v20, {hex(f2u(1.0/576))}, v20")
    for i in range(18):
        e(f"v_sub_f32 v{50+i}, v{50+i}, v20")
    e("v_mul_f32 v22, v50, v50")
    for i in range(1, 18):
        e(f"v_fmac_f32 v22, v{50+i}, v{50+i}")
    red(22)
    e(f"v_mov_b32 v23, {hex(f2u(1e-5))}")
    e(f"v_fmac_f32 v23, {hex(f2u(1.0/576))}, v22")
    e("v_rsq_f32 v23, v23")
    e("s_nop 1")
    for i in range(18):
        e(f"v_mul_f32 v{50+i}, v{50+i}, v23")
    for i in range(9):
        e(f"v_cvt_pk_bf16_f32 v{10+i}, v{50+2*i}, v{51+2*i}")
    e("""
    v_lshrrev_b32 v5, 5, v2
    v_mul_u32_u24 v5, 36864, v5
    v_and_b32 v6, 31, v2
    v_lshl_add_u32 v5, v6, 4, v5
    v_lshrrev_b32 v6, 3, v3
    v_lshl_add_u32 v5, v6, 10, v5
    v_bfe_u32 v6, v3, 2, 1
    v_lshl_add_u32 v5, v6, 9, v5
    v_and_b32 v6, 3, v3
    v_lshl_add_u32 v5, v6, 2, v5
    """)
    for i in range(9):
        e(f"s_mov_b32 s20, {4096*i}")
        e(f"buffer_store_dword v{10+i}, v5, s[12:15], s20 offen")
    e("LN_END:\ns_endpgm")

ACC = 0
def acc(p, t):
    b = ACC + p * 32 + t * 16
    return f"v[{b}:{b+15}]"

def gemm_dma(e, buf):
    if "NODMA" in sys.argv: return
    sb = buf * 16384
    for i in range(2):
        e(f"s_add_u32 m0, s54, {sb + i*1024}")
        e("s_nop 0")
        e(f"buffer_load_dwordx4 v{96+i}, s[40:43], s52 offen lds")
    for p in range(2):
        e(f"s_add_u32 m0, s55, {sb + p*4096}")
        e("s_nop 0")
        e(f"buffer_load_dwordx4 v100, s[{44+4*p}:{47+4*p}], s53 offen lds")

def gemm_reads(e, buf, ks):
    fs = 64 + (ks & 1) * 16
    sb = buf * 16384
    for p in range(2):
        for h2 in range(2):
            e(f"ds_read_b64_tr_b16 v[{fs+4*p+2*h2}:{fs+4*p+2*h2+1}], v106 offset:{sb + p*4096 + ks*2048 + h2*512}")
    for t in range(2):
        e(f"ds_read_b128 v[{fs+8+4*t}:{fs+11+4*t}], v{102+ks} offset:{sb + t*2048}")

SWAP = [False]
def gemm_compute(e, buf):
    gemm_reads(e, buf, 0)
    for ks in range(2):
        if ks < 1:
            gemm_reads(e, buf, ks + 1)
            e("s_waitcnt lgkmcnt(6)")
        else:
            e("s_waitcnt lgkmcnt(0)")
        fs = 64 + (ks & 1) * 16
        for p in range(2):
            for t in range(2):
                wfr = f"v[{fs+4*p}:{fs+4*p+3}]"; xfr = f"v[{fs+8+4*t}:{fs+11+4*t}]"
                if SWAP[0]: wfr, xfr = xfr, wfr
                if "NOMF" not in sys.argv: e(f"v_mfma_f32_32x32x16_bf16 {acc(p,t)}, {wfr}, {xfr}, {acc(p,t)}")

def gemm_setup_common(e, m0_sreg):
    e("""
    v_and_b32 v107, 63, v0
    v_lshrrev_b32 v108, 6, v0
    s_nop 0
    v_readfirstlane_b32 s56, v108
    """)
    for i in range(64):
        e(f"v_mov_b32 v{i}, 0")
    e("""
    s_lshr_b32 s57, s56, 1
    s_and_b32 s58, s56, 1
    v_and_b32 v108, 31, v107
    v_lshrrev_b32 v109, 5, v107
    v_bfe_u32 v110, v107, 2, 2
    s_lshl_b32 s59, s57, 12
    v_lshlrev_b32 v111, 6, v108
    v_add_u32 v111, s59, v111
    """)
    for ks in range(2):
        e(f"v_or_b32 v112, {2*ks}, v109")
        e("v_xor_b32 v112, v112, v110")
        e(f"v_lshl_add_u32 v{102+ks}, v112, 4, v111")
    e("""
    v_bfe_u32 v108, v107, 2, 2
    v_lshl_add_u32 v108, v109, 3, v108
    v_lshlrev_b32 v108, 7, v108
    v_bfe_u32 v110, v107, 3, 1
    v_xor_b32 v110, s58, v110
    v_lshl_add_u32 v108, v110, 6, v108
    v_bfe_u32 v110, v107, 4, 1
    v_lshl_add_u32 v108, v110, 5, v108
    v_and_b32 v110, 3, v107
    v_lshl_add_u32 v108, v110, 3, v108
    v_add_u32 v106, 8192, v108
    s_lshl_b32 s54, s56, 11
    s_lshl_b32 s55, s56, 10
    s_add_u32 s55, s55, 8192
    """)

def gemm_setup_x(e, m0_sreg, stride_sreg):
    e(f"""
    s_lshl_b32 s59, s56, 5
    s_add_u32 s59, s59, s{m0_sreg}
    v_lshrrev_b32 v108, 2, v107
    v_add_u32 v108, s59, v108
    v_and_b32 v109, 3, v107
    v_bfe_u32 v110, v107, 4, 2
    v_xor_b32 v112, v109, v110
    """)
    for i in range(2):
        e(f"v_add_u32 v111, {16*i}, v108")
        e(f"v_mul_lo_u32 v111, v111, s{stride_sreg}")
        e(f"v_lshl_add_u32 v{96+i}, v112, 4, v111")

def gemm_setup_w(e, ncol_sreg, stride_sreg):
    e(f"""
    s_lshl_b32 s59, s56, 3
    v_lshrrev_b32 v108, 3, v107
    v_add_u32 v108, s59, v108
    v_and_b32 v109, 7, v107
    v_bfe_u32 v110, v107, 4, 1
    v_lshlrev_b32 v110, 2, v110
    v_xor_b32 v109, v109, v110
    v_lshlrev_b32 v109, 4, v109
    s_lshl_b32 s59, s{ncol_sreg}, 1
    v_add_u32 v109, s59, v109
    v_mul_lo_u32 v111, v108, s{stride_sreg}
    v_add_u32 v100, v111, v109
    """)

def gemm_stage(e, s, nst, adv):
    buf = s & 1
    if s + 1 < nst:
        adv(e)
        gemm_dma(e, buf ^ 1)
        e("s_waitcnt vmcnt(4)")
    else:
        e("s_waitcnt vmcnt(0)")
    e("s_barrier")
    gemm_compute(e, buf)
    e("s_barrier")

def gen_gemm1(e):
    XR = 64; WF = 208; T = WF
    FL = sys.argv
    header(e, "gemm1_kernel")
    e(f"""
    s_cmp_ge_u32 s2, 256
    s_cbranch_scc1 G1_END
    s_load_dwordx2 s[4:5], s[0:1], 8
    s_load_dwordx2 s[6:7], s[0:1], 32
    s_load_dwordx2 s[8:9], s[0:1], 40
    s_load_dwordx2 s[10:11], s[0:1], 72
    s_bfe_u32 s12, s2, 0x30003
    s_lshl_b32 s12, s12, 8
    s_lshr_b32 s13, s2, 6
    s_lshl_b32 s13, s13, 3
    s_and_b32 s14, s2, 7
    s_add_u32 s14, s13, s14      ; group 0..31
    v_and_b32 v245, 63, v0
    v_lshrrev_b32 v246, 6, v0
    s_nop 0
    v_readfirstlane_b32 s56, v246
    v_and_b32 v246, 31, v245
    v_lshrrev_b32 v247, 5, v245
    s_waitcnt lgkmcnt(0)
    """)
    srd(e, 40, 10, 11, S_ * D_ * 2)
    srd(e, 60, 10, 11, WS_SIZE)
    e("""
    v_bfe_u32 v248, v245, 2, 2
    v_lshl_add_u32 v248, v247, 3, v248
    v_lshlrev_b32 v248, 7, v248
    v_bfe_u32 v249, v245, 4, 1
    v_lshl_add_u32 v248, v249, 5, v248
    v_and_b32 v249, 3, v245
    v_lshl_add_u32 v248, v249, 3, v248
    v_bfe_u32 v249, v245, 3, 1
    v_lshl_add_u32 v242, v249, 6, v248
    v_xor_b32 v249, 1, v249
    v_lshl_add_u32 v243, v249, 6, v248
    v_add_u32 v252, 0x10000, v242
    v_add_u32 v253, 0x10000, v243
    v_add_u32 v254, 0x20000, v242
    v_add_u32 v255, 0x20000, v243
    s_lshl_b32 s55, s56, 10
    s_lshr_b32 s59, s12, 5
    s_add_u32 s59, s59, s56
    s_mul_i32 s59, s59, 36864
    v_lshl_add_u32 v244, v245, 4, s59
    """)
    def xload(kk):
        e(f"s_mov_b32 s59, {1024*kk}")
        e(f"buffer_load_dwordx4 v[{XR+4*kk}:{XR+4*kk+3}], v244, s[40:43], s59 offen")
    def voffw():
        e(f"""
        s_lshl_b32 s17, s16, 6
        s_lshl_b32 s59, s56, 3
        v_lshrrev_b32 v248, 3, v245
        v_add_u32 v248, s59, v248
        v_and_b32 v249, 7, v245
        v_bfe_u32 v250, v245, 4, 1
        v_lshlrev_b32 v250, 2, v250
        v_xor_b32 v249, v249, v250
        v_lshlrev_b32 v249, 4, v249
        s_lshl_b32 s59, s15, 1
        v_add_u32 v249, s59, v249
        v_mul_lo_u32 v250, v248, s16
        v_add_u32 v240, v250, v249
        s_mov_b32 s53, 0
        s_nop 4
        """)
    def dma(buf):
        for p in range(2):
            e(f"s_add_u32 m0, s55, {buf*16384 + p*8192}")
            e("s_nop 0")
            e(f"buffer_load_dwordx4 v240, s[{44+4*p}:{47+4*p}], s53 offen lds")
        e("s_add_u32 s53, s53, s17")
    def reads(buf, ks):
        fs = WF + (ks & 1) * 16
        for j in range(4):
            p, sub = j >> 1, j & 1
            for h2 in range(2):
                areg = (242, 252, 254)[buf // 4] + sub
                e(f"ds_read_b64_tr_b16 v[{fs+4*j+2*h2}:{fs+4*j+2*h2+1}], v{areg} offset:{(buf%4)*16384 + p*8192 + ks*2048 + h2*512}")
    def mfmas(st, ks, swap):
        fs = WF + (ks & 1) * 16
        kk = 4 * st + ks
        for j in range(4):
            wfr = f"v[{fs+4*j}:{fs+4*j+3}]"; xfr = f"v[{XR+4*kk}:{XR+4*kk+3}]"
            if swap: wfr, xfr = xfr, wfr
            c = "0" if (st == 0 and ks == 0) else f"v[{16*j}:{16*j+15}]"
            e(f"v_mfma_f32_32x32x16_bf16 v[{16*j}:{16*j+15}], {wfr}, {xfr}, {c}")
    def body(swap, sync):
        reads(0, 0)
        for st in range(9):
            for ks in range(4):
                if ks == 2 and st < 8: sync(st)
                if ks < 3: reads(st, ks + 1)
                elif st < 8: reads(st + 1, 0)
                e("s_waitcnt lgkmcnt(8)" if (ks < 3 or st < 8) else "s_waitcnt lgkmcnt(0)")
                mfmas(st, ks, swap)
        e("s_barrier")
        e("s_nop 15")
    e("s_cmp_ge_u32 s14, 8\ns_cbranch_scc1 G1_FFN")
    e("""
    s_lshl_b32 s13, s14, 1       ; tile
    s_add_u32 s19, s13, 2
    s_min_u32 s19, s19, 15
    s_mov_b32 s30, 0
    s_lshl_b32 s57, s56, 14
    """)
    srd(e, 44, 4, 5, D_ * 1728 * 2)
    e(f"""
    s_add_u32 s48, s4, 128
    s_addc_u32 s49, s5, 0
    s_and_b32 s49, s49, 0xffff
    s_mov_b32 s50, {D_*1728*2-128}
    s_mov_b32 s51, 0x00020000
    G1_QT:
    s_mul_i32 s22, s13, 13
    s_lshr_b32 s22, s22, 6       ; mat
    s_mul_i32 s23, s22, 5
    s_sub_u32 s23, s13, s23      ; t'
    s_mul_i32 s15, s22, 576
    s_mul_i32 s59, s23, 126
    s_add_u32 s15, s15, s59      ; col0
    s_mul_i32 s24, s23, 7        ; head0
    s_movk_i32 s16, 3456
    """)
    voffw()
    for b_ in range(9): dma(b_)
    e("s_cmp_lg_u32 s30, 0\ns_cbranch_scc1 G1_QNX")
    for kk in range(36): xload(kk)
    e("""
    s_mov_b32 s30, 1
    G1_QNX:
    s_waitcnt vmcnt(0)
    s_barrier
    s_cmp_ge_u32 s22, 2
    s_cbranch_scc1 G1_QV
    """)
    nos = lambda s_: None
    body(False, nos)
    e(f"""
    s_mov_b32 s20, {hex(f2u(QSCALE))}
    s_cmp_eq_u32 s22, 0
    s_cselect_b32 s20, s20, 1.0
    v_lshl_add_u32 v248, v246, 6, s57
    v_bfe_u32 v249, v246, 1, 2
    v_lshlrev_b32 v249, 4, v249
    """)
    cnt = 0
    for j in range(4):
        for q in range(4):
            for jj in (0, 2):
                n0 = 32*j + 8*q + jj; n1 = n0 + 4
                o0 = (n0//18)*2048 + (n0%18)*2; o1 = (n1//18)*2048 + (n1%18)*2
                t = T + 4*(cnt % 4); cnt += 1
                r = 16*j + 4*q + jj
                e(f"v_mul_u32_u24 v{t}, {o1-o0}, v247")
                e(f"v_mul_f32 v{t+1}, s20, v{r}")
                e(f"v_mul_f32 v{t+2}, s20, v{r+1}")
                e(f"v_add_u32 v{t}, {o0}, v{t}")
                e(f"v_xor_b32 v{t}, v{t}, v249")
                e(f"v_cvt_pk_bf16_f32 v{t+1}, v{t+1}, v{t+2}")
                e(f"v_add_u32 v{t}, v{t}, v248")
                e(f"ds_write_b32 v{t}, v{t+1}")
    e(f"""
    v_lshrrev_b32 v248, 2, v245
    v_and_b32 v249, 3, v245
    v_bfe_u32 v250, v245, 3, 2
    v_xor_b32 v250, v250, v249
    v_lshlrev_b32 v250, 4, v250
    v_lshl_add_u32 v250, v248, 6, v250
    v_add_u32 v250, s57, v250
    v_cmp_gt_u32 vcc, 3, v249
    v_cndmask_b32 v251, 0, -1, vcc
    v_cmp_gt_u32 vcc, 2, v249
    v_cndmask_b32 v241, 0, -1, vcc
    s_lshl_b32 s59, s56, 5
    s_add_u32 s59, s59, s12
    v_add_u32 v248, s59, v248
    v_lshlrev_b32 v248, 6, v248
    v_lshl_add_u32 v248, v249, 4, v248
    s_lshl_b32 s59, s22, 22
    s_add_u32 s59, s59, {WS_QP}
    s_lshl_b32 s25, s24, 17
    s_add_u32 s59, s59, s25
    v_add_u32 v248, s59, v248
    s_waitcnt lgkmcnt(0)
    """)
    for b0 in range(0, 14, 4):
        rs = list(range(b0, min(b0+4, 14)))
        if b0 == 8: e("s_cmp_eq_u32 s23, 4\ns_cbranch_scc1 G1_QNEXT")
        for i in rs:
            t = T + 4*(i % 4)
            e(f"ds_read_b128 v[{t}:{t+3}], v250 offset:{i*1024}")
        for i in rs:
            t = T + 4*(i % 4)
            e(f"s_waitcnt lgkmcnt({rs[-1]-i})")
            e(f"v_and_b32 v{t}, v{t}, v251")
            for k_ in range(1, 4): e(f"v_and_b32 v{t+k_}, v{t+k_}, v241")
            e(f"s_mov_b32 s59, {(i//2)*131072 + (i%2)*1024}")
            e(f"buffer_store_dwordx4 v[{t}:{t+3}], v248, s[60:63], s59 offen")
    e("s_branch G1_QNEXT\nG1_QV:")
    body(True, nos)
    e(f"""
    v_bfe_u32 v249, v246, 1, 2
    v_xor_b32 v250, v249, v247
    v_lshlrev_b32 v250, 4, v250
    v_lshl_add_u32 v250, v246, 6, v250
    v_add_u32 v250, s57, v250
    v_or_b32 v251, 2, v247
    v_xor_b32 v251, v249, v251
    v_lshlrev_b32 v251, 4, v251
    v_lshl_add_u32 v251, v246, 6, v251
    v_add_u32 v251, s57, v251
    """)
    cnt = 0
    for j in range(4):
        for q in range(4):
            r = 16*j + 4*q
            t = T + 2*(cnt % 8); cnt += 1
            e(f"v_cvt_pk_bf16_f32 v{t}, v{r}, v{r+1}")
            e(f"v_cvt_pk_bf16_f32 v{t+1}, v{r+2}, v{r+3}")
            e(f"ds_write_b64 v{250 + (q>>1)}, v[{t}:{t+1}] offset:{j*2048 + 8*(q&1)}")
    e(f"""
    v_lshrrev_b32 v248, 2, v245
    v_and_b32 v249, 3, v245
    v_bfe_u32 v250, v245, 3, 2
    v_xor_b32 v250, v250, v249
    v_lshlrev_b32 v250, 4, v250
    v_lshl_add_u32 v250, v248, 6, v250
    v_add_u32 v250, s57, v250
    s_lshl_b32 s59, s56, 5
    s_add_u32 s59, s59, s12
    s_lshl_b32 s59, s59, 1
    s_add_u32 s59, s59, {WS_VT}
    s_lshl_b32 s25, s24, 17
    s_add_u32 s59, s59, s25
    v_lshl_add_u32 v249, v249, 4, s59
    s_movk_i32 s21, 3641
    s_movk_i32 s25, 126
    s_cmp_eq_u32 s23, 4
    s_cselect_b32 s25, 72, s25
    s_waitcnt lgkmcnt(0)
    """)
    for b0 in (0, 4):
        rs = list(range(b0, b0+4))
        for i in rs:
            t = T + 4*(i % 4)
            e(f"ds_read_b128 v[{t}:{t+3}], v250 offset:{i*1024}")
        for i in rs:
            t = T + 4*(i % 4)
            u = T + 16 + 4*(i % 4)
            e(f"""
            v_add_u32 v{u}, {16*i}, v248
            v_mul_u32_u24 v{u+1}, s21, v{u}
            v_lshrrev_b32 v{u+1}, 16, v{u+1}
            v_mul_u32_u24 v{u+2}, 14, v{u+1}
            v_add_u32 v{u+2}, v{u+2}, v{u}
            v_lshl_add_u32 v{u+2}, v{u+2}, 12, v249
            v_cmp_gt_u32 vcc, s25, v{u}
            s_waitcnt lgkmcnt({rs[-1]-i})
            s_mov_b64 exec, vcc
            buffer_store_dwordx4 v[{t}:{t+3}], v{u+2}, s[60:63], 0 offen
            s_mov_b64 exec, -1
            """)
    e("""
    G1_QNEXT:
    s_add_u32 s13, s13, 1
    s_cmp_ge_u32 s13, s19
    s_cbranch_scc1 G1_END
    s_barrier
    s_branch G1_QT
    """)
    e("""
    G1_FFN:
    s_sub_u32 s13, s14, 8
    s_mul_i32 s13, s13, 3
    s_add_u32 s19, s13, 3
    s_mov_b32 s31, s13
    s_movk_i32 s16, 9216
    """)
    srd(e, 44, 6, 7, D_ * F_ * 2)
    srd(e, 48, 8, 9, D_ * F_ * 2)
    e("s_lshl_b32 s15, s31, 6")
    voffw()
    def cursor_next(tag):
        e(f"""
        s_add_u32 s31, s31, 1
        s_cmp_lt_u32 s31, s19
        s_cbranch_scc1 G1_CN{tag}
        s_mov_b32 s46, 0
        s_mov_b32 s50, 0
        G1_CN{tag}:
        s_lshl_b32 s15, s31, 6
        """)
        voffw()
    for g in range(7):
        dma(g)
        for kk in range(4*g, 4*g+4): xload(kk)
    for kk in range(28, 36): xload(kk)
    def mk_sync(waits, tag):
        def sy(s_):
            e(f"s_waitcnt vmcnt({waits[s_+1]})")
            e("s_barrier")
            if s_ == 1: cursor_next(tag)
            dma((s_ - 1) % 9)
        return sy
    first = [44, 40, 36, 32, 28, 24, 20, 12, 12]
    steady = [16, 16, 16, 16, 16, 16, 16, 12, 12]
    def ffn_epi():
        e(f"""
        s_lshl_b32 s18, s13, 6
        s_lshl_b32 s59, s56, 12
        s_add_u32 s59, s59, 131072
        v_lshl_add_u32 v250, v246, 7, s59
        v_lshl_add_u32 v250, v247, 3, v250
        v_and_b32 v251, 7, v246
        v_lshlrev_b32 v251, 4, v251
        s_mov_b32 s20, {hex(f2u(-LOG2E))}
        """)
        for sub in range(2):
            for q in range(4):
                for j in range(4):
                    e(f"v_mul_f32 v{T+j}, s20, v{16*sub+4*q+j}")
                for j in range(4):
                    e(f"v_exp_f32 v{T+j}, v{T+j}")
                for j in range(4):
                    e(f"v_mul_f32 v{T+4+j}, v{16*sub+4*q+j}, v{32+16*sub+4*q+j}")
                for j in range(4):
                    e(f"v_add_f32 v{T+j}, 1.0, v{T+j}")
                for j in range(4):
                    e(f"v_rcp_f32 v{T+j}, v{T+j}")
                e(f"v_xor_b32 v{T+10}, {(4*sub+q)*16}, v251")
                e(f"v_add_u32 v{T+10}, v{T+10}, v250")
                for j in range(4):
                    e(f"v_mul_f32 v{T+4+j}, v{T+4+j}, v{T+j}")
                e(f"v_cvt_pk_bf16_f32 v{T+8}, v{T+4}, v{T+5}")
                e(f"v_cvt_pk_bf16_f32 v{T+9}, v{T+6}, v{T+7}")
                e(f"ds_write_b64 v{T+10}, v[{T+8}:{T+9}]")
        e(f"""
        v_lshrrev_b32 v248, 3, v245
        v_and_b32 v249, 7, v245
        v_xor_b32 v250, v249, v248
        v_lshlrev_b32 v250, 4, v250
        v_lshl_add_u32 v250, v248, 7, v250
        v_add_u32 v250, s59, v250
        s_lshl_b32 s59, s56, 5
        s_add_u32 s59, s59, s12
        v_add_u32 v248, s59, v248
        s_movk_i32 s20, 9216
        v_mul_lo_u32 v251, v248, s20
        v_lshl_add_u32 v251, v249, 4, v251
        s_lshl_b32 s59, s18, 1
        s_add_u32 s59, s59, {WS_H}
        v_add_u32 v251, s59, v251
        s_waitcnt lgkmcnt(0)
        """)
        for i in range(4):
            e(f"ds_read_b128 v[{T+4*i}:{T+3+4*i}], v250 offset:{i*1024}")
        for i in range(4):
            e(f"s_waitcnt lgkmcnt({3-i})")
            e(f"s_mov_b32 s59, {i*8*9216}")
            e(f"buffer_store_dwordx4 v[{T+4*i}:{T+3+4*i}], v251, s[60:63], s59 offen")
    mk_sync(first, "X")(-1)
    body(False, mk_sync(first, "A"))
    ffn_epi()
    e("s_add_u32 s13, s13, 1\nG1_FT:")
    mk_sync(steady, "Y")(-1)
    body(False, mk_sync(steady, "B"))
    ffn_epi()
    e("""
    s_add_u32 s13, s13, 1
    s_cmp_lt_u32 s13, s19
    s_cbranch_scc1 G1_FT
    G1_END:
    s_endpgm
    """)

WS_P = 48 * MB
def gen_gemm2(e):
    header(e, "gemm2_kernel")
    e(f"""
    s_cmp_ge_u32 s2, 320
    s_cbranch_scc1 G2_END
    s_load_dwordx2 s[4:5], s[0:1], 16
    s_load_dwordx2 s[6:7], s[0:1], 48
    s_load_dwordx2 s[10:11], s[0:1], 72
    s_bfe_u32 s28, s2, 0x20001
    s_and_b32 s12, s2, 1
    s_lshl_b32 s12, s12, 3
    s_bfe_u32 s13, s2, 0x30003
    s_add_u32 s12, s12, s13      ; mtile
    s_lshr_b32 s13, s2, 6        ; ntile
    s_lshl_b32 s12, s12, 7
    s_lshl_b32 s15, s13, 7
    """)
    gemm_setup_common(e, 12)
    e("s_waitcnt lgkmcnt(0)")
    e("s_movk_i32 s16, 1152\ns_lshl_b32 s17, s16, 5\ns_mov_b32 s43, 0x00020000\ns_mov_b32 s51, 0x00020000")
    gemm_setup_w(e, 15, 16)
    def adv(e):
        e("s_add_u32 s52, s52, 64")
        e("s_add_u32 s53, s53, s17")
    def adv_switch(e):
        e(f"s_add_u32 s40, s10, {WS_H}\ns_addc_u32 s41, s11, 0\ns_and_b32 s41, s41, 0xffff")
        e(f"s_mov_b32 s42, {S_*F_*2}")
        srd(e, 44, 6, 7, F_ * D_ * 2)
        e(f"""
        s_add_u32 s48, s6, 128
        s_addc_u32 s49, s7, 0
        s_and_b32 s49, s49, 0xffff
        s_mov_b32 s50, {F_*D_*2-128}
        s_movk_i32 s14, 9216
        """)
        gemm_setup_x(e, 12, 14)
    e("s_cmp_lg_u32 s28, 0\ns_cbranch_scc1 G2_S1")
    e(f"s_add_u32 s40, s10, {WS_O}\ns_addc_u32 s41, s11, 0\ns_and_b32 s41, s41, 0xffff")
    e(f"s_mov_b32 s42, {S_*D_*2}")
    srd(e, 44, 4, 5, D_ * D_ * 2)
    e(f"""
    s_add_u32 s48, s4, 128
    s_addc_u32 s49, s5, 0
    s_and_b32 s49, s49, 0xffff
    s_mov_b32 s50, {D_*D_*2-128}
    s_movk_i32 s14, 1152
    """)
    gemm_setup_x(e, 12, 14)
    e("s_mov_b32 s52, 0\ns_mov_b32 s53, 0\ns_nop 4")
    gemm_dma(e, 0)
    NST = 81
    for st in range(17):
        gemm_stage(e, st, NST, adv)
    def adv_sw0(e):
        adv_switch(e)
        e("s_mov_b32 s52, 0\ns_mov_b32 s53, 0\ns_nop 4")
    gemm_stage(e, 17, NST, adv_sw0)
    e("s_mov_b32 s30, 11\ns_branch G2_LOOP\nG2_S1:")
    adv_switch(e)
    e("""
    s_mul_i32 s29, s28, 40
    s_sub_u32 s29, s29, 16
    s_lshl_b32 s52, s29, 6
    s_mul_i32 s53, s29, s17
    s_mov_b32 s30, 19
    s_nop 4
    """)
    gemm_dma(e, 0)
    e("G2_LOOP:")
    gemm_stage(e, 18, NST, adv)
    gemm_stage(e, 19, NST, adv)
    e("s_sub_u32 s30, s30, 1\ns_cmp_lg_u32 s30, 0\ns_cbranch_scc1 G2_LOOP")
    gemm_stage(e, 78, 80, adv)
    gemm_stage(e, 79, 80, adv)
    e("s_nop 15")
    e(f"""
    s_mul_i32 s29, s28, {S_*D_*4}
    s_add_u32 s29, s29, {WS_P}
    s_add_u32 s60, s10, s29
    s_addc_u32 s61, s11, 0
    s_and_b32 s61, s61, 0xffff
    s_mov_b32 s62, {S_*D_*4}
    s_mov_b32 s63, 0x00020000
    v_and_b32 v108, 31, v107
    v_lshrrev_b32 v109, 5, v107
    s_lshl_b32 s59, s57, 6
    s_add_u32 s59, s59, s12
    v_add_u32 v108, s59, v108
    s_lshl_b32 s59, s58, 5
    s_add_u32 s59, s59, s15
    v_lshl_add_u32 v109, v109, 2, s59
    s_movk_i32 s20, 2304
    v_mul_lo_u32 v110, v108, s20
    v_lshl_add_u32 v110, v109, 2, v110
    v_add_u32 v111, {32*2304}, v110
    """)
    for p in range(2):
        if p == 1:
            e("s_cmp_ge_u32 s13, 4\ns_cbranch_scc1 G2_END")
        for t in range(2):
            for q in range(4):
                r = ACC + p * 32 + t * 16 + 4 * q
                e(f"buffer_store_dwordx4 v[{r}:{r+3}], v{110+t}, s[60:63], 0 offen offset:{p*256+32*q}")
    e("G2_END:\ns_endpgm")

def gen_red(e):
    header(e, "red_kernel")
    e(f"""
    s_cmp_ge_u32 s2, 1152
    s_cbranch_scc1 RD_END
    s_load_dwordx2 s[4:5], s[0:1], 0
    s_load_dwordx2 s[6:7], s[0:1], 56
    s_load_dwordx2 s[10:11], s[0:1], 72
    s_lshl_b32 s3, s2, 8
    v_add_u32 v1, s3, v0
    v_lshlrev_b32 v2, 4, v1
    v_lshlrev_b32 v3, 3, v1
    s_waitcnt lgkmcnt(0)
    s_add_u32 s10, s10, {WS_P}
    s_addc_u32 s11, s11, 0
    """)
    srd(e, 12, 4, 5, S_*D_*2); srd(e, 16, 6, 7, S_*D_*2); srd(e, 20, 10, 11, S_*D_*16)
    e("buffer_load_dwordx2 v[4:5], v3, s[12:15], 0 offen")
    for i in range(4):
        e(f"s_mov_b32 s24, {i*S_*D_*4}")
        e(f"buffer_load_dwordx4 v[{8+4*i}:{11+4*i}], v2, s[20:23], s24 offen")
    e("s_waitcnt vmcnt(4)")
    e("v_lshlrev_b32 v24, 16, v4\nv_and_b32 v25, 0xffff0000, v4\nv_lshlrev_b32 v26, 16, v5\nv_and_b32 v27, 0xffff0000, v5")
    for i in range(4):
        e(f"s_waitcnt vmcnt({3-i})")
        for j in range(4):
            e(f"v_add_f32 v{24+j}, v{24+j}, v{8+4*i+j}")
    e("v_cvt_pk_bf16_f32 v4, v24, v25\nv_cvt_pk_bf16_f32 v5, v26, v27")
    e("buffer_store_dwordx2 v[4:5], v3, s[16:19], 0 offen")
    e("RD_END:\ns_endpgm")

def gen_attn(e):
    header(e, "attn_kernel")
    KA = 112; VA = 114; DM = 122
    e(f"""
    s_cmp_ge_u32 s2, 256
    s_cbranch_scc1 AT_END
    s_load_dwordx2 s[10:11], s[0:1], 72
    s_and_b32 s4, s2, 7
    s_lshl_b32 s4, s4, 2
    s_bfe_u32 s5, s2, 0x20003
    s_add_u32 s4, s4, s5          ; head
    s_lshr_b32 s5, s2, 5          ; qblock
    v_and_b32 v127, 63, v0
    v_lshrrev_b32 v16, 6, v0
    s_nop 0
    v_readfirstlane_b32 s56, v16
    v_and_b32 v17, 31, v127      ; l32
    v_lshrrev_b32 v18, 5, v127   ; h
    s_and_b32 s57, s56, 7        ; qt
    s_lshr_b32 s58, s56, 3       ; kh
    s_waitcnt lgkmcnt(0)
    """)
    srd(e, 40, 10, 11, WS_SIZE)
    e(f"""
    s_lshl_b32 s6, s4, 11
    s_lshl_b32 s7, s5, 8
    s_add_u32 s6, s6, s7
    s_lshl_b32 s7, s57, 5
    s_add_u32 s6, s6, s7
    v_add_u32 v19, s6, v17
    v_lshlrev_b32 v19, 6, v19
    v_lshl_add_u32 v19, v18, 4, v19
    v_add_u32 v19, {WS_QP}, v19
    buffer_load_dwordx4 v[64:67], v19, s[40:43], 0 offen
    buffer_load_dwordx4 v[68:71], v19, s[40:43], 0 offen offset:32
    s_lshl_b32 s7, s4, 17
    s_add_u32 s7, s7, {WS_KP}
    s_lshl_b32 s8, s56, 11
    s_add_u32 s7, s7, s8
    v_lshrrev_b32 v20, 2, v127
    v_lshlrev_b32 v20, 6, v20
    v_and_b32 v21, 3, v127
    v_bfe_u32 v22, v127, 4, 2
    v_xor_b32 v21, v21, v22
    v_lshl_add_u32 v20, v21, 4, v20
    v_add_u32 v{DM}, s7, v20
    v_add_u32 v{DM+1}, 1024, v{DM}
    s_lshl_b32 s7, s4, 17
    s_add_u32 s7, s7, {WS_VT}
    s_lshl_b32 s8, s56, 1
    """)
    for j in range(2):
        e(f"""
        s_add_u32 s9, s8, {j}
        s_and_b32 s12, s9, 15
        v_xor_b32 v22, s12, v127
        s_lshl_b32 s9, s9, 12
        s_add_u32 s9, s9, s7
        v_lshl_add_u32 v{DM+2+j}, v22, 4, s9
        """)
    e("""
    v_bfe_u32 v20, v127, 2, 2
    v_lshlrev_b32 v21, 6, v17
    s_lshl_b32 s9, s58, 14
    v_add_u32 v21, s9, v21
    """)
    for ks in range(2):
        e(f"v_or_b32 v22, {2*ks}, v18")
        e("v_xor_b32 v22, v22, v20")
        e(f"v_lshl_add_u32 v{KA+ks}, v22, 4, v21")
    e("v_and_b32 v20, 15, v127\nv_lshlrev_b32 v21, 10, v17\ns_lshl_b32 s9, s58, 9\ns_add_u32 s9, s9, 32768\nv_add_u32 v21, s9, v21")
    for c in range(8):
        e(f"v_or_b32 v22, {2*c}, v18")
        e("v_xor_b32 v22, v22, v20")
        e(f"v_lshl_add_u32 v{VA+c}, v22, 4, v21")
    e("s_lshl_b32 s54, s56, 11\ns_mov_b32 s52, 0\ns_mov_b32 s53, 0")
    for i in range(16):
        e(f"v_mov_b32 v{i}, 0")
        e(f"v_mov_b32 v{48+i}, 0")
    e("v_mov_b32 v126, 0xff800000\ns_mov_b64 s[34:35], -1")
    def dma():
        for j in range(2):
            e(f"s_add_u32 m0, s54, {j*1024}\ns_nop 0")
            e(f"buffer_load_dwordx4 v{DM+j}, s[40:43], s52 offen lds")
        for j in range(2):
            e(f"s_add_u32 m0, s54, {32768 + j*1024}\ns_nop 0")
            e(f"buffer_load_dwordx4 v{DM+2+j}, s[40:43], s53 offen lds")
    dma()
    KF = [72, 80]; VF = [88, 96]; SB = [16, 32]; P = 104
    def kread(tile):
        kf = KF[tile & 1]
        for ks in range(2):
            e(f"ds_read_b128 v[{kf+4*ks}:{kf+3+4*ks}], v{KA+ks} offset:{tile*2048}")
    def vread(tile):
        vf = VF[tile & 1]
        for c in range(2):
            cc = 2*tile + c
            e(f"ds_read_b128 v[{vf+4*c}:{vf+3+4*c}], v{VA + (cc&7)} offset:{(cc>>3)*256}")
    def smfma(tile):
        kf = KF[tile & 1]; S = SB[tile & 1]
        e(f"v_mfma_f32_32x32x16_bf16 v[{S}:{S+15}], v[{kf}:{kf+3}], v[64:67], v[48:63]")
        e(f"v_mfma_f32_32x32x16_bf16 v[{S}:{S+15}], v[{kf+4}:{kf+7}], v[68:71], v[{S}:{S+15}]")
    AR = [KA, KA+1] + list(range(VA, VA+8))
    e("s_mov_b32 s30, 0\nAT_LOOP:")
    e("s_add_u32 s52, s52, 32768\ns_add_u32 s53, s53, 1024\ns_xor_b32 s54, s54, 0x10000")
    dma()
    e("s_waitcnt vmcnt(4)\ns_barrier")
    kread(0); kread(1); vread(0)
    e("s_waitcnt lgkmcnt(4)")
    smfma(0)
    e("s_nop 7\ns_mov_b32 s31, 0\nAT_IN:")
    for tile in range(4):
        S = SB[tile & 1]; vf = VF[tile & 1]
        e("s_waitcnt lgkmcnt(2)")
        smfma(tile + 1)
        kread(tile + 2)
        vread(tile + 1)
        e(f"v_max3_f32 v{P}, v{S}, v{S+1}, v{S+2}")
        for i in range(3, 15, 2):
            e(f"v_max3_f32 v{P}, v{P}, v{S+i}, v{S+i+1}")
        e(f"v_max_f32 v{P}, v{P}, v{S+15}")
        e(f"v_cmp_lt_f32 vcc, 0x41000000, v{P}")
        e("s_or_b64 vcc, vcc, s[34:35]")
        e(f"s_cbranch_vccnz AT_SLOW{tile}")
        e(f"AT_F{tile}:")
        for i in range(16):
            e(f"v_exp_f32 v{S+i}, v{S+i}")
        for i in range(8):
            e(f"v_cvt_pk_bf16_f32 v{P+i}, v{S+2*i}, v{S+1+2*i}")
        e("s_waitcnt lgkmcnt(4)\ns_nop 1")
        e(f"v_mfma_f32_32x32x16_bf16 v[0:15], v[{vf}:{vf+3}], v[{P}:{P+3}], v[0:15]")
        e(f"v_mfma_f32_32x32x16_bf16 v[0:15], v[{vf+4}:{vf+7}], v[{P+4}:{P+7}], v[0:15]")
    e(f"v_add_u32 v{KA}, 8192, v{KA}\nv_add_u32 v{KA+1}, 8192, v{KA+1}")
    for r in range(VA, VA+8):
        e(f"v_add_u32 v{r}, 256, v{r}")
    e("s_add_u32 s31, s31, 1\ns_cmp_lt_u32 s31, 2\ns_cbranch_scc1 AT_IN")
    e(f"v_subrev_u32 v{KA}, 16384, v{KA}\nv_subrev_u32 v{KA+1}, 16384, v{KA+1}")
    for r in range(VA, VA+8):
        e(f"v_subrev_u32 v{r}, 512, v{r}")
    for r in AR:
        e(f"v_xor_b32 v{r}, 0x10000, v{r}")
    e("s_waitcnt lgkmcnt(0)\ns_barrier")
    e("s_add_u32 s30, s30, 1\ns_cmp_lt_u32 s30, 4\ns_cbranch_scc1 AT_LOOP")
    e("s_branch AT_FIN")
    for tile in range(4):
        S = SB[tile & 1]; S2 = SB[(tile & 1) ^ 1]
        e(f"AT_SLOW{tile}:")
        e(f"v_mov_b32 v{P+1}, v{P}\ns_nop 1")
        e(f"v_permlane32_swap_b32 v{P}, v{P+1}")
        e("s_nop 1")
        e(f"v_max3_f32 v{P}, v{P}, v{P+1}, v126")
        e("v_mov_b32 v126, 0\ns_mov_b64 s[34:35], 0")
        e(f"v_exp_f32 v{P+1}, -v{P}")
        e("s_nop 7\ns_nop 7")
        for i in range(16):
            e(f"v_sub_f32 v{S+i}, v{S+i}, v{P}")
            e(f"v_sub_f32 v{48+i}, v{48+i}, v{P}")
            e(f"v_mul_f32 v{i}, v{i}, v{P+1}")
            e(f"v_sub_f32 v{S2+i}, v{S2+i}, v{P}")
        e(f"s_branch AT_F{tile}")
    e("AT_FIN:\ns_waitcnt vmcnt(0)\ns_nop 15")
    e("""
    s_lshl_b32 s6, s57, 6
    v_add_u32 v16, s6, v127
    v_lshlrev_b32 v16, 6, v16
    s_barrier
    s_cmp_eq_u32 s58, 0
    s_cbranch_scc1 AT_MRG
    ds_write_b128 v16, v[0:3]
    ds_write_b128 v16, v[4:7] offset:16
    ds_write_b128 v16, v[8:11] offset:32
    ds_write_b32 v16, v48 offset:48
    s_waitcnt lgkmcnt(0)
    s_barrier
    s_branch AT_END
    AT_MRG:
    s_barrier
    ds_read_b128 v[20:23], v16
    ds_read_b128 v[24:27], v16 offset:16
    ds_read_b128 v[28:31], v16 offset:32
    ds_read_b32 v32, v16 offset:48
    s_waitcnt lgkmcnt(0)
    v_min_f32 v33, v48, v32
    v_sub_f32 v34, v33, v48
    v_sub_f32 v35, v33, v32
    v_exp_f32 v34, v34
    v_exp_f32 v35, v35
    s_nop 1
    """)
    for i in range(12):
        e(f"v_mul_f32 v{i}, v{i}, v34")
        e(f"v_fmac_f32 v{i}, v{20+i}, v35")
    e(f"""
    v_and_b32 v17, 31, v127
    v_lshrrev_b32 v18, 5, v127
    v_rcp_f32 v33, v10
    s_lshl_b32 s6, s5, 8
    s_lshl_b32 s7, s57, 5
    s_add_u32 s6, s6, s7
    v_add_u32 v19, s6, v17
    s_movk_i32 s8, 1152
    v_mul_lo_u32 v19, v19, s8
    s_mul_i32 s8, s4, 36
    s_add_u32 s8, s8, {WS_O}
    v_add_u32 v19, s8, v19
    v_lshl_add_u32 v19, v18, 3, v19
    """)
    for i in range(10):
        e(f"v_mul_f32 v{i}, v{i}, v33")
    for q in range(2):
        e(f"v_cvt_pk_bf16_f32 v{36+2*q}, v{4*q}, v{4*q+1}")
        e(f"v_cvt_pk_bf16_f32 v{37+2*q}, v{4*q+2}, v{4*q+3}")
        e(f"buffer_store_dword v{36+2*q}, v19, s[40:43], 0 offen offset:{16*q}")
        e(f"buffer_store_dword v{37+2*q}, v19, s[40:43], 0 offen offset:{16*q+4}")
    e("""
    v_cvt_pk_bf16_f32 v40, v8, v9
    v_cmp_eq_u32 vcc, 0, v18
    s_and_saveexec_b64 s[24:25], vcc
    s_cbranch_execz AT_SK
    buffer_store_dword v40, v19, s[40:43], 0 offen offset:32
    AT_SK:
    s_or_b64 exec, exec, s[24:25]
    AT_END:
    s_endpgm
    """)

def main():
    e = E()
    hdr = open("parallel_sum__mha_block__glu_gated_swiglu__prompt.s.ref").read().split("; Override")[0]
    txt = hdr
    txt += "; @launch kernel=ln_kernel grid=(1024,1,1) block=(256,1,1) lds=0\n"
    txt += f"; @launch kernel=gemm1_kernel grid=(256,1,1) block=(512,1,1) lds=163840\n"
    txt += "; @launch kernel=attn_kernel grid=(256,1,1) block=(1024,1,1) lds=131072\n"
    txt += "; @launch kernel=gemm2_kernel grid=(320,1,1) block=(256,1,1) lds=32768\n"
    txt += "; @launch kernel=red_kernel grid=(1152,1,1) block=(256,1,1) lds=0\n"
    txt += '.amdgcn_target "amdgcn-amd-amdhsa--gfx950"\n.text\n'
    gen_ln(e); gen_gemm1(e); gen_attn(e); gen_gemm2(e); gen_red(e)
    txt += e.text()
    txt += kd("ln_kernel", 80) + kd("gemm1_kernel", 256) + kd("attn_kernel", 128) + kd("gemm2_kernel", 128) + kd("red_kernel", 32)
    open(OUT, "w").write(txt)
    print("wrote", len(txt))
main()
```

```python
import sys
OUT = "parallel_sum__mha_block__glu_gated_swiglu__prompt.s" if len(sys.argv)<2 else "var_"+sys.argv[1]+".s"

MB = 1 << 20
WS_XN = 0
WS_QP = 4 * MB
WS_KP = 8 * MB
WS_VT = 12 * MB
WS_H = 16 * MB
WS_O = 40 * MB
WS_SIZE = 268435456

S_, D_, F_, H_ = 2048, 576, 4608, 32
LOG2E = 1.4426950408889634
QSCALE = LOG2E * (18 ** -0.5)

import struct
def f2u(x):
    return struct.unpack("<I", struct.pack("<f", x))[0]

class E:
    def __init__(self):
        self.l = []
    def __call__(self, s):
        for ln in s.strip("\n").split("\n"):
            self.l.append("  " + ln.strip() if not ln.strip().endswith(":") else ln.strip())
    def text(self):
        return "\n".join(self.l) + "\n"

def srd(e, d, base_lo, base_hi, nbytes):
    e(f"s_mov_b32 s{d}, s{base_lo}")
    e(f"s_and_b32 s{d+1}, s{base_hi}, 0xffff")
    e(f"s_mov_b32 s{d+2}, {nbytes}")
    e(f"s_mov_b32 s{d+3}, 0x00020000")

def header(e, name):
    e(f".globl {name}\n.p2align 8\n.type {name},@function\n{name}:")

def kd(name, vgpr, sgpr=102):
    acc = (vgpr + 3) // 4 * 4
    return f""".section .rodata,"a"
.p2align 6
.amdhsa_kernel {name}
  .amdhsa_next_free_vgpr {vgpr}
  .amdhsa_next_free_sgpr {sgpr}
  .amdhsa_accum_offset {acc}
  .amdhsa_group_segment_fixed_size 0
  .amdhsa_kernarg_size 80
  .amdhsa_user_sgpr_count 2
  .amdhsa_user_sgpr_kernarg_segment_ptr 1
  .amdhsa_system_sgpr_workgroup_id_x 1
.end_amdhsa_kernel
"""

def gen_ln(e):
    header(e, "ln_kernel")
    PF = ((28, D_*F_*2), (30, D_*F_*2), (26, D_*1728*2))
    def prefetch():
        if "PF" not in sys.argv: return
        for n_, (lo, nb) in enumerate(PF):
            srd(e, 32, lo, lo+1, nb)
            e(f"buffer_load_dword v{71+n_}, v70, s[32:35], 0 offen")
    e("""
    s_cmp_ge_u32 s2, 704
    s_cbranch_scc1 LN_END
    s_load_dwordx2 s[4:5], s[0:1], 0
    s_load_dwordx2 s[6:7], s[0:1], 72
    s_load_dwordx2 s[26:27], s[0:1], 8
    s_load_dwordx2 s[28:29], s[0:1], 32
    s_load_dwordx2 s[30:31], s[0:1], 40
    s_lshl_b32 s3, s2, 8
    v_add_u32 v1, s3, v0
    v_lshlrev_b32 v70, 5, v1
    v_lshrrev_b32 v2, 5, v1
    v_and_b32 v3, 31, v1
    s_movk_i32 s20, 1152
    v_mul_lo_u32 v4, v2, s20
    v_lshl_add_u32 v4, v3, 2, v4
    s_waitcnt lgkmcnt(0)
    """)
    srd(e, 12, 6, 7, WS_SIZE)
    e("s_cmp_lt_u32 s2, 256\ns_cbranch_scc1 LN_MAIN")
    prefetch()
    magic = -(-(1 << 32) // 3584)
    e(f"""
    v_subrev_u32 v30, 65536, v1
    s_mov_b32 s21, {magic}
    v_mul_hi_u32 v31, v30, s21
    s_movk_i32 s21, 3584
    v_mul_lo_u32 v32, v31, s21
    v_sub_u32 v32, v30, v32
    v_lshrrev_b32 v33, 8, v32
    v_and_b32 v34, 255, v32
    v_add_u32 v33, 18, v33
    v_lshl_add_u32 v35, v31, 5, v33
    v_lshlrev_b32 v35, 12, v35
    v_lshl_add_u32 v35, v34, 4, v35
    v_add_u32 v35, {WS_VT}, v35
    v_cmp_eq_u32 vcc, 18, v33
    v_cmp_eq_u32 s[22:23], 22, v33
    s_or_b64 vcc, vcc, s[22:23]
    v_mov_b32 v36, 0x3f803f80
    s_nop 1
    v_cndmask_b32 v44, 0, v36, vcc
    v_mov_b32 v45, v44
    v_mov_b32 v46, v44
    v_mov_b32 v47, v44
    v_cmp_gt_u32 vcc, 114688, v30
    s_and_saveexec_b64 s[24:25], vcc
    s_cbranch_execz LN_END
    buffer_store_dwordx4 v[44:47], v35, s[12:15], 0 offen
    s_branch LN_END
    LN_MAIN:
    """)
    srd(e, 8, 4, 5, S_ * D_ * 2)
    for i in range(9):
        e(f"buffer_load_dword v{10+i}, v4, s[8:11], 0 offen offset:{128*i}")
    prefetch()
    e(f"s_waitcnt vmcnt({0 if 'PF' not in sys.argv else len(PF)})")
    for i in range(9):
        e(f"v_lshlrev_b32 v{50+2*i}, 16, v{10+i}")
        e(f"v_and_b32 v{51+2*i}, 0xffff0000, v{10+i}")
    e("v_add_f32 v20, v50, v51")
    for i in range(2, 18):
        e(f"v_add_f32 v20, v20, v{50+i}")
    def red(v):
        for x in (1, 2, 4, 8, 16):
            e(f"ds_swizzle_b32 v21, v{v} offset:{(x<<10)|0x1f}")
            e("s_waitcnt lgkmcnt(0)")
            e(f"v_add_f32 v{v}, v{v}, v21")
    red(20)
    e(f"v_mul_f32 v20, {hex(f2u(1.0/576))}, v20")
    for i in range(18):
        e(f"v_sub_f32 v{50+i}, v{50+i}, v20")
    e("v_mul_f32 v22, v50, v50")
    for i in range(1, 18):
        e(f"v_fmac_f32 v22, v{50+i}, v{50+i}")
    red(22)
    e(f"v_mov_b32 v23, {hex(f2u(1e-5))}")
    e(f"v_fmac_f32 v23, {hex(f2u(1.0/576))}, v22")
    e("v_rsq_f32 v23, v23")
    e("s_nop 1")
    for i in range(18):
        e(f"v_mul_f32 v{50+i}, v{50+i}, v23")
    for i in range(9):
        e(f"v_cvt_pk_bf16_f32 v{10+i}, v{50+2*i}, v{51+2*i}")
    e("""
    v_lshrrev_b32 v5, 5, v2
    v_mul_u32_u24 v5, 36864, v5
    v_and_b32 v6, 31, v2
    v_lshl_add_u32 v5, v6, 4, v5
    v_lshrrev_b32 v6, 3, v3
    v_lshl_add_u32 v5, v6, 10, v5
    v_bfe_u32 v6, v3, 2, 1
    v_lshl_add_u32 v5, v6, 9, v5
    v_and_b32 v6, 3, v3
    v_lshl_add_u32 v5, v6, 2, v5
    """)
    for i in range(9):
        e(f"s_mov_b32 s20, {4096*i}")
        e(f"buffer_store_dword v{10+i}, v5, s[12:15], s20 offen")
    e("LN_END:\ns_endpgm")

ACC = 0
def acc(p, t):
    b = ACC + p * 32 + t * 16
    return f"v[{b}:{b+15}]"

def gemm_dma(e, buf):
    if "NODMA" in sys.argv: return
    sb = buf * 16384
    for i in range(2):
        e(f"s_add_u32 m0, s54, {sb + i*1024}")
        e("s_nop 0")
        e(f"buffer_load_dwordx4 v{96+i}, s[40:43], s52 offen lds")
    for p in range(2):
        e(f"s_add_u32 m0, s55, {sb + p*4096}")
        e("s_nop 0")
        e(f"buffer_load_dwordx4 v100, s[{44+4*p}:{47+4*p}], s53 offen lds")

def gemm_reads(e, buf, ks):
    fs = 64 + (ks & 1) * 16
    sb = buf * 16384
    for p in range(2):
        for h2 in range(2):
            e(f"ds_read_b64_tr_b16 v[{fs+4*p+2*h2}:{fs+4*p+2*h2+1}], v106 offset:{sb + p*4096 + ks*2048 + h2*512}")
    for t in range(2):
        e(f"ds_read_b128 v[{fs+8+4*t}:{fs+11+4*t}], v{102+ks} offset:{sb + t*2048}")

SWAP = [False]
def gemm_compute(e, buf):
    gemm_reads(e, buf, 0)
    for ks in range(2):
        if ks < 1:
            gemm_reads(e, buf, ks + 1)
            e("s_waitcnt lgkmcnt(6)")
        else:
            e("s_waitcnt lgkmcnt(0)")
        fs = 64 + (ks & 1) * 16
        for p in range(2):
            for t in range(2):
                wfr = f"v[{fs+4*p}:{fs+4*p+3}]"; xfr = f"v[{fs+8+4*t}:{fs+11+4*t}]"
                if SWAP[0]: wfr, xfr = xfr, wfr
                if "NOMF" not in sys.argv: e(f"v_mfma_f32_32x32x16_bf16 {acc(p,t)}, {wfr}, {xfr}, {acc(p,t)}")

def gemm_setup_common(e, m0_sreg):
    e("""
    v_and_b32 v107, 63, v0
    v_lshrrev_b32 v108, 6, v0
    s_nop 0
    v_readfirstlane_b32 s56, v108
    """)
    for i in range(64):
        e(f"v_mov_b32 v{i}, 0")
    e("""
    s_lshr_b32 s57, s56, 1
    s_and_b32 s58, s56, 1
    v_and_b32 v108, 31, v107
    v_lshrrev_b32 v109, 5, v107
    v_bfe_u32 v110, v107, 2, 2
    s_lshl_b32 s59, s57, 12
    v_lshlrev_b32 v111, 6, v108
    v_add_u32 v111, s59, v111
    """)
    for ks in range(2):
        e(f"v_or_b32 v112, {2*ks}, v109")
        e("v_xor_b32 v112, v112, v110")
        e(f"v_lshl_add_u32 v{102+ks}, v112, 4, v111")
    e("""
    v_bfe_u32 v108, v107, 2, 2
    v_lshl_add_u32 v108, v109, 3, v108
    v_lshlrev_b32 v108, 7, v108
    v_bfe_u32 v110, v107, 3, 1
    v_xor_b32 v110, s58, v110
    v_lshl_add_u32 v108, v110, 6, v108
    v_bfe_u32 v110, v107, 4, 1
    v_lshl_add_u32 v108, v110, 5, v108
    v_and_b32 v110, 3, v107
    v_lshl_add_u32 v108, v110, 3, v108
    v_add_u32 v106, 8192, v108
    s_lshl_b32 s54, s56, 11
    s_lshl_b32 s55, s56, 10
    s_add_u32 s55, s55, 8192
    """)

def gemm_setup_x(e, m0_sreg, stride_sreg):
    e(f"""
    s_lshl_b32 s59, s56, 5
    s_add_u32 s59, s59, s{m0_sreg}
    v_lshrrev_b32 v108, 2, v107
    v_add_u32 v108, s59, v108
    v_and_b32 v109, 3, v107
    v_bfe_u32 v110, v107, 4, 2
    v_xor_b32 v112, v109, v110
    """)
    for i in range(2):
        e(f"v_add_u32 v111, {16*i}, v108")
        e(f"v_mul_lo_u32 v111, v111, s{stride_sreg}")
        e(f"v_lshl_add_u32 v{96+i}, v112, 4, v111")

def gemm_setup_w(e, ncol_sreg, stride_sreg):
    e(f"""
    s_lshl_b32 s59, s56, 3
    v_lshrrev_b32 v108, 3, v107
    v_add_u32 v108, s59, v108
    v_and_b32 v109, 7, v107
    v_bfe_u32 v110, v107, 4, 1
    v_lshlrev_b32 v110, 2, v110
    v_xor_b32 v109, v109, v110
    v_lshlrev_b32 v109, 4, v109
    s_lshl_b32 s59, s{ncol_sreg}, 1
    v_add_u32 v109, s59, v109
    v_mul_lo_u32 v111, v108, s{stride_sreg}
    v_add_u32 v100, v111, v109
    """)

def gemm_stage(e, s, nst, adv):
    buf = s & 1
    if s + 1 < nst:
        adv(e)
        gemm_dma(e, buf ^ 1)
        e("s_waitcnt vmcnt(4)")
    else:
        e("s_waitcnt vmcnt(0)")
    e("s_barrier")
    gemm_compute(e, buf)
    e("s_barrier")

def gen_gemm1(e):
    XR = 64; WF = 208; T = WF
    FL = sys.argv
    header(e, "gemm1_kernel")
    e(f"""
    s_cmp_ge_u32 s2, 256
    s_cbranch_scc1 G1_END
    s_load_dwordx2 s[4:5], s[0:1], 8
    s_load_dwordx2 s[6:7], s[0:1], 32
    s_load_dwordx2 s[8:9], s[0:1], 40
    s_load_dwordx2 s[10:11], s[0:1], 72
    s_bfe_u32 s12, s2, 0x30003
    s_lshl_b32 s12, s12, 8
    s_lshr_b32 s13, s2, 6
    s_lshl_b32 s13, s13, 3
    s_and_b32 s14, s2, 7
    s_add_u32 s14, s13, s14      ; group 0..31
    v_and_b32 v245, 63, v0
    v_lshrrev_b32 v246, 6, v0
    s_nop 0
    v_readfirstlane_b32 s56, v246
    v_and_b32 v246, 31, v245
    v_lshrrev_b32 v247, 5, v245
    s_waitcnt lgkmcnt(0)
    """)
    srd(e, 40, 10, 11, S_ * D_ * 2)
    srd(e, 60, 10, 11, WS_SIZE)
    e("""
    v_bfe_u32 v248, v245, 2, 2
    v_lshl_add_u32 v248, v247, 3, v248
    v_lshlrev_b32 v248, 7, v248
    v_bfe_u32 v249, v245, 4, 1
    v_lshl_add_u32 v248, v249, 5, v248
    v_and_b32 v249, 3, v245
    v_lshl_add_u32 v248, v249, 3, v248
    v_bfe_u32 v249, v245, 3, 1
    v_lshl_add_u32 v242, v249, 6, v248
    v_xor_b32 v249, 1, v249
    v_lshl_add_u32 v243, v249, 6, v248
    v_add_u32 v252, 0x10000, v242
    v_add_u32 v253, 0x10000, v243
    v_add_u32 v254, 0x20000, v242
    v_add_u32 v255, 0x20000, v243
    s_lshl_b32 s55, s56, 10
    s_lshr_b32 s59, s12, 5
    s_add_u32 s59, s59, s56
    s_mul_i32 s59, s59, 36864
    v_lshl_add_u32 v244, v245, 4, s59
    """)
    def xload(kk):
        if "NOX1" in FL: return
        e(f"s_mov_b32 s59, {1024*kk}")
        e(f"buffer_load_dwordx4 v[{XR+4*kk}:{XR+4*kk+3}], v244, s[40:43], s59 offen")
    def voffw():
        e(f"""
        s_lshl_b32 s17, s16, 6
        s_lshl_b32 s59, s56, 3
        v_lshrrev_b32 v248, 3, v245
        v_add_u32 v248, s59, v248
        v_and_b32 v249, 7, v245
        v_bfe_u32 v250, v245, 4, 1
        v_lshlrev_b32 v250, 2, v250
        v_xor_b32 v249, v249, v250
        v_lshlrev_b32 v249, 4, v249
        s_lshl_b32 s59, s15, 1
        v_add_u32 v249, s59, v249
        v_mul_lo_u32 v250, v248, s16
        v_add_u32 v240, v250, v249
        s_mov_b32 s53, 0
        s_nop 4
        """)
    def dma(buf):
        for p in range(2):
            if "NODMA1" in FL: continue
            e(f"s_add_u32 m0, s55, {buf*16384 + p*8192}")
            e("s_nop 0")
            e(f"buffer_load_dwordx4 v240, s[{44+4*p}:{47+4*p}], s53 offen lds")
        e("s_add_u32 s53, s53, s17")
    def reads(buf, ks):
        fs = WF + (ks & 1) * 16
        for j in range(4):
            p, sub = j >> 1, j & 1
            for h2 in range(2):
                areg = (242, 252, 254)[buf // 4] + sub
                e(f"ds_read_b64_tr_b16 v[{fs+4*j+2*h2}:{fs+4*j+2*h2+1}], v{areg} offset:{(buf%4)*16384 + p*8192 + ks*2048 + h2*512}")
    def mfmas(st, ks, swap):
        if "NOMF1" in FL: return
        fs = WF + (ks & 1) * 16
        kk = 4 * st + ks
        for j in range(4):
            wfr = f"v[{fs+4*j}:{fs+4*j+3}]"; xfr = f"v[{XR+4*kk}:{XR+4*kk+3}]"
            if swap: wfr, xfr = xfr, wfr
            c = "0" if (st == 0 and ks == 0) else f"v[{16*j}:{16*j+15}]"
            e(f"v_mfma_f32_32x32x16_bf16 v[{16*j}:{16*j+15}], {wfr}, {xfr}, {c}")
    def body(swap, sync):
        reads(0, 0)
        for st in range(9):
            for ks in range(4):
                if ks == 2 and st < 8: sync(st)
                if ks < 3: reads(st, ks + 1)
                elif st < 8: reads(st + 1, 0)
                e("s_waitcnt lgkmcnt(8)" if (ks < 3 or st < 8) else "s_waitcnt lgkmcnt(0)")
                mfmas(st, ks, swap)
        e("s_barrier")
        e("s_nop 15")
    e("s_cmp_ge_u32 s14, 8\ns_cbranch_scc1 " + ("G1_END" if "NOF" in FL else "G1_FFN"))
    if "NOQ" in FL: e("s_branch G1_END")
    e("""
    s_lshl_b32 s13, s14, 1       ; tile
    s_add_u32 s19, s13, 2
    s_min_u32 s19, s19, 15
    s_mov_b32 s30, 0
    s_lshl_b32 s57, s56, 14
    """)
    srd(e, 44, 4, 5, D_ * 1728 * 2)
    e(f"""
    s_add_u32 s48, s4, 128
    s_addc_u32 s49, s5, 0
    s_and_b32 s49, s49, 0xffff
    s_mov_b32 s50, {D_*1728*2-128}
    s_mov_b32 s51, 0x00020000
    G1_QT:
    s_mul_i32 s22, s13, 13
    s_lshr_b32 s22, s22, 6       ; mat
    s_mul_i32 s23, s22, 5
    s_sub_u32 s23, s13, s23      ; t'
    s_mul_i32 s15, s22, 576
    s_mul_i32 s59, s23, 126
    s_add_u32 s15, s15, s59      ; col0
    s_mul_i32 s24, s23, 7        ; head0
    s_movk_i32 s16, 3456
    """)
    voffw()
    for b_ in range(9): dma(b_)
    e("s_cmp_lg_u32 s30, 0\ns_cbranch_scc1 G1_QNX")
    for kk in range(36): xload(kk)
    e("""
    s_mov_b32 s30, 1
    G1_QNX:
    s_waitcnt vmcnt(0)
    s_barrier
    s_cmp_ge_u32 s22, 2
    s_cbranch_scc1 G1_QV
    """)
    nos = lambda s_: None
    body(False, nos)
    e(f"""
    s_mov_b32 s20, {hex(f2u(QSCALE))}
    s_cmp_eq_u32 s22, 0
    s_cselect_b32 s20, s20, 1.0
    v_lshl_add_u32 v248, v246, 6, s57
    v_bfe_u32 v249, v246, 1, 2
    v_lshlrev_b32 v249, 4, v249
    """)
    cnt = 0
    for j in range(4):
        for q in range(4):
            for jj in (0, 2):
                n0 = 32*j + 8*q + jj; n1 = n0 + 4
                o0 = (n0//18)*2048 + (n0%18)*2; o1 = (n1//18)*2048 + (n1%18)*2
                t = T + 4*(cnt % 4); cnt += 1
                r = 16*j + 4*q + jj
                e(f"v_mul_u32_u24 v{t}, {o1-o0}, v247")
                e(f"v_mul_f32 v{t+1}, s20, v{r}")
                e(f"v_mul_f32 v{t+2}, s20, v{r+1}")
                e(f"v_add_u32 v{t}, {o0}, v{t}")
                e(f"v_xor_b32 v{t}, v{t}, v249")
                e(f"v_cvt_pk_bf16_f32 v{t+1}, v{t+1}, v{t+2}")
                e(f"v_add_u32 v{t}, v{t}, v248")
                e(f"ds_write_b32 v{t}, v{t+1}")
    e(f"""
    v_lshrrev_b32 v248, 2, v245
    v_and_b32 v249, 3, v245
    v_bfe_u32 v250, v245, 3, 2
    v_xor_b32 v250, v250, v249
    v_lshlrev_b32 v250, 4, v250
    v_lshl_add_u32 v250, v248, 6, v250
    v_add_u32 v250, s57, v250
    v_cmp_gt_u32 vcc, 3, v249
    v_cndmask_b32 v251, 0, -1, vcc
    v_cmp_gt_u32 vcc, 2, v249
    v_cndmask_b32 v241, 0, -1, vcc
    s_lshl_b32 s59, s56, 5
    s_add_u32 s59, s59, s12
    v_add_u32 v248, s59, v248
    v_lshlrev_b32 v248, 6, v248
    v_lshl_add_u32 v248, v249, 4, v248
    s_lshl_b32 s59, s22, 22
    s_add_u32 s59, s59, {WS_QP}
    s_lshl_b32 s25, s24, 17
    s_add_u32 s59, s59, s25
    v_add_u32 v248, s59, v248
    s_waitcnt lgkmcnt(0)
    """)
    for b0 in range(0, 14, 4):
        rs = list(range(b0, min(b0+4, 14)))
        if b0 == 8: e("s_cmp_eq_u32 s23, 4\ns_cbranch_scc1 G1_QNEXT")
        for i in rs:
            t = T + 4*(i % 4)
            e(f"ds_read_b128 v[{t}:{t+3}], v250 offset:{i*1024}")
        for i in rs:
            t = T + 4*(i % 4)
            e(f"s_waitcnt lgkmcnt({rs[-1]-i})")
            e(f"v_and_b32 v{t}, v{t}, v251")
            for k_ in range(1, 4): e(f"v_and_b32 v{t+k_}, v{t+k_}, v241")
            e(f"s_mov_b32 s59, {(i//2)*131072 + (i%2)*1024}")
            e(f"buffer_store_dwordx4 v[{t}:{t+3}], v248, s[60:63], s59 offen")
    e("s_branch G1_QNEXT\nG1_QV:")
    body(True, nos)
    e(f"""
    v_bfe_u32 v249, v246, 1, 2
    v_xor_b32 v250, v249, v247
    v_lshlrev_b32 v250, 4, v250
    v_lshl_add_u32 v250, v246, 6, v250
    v_add_u32 v250, s57, v250
    v_or_b32 v251, 2, v247
    v_xor_b32 v251, v249, v251
    v_lshlrev_b32 v251, 4, v251
    v_lshl_add_u32 v251, v246, 6, v251
    v_add_u32 v251, s57, v251
    """)
    cnt = 0
    for j in range(4):
        for q in range(4):
            r = 16*j + 4*q
            t = T + 2*(cnt % 8); cnt += 1
            e(f"v_cvt_pk_bf16_f32 v{t}, v{r}, v{r+1}")
            e(f"v_cvt_pk_bf16_f32 v{t+1}, v{r+2}, v{r+3}")
            e(f"ds_write_b64 v{250 + (q>>1)}, v[{t}:{t+1}] offset:{j*2048 + 8*(q&1)}")
    e(f"""
    v_lshrrev_b32 v248, 2, v245
    v_and_b32 v249, 3, v245
    v_bfe_u32 v250, v245, 3, 2
    v_xor_b32 v250, v250, v249
    v_lshlrev_b32 v250, 4, v250
    v_lshl_add_u32 v250, v248, 6, v250
    v_add_u32 v250, s57, v250
    s_lshl_b32 s59, s56, 5
    s_add_u32 s59, s59, s12
    s_lshl_b32 s59, s59, 1
    s_add_u32 s59, s59, {WS_VT}
    s_lshl_b32 s25, s24, 17
    s_add_u32 s59, s59, s25
    v_lshl_add_u32 v249, v249, 4, s59
    s_movk_i32 s21, 3641
    s_movk_i32 s25, 126
    s_cmp_eq_u32 s23, 4
    s_cselect_b32 s25, 72, s25
    s_waitcnt lgkmcnt(0)
    """)
    for b0 in (0, 4):
        rs = list(range(b0, b0+4))
        for i in rs:
            t = T + 4*(i % 4)
            e(f"ds_read_b128 v[{t}:{t+3}], v250 offset:{i*1024}")
        for i in rs:
            t = T + 4*(i % 4)
            u = T + 16 + 4*(i % 4)
            e(f"""
            v_add_u32 v{u}, {16*i}, v248
            v_mul_u32_u24 v{u+1}, s21, v{u}
            v_lshrrev_b32 v{u+1}, 16, v{u+1}
            v_mul_u32_u24 v{u+2}, 14, v{u+1}
            v_add_u32 v{u+2}, v{u+2}, v{u}
            v_lshl_add_u32 v{u+2}, v{u+2}, 12, v249
            v_cmp_gt_u32 vcc, s25, v{u}
            s_waitcnt lgkmcnt({rs[-1]-i})
            s_mov_b64 exec, vcc
            buffer_store_dwordx4 v[{t}:{t+3}], v{u+2}, s[60:63], 0 offen
            s_mov_b64 exec, -1
            """)
    e("""
    G1_QNEXT:
    s_add_u32 s13, s13, 1
    s_cmp_ge_u32 s13, s19
    s_cbranch_scc1 G1_END
    s_barrier
    s_branch G1_QT
    """)
    e("""
    G1_FFN:
    s_sub_u32 s13, s14, 8
    s_mul_i32 s13, s13, 3
    s_add_u32 s19, s13, 3
    s_mov_b32 s31, s13
    s_movk_i32 s16, 9216
    """)
    srd(e, 44, 6, 7, D_ * F_ * 2)
    srd(e, 48, 8, 9, D_ * F_ * 2)
    e("s_lshl_b32 s15, s31, 6")
    voffw()
    def cursor_next(tag):
        e(f"""
        s_add_u32 s31, s31, 1
        s_cmp_lt_u32 s31, s19
        s_cbranch_scc1 G1_CN{tag}
        s_mov_b32 s46, 0
        s_mov_b32 s50, 0
        G1_CN{tag}:
        s_lshl_b32 s15, s31, 6
        """)
        voffw()
    for g in range(7):
        dma(g)
        for kk in range(4*g, 4*g+4): xload(kk)
    for kk in range(28, 36): xload(kk)
    def mk_sync(waits, tag):
        def sy(s_):
            if "NOWAIT" not in FL: e(f"s_waitcnt vmcnt({waits[s_+1]})")
            if "NOBAR" not in FL: e("s_barrier")
            if s_ == 1: cursor_next(tag)
            dma((s_ - 1) % 9)
        return sy
    first = [44, 40, 36, 32, 28, 24, 20, 12, 12]
    steady = [20, 20, 20, 20, 20, 20, 20, 12, 12]
    def ffn_epi():
        if "NOEPI1" in FL: return
        e(f"""
        s_lshr_b32 s59, s12, 5
        s_add_u32 s59, s59, s56
        s_mul_i32 s59, s59, 331776
        s_lshl_b32 s18, s13, 12
        s_add_u32 s59, s59, s18
        s_add_u32 s59, s59, {WS_H}
        v_lshl_add_u32 v251, v246, 4, s59
        v_lshl_add_u32 v251, v247, 3, v251
        s_mov_b32 s20, {hex(f2u(-LOG2E))}
        """)
        cnt = 0
        for sub in range(2):
            for q in range(4):
                t = T + 10 * (cnt % 3); cnt += 1
                for j in range(4):
                    e(f"v_mul_f32 v{t+j}, s20, v{16*sub+4*q+j}")
                for j in range(4):
                    e(f"v_exp_f32 v{t+j}, v{t+j}")
                for j in range(4):
                    e(f"v_mul_f32 v{t+4+j}, v{16*sub+4*q+j}, v{32+16*sub+4*q+j}")
                for j in range(4):
                    e(f"v_add_f32 v{t+j}, 1.0, v{t+j}")
                for j in range(4):
                    e(f"v_rcp_f32 v{t+j}, v{t+j}")
                e("s_nop 0")
                for j in range(4):
                    e(f"v_mul_f32 v{t+4+j}, v{t+4+j}, v{t+j}")
                e(f"v_cvt_pk_bf16_f32 v{t+8}, v{t+4}, v{t+5}")
                e(f"v_cvt_pk_bf16_f32 v{t+9}, v{t+6}, v{t+7}")
                e(f"buffer_store_dwordx2 v[{t+8}:{t+9}], v251, s[60:63], 0 offen offset:{(2*sub+(q>>1))*1024 + (q&1)*512}")
    mk_sync(first, "X")(-1)
    body(False, mk_sync(first, "A"))
    ffn_epi()
    e("s_add_u32 s13, s13, 1\nG1_FT:")
    mk_sync(steady, "Y")(-1)
    body(False, mk_sync(steady, "B"))
    ffn_epi()
    e("""
    s_add_u32 s13, s13, 1
    s_cmp_lt_u32 s13, s19
    s_cbranch_scc1 G1_FT
    G1_END:
    s_endpgm
    """)

WS_P = 48 * MB
NSPLIT = 5
def gen_gemm2(e):
    XR = 48; WF = 144
    header(e, "gemm2_kernel")
    e(f"""
    s_cmp_ge_u32 s2, 240
    s_cbranch_scc1 G2_END
    s_load_dwordx2 s[4:5], s[0:1], 16
    s_load_dwordx2 s[6:7], s[0:1], 48
    s_load_dwordx2 s[10:11], s[0:1], 72
    s_and_b32 s12, s2, 7
    s_lshr_b32 s13, s2, 3        ; r 0..29
    s_mul_i32 s28, s13, 43
    s_lshr_b32 s28, s28, 8       ; r/6
    s_mul_i32 s14, s28, 6
    s_sub_u32 s13, s13, s14      ; n tile
    s_mul_i32 s12, s12, 5
    s_add_u32 s12, s12, s28      ; pair 0..39
    s_lshr_b32 s28, s12, 3       ; split
    s_and_b32 s12, s12, 7        ; m tile
    s_lshl_b32 s29, s28, 4
    s_add_u32 s29, s29, 1
    s_mov_b32 s30, 16
    s_cmp_lg_u32 s28, 0
    s_cbranch_scc1 G2_SP
    s_mov_b32 s29, 0
    s_mov_b32 s30, 17
    G2_SP:
    v_and_b32 v170, 63, v0
    v_lshrrev_b32 v171, 6, v0
    s_nop 0
    v_readfirstlane_b32 s56, v171
    s_waitcnt lgkmcnt(0)
    s_add_u32 s40, s10, {WS_H}
    s_addc_u32 s41, s11, 0
    s_and_b32 s41, s41, 0xffff
    s_mov_b32 s42, {64*331776}
    s_mov_b32 s43, 0x00020000
    s_mov_b32 s44, s6
    s_and_b32 s45, s7, 0xffff
    s_mov_b32 s46, {F_*D_*2}
    s_mov_b32 s47, 0x00020000
    s_mov_b32 s49, {D_*D_*2}
    s_lshl_b32 s55, s56, 11      ; m0 base within stage buf
    s_cmp_lt_u32 s56, 6
    s_cbranch_scc1 G2_W6
    s_mov_b32 s46, 0
    s_mov_b32 s49, 0
    G2_W6:
    ; X voffset
    s_lshl_b32 s59, s12, 3
    s_add_u32 s59, s59, s56
    s_mul_i32 s58, s59, 331776
    v_lshl_add_u32 v172, v170, 4, s58
    s_lshl_b32 s52, s29, 12      ; X soffset (stage*4096)
    ; W voffset: c = w/2 ; krow = (w&1)*32 + lane/4
    s_and_b32 s58, s56, 1
    s_lshl_b32 s58, s58, 5
    v_lshrrev_b32 v171, 2, v170
    v_add_u32 v171, s58, v171
    v_mul_u32_u24 v171, 1152, v171
    v_and_b32 v173, 3, v170
    v_lshl_add_u32 v171, v173, 4, v171
    s_lshr_b32 s58, s56, 1
    s_lshl_b32 s58, s58, 6
    s_mul_i32 s57, s13, 192
    s_add_u32 s58, s58, s57
    v_add_u32 v174, s58, v171
    v_add_u32 v175, {16*1152}, v174
    s_mul_i32 s53, s29, {64*1152}
    """ + ("""
    s_lshl_b32 s58, s56, 11
    s_mul_i32 s57, s13, 12288
    s_add_u32 s58, s58, s57
    v_lshl_add_u32 v174, v170, 4, s58
    v_add_u32 v175, 1024, v174
    """ if "WLIN" in sys.argv else "") + f"""
    ; tr read addr
    v_lshrrev_b32 v171, 5, v170
    v_bfe_u32 v173, v170, 2, 2
    v_lshl_add_u32 v171, v171, 3, v173
    v_lshlrev_b32 v171, 6, v171
    v_bfe_u32 v173, v170, 4, 1
    v_lshl_add_u32 v171, v173, 5, v171
    v_and_b32 v173, 3, v170
    v_lshl_add_u32 v176, v173, 3, v171
    v_add_u32 v177, 36864, v176
    """)
    for i in range(48): e(f"v_mov_b32 v{i}, 0")
    lab = [0]
    def dma(slot):
        lab[0] += 1
        e(f"""
        s_cmp_lg_u32 s29, 72
        s_cbranch_scc1 G2_NS{lab[0]}
        s_mov_b32 s44, s4
        s_and_b32 s45, s5, 0xffff
        s_mov_b32 s46, s49
        s_mov_b32 s53, 0
        G2_NS{lab[0]}:
        """)
        e(f"s_add_u32 m0, s54, {slot*12288}" if False else f"s_add_u32 m0, s55, {slot*12288}")
        e("s_nop 0")
        e(f"buffer_load_dwordx4 v174, s[44:47], s53 offen lds")
        e(f"s_add_u32 m0, s55, {slot*12288 + 1024}")
        e("s_nop 0")
        e(f"buffer_load_dwordx4 v175, s[44:47], s53 offen lds")
        e(f"s_add_u32 s53, s53, {64*1152}")
        e("s_add_u32 s29, s29, 1")
    def xld(slot):
        for ks in range(4):
            if "NOX2" in sys.argv: continue
            r = XR + 16*slot + 4*ks
            e(f"buffer_load_dwordx4 v[{r}:{r+3}], v172, s[40:43], s52 offen offset:{ks*1024}")
        e("s_add_u32 s52, s52, 4096")
    def reads(slot, ks):
        fs = WF + (ks & 1) * 12
        areg = 176 if slot < 3 else 177
        for c in range(3):
            for h2 in range(2):
                e(f"ds_read_b64_tr_b16 v[{fs+4*c+2*h2}:{fs+4*c+2*h2+1}], v{areg} offset:{(slot%3)*12288 + c*4096 + ks*1024 + h2*256}")
    e("""
    s_cmp_lt_u32 s56, 6
    s_cbranch_scc1 G2_PRO
    s_branch G2_PROB
    G2_PRO:
    """)
    def full(dummy):
        def dm(slot):
            if "NODMA2" in sys.argv: return
            if dummy:
                lab[0] += 1
                e("s_mov_b32 m0, 73728\ns_nop 0")
                e("buffer_load_dwordx4 v174, s[44:47], s53 offen lds")
                e("buffer_load_dwordx4 v175, s[44:47], s53 offen lds")
            else:
                dma(slot)
        tg = "B" if dummy else "A"
        xld(0)
        for v in range(5):
            dm(v); xld(v + 1)
        nd = 0 if "NODMA2" in sys.argv else 2; nx = 0 if "NOX2" in sys.argv else 4
        e(f"s_waitcnt vmcnt({nx+4*(nd+nx)})\ns_barrier")
        reads(0, 0)
        e(f"G2_LOOP{tg}:")
        for u in range(6):
            e(f"s_waitcnt vmcnt({5*(nd+nx)})")
            for ks in range(4):
                if ks == 2:
                    e(f"s_waitcnt vmcnt({nx+3*(nd+nx)})" + ("" if "NOBAR2" in sys.argv else "\ns_barrier"))
                    dm((u + 5) % 6)
                if ks < 3: reads(u, ks + 1)
                else: reads((u + 1) % 6, 0)
                e("s_waitcnt lgkmcnt(6)")
                fs = WF + (ks & 1) * 12
                xr = XR + 16*u + 4*ks
                for c in range(3):
                    if "NOMF2" not in sys.argv: e(f"v_mfma_f32_32x32x16_bf16 v[{16*c}:{16*c+15}], v[{fs+4*c}:{fs+4*c+3}], v[{xr}:{xr+3}], v[{16*c}:{16*c+15}]")
            xld(u)
            e("s_sub_u32 s30, s30, 1\ns_cmp_eq_u32 s30, 0")
            e("s_cbranch_scc1 G2_EPI")
        e(f"s_branch G2_LOOP{tg}")
    full(False)
    e("G2_PROB:")
    full(True)
    e(f"""
    G2_EPI:
    s_waitcnt vmcnt(0) lgkmcnt(0)
    s_nop 15
    s_mul_i32 s29, s28, {S_*D_*2}
    s_add_u32 s29, s29, {WS_P}
    s_add_u32 s60, s10, s29
    s_addc_u32 s61, s11, 0
    s_and_b32 s61, s61, 0xffff
    s_mov_b32 s62, {S_*D_*2}
    s_mov_b32 s63, 0x00020000
    s_lshl_b32 s59, s12, 3
    s_add_u32 s59, s59, s56
    s_mul_i32 s59, s59, 18
    s_mul_i32 s58, s13, 3
    s_add_u32 s59, s59, s58
    s_lshl_b32 s59, s59, 11
    v_lshl_add_u32 v171, v170, 4, s59
    """)
    for c in range(3):
        for hf in range(2):
            t = 48 + 4*(2*c+hf)
            for i in range(4):
                r = 16*c + 8*hf + 2*i
                e(f"v_cvt_pk_bf16_f32 v{t+i}, v{r}, v{r+1}")
            if "NOST2" not in sys.argv: e(f"s_mov_b32 s58, {c*2048}\nbuffer_store_dwordx4 v[{t}:{t+3}], v171, s[60:63], s58 offen offset:{hf*1024}")
    e("s_waitcnt vmcnt(0) lgkmcnt(0)\nG2_END:\ns_endpgm")

def gen_red(e):
    header(e, "red_kernel")
    e(f"""
    s_cmp_ge_u32 s2, 288
    s_cbranch_scc1 RD_END
    s_load_dwordx2 s[4:5], s[0:1], 0
    s_load_dwordx2 s[6:7], s[0:1], 56
    s_load_dwordx2 s[10:11], s[0:1], 72
    s_lshl_b32 s3, s2, 8
    v_add_u32 v1, s3, v0
    v_lshrrev_b32 v2, 6, v1        ; blk
    v_bfe_u32 v3, v1, 1, 5         ; row
    v_and_b32 v4, 1, v1            ; half
    v_lshlrev_b32 v5, 11, v2
    v_lshl_add_u32 v5, v4, 10, v5
    v_lshl_add_u32 v5, v3, 4, v5   ; P offset
    s_mov_b32 s21, 3641
    v_mul_u32_u24 v6, s21, v2
    v_lshrrev_b32 v6, 16, v6       ; mb
    v_mul_u32_u24 v7, 18, v6
    v_sub_u32 v7, v2, v7           ; nb
    v_lshl_add_u32 v6, v6, 5, v3
    v_mul_u32_u24 v6, 1152, v6
    v_lshl_add_u32 v6, v7, 6, v6
    v_lshl_add_u32 v6, v4, 5, v6
    s_waitcnt lgkmcnt(0)
    s_add_u32 s10, s10, {WS_P}
    s_addc_u32 s11, s11, 0
    """)
    srd(e, 12, 4, 5, S_*D_*2); srd(e, 16, 6, 7, S_*D_*2); srd(e, 20, 10, 11, S_*D_*2*NSPLIT)
    e("buffer_load_dwordx4 v[8:11], v6, s[12:15], 0 offen")
    e("buffer_load_dwordx4 v[12:15], v6, s[12:15], 0 offen offset:16")
    for i in range(NSPLIT):
        e(f"s_mov_b32 s24, {i*S_*D_*2}")
        e(f"buffer_load_dwordx4 v[{16+8*i}:{19+8*i}], v5, s[20:23], s24 offen")
        e(f"buffer_load_dwordx4 v[{20+8*i}:{23+8*i}], v5, s[20:23], s24 offen offset:512")
    e(f"s_waitcnt vmcnt({2*NSPLIT})")
    A = 16 + 8*NSPLIT
    for j in range(8):
        e(f"v_lshlrev_b32 v{A+2*j}, 16, v{8+j}\nv_and_b32 v{A+2*j+1}, 0xffff0000, v{8+j}")
    T = A + 16
    for i in range(NSPLIT):
        e(f"s_waitcnt vmcnt({2*(NSPLIT-1-i)})")
        for h in range(2):
            for d in range(4):
                n = 8*(d>>1) + 4*h + 2*(d&1)
                r = 16 + 8*i + 4*h + d
                e(f"v_lshlrev_b32 v{T}, 16, v{r}")
                e(f"v_and_b32 v{T+1}, 0xffff0000, v{r}")
                e(f"v_add_f32 v{A+n}, v{A+n}, v{T}")
                e(f"v_add_f32 v{A+n+1}, v{A+n+1}, v{T+1}")
    for j in range(8):
        e(f"v_cvt_pk_bf16_f32 v{8+j}, v{A+2*j}, v{A+2*j+1}")
    e("buffer_store_dwordx4 v[8:11], v6, s[16:19], 0 offen")
    e("buffer_store_dwordx4 v[12:15], v6, s[16:19], 0 offen offset:16")
    e("RD_END:\ns_endpgm")

def gen_attn(e):
    header(e, "attn_kernel")
    KA = 112; VA = 114; DM = 122
    e(f"""
    s_cmp_ge_u32 s2, 256
    s_cbranch_scc1 AT_END
    s_load_dwordx2 s[10:11], s[0:1], 72
    s_and_b32 s4, s2, 7
    s_lshl_b32 s4, s4, 2
    s_bfe_u32 s5, s2, 0x20003
    s_add_u32 s4, s4, s5          ; head
    s_lshr_b32 s5, s2, 5          ; qblock
    v_and_b32 v127, 63, v0
    v_lshrrev_b32 v16, 6, v0
    s_nop 0
    v_readfirstlane_b32 s56, v16
    v_and_b32 v17, 31, v127      ; l32
    v_lshrrev_b32 v18, 5, v127   ; h
    s_and_b32 s57, s56, 7        ; qt
    s_lshr_b32 s58, s56, 3       ; kh
    s_waitcnt lgkmcnt(0)
    """)
    srd(e, 40, 10, 11, WS_SIZE)
    e(f"""
    s_lshl_b32 s6, s4, 11
    s_lshl_b32 s7, s5, 8
    s_add_u32 s6, s6, s7
    s_lshl_b32 s7, s57, 5
    s_add_u32 s6, s6, s7
    v_add_u32 v19, s6, v17
    v_lshlrev_b32 v19, 6, v19
    v_lshl_add_u32 v19, v18, 4, v19
    v_add_u32 v19, {WS_QP}, v19
    buffer_load_dwordx4 v[64:67], v19, s[40:43], 0 offen
    buffer_load_dwordx4 v[68:71], v19, s[40:43], 0 offen offset:32
    s_lshl_b32 s7, s4, 17
    s_add_u32 s7, s7, {WS_KP}
    s_lshl_b32 s8, s56, 11
    s_add_u32 s7, s7, s8
    v_lshrrev_b32 v20, 2, v127
    v_lshlrev_b32 v20, 6, v20
    v_and_b32 v21, 3, v127
    v_bfe_u32 v22, v127, 4, 2
    v_xor_b32 v21, v21, v22
    v_lshl_add_u32 v20, v21, 4, v20
    v_add_u32 v{DM}, s7, v20
    v_add_u32 v{DM+1}, 1024, v{DM}
    s_lshl_b32 s7, s4, 17
    s_add_u32 s7, s7, {WS_VT}
    s_lshl_b32 s8, s56, 1
    """)
    for j in range(2):
        e(f"""
        s_add_u32 s9, s8, {j}
        s_and_b32 s12, s9, 15
        v_xor_b32 v22, s12, v127
        s_lshl_b32 s9, s9, 12
        s_add_u32 s9, s9, s7
        v_lshl_add_u32 v{DM+2+j}, v22, 4, s9
        """)
    e("""
    v_bfe_u32 v20, v127, 2, 2
    v_lshlrev_b32 v21, 6, v17
    s_lshl_b32 s9, s58, 14
    v_add_u32 v21, s9, v21
    """)
    for ks in range(2):
        e(f"v_or_b32 v22, {2*ks}, v18")
        e("v_xor_b32 v22, v22, v20")
        e(f"v_lshl_add_u32 v{KA+ks}, v22, 4, v21")
    e("v_and_b32 v20, 15, v127\nv_lshlrev_b32 v21, 10, v17\ns_lshl_b32 s9, s58, 9\ns_add_u32 s9, s9, 32768\nv_add_u32 v21, s9, v21")
    for c in range(8):
        e(f"v_or_b32 v22, {2*c}, v18")
        e("v_xor_b32 v22, v22, v20")
        e(f"v_lshl_add_u32 v{VA+c}, v22, 4, v21")
    e("s_lshl_b32 s54, s56, 11\ns_mov_b32 s52, 0\ns_mov_b32 s53, 0")
    for i in range(16):
        e(f"v_mov_b32 v{i}, 0")
        e(f"v_mov_b32 v{48+i}, 0")
    e("v_mov_b32 v126, 0xff800000\ns_mov_b64 s[34:35], -1")
    def dma():
        for j in range(2):
            e(f"s_add_u32 m0, s54, {j*1024}\ns_nop 0")
            e(f"buffer_load_dwordx4 v{DM+j}, s[40:43], s52 offen lds")
        for j in range(2):
            e(f"s_add_u32 m0, s54, {32768 + j*1024}\ns_nop 0")
            e(f"buffer_load_dwordx4 v{DM+2+j}, s[40:43], s53 offen lds")
    dma()
    KF = [72, 80]; VF = [88, 96]; SB = [16, 32]; P = 104
    def kread(tile):
        kf = KF[tile & 1]
        for ks in range(2):
            e(f"ds_read_b128 v[{kf+4*ks}:{kf+3+4*ks}], v{KA+ks} offset:{tile*2048}")
    def vread(tile):
        vf = VF[tile & 1]
        for c in range(2):
            cc = 2*tile + c
            e(f"ds_read_b128 v[{vf+4*c}:{vf+3+4*c}], v{VA + (cc&7)} offset:{(cc>>3)*256}")
    def smfma(tile):
        kf = KF[tile & 1]; S = SB[tile & 1]
        e(f"v_mfma_f32_32x32x16_bf16 v[{S}:{S+15}], v[{kf}:{kf+3}], v[64:67], v[48:63]")
        e(f"v_mfma_f32_32x32x16_bf16 v[{S}:{S+15}], v[{kf+4}:{kf+7}], v[68:71], v[{S}:{S+15}]")
    AR = [KA, KA+1] + list(range(VA, VA+8))
    e("s_mov_b32 s30, 0\nAT_LOOP:")
    e("s_add_u32 s52, s52, 32768\ns_add_u32 s53, s53, 1024\ns_xor_b32 s54, s54, 0x10000")
    dma()
    e("s_waitcnt vmcnt(4)\ns_barrier")
    kread(0); kread(1); vread(0)
    e("s_waitcnt lgkmcnt(4)")
    smfma(0)
    e("s_nop 7\ns_mov_b32 s31, 0\nAT_IN:")
    for tile in range(4):
        S = SB[tile & 1]; vf = VF[tile & 1]
        e("s_waitcnt lgkmcnt(2)")
        smfma(tile + 1)
        kread(tile + 2)
        vread(tile + 1)
        e(f"v_max3_f32 v{P}, v{S}, v{S+1}, v{S+2}")
        for i in range(3, 15, 2):
            e(f"v_max3_f32 v{P}, v{P}, v{S+i}, v{S+i+1}")
        e(f"v_max_f32 v{P}, v{P}, v{S+15}")
        e(f"v_cmp_lt_f32 vcc, 0x41000000, v{P}")
        e("s_or_b64 vcc, vcc, s[34:35]")
        e(f"s_cbranch_vccnz AT_SLOW{tile}")
        e(f"AT_F{tile}:")
        for i in range(16):
            e(f"v_exp_f32 v{S+i}, v{S+i}")
        for i in range(8):
            e(f"v_cvt_pk_bf16_f32 v{P+i}, v{S+2*i}, v{S+1+2*i}")
        e("s_waitcnt lgkmcnt(4)\ns_nop 1")
        e(f"v_mfma_f32_32x32x16_bf16 v[0:15], v[{vf}:{vf+3}], v[{P}:{P+3}], v[0:15]")
        e(f"v_mfma_f32_32x32x16_bf16 v[0:15], v[{vf+4}:{vf+7}], v[{P+4}:{P+7}], v[0:15]")
    e(f"v_add_u32 v{KA}, 8192, v{KA}\nv_add_u32 v{KA+1}, 8192, v{KA+1}")
    for r in range(VA, VA+8):
        e(f"v_add_u32 v{r}, 256, v{r}")
    e("s_add_u32 s31, s31, 1\ns_cmp_lt_u32 s31, 2\ns_cbranch_scc1 AT_IN")
    e(f"v_subrev_u32 v{KA}, 16384, v{KA}\nv_subrev_u32 v{KA+1}, 16384, v{KA+1}")
    for r in range(VA, VA+8):
        e(f"v_subrev_u32 v{r}, 512, v{r}")
    for r in AR:
        e(f"v_xor_b32 v{r}, 0x10000, v{r}")
    e("s_waitcnt lgkmcnt(0)\ns_barrier")
    e("s_add_u32 s30, s30, 1\ns_cmp_lt_u32 s30, 4\ns_cbranch_scc1 AT_LOOP")
    e("s_branch AT_FIN")
    for tile in range(4):
        S = SB[tile & 1]; S2 = SB[(tile & 1) ^ 1]
        e(f"AT_SLOW{tile}:")
        e(f"v_mov_b32 v{P+1}, v{P}\ns_nop 1")
        e(f"v_permlane32_swap_b32 v{P}, v{P+1}")
        e("s_nop 1")
        e(f"v_max3_f32 v{P}, v{P}, v{P+1}, v126")
        e("v_mov_b32 v126, 0\ns_mov_b64 s[34:35], 0")
        e(f"v_exp_f32 v{P+1}, -v{P}")
        e("s_nop 7\ns_nop 7")
        for i in range(16):
            e(f"v_sub_f32 v{S+i}, v{S+i}, v{P}")
            e(f"v_sub_f32 v{48+i}, v{48+i}, v{P}")
            e(f"v_mul_f32 v{i}, v{i}, v{P+1}")
            e(f"v_sub_f32 v{S2+i}, v{S2+i}, v{P}")
        e(f"s_branch AT_F{tile}")
    e("AT_FIN:\ns_waitcnt vmcnt(0)\ns_nop 15")
    e("""
    s_lshl_b32 s6, s57, 6
    v_add_u32 v16, s6, v127
    v_lshlrev_b32 v16, 6, v16
    s_barrier
    s_cmp_eq_u32 s58, 0
    s_cbranch_scc1 AT_MRG
    ds_write_b128 v16, v[0:3]
    ds_write_b128 v16, v[4:7] offset:16
    ds_write_b128 v16, v[8:11] offset:32
    ds_write_b32 v16, v48 offset:48
    s_waitcnt lgkmcnt(0)
    s_barrier
    s_branch AT_END
    AT_MRG:
    s_barrier
    ds_read_b128 v[20:23], v16
    ds_read_b128 v[24:27], v16 offset:16
    ds_read_b128 v[28:31], v16 offset:32
    ds_read_b32 v32, v16 offset:48
    s_waitcnt lgkmcnt(0)
    v_min_f32 v33, v48, v32
    v_sub_f32 v34, v33, v48
    v_sub_f32 v35, v33, v32
    v_exp_f32 v34, v34
    v_exp_f32 v35, v35
    s_nop 1
    """)
    for i in range(12):
        e(f"v_mul_f32 v{i}, v{i}, v34")
        e(f"v_fmac_f32 v{i}, v{20+i}, v35")
    e(f"""
    v_and_b32 v17, 31, v127
    v_lshrrev_b32 v18, 5, v127
    v_rcp_f32 v33, v10
    s_lshl_b32 s6, s5, 8
    s_lshl_b32 s7, s57, 5
    s_add_u32 s6, s6, s7
    s_lshr_b32 s6, s6, 5
    s_mul_i32 s6, s6, 331776
    s_add_u32 s6, s6, {WS_H}
    v_lshl_add_u32 v19, v17, 4, s6
    s_mul_i32 s8, s4, 18
    s_add_u32 s8, s8, 4608
    v_lshl_add_u32 v41, v18, 2, s8
    """)
    for i in range(10):
        e(f"v_mul_f32 v{i}, v{i}, v33")
    def oaddr(dst, c):
        e(f"v_add_u32 v{dst}, {c}, v41")
        e(f"v_lshrrev_b32 v46, 3, v{dst}")
        e(f"v_and_b32 v{dst}, 7, v{dst}")
        e(f"v_lshl_add_u32 v{dst}, v{dst}, 1, v19")
        e(f"v_lshl_add_u32 v{dst}, v46, 9, v{dst}")
    for q in range(2):
        e(f"v_cvt_pk_bf16_f32 v{36+2*q}, v{4*q}, v{4*q+1}")
        e(f"v_cvt_pk_bf16_f32 v{37+2*q}, v{4*q+2}, v{4*q+3}")
        oaddr(42+2*q, 8*q); oaddr(43+2*q, 8*q+2)
        e(f"buffer_store_dword v{36+2*q}, v{42+2*q}, s[40:43], 0 offen")
        e(f"buffer_store_dword v{37+2*q}, v{43+2*q}, s[40:43], 0 offen")
    oaddr(47, 16)
    e("""
    v_cvt_pk_bf16_f32 v40, v8, v9
    v_cmp_eq_u32 vcc, 0, v18
    s_and_saveexec_b64 s[24:25], vcc
    s_cbranch_execz AT_SK
    buffer_store_dword v40, v47, s[40:43], 0 offen
    AT_SK:
    s_or_b64 exec, exec, s[24:25]
    AT_END:
    s_endpgm
    """)

def main():
    e = E()
    hdr = open("parallel_sum__mha_block__glu_gated_swiglu__prompt.s.ref").read().split("; Override")[0]
    txt = hdr
    txt += "; @launch kernel=ln_kernel grid=(704,1,1) block=(256,1,1) lds=0\n"
    txt += f"; @launch kernel=gemm1_kernel grid=(256,1,1) block=(512,1,1) lds=163840\n"
    txt += "; @launch kernel=attn_kernel grid=(256,1,1) block=(1024,1,1) lds=131072\n"
    txt += "; @launch kernel=gemm2_kernel grid=(240,1,1) block=(512,1,1) lds=77824\n"
    txt += "; @launch kernel=red_kernel grid=(288,1,1) block=(256,1,1) lds=0\n"
    txt += '.amdgcn_target "amdgcn-amd-amdhsa--gfx950"\n.text\n'
    gen_ln(e); gen_gemm1(e); gen_attn(e); gen_gemm2(e); gen_red(e)
    txt += e.text()
    txt += kd("ln_kernel", 80) + kd("gemm1_kernel", 256) + kd("attn_kernel", 128) + kd("gemm2_kernel", 180) + kd("red_kernel", 80)
    open(OUT, "w").write(txt)
    print("wrote", len(txt))
main()
```

```python
import sys
OUT = "parallel_sum__mha_block__glu_gated_swiglu__prompt.s" if len(sys.argv)<2 else "var_"+sys.argv[1]+".s"

MB = 1 << 20
WS_XN = 0
WS_QP = 4 * MB
WS_KP = 8 * MB
WS_VT = 12 * MB
WS_H = 16 * MB
WS_O = 40 * MB
WS_SIZE = 268435456

S_, D_, F_, H_ = 2048, 576, 4608, 32
LOG2E = 1.4426950408889634
QSCALE = LOG2E * (18 ** -0.5)

import struct
def f2u(x):
    return struct.unpack("<I", struct.pack("<f", x))[0]

class E:
    def __init__(self):
        self.l = []
    def __call__(self, s):
        for ln in s.strip("\n").split("\n"):
            self.l.append("  " + ln.strip() if not ln.strip().endswith(":") else ln.strip())
    def text(self):
        return "\n".join(self.l) + "\n"

def srd(e, d, base_lo, base_hi, nbytes):
    e(f"s_mov_b32 s{d}, s{base_lo}")
    e(f"s_and_b32 s{d+1}, s{base_hi}, 0xffff")
    e(f"s_mov_b32 s{d+2}, {nbytes}")
    e(f"s_mov_b32 s{d+3}, 0x00020000")

def header(e, name):
    e(f".globl {name}\n.p2align 8\n.type {name},@function\n{name}:")

def kd(name, vgpr, sgpr=102):
    acc = (vgpr + 3) // 4 * 4
    return f""".section .rodata,"a"
.p2align 6
.amdhsa_kernel {name}
  .amdhsa_next_free_vgpr {vgpr}
  .amdhsa_next_free_sgpr {sgpr}
  .amdhsa_accum_offset {acc}
  .amdhsa_group_segment_fixed_size 0
  .amdhsa_kernarg_size 80
  .amdhsa_user_sgpr_count 2
  .amdhsa_user_sgpr_kernarg_segment_ptr 1
  .amdhsa_system_sgpr_workgroup_id_x 1
.end_amdhsa_kernel
"""

def gen_ln(e):
    header(e, "ln_kernel")
    PF = ((28, D_*F_*2), (30, D_*F_*2), (26, D_*1728*2))
    def prefetch():
        if "PF" not in sys.argv: return
        for n_, (lo, nb) in enumerate(PF):
            srd(e, 32, lo, lo+1, nb)
            e(f"buffer_load_dword v{71+n_}, v70, s[32:35], 0 offen")
    e("""
    s_cmp_ge_u32 s2, 704
    s_cbranch_scc1 LN_END
    s_load_dwordx2 s[4:5], s[0:1], 0
    s_load_dwordx2 s[6:7], s[0:1], 72
    s_load_dwordx2 s[26:27], s[0:1], 8
    s_load_dwordx2 s[28:29], s[0:1], 32
    s_load_dwordx2 s[30:31], s[0:1], 40
    s_lshl_b32 s3, s2, 8
    v_add_u32 v1, s3, v0
    v_lshlrev_b32 v70, 5, v1
    v_lshrrev_b32 v2, 5, v1
    v_and_b32 v3, 31, v1
    s_movk_i32 s20, 1152
    v_mul_lo_u32 v4, v2, s20
    v_lshl_add_u32 v4, v3, 2, v4
    s_waitcnt lgkmcnt(0)
    """)
    srd(e, 12, 6, 7, WS_SIZE)
    e("s_cmp_lt_u32 s2, 256\ns_cbranch_scc1 LN_MAIN")
    prefetch()
    magic = -(-(1 << 32) // 3584)
    e(f"""
    v_subrev_u32 v30, 65536, v1
    s_mov_b32 s21, {magic}
    v_mul_hi_u32 v31, v30, s21
    s_movk_i32 s21, 3584
    v_mul_lo_u32 v32, v31, s21
    v_sub_u32 v32, v30, v32
    v_lshrrev_b32 v33, 8, v32
    v_and_b32 v34, 255, v32
    v_add_u32 v33, 18, v33
    v_lshl_add_u32 v35, v31, 5, v33
    v_lshlrev_b32 v35, 12, v35
    v_lshl_add_u32 v35, v34, 4, v35
    v_add_u32 v35, {WS_VT}, v35
    v_cmp_eq_u32 vcc, 18, v33
    v_cmp_eq_u32 s[22:23], 22, v33
    s_or_b64 vcc, vcc, s[22:23]
    v_mov_b32 v36, 0x3f803f80
    s_nop 1
    v_cndmask_b32 v44, 0, v36, vcc
    v_mov_b32 v45, v44
    v_mov_b32 v46, v44
    v_mov_b32 v47, v44
    v_cmp_gt_u32 vcc, 114688, v30
    s_and_saveexec_b64 s[24:25], vcc
    s_cbranch_execz LN_END
    buffer_store_dwordx4 v[44:47], v35, s[12:15], 0 offen
    s_branch LN_END
    LN_MAIN:
    """)
    srd(e, 8, 4, 5, S_ * D_ * 2)
    for i in range(9):
        e(f"buffer_load_dword v{10+i}, v4, s[8:11], 0 offen offset:{128*i}")
    prefetch()
    e(f"s_waitcnt vmcnt({0 if 'PF' not in sys.argv else len(PF)})")
    for i in range(9):
        e(f"v_lshlrev_b32 v{50+2*i}, 16, v{10+i}")
        e(f"v_and_b32 v{51+2*i}, 0xffff0000, v{10+i}")
    e("v_add_f32 v20, v50, v51")
    for i in range(2, 18):
        e(f"v_add_f32 v20, v20, v{50+i}")
    def red(v):
        for x in (1, 2, 4, 8, 16):
            e(f"ds_swizzle_b32 v21, v{v} offset:{(x<<10)|0x1f}")
            e("s_waitcnt lgkmcnt(0)")
            e(f"v_add_f32 v{v}, v{v}, v21")
    red(20)
    e(f"v_mul_f32 v20, {hex(f2u(1.0/576))}, v20")
    for i in range(18):
        e(f"v_sub_f32 v{50+i}, v{50+i}, v20")
    e("v_mul_f32 v22, v50, v50")
    for i in range(1, 18):
        e(f"v_fmac_f32 v22, v{50+i}, v{50+i}")
    red(22)
    e(f"v_mov_b32 v23, {hex(f2u(1e-5))}")
    e(f"v_fmac_f32 v23, {hex(f2u(1.0/576))}, v22")
    e("v_rsq_f32 v23, v23")
    e("s_nop 1")
    for i in range(18):
        e(f"v_mul_f32 v{50+i}, v{50+i}, v23")
    for i in range(9):
        e(f"v_cvt_pk_bf16_f32 v{10+i}, v{50+2*i}, v{51+2*i}")
    e("""
    v_lshrrev_b32 v5, 5, v2
    v_mul_u32_u24 v5, 36864, v5
    v_and_b32 v6, 31, v2
    v_lshl_add_u32 v5, v6, 4, v5
    v_lshrrev_b32 v6, 3, v3
    v_lshl_add_u32 v5, v6, 10, v5
    v_bfe_u32 v6, v3, 2, 1
    v_lshl_add_u32 v5, v6, 9, v5
    v_and_b32 v6, 3, v3
    v_lshl_add_u32 v5, v6, 2, v5
    """)
    for i in range(9):
        e(f"s_mov_b32 s20, {4096*i}")
        e(f"buffer_store_dword v{10+i}, v5, s[12:15], s20 offen")
    e("LN_END:\ns_endpgm")

ACC = 0
def acc(p, t):
    b = ACC + p * 32 + t * 16
    return f"v[{b}:{b+15}]"

def gemm_dma(e, buf):
    if "NODMA" in sys.argv: return
    sb = buf * 16384
    for i in range(2):
        e(f"s_add_u32 m0, s54, {sb + i*1024}")
        e("s_nop 0")
        e(f"buffer_load_dwordx4 v{96+i}, s[40:43], s52 offen lds")
    for p in range(2):
        e(f"s_add_u32 m0, s55, {sb + p*4096}")
        e("s_nop 0")
        e(f"buffer_load_dwordx4 v100, s[{44+4*p}:{47+4*p}], s53 offen lds")

def gemm_reads(e, buf, ks):
    fs = 64 + (ks & 1) * 16
    sb = buf * 16384
    for p in range(2):
        for h2 in range(2):
            e(f"ds_read_b64_tr_b16 v[{fs+4*p+2*h2}:{fs+4*p+2*h2+1}], v106 offset:{sb + p*4096 + ks*2048 + h2*512}")
    for t in range(2):
        e(f"ds_read_b128 v[{fs+8+4*t}:{fs+11+4*t}], v{102+ks} offset:{sb + t*2048}")

SWAP = [False]
def gemm_compute(e, buf):
    gemm_reads(e, buf, 0)
    for ks in range(2):
        if ks < 1:
            gemm_reads(e, buf, ks + 1)
            e("s_waitcnt lgkmcnt(6)")
        else:
            e("s_waitcnt lgkmcnt(0)")
        fs = 64 + (ks & 1) * 16
        for p in range(2):
            for t in range(2):
                wfr = f"v[{fs+4*p}:{fs+4*p+3}]"; xfr = f"v[{fs+8+4*t}:{fs+11+4*t}]"
                if SWAP[0]: wfr, xfr = xfr, wfr
                if "NOMF" not in sys.argv: e(f"v_mfma_f32_32x32x16_bf16 {acc(p,t)}, {wfr}, {xfr}, {acc(p,t)}")

def gemm_setup_common(e, m0_sreg):
    e("""
    v_and_b32 v107, 63, v0
    v_lshrrev_b32 v108, 6, v0
    s_nop 0
    v_readfirstlane_b32 s56, v108
    """)
    for i in range(64):
        e(f"v_mov_b32 v{i}, 0")
    e("""
    s_lshr_b32 s57, s56, 1
    s_and_b32 s58, s56, 1
    v_and_b32 v108, 31, v107
    v_lshrrev_b32 v109, 5, v107
    v_bfe_u32 v110, v107, 2, 2
    s_lshl_b32 s59, s57, 12
    v_lshlrev_b32 v111, 6, v108
    v_add_u32 v111, s59, v111
    """)
    for ks in range(2):
        e(f"v_or_b32 v112, {2*ks}, v109")
        e("v_xor_b32 v112, v112, v110")
        e(f"v_lshl_add_u32 v{102+ks}, v112, 4, v111")
    e("""
    v_bfe_u32 v108, v107, 2, 2
    v_lshl_add_u32 v108, v109, 3, v108
    v_lshlrev_b32 v108, 7, v108
    v_bfe_u32 v110, v107, 3, 1
    v_xor_b32 v110, s58, v110
    v_lshl_add_u32 v108, v110, 6, v108
    v_bfe_u32 v110, v107, 4, 1
    v_lshl_add_u32 v108, v110, 5, v108
    v_and_b32 v110, 3, v107
    v_lshl_add_u32 v108, v110, 3, v108
    v_add_u32 v106, 8192, v108
    s_lshl_b32 s54, s56, 11
    s_lshl_b32 s55, s56, 10
    s_add_u32 s55, s55, 8192
    """)

def gemm_setup_x(e, m0_sreg, stride_sreg):
    e(f"""
    s_lshl_b32 s59, s56, 5
    s_add_u32 s59, s59, s{m0_sreg}
    v_lshrrev_b32 v108, 2, v107
    v_add_u32 v108, s59, v108
    v_and_b32 v109, 3, v107
    v_bfe_u32 v110, v107, 4, 2
    v_xor_b32 v112, v109, v110
    """)
    for i in range(2):
        e(f"v_add_u32 v111, {16*i}, v108")
        e(f"v_mul_lo_u32 v111, v111, s{stride_sreg}")
        e(f"v_lshl_add_u32 v{96+i}, v112, 4, v111")

def gemm_setup_w(e, ncol_sreg, stride_sreg):
    e(f"""
    s_lshl_b32 s59, s56, 3
    v_lshrrev_b32 v108, 3, v107
    v_add_u32 v108, s59, v108
    v_and_b32 v109, 7, v107
    v_bfe_u32 v110, v107, 4, 1
    v_lshlrev_b32 v110, 2, v110
    v_xor_b32 v109, v109, v110
    v_lshlrev_b32 v109, 4, v109
    s_lshl_b32 s59, s{ncol_sreg}, 1
    v_add_u32 v109, s59, v109
    v_mul_lo_u32 v111, v108, s{stride_sreg}
    v_add_u32 v100, v111, v109
    """)

def gemm_stage(e, s, nst, adv):
    buf = s & 1
    if s + 1 < nst:
        adv(e)
        gemm_dma(e, buf ^ 1)
        e("s_waitcnt vmcnt(4)")
    else:
        e("s_waitcnt vmcnt(0)")
    e("s_barrier")
    gemm_compute(e, buf)
    e("s_barrier")

def gen_gemm1(e):
    XR = 64; WF = 208; T = WF
    FL = sys.argv
    header(e, "gemm1_kernel")
    e(f"""
    s_cmp_ge_u32 s2, 256
    s_cbranch_scc1 G1_END
    s_load_dwordx2 s[4:5], s[0:1], 8
    s_load_dwordx2 s[6:7], s[0:1], 32
    s_load_dwordx2 s[8:9], s[0:1], 40
    s_load_dwordx2 s[10:11], s[0:1], 72
    s_bfe_u32 s12, s2, 0x30003
    s_lshl_b32 s12, s12, 8
    s_lshr_b32 s13, s2, 6
    s_lshl_b32 s13, s13, 3
    s_and_b32 s14, s2, 7
    s_add_u32 s14, s13, s14      ; group 0..31
    v_and_b32 v245, 63, v0
    v_lshrrev_b32 v246, 6, v0
    s_nop 0
    v_readfirstlane_b32 s56, v246
    v_and_b32 v246, 31, v245
    v_lshrrev_b32 v247, 5, v245
    s_waitcnt lgkmcnt(0)
    """)
    srd(e, 40, 10, 11, S_ * D_ * 2)
    srd(e, 60, 10, 11, WS_SIZE)
    e("""
    v_bfe_u32 v248, v245, 2, 2
    v_lshl_add_u32 v248, v247, 3, v248
    v_lshlrev_b32 v248, 7, v248
    v_bfe_u32 v249, v245, 4, 1
    v_lshl_add_u32 v248, v249, 5, v248
    v_and_b32 v249, 3, v245
    v_lshl_add_u32 v248, v249, 3, v248
    v_bfe_u32 v249, v245, 3, 1
    v_lshl_add_u32 v242, v249, 6, v248
    v_xor_b32 v249, 1, v249
    v_lshl_add_u32 v243, v249, 6, v248
    v_add_u32 v252, 0x10000, v242
    v_add_u32 v253, 0x10000, v243
    v_add_u32 v254, 0x20000, v242
    v_add_u32 v255, 0x20000, v243
    s_lshl_b32 s55, s56, 10
    s_lshr_b32 s59, s12, 5
    s_add_u32 s59, s59, s56
    s_mul_i32 s59, s59, 36864
    v_lshl_add_u32 v244, v245, 4, s59
    """)
    def xload(kk):
        if "NOX1" in FL: return
        e(f"s_mov_b32 s59, {1024*kk}")
        e(f"buffer_load_dwordx4 v[{XR+4*kk}:{XR+4*kk+3}], v244, s[40:43], s59 offen")
    def voffw():
        e(f"""
        s_lshl_b32 s17, s16, 6
        s_lshl_b32 s59, s56, 3
        v_lshrrev_b32 v248, 3, v245
        v_add_u32 v248, s59, v248
        v_and_b32 v249, 7, v245
        v_bfe_u32 v250, v245, 4, 1
        v_lshlrev_b32 v250, 2, v250
        v_xor_b32 v249, v249, v250
        v_lshlrev_b32 v249, 4, v249
        s_lshl_b32 s59, s15, 1
        v_add_u32 v249, s59, v249
        v_mul_lo_u32 v250, v248, s16
        v_add_u32 v240, v250, v249
        s_mov_b32 s53, 0
        s_nop 4
        """)
    def dma(buf):
        for p in range(2):
            if "NODMA1" in FL: continue
            e(f"s_add_u32 m0, s55, {buf*16384 + p*8192}")
            e("s_nop 0")
            e(f"buffer_load_dwordx4 v240, s[{44+4*p}:{47+4*p}], s53 offen lds")
        e("s_add_u32 s53, s53, s17")
    def reads(buf, ks):
        fs = WF + (ks & 1) * 16
        for j in range(4):
            p, sub = j >> 1, j & 1
            for h2 in range(2):
                areg = (242, 252, 254)[buf // 4] + sub
                e(f"ds_read_b64_tr_b16 v[{fs+4*j+2*h2}:{fs+4*j+2*h2+1}], v{areg} offset:{(buf%4)*16384 + p*8192 + ks*2048 + h2*512}")
    def mfmas(st, ks, swap):
        if "NOMF1" in FL: return
        fs = WF + (ks & 1) * 16
        kk = 4 * st + ks
        for j in range(4):
            wfr = f"v[{fs+4*j}:{fs+4*j+3}]"; xfr = f"v[{XR+4*kk}:{XR+4*kk+3}]"
            if swap: wfr, xfr = xfr, wfr
            c = "0" if (st == 0 and ks == 0) else f"v[{16*j}:{16*j+15}]"
            e(f"v_mfma_f32_32x32x16_bf16 v[{16*j}:{16*j+15}], {wfr}, {xfr}, {c}")
    def body(swap, sync):
        reads(0, 0)
        for st in range(9):
            for ks in range(4):
                if ks == 2 and st < 8: sync(st)
                if ks < 3: reads(st, ks + 1)
                elif st < 8: reads(st + 1, 0)
                e("s_waitcnt lgkmcnt(8)" if (ks < 3 or st < 8) else "s_waitcnt lgkmcnt(0)")
                mfmas(st, ks, swap)
        e("s_barrier")
        e("s_nop 15")
    e("s_cmp_ge_u32 s14, 8\ns_cbranch_scc1 " + ("G1_END" if "NOF" in FL else "G1_FFN"))
    if "NOQ" in FL: e("s_branch G1_END")
    e("""
    s_lshl_b32 s13, s14, 1       ; tile
    s_add_u32 s19, s13, 2
    s_min_u32 s19, s19, 15
    s_mov_b32 s30, 0
    s_lshl_b32 s57, s56, 14
    """)
    srd(e, 44, 4, 5, D_ * 1728 * 2)
    e(f"""
    s_add_u32 s48, s4, 128
    s_addc_u32 s49, s5, 0
    s_and_b32 s49, s49, 0xffff
    s_mov_b32 s50, {D_*1728*2-128}
    s_mov_b32 s51, 0x00020000
    G1_QT:
    s_mul_i32 s22, s13, 13
    s_lshr_b32 s22, s22, 6       ; mat
    s_mul_i32 s23, s22, 5
    s_sub_u32 s23, s13, s23      ; t'
    s_mul_i32 s15, s22, 576
    s_mul_i32 s59, s23, 126
    s_add_u32 s15, s15, s59      ; col0
    s_mul_i32 s24, s23, 7        ; head0
    s_movk_i32 s16, 3456
    """)
    voffw()
    for b_ in range(9): dma(b_)
    e("s_cmp_lg_u32 s30, 0\ns_cbranch_scc1 G1_QNX")
    for kk in range(36): xload(kk)
    e("""
    s_mov_b32 s30, 1
    G1_QNX:
    s_waitcnt vmcnt(0)
    s_barrier
    s_cmp_ge_u32 s22, 2
    s_cbranch_scc1 G1_QV
    """)
    nos = lambda s_: None
    body(False, nos)
    e(f"""
    s_mov_b32 s20, {hex(f2u(QSCALE))}
    s_cmp_eq_u32 s22, 0
    s_cselect_b32 s20, s20, 1.0
    v_lshl_add_u32 v248, v246, 6, s57
    v_bfe_u32 v249, v246, 1, 2
    v_lshlrev_b32 v249, 4, v249
    """)
    cnt = 0
    for j in range(4):
        for q in range(4):
            for jj in (0, 2):
                n0 = 32*j + 8*q + jj; n1 = n0 + 4
                o0 = (n0//18)*2048 + (n0%18)*2; o1 = (n1//18)*2048 + (n1%18)*2
                t = T + 4*(cnt % 4); cnt += 1
                r = 16*j + 4*q + jj
                e(f"v_mul_u32_u24 v{t}, {o1-o0}, v247")
                e(f"v_mul_f32 v{t+1}, s20, v{r}")
                e(f"v_mul_f32 v{t+2}, s20, v{r+1}")
                e(f"v_add_u32 v{t}, {o0}, v{t}")
                e(f"v_xor_b32 v{t}, v{t}, v249")
                e(f"v_cvt_pk_bf16_f32 v{t+1}, v{t+1}, v{t+2}")
                e(f"v_add_u32 v{t}, v{t}, v248")
                e(f"ds_write_b32 v{t}, v{t+1}")
    e(f"""
    v_lshrrev_b32 v248, 2, v245
    v_and_b32 v249, 3, v245
    v_bfe_u32 v250, v245, 3, 2
    v_xor_b32 v250, v250, v249
    v_lshlrev_b32 v250, 4, v250
    v_lshl_add_u32 v250, v248, 6, v250
    v_add_u32 v250, s57, v250
    v_cmp_gt_u32 vcc, 3, v249
    v_cndmask_b32 v251, 0, -1, vcc
    v_cmp_gt_u32 vcc, 2, v249
    v_cndmask_b32 v241, 0, -1, vcc
    s_lshl_b32 s59, s56, 5
    s_add_u32 s59, s59, s12
    v_add_u32 v248, s59, v248
    v_lshlrev_b32 v248, 6, v248
    v_lshl_add_u32 v248, v249, 4, v248
    s_lshl_b32 s59, s22, 22
    s_add_u32 s59, s59, {WS_QP}
    s_lshl_b32 s25, s24, 17
    s_add_u32 s59, s59, s25
    v_add_u32 v248, s59, v248
    s_waitcnt lgkmcnt(0)
    """)
    for b0 in range(0, 14, 4):
        rs = list(range(b0, min(b0+4, 14)))
        if b0 == 8: e("s_cmp_eq_u32 s23, 4\ns_cbranch_scc1 G1_QNEXT")
        for i in rs:
            t = T + 4*(i % 4)
            e(f"ds_read_b128 v[{t}:{t+3}], v250 offset:{i*1024}")
        for i in rs:
            t = T + 4*(i % 4)
            e(f"s_waitcnt lgkmcnt({rs[-1]-i})")
            e(f"v_and_b32 v{t}, v{t}, v251")
            for k_ in range(1, 4): e(f"v_and_b32 v{t+k_}, v{t+k_}, v241")
            e(f"s_mov_b32 s59, {(i//2)*131072 + (i%2)*1024}")
            e(f"buffer_store_dwordx4 v[{t}:{t+3}], v248, s[60:63], s59 offen")
    e("s_branch G1_QNEXT\nG1_QV:")
    body(True, nos)
    e(f"""
    v_bfe_u32 v249, v246, 1, 2
    v_xor_b32 v250, v249, v247
    v_lshlrev_b32 v250, 4, v250
    v_lshl_add_u32 v250, v246, 6, v250
    v_add_u32 v250, s57, v250
    v_or_b32 v251, 2, v247
    v_xor_b32 v251, v249, v251
    v_lshlrev_b32 v251, 4, v251
    v_lshl_add_u32 v251, v246, 6, v251
    v_add_u32 v251, s57, v251
    """)
    cnt = 0
    for j in range(4):
        for q in range(4):
            r = 16*j + 4*q
            t = T + 2*(cnt % 8); cnt += 1
            e(f"v_cvt_pk_bf16_f32 v{t}, v{r}, v{r+1}")
            e(f"v_cvt_pk_bf16_f32 v{t+1}, v{r+2}, v{r+3}")
            e(f"ds_write_b64 v{250 + (q>>1)}, v[{t}:{t+1}] offset:{j*2048 + 8*(q&1)}")
    e(f"""
    v_lshrrev_b32 v248, 2, v245
    v_and_b32 v249, 3, v245
    v_bfe_u32 v250, v245, 3, 2
    v_xor_b32 v250, v250, v249
    v_lshlrev_b32 v250, 4, v250
    v_lshl_add_u32 v250, v248, 6, v250
    v_add_u32 v250, s57, v250
    s_lshl_b32 s59, s56, 5
    s_add_u32 s59, s59, s12
    s_lshl_b32 s59, s59, 1
    s_add_u32 s59, s59, {WS_VT}
    s_lshl_b32 s25, s24, 17
    s_add_u32 s59, s59, s25
    v_lshl_add_u32 v249, v249, 4, s59
    s_movk_i32 s21, 3641
    s_movk_i32 s25, 126
    s_cmp_eq_u32 s23, 4
    s_cselect_b32 s25, 72, s25
    s_waitcnt lgkmcnt(0)
    """)
    for b0 in (0, 4):
        rs = list(range(b0, b0+4))
        for i in rs:
            t = T + 4*(i % 4)
            e(f"ds_read_b128 v[{t}:{t+3}], v250 offset:{i*1024}")
        for i in rs:
            t = T + 4*(i % 4)
            u = T + 16 + 4*(i % 4)
            e(f"""
            v_add_u32 v{u}, {16*i}, v248
            v_mul_u32_u24 v{u+1}, s21, v{u}
            v_lshrrev_b32 v{u+1}, 16, v{u+1}
            v_mul_u32_u24 v{u+2}, 14, v{u+1}
            v_add_u32 v{u+2}, v{u+2}, v{u}
            v_lshl_add_u32 v{u+2}, v{u+2}, 12, v249
            v_cmp_gt_u32 vcc, s25, v{u}
            s_waitcnt lgkmcnt({rs[-1]-i})
            s_mov_b64 exec, vcc
            buffer_store_dwordx4 v[{t}:{t+3}], v{u+2}, s[60:63], 0 offen
            s_mov_b64 exec, -1
            """)
    e("""
    G1_QNEXT:
    s_add_u32 s13, s13, 1
    s_cmp_ge_u32 s13, s19
    s_cbranch_scc1 G1_END
    s_barrier
    s_branch G1_QT
    """)
    e("""
    G1_FFN:
    s_sub_u32 s13, s14, 8
    s_mul_i32 s13, s13, 3
    s_add_u32 s19, s13, 3
    s_mov_b32 s31, s13
    s_movk_i32 s16, 9216
    """)
    srd(e, 44, 6, 7, D_ * F_ * 2)
    srd(e, 48, 8, 9, D_ * F_ * 2)
    e("s_lshl_b32 s15, s31, 6")
    voffw()
    def cursor_next(tag):
        e(f"""
        s_add_u32 s31, s31, 1
        s_cmp_lt_u32 s31, s19
        s_cbranch_scc1 G1_CN{tag}
        s_mov_b32 s46, 0
        s_mov_b32 s50, 0
        G1_CN{tag}:
        s_lshl_b32 s15, s31, 6
        """)
        voffw()
    for g in range(7):
        dma(g)
        for kk in range(4*g, 4*g+4): xload(kk)
    for kk in range(28, 36): xload(kk)
    def mk_sync(waits, tag):
        def sy(s_):
            if "NOWAIT" not in FL: e(f"s_waitcnt vmcnt({waits[s_+1]})")
            if "NOBAR" not in FL: e("s_barrier")
            if s_ == 1: cursor_next(tag)
            dma((s_ - 1) % 9)
        return sy
    first = [44, 40, 36, 32, 28, 24, 20, 12, 12]
    steady = [20, 20, 20, 20, 20, 20, 20, 12, 12]
    def ffn_epi():
        if "NOEPI1" in FL: return
        e(f"""
        s_lshr_b32 s59, s12, 5
        s_add_u32 s59, s59, s56
        s_mul_i32 s59, s59, 331776
        s_lshl_b32 s18, s13, 12
        s_add_u32 s59, s59, s18
        s_add_u32 s59, s59, {WS_H}
        v_lshl_add_u32 v251, v246, 4, s59
        v_lshl_add_u32 v251, v247, 3, v251
        s_mov_b32 s20, {hex(f2u(-LOG2E))}
        """)
        cnt = 0
        for sub in range(2):
            for q in range(4):
                t = T + 10 * (cnt % 3); cnt += 1
                for j in range(4):
                    e(f"v_mul_f32 v{t+j}, s20, v{16*sub+4*q+j}")
                for j in range(4):
                    e(f"v_exp_f32 v{t+j}, v{t+j}")
                for j in range(4):
                    e(f"v_mul_f32 v{t+4+j}, v{16*sub+4*q+j}, v{32+16*sub+4*q+j}")
                for j in range(4):
                    e(f"v_add_f32 v{t+j}, 1.0, v{t+j}")
                for j in range(4):
                    e(f"v_rcp_f32 v{t+j}, v{t+j}")
                e("s_nop 0")
                for j in range(4):
                    e(f"v_mul_f32 v{t+4+j}, v{t+4+j}, v{t+j}")
                e(f"v_cvt_pk_bf16_f32 v{t+8}, v{t+4}, v{t+5}")
                e(f"v_cvt_pk_bf16_f32 v{t+9}, v{t+6}, v{t+7}")
                e(f"buffer_store_dwordx2 v[{t+8}:{t+9}], v251, s[60:63], 0 offen offset:{(2*sub+(q>>1))*1024 + (q&1)*512}")
    mk_sync(first, "X")(-1)
    body(False, mk_sync(first, "A"))
    ffn_epi()
    e("s_add_u32 s13, s13, 1\nG1_FT:")
    mk_sync(steady, "Y")(-1)
    body(False, mk_sync(steady, "B"))
    ffn_epi()
    e("""
    s_add_u32 s13, s13, 1
    s_cmp_lt_u32 s13, s19
    s_cbranch_scc1 G1_FT
    G1_END:
    s_endpgm
    """)

WS_P = 48 * MB
NSPLIT = 5
def gen_gemm2(e):
    XR = 48; WF = 144
    header(e, "gemm2_kernel")
    e(f"""
    s_cmp_ge_u32 s2, 240
    s_cbranch_scc1 G2_END
    s_load_dwordx2 s[4:5], s[0:1], 16
    s_load_dwordx2 s[6:7], s[0:1], 48
    s_load_dwordx2 s[10:11], s[0:1], 72
    s_and_b32 s12, s2, 7
    s_lshr_b32 s13, s2, 3        ; r 0..29
    s_mul_i32 s28, s13, 43
    s_lshr_b32 s28, s28, 8       ; r/6
    s_mul_i32 s14, s28, 6
    s_sub_u32 s13, s13, s14      ; n tile
    s_mul_i32 s12, s12, 5
    s_add_u32 s12, s12, s28      ; pair 0..39
    s_lshr_b32 s28, s12, 3       ; split
    s_and_b32 s12, s12, 7        ; m tile
    s_lshl_b32 s29, s28, 4
    s_add_u32 s29, s29, 1
    s_mov_b32 s30, 16
    s_cmp_lg_u32 s28, 0
    s_cbranch_scc1 G2_SP
    s_mov_b32 s29, 0
    s_mov_b32 s30, 17
    G2_SP:
    v_and_b32 v170, 63, v0
    v_lshrrev_b32 v171, 6, v0
    s_nop 0
    v_readfirstlane_b32 s56, v171
    s_waitcnt lgkmcnt(0)
    s_add_u32 s40, s10, {WS_H}
    s_addc_u32 s41, s11, 0
    s_and_b32 s41, s41, 0xffff
    s_mov_b32 s42, {64*331776}
    s_mov_b32 s43, 0x00020000
    s_mov_b32 s44, s6
    s_and_b32 s45, s7, 0xffff
    s_mov_b32 s46, {F_*D_*2}
    s_mov_b32 s47, 0x00020000
    s_mov_b32 s49, {D_*D_*2}
    s_lshl_b32 s55, s56, 11      ; m0 base within stage buf
    s_cmp_lt_u32 s56, 6
    s_cbranch_scc1 G2_W6
    s_mov_b32 s46, 0
    s_mov_b32 s49, 0
    G2_W6:
    ; X voffset
    s_lshl_b32 s59, s12, 3
    s_add_u32 s59, s59, s56
    s_mul_i32 s58, s59, 331776
    v_lshl_add_u32 v172, v170, 4, s58
    s_lshl_b32 s52, s29, 12      ; X soffset (stage*4096)
    ; W voffset: c = w/2 ; krow = (w&1)*32 + lane/4
    s_and_b32 s58, s56, 1
    s_lshl_b32 s58, s58, 5
    v_lshrrev_b32 v171, 2, v170
    v_add_u32 v171, s58, v171
    v_mul_u32_u24 v171, 1152, v171
    v_and_b32 v173, 3, v170
    v_lshl_add_u32 v171, v173, 4, v171
    s_lshr_b32 s58, s56, 1
    s_lshl_b32 s58, s58, 6
    s_mul_i32 s57, s13, 192
    s_add_u32 s58, s58, s57
    v_add_u32 v174, s58, v171
    v_add_u32 v175, {16*1152}, v174
    s_mul_i32 s53, s29, {64*1152}
    """ + ("""
    s_lshl_b32 s58, s56, 11
    s_mul_i32 s57, s13, 12288
    s_add_u32 s58, s58, s57
    v_lshl_add_u32 v174, v170, 4, s58
    v_add_u32 v175, 1024, v174
    """ if "WLIN" in sys.argv else "") + f"""
    ; tr read addr
    v_lshrrev_b32 v171, 5, v170
    v_bfe_u32 v173, v170, 2, 2
    v_lshl_add_u32 v171, v171, 3, v173
    v_lshlrev_b32 v171, 6, v171
    v_bfe_u32 v173, v170, 4, 1
    v_lshl_add_u32 v171, v173, 5, v171
    v_and_b32 v173, 3, v170
    v_lshl_add_u32 v176, v173, 3, v171
    v_add_u32 v177, 36864, v176
    """)
    for i in range(48): e(f"v_mov_b32 v{i}, 0")
    lab = [0]
    def dma(slot):
        lab[0] += 1
        e(f"""
        s_cmp_lg_u32 s29, 72
        s_cbranch_scc1 G2_NS{lab[0]}
        s_mov_b32 s44, s4
        s_and_b32 s45, s5, 0xffff
        s_mov_b32 s46, s49
        s_mov_b32 s53, 0
        G2_NS{lab[0]}:
        """)
        e(f"s_add_u32 m0, s54, {slot*12288}" if False else f"s_add_u32 m0, s55, {slot*12288}")
        e("s_nop 0")
        e(f"buffer_load_dwordx4 v174, s[44:47], s53 offen lds")
        e(f"s_add_u32 m0, s55, {slot*12288 + 1024}")
        e("s_nop 0")
        e(f"buffer_load_dwordx4 v175, s[44:47], s53 offen lds")
        if "WHOT" not in sys.argv: e(f"s_add_u32 s53, s53, {64*1152}")
        e("s_add_u32 s29, s29, 1")
    def xld(slot):
        for ks in range(4):
            if "NOX2" in sys.argv: continue
            r = XR + 16*slot + 4*ks
            e(f"buffer_load_dwordx4 v[{r}:{r+3}], v172, s[40:43], s52 offen offset:{ks*1024}")
        if "XHOT" not in sys.argv: e("s_add_u32 s52, s52, 4096")
    def reads(slot, ks):
        fs = WF + (ks & 1) * 12
        areg = 176 if slot < 3 else 177
        for c in range(3):
            for h2 in range(2):
                e(f"ds_read_b64_tr_b16 v[{fs+4*c+2*h2}:{fs+4*c+2*h2+1}], v{areg} offset:{(slot%3)*12288 + c*4096 + ks*1024 + h2*256}")
    e("""
    s_cmp_lt_u32 s56, 6
    s_cbranch_scc1 G2_PRO
    s_branch G2_PROB
    G2_PRO:
    """)
    def full(dummy):
        def dm(slot):
            if "NODMA2" in sys.argv: return
            if dummy:
                lab[0] += 1
                e("s_mov_b32 m0, 73728\ns_nop 0")
                e("buffer_load_dwordx4 v174, s[44:47], s53 offen lds")
                e("buffer_load_dwordx4 v175, s[44:47], s53 offen lds")
            else:
                dma(slot)
        tg = "B" if dummy else "A"
        xld(0)
        for v in range(5):
            dm(v); xld(v + 1)
        nd = 0 if "NODMA2" in sys.argv else 2; nx = 0 if "NOX2" in sys.argv else 4
        e(f"s_waitcnt vmcnt({nx+4*(nd+nx)})\ns_barrier")
        reads(0, 0)
        e(f"G2_LOOP{tg}:")
        for u in range(6):
            e(f"s_waitcnt vmcnt({5*(nd+nx)})")
            for ks in range(4):
                if ks == 2:
                    e(f"s_waitcnt vmcnt({nx+3*(nd+nx)})" + ("" if "NOBAR2" in sys.argv else "\ns_barrier"))
                    dm((u + 5) % 6)
                if ks < 3: reads(u, ks + 1)
                else: reads((u + 1) % 6, 0)
                e("s_waitcnt lgkmcnt(6)")
                fs = WF + (ks & 1) * 12
                xr = XR + 16*u + 4*ks
                for c in range(3):
                    if "NOMF2" not in sys.argv: e(f"v_mfma_f32_32x32x16_bf16 v[{16*c}:{16*c+15}], v[{fs+4*c}:{fs+4*c+3}], v[{xr}:{xr+3}], v[{16*c}:{16*c+15}]")
            xld(u)
            e("s_sub_u32 s30, s30, 1\ns_cmp_eq_u32 s30, 0")
            e("s_cbranch_scc1 G2_EPI")
        e(f"s_branch G2_LOOP{tg}")
    full(False)
    e("G2_PROB:")
    full(True)
    e(f"""
    G2_EPI:
    s_waitcnt vmcnt(0) lgkmcnt(0)
    s_nop 15
    s_mul_i32 s29, s28, {S_*D_*2}
    s_add_u32 s29, s29, {WS_P}
    s_add_u32 s60, s10, s29
    s_addc_u32 s61, s11, 0
    s_and_b32 s61, s61, 0xffff
    s_mov_b32 s62, {S_*D_*2}
    s_mov_b32 s63, 0x00020000
    s_lshl_b32 s59, s12, 3
    s_add_u32 s59, s59, s56
    s_mul_i32 s59, s59, 18
    s_mul_i32 s58, s13, 3
    s_add_u32 s59, s59, s58
    s_lshl_b32 s59, s59, 11
    v_lshl_add_u32 v171, v170, 4, s59
    """)
    for c in range(3):
        for hf in range(2):
            t = 48 + 4*(2*c+hf)
            for i in range(4):
                r = 16*c + 8*hf + 2*i
                e(f"v_cvt_pk_bf16_f32 v{t+i}, v{r}, v{r+1}")
            if "NOST2" not in sys.argv: e(f"s_mov_b32 s58, {c*2048}\nbuffer_store_dwordx4 v[{t}:{t+3}], v171, s[60:63], s58 offen offset:{hf*1024}")
    e("s_waitcnt vmcnt(0) lgkmcnt(0)\nG2_END:\ns_endpgm")

def gen_red(e):
    header(e, "red_kernel")
    e(f"""
    s_cmp_ge_u32 s2, 288
    s_cbranch_scc1 RD_END
    s_load_dwordx2 s[4:5], s[0:1], 0
    s_load_dwordx2 s[6:7], s[0:1], 56
    s_load_dwordx2 s[10:11], s[0:1], 72
    s_lshl_b32 s3, s2, 8
    v_add_u32 v1, s3, v0
    v_lshrrev_b32 v2, 6, v1        ; blk
    v_bfe_u32 v3, v1, 1, 5         ; row
    v_and_b32 v4, 1, v1            ; half
    v_lshlrev_b32 v5, 11, v2
    v_lshl_add_u32 v5, v4, 10, v5
    v_lshl_add_u32 v5, v3, 4, v5   ; P offset
    s_mov_b32 s21, 3641
    v_mul_u32_u24 v6, s21, v2
    v_lshrrev_b32 v6, 16, v6       ; mb
    v_mul_u32_u24 v7, 18, v6
    v_sub_u32 v7, v2, v7           ; nb
    v_lshl_add_u32 v6, v6, 5, v3
    v_mul_u32_u24 v6, 1152, v6
    v_lshl_add_u32 v6, v7, 6, v6
    v_lshl_add_u32 v6, v4, 5, v6
    s_waitcnt lgkmcnt(0)
    s_add_u32 s10, s10, {WS_P}
    s_addc_u32 s11, s11, 0
    """)
    srd(e, 12, 4, 5, S_*D_*2); srd(e, 16, 6, 7, S_*D_*2); srd(e, 20, 10, 11, S_*D_*2*NSPLIT)
    e("buffer_load_dwordx4 v[8:11], v6, s[12:15], 0 offen")
    e("buffer_load_dwordx4 v[12:15], v6, s[12:15], 0 offen offset:16")
    for i in range(NSPLIT):
        e(f"s_mov_b32 s24, {i*S_*D_*2}")
        e(f"buffer_load_dwordx4 v[{16+8*i}:{19+8*i}], v5, s[20:23], s24 offen")
        e(f"buffer_load_dwordx4 v[{20+8*i}:{23+8*i}], v5, s[20:23], s24 offen offset:512")
    e(f"s_waitcnt vmcnt({2*NSPLIT})")
    A = 16 + 8*NSPLIT
    for j in range(8):
        e(f"v_lshlrev_b32 v{A+2*j}, 16, v{8+j}\nv_and_b32 v{A+2*j+1}, 0xffff0000, v{8+j}")
    T = A + 16
    for i in range(NSPLIT):
        e(f"s_waitcnt vmcnt({2*(NSPLIT-1-i)})")
        for h in range(2):
            for d in range(4):
                n = 8*(d>>1) + 4*h + 2*(d&1)
                r = 16 + 8*i + 4*h + d
                e(f"v_lshlrev_b32 v{T}, 16, v{r}")
                e(f"v_and_b32 v{T+1}, 0xffff0000, v{r}")
                e(f"v_add_f32 v{A+n}, v{A+n}, v{T}")
                e(f"v_add_f32 v{A+n+1}, v{A+n+1}, v{T+1}")
    for j in range(8):
        e(f"v_cvt_pk_bf16_f32 v{8+j}, v{A+2*j}, v{A+2*j+1}")
    e("buffer_store_dwordx4 v[8:11], v6, s[16:19], 0 offen")
    e("buffer_store_dwordx4 v[12:15], v6, s[16:19], 0 offen offset:16")
    e("RD_END:\ns_endpgm")

def gen_attn(e):
    header(e, "attn_kernel")
    KA = 112; VA = 114; DM = 122
    e(f"""
    s_cmp_ge_u32 s2, 256
    s_cbranch_scc1 AT_END
    s_load_dwordx2 s[10:11], s[0:1], 72
    s_and_b32 s4, s2, 7
    s_lshl_b32 s4, s4, 2
    s_bfe_u32 s5, s2, 0x20003
    s_add_u32 s4, s4, s5          ; head
    s_lshr_b32 s5, s2, 5          ; qblock
    v_and_b32 v127, 63, v0
    v_lshrrev_b32 v16, 6, v0
    s_nop 0
    v_readfirstlane_b32 s56, v16
    v_and_b32 v17, 31, v127      ; l32
    v_lshrrev_b32 v18, 5, v127   ; h
    s_and_b32 s57, s56, 7        ; qt
    s_lshr_b32 s58, s56, 3       ; kh
    s_waitcnt lgkmcnt(0)
    """)
    srd(e, 40, 10, 11, WS_SIZE)
    e(f"""
    s_lshl_b32 s6, s4, 11
    s_lshl_b32 s7, s5, 8
    s_add_u32 s6, s6, s7
    s_lshl_b32 s7, s57, 5
    s_add_u32 s6, s6, s7
    v_add_u32 v19, s6, v17
    v_lshlrev_b32 v19, 6, v19
    v_lshl_add_u32 v19, v18, 4, v19
    v_add_u32 v19, {WS_QP}, v19
    buffer_load_dwordx4 v[64:67], v19, s[40:43], 0 offen
    buffer_load_dwordx4 v[68:71], v19, s[40:43], 0 offen offset:32
    s_lshl_b32 s7, s4, 17
    s_add_u32 s7, s7, {WS_KP}
    s_lshl_b32 s8, s56, 11
    s_add_u32 s7, s7, s8
    v_lshrrev_b32 v20, 2, v127
    v_lshlrev_b32 v20, 6, v20
    v_and_b32 v21, 3, v127
    v_bfe_u32 v22, v127, 4, 2
    v_xor_b32 v21, v21, v22
    v_lshl_add_u32 v20, v21, 4, v20
    v_add_u32 v{DM}, s7, v20
    v_add_u32 v{DM+1}, 1024, v{DM}
    s_lshl_b32 s7, s4, 17
    s_add_u32 s7, s7, {WS_VT}
    s_lshl_b32 s8, s56, 1
    """)
    for j in range(2):
        e(f"""
        s_add_u32 s9, s8, {j}
        s_and_b32 s12, s9, 15
        v_xor_b32 v22, s12, v127
        s_lshl_b32 s9, s9, 12
        s_add_u32 s9, s9, s7
        v_lshl_add_u32 v{DM+2+j}, v22, 4, s9
        """)
    e("""
    v_bfe_u32 v20, v127, 2, 2
    v_lshlrev_b32 v21, 6, v17
    s_lshl_b32 s9, s58, 14
    v_add_u32 v21, s9, v21
    """)
    for ks in range(2):
        e(f"v_or_b32 v22, {2*ks}, v18")
        e("v_xor_b32 v22, v22, v20")
        e(f"v_lshl_add_u32 v{KA+ks}, v22, 4, v21")
    e("v_and_b32 v20, 15, v127\nv_lshlrev_b32 v21, 10, v17\ns_lshl_b32 s9, s58, 9\ns_add_u32 s9, s9, 32768\nv_add_u32 v21, s9, v21")
    for c in range(8):
        e(f"v_or_b32 v22, {2*c}, v18")
        e("v_xor_b32 v22, v22, v20")
        e(f"v_lshl_add_u32 v{VA+c}, v22, 4, v21")
    def dma():
        for j in range(2):
            e(f"s_add_u32 m0, s54, {j*1024}\ns_nop 0")
            e(f"buffer_load_dwordx4 v{DM+j}, s[40:43], s52 offen lds")
        for j in range(2):
            e(f"s_add_u32 m0, s54, {32768 + j*1024}\ns_nop 0")
            e(f"buffer_load_dwordx4 v{DM+2+j}, s[40:43], s53 offen lds")
    KF = [72, 80]; VF = [88, 96]; SB = [16, 32]; P = 104
    def kread(tile):
        kf = KF[tile & 1]
        for ks in range(2):
            e(f"ds_read_b128 v[{kf+4*ks}:{kf+3+4*ks}], v{KA+ks} offset:{tile*2048}")
    def vread(tile):
        vf = VF[tile & 1]
        for c in range(2):
            cc = 2*tile + c
            e(f"ds_read_b128 v[{vf+4*c}:{vf+3+4*c}], v{VA + (cc&7)} offset:{(cc>>3)*256}")
    def smfma(tile):
        kf = KF[tile & 1]; S = SB[tile & 1]
        e(f"v_mfma_f32_32x32x16_bf16 v[{S}:{S+15}], v[{kf}:{kf+3}], v[64:67], v[48:63]")
        e(f"v_mfma_f32_32x32x16_bf16 v[{S}:{S+15}], v[{kf+4}:{kf+7}], v[68:71], v[{S}:{S+15}]")
    AR = [KA, KA+1] + list(range(VA, VA+8))
    def maxchain(S):
        e(f"v_max3_f32 v{P}, v{S}, v{S+1}, v{S+2}")
        for i in range(3, 15, 2):
            e(f"v_max3_f32 v{P}, v{P}, v{S+i}, v{S+i+1}")
        e(f"v_max_f32 v{P}, v{P}, v{S+15}")
    def mainloop(fast, tg):
        e("s_lshl_b32 s54, s56, 11\ns_mov_b32 s52, 0\ns_mov_b32 s53, 0")
        for i in range(16):
            e(f"v_mov_b32 v{i}, 0")
            e(f"v_mov_b32 v{48+i}, 0")
        e("v_mov_b32 v126, 0xff800000\ns_mov_b64 s[34:35], -1")
        dma()
        e(f"s_mov_b32 s30, 0\nAT_LOOP{tg}:")
        e("s_add_u32 s52, s52, 32768\ns_add_u32 s53, s53, 1024\ns_xor_b32 s54, s54, 0x10000")
        dma()
        e("s_waitcnt vmcnt(4)\ns_barrier")
        kread(0); kread(1); vread(0)
        e("s_waitcnt lgkmcnt(4)")
        smfma(0)
        e(f"s_nop 7\ns_mov_b32 s31, 0\nAT_IN{tg}:")
        for tile in range(4):
            S = SB[tile & 1]; vf = VF[tile & 1]
            e("s_waitcnt lgkmcnt(2)")
            smfma(tile + 1)
            kread(tile + 2)
            vread(tile + 1)
            if not fast:
                maxchain(S)
                e(f"v_cmp_lt_f32 vcc, 0x41000000, v{P}")
                e("s_or_b64 vcc, vcc, s[34:35]")
                e(f"s_cbranch_vccnz AT_SLOW{tg}{tile}")
            elif tile == 0:
                e("s_cmp_lg_u32 s34, 0")
                e(f"s_cbranch_scc1 AT_SLOW{tg}{tile}")
            e(f"AT_F{tg}{tile}:")
            for i in range(16):
                e(f"v_exp_f32 v{S+i}, v{S+i}")
            for i in range(8):
                e(f"v_cvt_pk_bf16_f32 v{P+i}, v{S+2*i}, v{S+1+2*i}")
            e("s_waitcnt lgkmcnt(4)\ns_nop 1")
            e(f"v_mfma_f32_32x32x16_bf16 v[0:15], v[{vf}:{vf+3}], v[{P}:{P+3}], v[0:15]")
            e(f"v_mfma_f32_32x32x16_bf16 v[0:15], v[{vf+4}:{vf+7}], v[{P+4}:{P+7}], v[0:15]")
        e(f"v_add_u32 v{KA}, 8192, v{KA}\nv_add_u32 v{KA+1}, 8192, v{KA+1}")
        for r in range(VA, VA+8):
            e(f"v_add_u32 v{r}, 256, v{r}")
        e(f"s_add_u32 s31, s31, 1\ns_cmp_lt_u32 s31, 2\ns_cbranch_scc1 AT_IN{tg}")
        e(f"v_subrev_u32 v{KA}, 16384, v{KA}\nv_subrev_u32 v{KA+1}, 16384, v{KA+1}")
        for r in range(VA, VA+8):
            e(f"v_subrev_u32 v{r}, 512, v{r}")
        for r in AR:
            e(f"v_xor_b32 v{r}, 0x10000, v{r}")
        e("s_waitcnt lgkmcnt(0)\ns_barrier")
        e(f"s_add_u32 s30, s30, 1\ns_cmp_lt_u32 s30, 4\ns_cbranch_scc1 AT_LOOP{tg}")
        e(f"s_branch AT_FIN{tg}")
        for tile in range(4 if not fast else 1):
            S = SB[tile & 1]; S2 = SB[(tile & 1) ^ 1]
            e(f"AT_SLOW{tg}{tile}:")
            if fast: maxchain(S)
            e(f"v_mov_b32 v{P+1}, v{P}\ns_nop 1")
            e(f"v_permlane32_swap_b32 v{P}, v{P+1}")
            e("s_nop 1")
            e(f"v_max3_f32 v{P}, v{P}, v{P+1}, v126")
            e("v_mov_b32 v126, 0\ns_mov_b64 s[34:35], 0")
            e(f"v_exp_f32 v{P+1}, -v{P}")
            e("s_nop 7\ns_nop 7")
            for i in range(16):
                e(f"v_sub_f32 v{S+i}, v{S+i}, v{P}")
                e(f"v_sub_f32 v{48+i}, v{48+i}, v{P}")
                e(f"v_mul_f32 v{i}, v{i}, v{P+1}")
                e(f"v_sub_f32 v{S2+i}, v{S2+i}, v{P}")
            e(f"s_branch AT_F{tg}{tile}")
        e(f"AT_FIN{tg}:\ns_waitcnt vmcnt(0)\ns_nop 15")
    mainloop(True, "A")
    e("""
    s_barrier
    v_mov_b32 v16, 0x71800000
    v_cmp_nlt_f32 vcc, v10, v16
    s_cmp_lg_u64 vcc, 0
    s_cselect_b32 s6, 1, 0
    v_mov_b32 v16, s6
    s_lshl_b32 s6, s56, 2
    s_add_u32 s6, s6, 65536
    v_mov_b32 v17, s6
    ds_write_b32 v17, v16
    v_and_b32 v17, 15, v127
    v_lshlrev_b32 v17, 2, v17
    v_add_u32 v17, 65536, v17
    s_waitcnt lgkmcnt(0)
    s_barrier
    ds_read_b32 v16, v17
    s_waitcnt lgkmcnt(0)
    v_cmp_ne_u32 vcc, 0, v16
    s_cbranch_vccz AT_MERGE
    s_barrier
    """)
    mainloop(False, "B")
    e("AT_MERGE:")
    e("""
    s_lshl_b32 s6, s57, 6
    v_add_u32 v16, s6, v127
    v_lshlrev_b32 v16, 6, v16
    s_barrier
    s_cmp_eq_u32 s58, 0
    s_cbranch_scc1 AT_MRG
    ds_write_b128 v16, v[0:3]
    ds_write_b128 v16, v[4:7] offset:16
    ds_write_b128 v16, v[8:11] offset:32
    ds_write_b32 v16, v48 offset:48
    s_waitcnt lgkmcnt(0)
    s_barrier
    s_branch AT_END
    AT_MRG:
    s_barrier
    ds_read_b128 v[20:23], v16
    ds_read_b128 v[24:27], v16 offset:16
    ds_read_b128 v[28:31], v16 offset:32
    ds_read_b32 v32, v16 offset:48
    s_waitcnt lgkmcnt(0)
    v_min_f32 v33, v48, v32
    v_sub_f32 v34, v33, v48
    v_sub_f32 v35, v33, v32
    v_exp_f32 v34, v34
    v_exp_f32 v35, v35
    s_nop 1
    """)
    for i in range(12):
        e(f"v_mul_f32 v{i}, v{i}, v34")
        e(f"v_fmac_f32 v{i}, v{20+i}, v35")
    e(f"""
    v_and_b32 v17, 31, v127
    v_lshrrev_b32 v18, 5, v127
    v_rcp_f32 v33, v10
    s_lshl_b32 s6, s5, 8
    s_lshl_b32 s7, s57, 5
    s_add_u32 s6, s6, s7
    s_lshr_b32 s6, s6, 5
    s_mul_i32 s6, s6, 331776
    s_add_u32 s6, s6, {WS_H}
    v_lshl_add_u32 v19, v17, 4, s6
    s_mul_i32 s8, s4, 18
    s_add_u32 s8, s8, 4608
    v_lshl_add_u32 v41, v18, 2, s8
    """)
    for i in range(10):
        e(f"v_mul_f32 v{i}, v{i}, v33")
    def oaddr(dst, c):
        e(f"v_add_u32 v{dst}, {c}, v41")
        e(f"v_lshrrev_b32 v46, 3, v{dst}")
        e(f"v_and_b32 v{dst}, 7, v{dst}")
        e(f"v_lshl_add_u32 v{dst}, v{dst}, 1, v19")
        e(f"v_lshl_add_u32 v{dst}, v46, 9, v{dst}")
    for q in range(2):
        e(f"v_cvt_pk_bf16_f32 v{36+2*q}, v{4*q}, v{4*q+1}")
        e(f"v_cvt_pk_bf16_f32 v{37+2*q}, v{4*q+2}, v{4*q+3}")
        oaddr(42+2*q, 8*q); oaddr(43+2*q, 8*q+2)
        e(f"buffer_store_dword v{36+2*q}, v{42+2*q}, s[40:43], 0 offen")
        e(f"buffer_store_dword v{37+2*q}, v{43+2*q}, s[40:43], 0 offen")
    oaddr(47, 16)
    e("""
    v_cvt_pk_bf16_f32 v40, v8, v9
    v_cmp_eq_u32 vcc, 0, v18
    s_and_saveexec_b64 s[24:25], vcc
    s_cbranch_execz AT_SK
    buffer_store_dword v40, v47, s[40:43], 0 offen
    AT_SK:
    s_or_b64 exec, exec, s[24:25]
    AT_END:
    s_endpgm
    """)

def main():
    e = E()
    hdr = open("parallel_sum__mha_block__glu_gated_swiglu__prompt.s.ref").read().split("; Override")[0]
    txt = hdr
    txt += "; @launch kernel=ln_kernel grid=(704,1,1) block=(256,1,1) lds=0\n"
    txt += f"; @launch kernel=gemm1_kernel grid=(256,1,1) block=(512,1,1) lds=163840\n"
    txt += "; @launch kernel=attn_kernel grid=(256,1,1) block=(1024,1,1) lds=131072\n"
    txt += "; @launch kernel=gemm2_kernel grid=(240,1,1) block=(512,1,1) lds=77824\n"
    txt += "; @launch kernel=red_kernel grid=(288,1,1) block=(256,1,1) lds=0\n"
    txt += '.amdgcn_target "amdgcn-amd-amdhsa--gfx950"\n.text\n'
    gen_ln(e); gen_gemm1(e); gen_attn(e); gen_gemm2(e); gen_red(e)
    txt += e.text()
    txt += kd("ln_kernel", 80) + kd("gemm1_kernel", 256) + kd("attn_kernel", 128) + kd("gemm2_kernel", 180) + kd("red_kernel", 80)
    open(OUT, "w").write(txt)
    print("wrote", len(txt))
main()
```

```python
import sys
OUT = "parallel_sum__mha_block__glu_gated_swiglu__prompt.s" if len(sys.argv)<2 else "var_"+sys.argv[1]+".s"

MB = 1 << 20
WS_XN = 0
WS_QP = 4 * MB
WS_KP = 8 * MB
WS_VT = 12 * MB
WS_H = 16 * MB
WS_O = 40 * MB
WS_SIZE = 268435456

S_, D_, F_, H_ = 2048, 576, 4608, 32
LOG2E = 1.4426950408889634
QSCALE = LOG2E * (18 ** -0.5)

import struct
def f2u(x):
    return struct.unpack("<I", struct.pack("<f", x))[0]

class E:
    def __init__(self):
        self.l = []
    def __call__(self, s):
        for ln in s.strip("\n").split("\n"):
            self.l.append("  " + ln.strip() if not ln.strip().endswith(":") else ln.strip())
    def text(self):
        return "\n".join(self.l) + "\n"

def srd(e, d, base_lo, base_hi, nbytes):
    e(f"s_mov_b32 s{d}, s{base_lo}")
    e(f"s_and_b32 s{d+1}, s{base_hi}, 0xffff")
    e(f"s_mov_b32 s{d+2}, {nbytes}")
    e(f"s_mov_b32 s{d+3}, 0x00020000")

def header(e, name):
    e(f".globl {name}\n.p2align 8\n.type {name},@function\n{name}:")

def kd(name, vgpr, sgpr=102):
    acc = (vgpr + 3) // 4 * 4
    return f""".section .rodata,"a"
.p2align 6
.amdhsa_kernel {name}
  .amdhsa_next_free_vgpr {vgpr}
  .amdhsa_next_free_sgpr {sgpr}
  .amdhsa_accum_offset {acc}
  .amdhsa_group_segment_fixed_size 0
  .amdhsa_kernarg_size 80
  .amdhsa_user_sgpr_count 2
  .amdhsa_user_sgpr_kernarg_segment_ptr 1
  .amdhsa_system_sgpr_workgroup_id_x 1
.end_amdhsa_kernel
"""

def gen_ln(e):
    header(e, "ln_kernel")
    PF = ((28, D_*F_*2), (30, D_*F_*2), (26, D_*1728*2))
    def prefetch():
        if "PF" not in sys.argv: return
        for n_, (lo, nb) in enumerate(PF):
            srd(e, 32, lo, lo+1, nb)
            e(f"buffer_load_dword v{71+n_}, v70, s[32:35], 0 offen")
    e("""
    s_cmp_ge_u32 s2, 704
    s_cbranch_scc1 LN_END
    s_load_dwordx2 s[4:5], s[0:1], 0
    s_load_dwordx2 s[6:7], s[0:1], 72
    s_load_dwordx2 s[26:27], s[0:1], 8
    s_load_dwordx2 s[28:29], s[0:1], 32
    s_load_dwordx2 s[30:31], s[0:1], 40
    s_lshl_b32 s3, s2, 8
    v_add_u32 v1, s3, v0
    v_lshlrev_b32 v70, 5, v1
    v_lshrrev_b32 v2, 5, v1
    v_and_b32 v3, 31, v1
    s_movk_i32 s20, 1152
    v_mul_lo_u32 v4, v2, s20
    v_lshl_add_u32 v4, v3, 2, v4
    s_waitcnt lgkmcnt(0)
    """)
    srd(e, 12, 6, 7, WS_SIZE)
    e("s_cmp_lt_u32 s2, 256\ns_cbranch_scc1 LN_MAIN")
    prefetch()
    magic = -(-(1 << 32) // 3584)
    e(f"""
    v_subrev_u32 v30, 65536, v1
    s_mov_b32 s21, {magic}
    v_mul_hi_u32 v31, v30, s21
    s_movk_i32 s21, 3584
    v_mul_lo_u32 v32, v31, s21
    v_sub_u32 v32, v30, v32
    v_lshrrev_b32 v33, 8, v32
    v_and_b32 v34, 255, v32
    v_add_u32 v33, 18, v33
    v_lshl_add_u32 v35, v31, 5, v33
    v_lshlrev_b32 v35, 12, v35
    v_lshl_add_u32 v35, v34, 4, v35
    v_add_u32 v35, {WS_VT}, v35
    v_cmp_eq_u32 vcc, 18, v33
    v_cmp_eq_u32 s[22:23], 22, v33
    s_or_b64 vcc, vcc, s[22:23]
    v_mov_b32 v36, 0x3f803f80
    s_nop 1
    v_cndmask_b32 v44, 0, v36, vcc
    v_mov_b32 v45, v44
    v_mov_b32 v46, v44
    v_mov_b32 v47, v44
    v_cmp_gt_u32 vcc, 114688, v30
    s_and_saveexec_b64 s[24:25], vcc
    s_cbranch_execz LN_END
    buffer_store_dwordx4 v[44:47], v35, s[12:15], 0 offen
    s_branch LN_END
    LN_MAIN:
    """)
    srd(e, 8, 4, 5, S_ * D_ * 2)
    for i in range(9):
        e(f"buffer_load_dword v{10+i}, v4, s[8:11], 0 offen offset:{128*i}")
    prefetch()
    e(f"s_waitcnt vmcnt({0 if 'PF' not in sys.argv else len(PF)})")
    for i in range(9):
        e(f"v_lshlrev_b32 v{50+2*i}, 16, v{10+i}")
        e(f"v_and_b32 v{51+2*i}, 0xffff0000, v{10+i}")
    e("v_add_f32 v20, v50, v51")
    for i in range(2, 18):
        e(f"v_add_f32 v20, v20, v{50+i}")
    def red(v):
        for x in (1, 2, 4, 8, 16):
            e(f"ds_swizzle_b32 v21, v{v} offset:{(x<<10)|0x1f}")
            e("s_waitcnt lgkmcnt(0)")
            e(f"v_add_f32 v{v}, v{v}, v21")
    red(20)
    e(f"v_mul_f32 v20, {hex(f2u(1.0/576))}, v20")
    for i in range(18):
        e(f"v_sub_f32 v{50+i}, v{50+i}, v20")
    e("v_mul_f32 v22, v50, v50")
    for i in range(1, 18):
        e(f"v_fmac_f32 v22, v{50+i}, v{50+i}")
    red(22)
    e(f"v_mov_b32 v23, {hex(f2u(1e-5))}")
    e(f"v_fmac_f32 v23, {hex(f2u(1.0/576))}, v22")
    e("v_rsq_f32 v23, v23")
    e("s_nop 1")
    for i in range(18):
        e(f"v_mul_f32 v{50+i}, v{50+i}, v23")
    for i in range(9):
        e(f"v_cvt_pk_bf16_f32 v{10+i}, v{50+2*i}, v{51+2*i}")
    e("""
    v_lshrrev_b32 v5, 5, v2
    v_mul_u32_u24 v5, 36864, v5
    v_and_b32 v6, 31, v2
    v_lshl_add_u32 v5, v6, 4, v5
    v_lshrrev_b32 v6, 3, v3
    v_lshl_add_u32 v5, v6, 10, v5
    v_bfe_u32 v6, v3, 2, 1
    v_lshl_add_u32 v5, v6, 9, v5
    v_and_b32 v6, 3, v3
    v_lshl_add_u32 v5, v6, 2, v5
    """)
    for i in range(9):
        e(f"s_mov_b32 s20, {4096*i}")
        e(f"buffer_store_dword v{10+i}, v5, s[12:15], s20 offen")
    e("LN_END:\ns_endpgm")

ACC = 0
def acc(p, t):
    b = ACC + p * 32 + t * 16
    return f"v[{b}:{b+15}]"

def gemm_dma(e, buf):
    if "NODMA" in sys.argv: return
    sb = buf * 16384
    for i in range(2):
        e(f"s_add_u32 m0, s54, {sb + i*1024}")
        e("s_nop 0")
        e(f"buffer_load_dwordx4 v{96+i}, s[40:43], s52 offen lds")
    for p in range(2):
        e(f"s_add_u32 m0, s55, {sb + p*4096}")
        e("s_nop 0")
        e(f"buffer_load_dwordx4 v100, s[{44+4*p}:{47+4*p}], s53 offen lds")

def gemm_reads(e, buf, ks):
    fs = 64 + (ks & 1) * 16
    sb = buf * 16384
    for p in range(2):
        for h2 in range(2):
            e(f"ds_read_b64_tr_b16 v[{fs+4*p+2*h2}:{fs+4*p+2*h2+1}], v106 offset:{sb + p*4096 + ks*2048 + h2*512}")
    for t in range(2):
        e(f"ds_read_b128 v[{fs+8+4*t}:{fs+11+4*t}], v{102+ks} offset:{sb + t*2048}")

SWAP = [False]
def gemm_compute(e, buf):
    gemm_reads(e, buf, 0)
    for ks in range(2):
        if ks < 1:
            gemm_reads(e, buf, ks + 1)
            e("s_waitcnt lgkmcnt(6)")
        else:
            e("s_waitcnt lgkmcnt(0)")
        fs = 64 + (ks & 1) * 16
        for p in range(2):
            for t in range(2):
                wfr = f"v[{fs+4*p}:{fs+4*p+3}]"; xfr = f"v[{fs+8+4*t}:{fs+11+4*t}]"
                if SWAP[0]: wfr, xfr = xfr, wfr
                if "NOMF" not in sys.argv: e(f"v_mfma_f32_32x32x16_bf16 {acc(p,t)}, {wfr}, {xfr}, {acc(p,t)}")

def gemm_setup_common(e, m0_sreg):
    e("""
    v_and_b32 v107, 63, v0
    v_lshrrev_b32 v108, 6, v0
    s_nop 0
    v_readfirstlane_b32 s56, v108
    """)
    for i in range(64):
        e(f"v_mov_b32 v{i}, 0")
    e("""
    s_lshr_b32 s57, s56, 1
    s_and_b32 s58, s56, 1
    v_and_b32 v108, 31, v107
    v_lshrrev_b32 v109, 5, v107
    v_bfe_u32 v110, v107, 2, 2
    s_lshl_b32 s59, s57, 12
    v_lshlrev_b32 v111, 6, v108
    v_add_u32 v111, s59, v111
    """)
    for ks in range(2):
        e(f"v_or_b32 v112, {2*ks}, v109")
        e("v_xor_b32 v112, v112, v110")
        e(f"v_lshl_add_u32 v{102+ks}, v112, 4, v111")
    e("""
    v_bfe_u32 v108, v107, 2, 2
    v_lshl_add_u32 v108, v109, 3, v108
    v_lshlrev_b32 v108, 7, v108
    v_bfe_u32 v110, v107, 3, 1
    v_xor_b32 v110, s58, v110
    v_lshl_add_u32 v108, v110, 6, v108
    v_bfe_u32 v110, v107, 4, 1
    v_lshl_add_u32 v108, v110, 5, v108
    v_and_b32 v110, 3, v107
    v_lshl_add_u32 v108, v110, 3, v108
    v_add_u32 v106, 8192, v108
    s_lshl_b32 s54, s56, 11
    s_lshl_b32 s55, s56, 10
    s_add_u32 s55, s55, 8192
    """)

def gemm_setup_x(e, m0_sreg, stride_sreg):
    e(f"""
    s_lshl_b32 s59, s56, 5
    s_add_u32 s59, s59, s{m0_sreg}
    v_lshrrev_b32 v108, 2, v107
    v_add_u32 v108, s59, v108
    v_and_b32 v109, 3, v107
    v_bfe_u32 v110, v107, 4, 2
    v_xor_b32 v112, v109, v110
    """)
    for i in range(2):
        e(f"v_add_u32 v111, {16*i}, v108")
        e(f"v_mul_lo_u32 v111, v111, s{stride_sreg}")
        e(f"v_lshl_add_u32 v{96+i}, v112, 4, v111")

def gemm_setup_w(e, ncol_sreg, stride_sreg):
    e(f"""
    s_lshl_b32 s59, s56, 3
    v_lshrrev_b32 v108, 3, v107
    v_add_u32 v108, s59, v108
    v_and_b32 v109, 7, v107
    v_bfe_u32 v110, v107, 4, 1
    v_lshlrev_b32 v110, 2, v110
    v_xor_b32 v109, v109, v110
    v_lshlrev_b32 v109, 4, v109
    s_lshl_b32 s59, s{ncol_sreg}, 1
    v_add_u32 v109, s59, v109
    v_mul_lo_u32 v111, v108, s{stride_sreg}
    v_add_u32 v100, v111, v109
    """)

def gemm_stage(e, s, nst, adv):
    buf = s & 1
    if s + 1 < nst:
        adv(e)
        gemm_dma(e, buf ^ 1)
        e("s_waitcnt vmcnt(4)")
    else:
        e("s_waitcnt vmcnt(0)")
    e("s_barrier")
    gemm_compute(e, buf)
    e("s_barrier")

def gen_gemm1(e):
    XR = 64; WF = 208; T = WF
    FL = sys.argv
    header(e, "gemm1_kernel")
    e(f"""
    s_cmp_ge_u32 s2, 256
    s_cbranch_scc1 G1_END
    s_load_dwordx2 s[4:5], s[0:1], 8
    s_load_dwordx2 s[6:7], s[0:1], 32
    s_load_dwordx2 s[8:9], s[0:1], 40
    s_load_dwordx2 s[10:11], s[0:1], 72
    s_bfe_u32 s12, s2, 0x30003
    s_lshl_b32 s12, s12, 8
    s_lshr_b32 s13, s2, 6
    s_lshl_b32 s13, s13, 3
    s_and_b32 s14, s2, 7
    s_add_u32 s14, s13, s14      ; group 0..31
    v_and_b32 v245, 63, v0
    v_lshrrev_b32 v246, 6, v0
    s_nop 0
    v_readfirstlane_b32 s56, v246
    v_and_b32 v246, 31, v245
    v_lshrrev_b32 v247, 5, v245
    s_waitcnt lgkmcnt(0)
    """)
    srd(e, 40, 10, 11, S_ * D_ * 2)
    srd(e, 60, 10, 11, WS_SIZE)
    e("""
    v_bfe_u32 v248, v245, 2, 2
    v_lshl_add_u32 v248, v247, 3, v248
    v_lshlrev_b32 v248, 7, v248
    v_bfe_u32 v249, v245, 4, 1
    v_lshl_add_u32 v248, v249, 5, v248
    v_and_b32 v249, 3, v245
    v_lshl_add_u32 v248, v249, 3, v248
    v_bfe_u32 v249, v245, 3, 1
    v_lshl_add_u32 v242, v249, 6, v248
    v_xor_b32 v249, 1, v249
    v_lshl_add_u32 v243, v249, 6, v248
    v_add_u32 v252, 0x10000, v242
    v_add_u32 v253, 0x10000, v243
    v_add_u32 v254, 0x20000, v242
    v_add_u32 v255, 0x20000, v243
    s_lshl_b32 s55, s56, 10
    s_lshr_b32 s59, s12, 5
    s_add_u32 s59, s59, s56
    s_mul_i32 s59, s59, 36864
    v_lshl_add_u32 v244, v245, 4, s59
    """)
    def xload(kk):
        if "NOX1" in FL: return
        e(f"s_mov_b32 s59, {1024*kk}")
        e(f"buffer_load_dwordx4 v[{XR+4*kk}:{XR+4*kk+3}], v244, s[40:43], s59 offen")
    def voffw():
        e(f"""
        s_lshl_b32 s17, s16, 6
        s_lshl_b32 s59, s56, 3
        v_lshrrev_b32 v248, 3, v245
        v_add_u32 v248, s59, v248
        v_and_b32 v249, 7, v245
        v_bfe_u32 v250, v245, 4, 1
        v_lshlrev_b32 v250, 2, v250
        v_xor_b32 v249, v249, v250
        v_lshlrev_b32 v249, 4, v249
        s_lshl_b32 s59, s15, 1
        v_add_u32 v249, s59, v249
        v_mul_lo_u32 v250, v248, s16
        v_add_u32 v240, v250, v249
        s_mov_b32 s53, 0
        s_nop 4
        """)
    def dma(buf):
        for p in range(2):
            if "NODMA1" in FL: continue
            e(f"s_add_u32 m0, s55, {buf*16384 + p*8192}")
            e("s_nop 0")
            e(f"buffer_load_dwordx4 v240, s[{44+4*p}:{47+4*p}], s53 offen lds")
        e("s_add_u32 s53, s53, s17")
    def reads(buf, ks):
        fs = WF + (ks & 1) * 16
        for j in range(4):
            p, sub = j >> 1, j & 1
            for h2 in range(2):
                areg = (242, 252, 254)[buf // 4] + sub
                e(f"ds_read_b64_tr_b16 v[{fs+4*j+2*h2}:{fs+4*j+2*h2+1}], v{areg} offset:{(buf%4)*16384 + p*8192 + ks*2048 + h2*512}")
    def mfmas(st, ks, swap):
        if "NOMF1" in FL: return
        fs = WF + (ks & 1) * 16
        kk = 4 * st + ks
        for j in range(4):
            wfr = f"v[{fs+4*j}:{fs+4*j+3}]"; xfr = f"v[{XR+4*kk}:{XR+4*kk+3}]"
            if swap: wfr, xfr = xfr, wfr
            c = "0" if (st == 0 and ks == 0) else f"v[{16*j}:{16*j+15}]"
            e(f"v_mfma_f32_32x32x16_bf16 v[{16*j}:{16*j+15}], {wfr}, {xfr}, {c}")
    def body(swap, sync):
        reads(0, 0)
        for st in range(9):
            for ks in range(4):
                if ks == 2 and st < 8: sync(st)
                if ks < 3: reads(st, ks + 1)
                elif st < 8: reads(st + 1, 0)
                e("s_waitcnt lgkmcnt(8)" if (ks < 3 or st < 8) else "s_waitcnt lgkmcnt(0)")
                mfmas(st, ks, swap)
        e("s_barrier")
        e("s_nop 15")
    e("s_cmp_ge_u32 s14, 8\ns_cbranch_scc1 " + ("G1_END" if "NOF" in FL else "G1_FFN"))
    if "NOQ" in FL: e("s_branch G1_END")
    e("""
    s_lshl_b32 s13, s14, 1       ; tile
    s_add_u32 s19, s13, 2
    s_min_u32 s19, s19, 15
    s_mov_b32 s30, 0
    s_lshl_b32 s57, s56, 14
    """)
    srd(e, 44, 4, 5, D_ * 1728 * 2)
    e(f"""
    s_add_u32 s48, s4, 128
    s_addc_u32 s49, s5, 0
    s_and_b32 s49, s49, 0xffff
    s_mov_b32 s50, {D_*1728*2-128}
    s_mov_b32 s51, 0x00020000
    G1_QT:
    s_mul_i32 s22, s13, 13
    s_lshr_b32 s22, s22, 6       ; mat
    s_mul_i32 s23, s22, 5
    s_sub_u32 s23, s13, s23      ; t'
    s_mul_i32 s15, s22, 576
    s_mul_i32 s59, s23, 126
    s_add_u32 s15, s15, s59      ; col0
    s_mul_i32 s24, s23, 7        ; head0
    s_movk_i32 s16, 3456
    """)
    voffw()
    for b_ in range(9): dma(b_)
    e("s_cmp_lg_u32 s30, 0\ns_cbranch_scc1 G1_QNX")
    for kk in range(36): xload(kk)
    e("""
    s_mov_b32 s30, 1
    G1_QNX:
    s_waitcnt vmcnt(0)
    s_barrier
    s_cmp_ge_u32 s22, 2
    s_cbranch_scc1 G1_QV
    """)
    nos = lambda s_: None
    body(False, nos)
    e(f"""
    s_mov_b32 s20, {hex(f2u(QSCALE))}
    s_cmp_eq_u32 s22, 0
    s_cselect_b32 s20, s20, 1.0
    v_lshl_add_u32 v248, v246, 6, s57
    v_bfe_u32 v249, v246, 1, 2
    v_lshlrev_b32 v249, 4, v249
    """)
    cnt = 0
    for j in range(4):
        for q in range(4):
            for jj in (0, 2):
                n0 = 32*j + 8*q + jj; n1 = n0 + 4
                o0 = (n0//18)*2048 + (n0%18)*2; o1 = (n1//18)*2048 + (n1%18)*2
                t = T + 4*(cnt % 4); cnt += 1
                r = 16*j + 4*q + jj
                e(f"v_mul_u32_u24 v{t}, {o1-o0}, v247")
                e(f"v_mul_f32 v{t+1}, s20, v{r}")
                e(f"v_mul_f32 v{t+2}, s20, v{r+1}")
                e(f"v_add_u32 v{t}, {o0}, v{t}")
                e(f"v_xor_b32 v{t}, v{t}, v249")
                e(f"v_cvt_pk_bf16_f32 v{t+1}, v{t+1}, v{t+2}")
                e(f"v_add_u32 v{t}, v{t}, v248")
                e(f"ds_write_b32 v{t}, v{t+1}")
    e(f"""
    v_lshrrev_b32 v248, 2, v245
    v_and_b32 v249, 3, v245
    v_bfe_u32 v250, v245, 3, 2
    v_xor_b32 v250, v250, v249
    v_lshlrev_b32 v250, 4, v250
    v_lshl_add_u32 v250, v248, 6, v250
    v_add_u32 v250, s57, v250
    v_cmp_gt_u32 vcc, 3, v249
    v_cndmask_b32 v251, 0, -1, vcc
    v_cmp_gt_u32 vcc, 2, v249
    v_cndmask_b32 v241, 0, -1, vcc
    s_lshl_b32 s59, s56, 5
    s_add_u32 s59, s59, s12
    v_add_u32 v248, s59, v248
    v_lshlrev_b32 v248, 6, v248
    v_lshl_add_u32 v248, v249, 4, v248
    s_lshl_b32 s59, s22, 22
    s_add_u32 s59, s59, {WS_QP}
    s_lshl_b32 s25, s24, 17
    s_add_u32 s59, s59, s25
    v_add_u32 v248, s59, v248
    s_waitcnt lgkmcnt(0)
    """)
    for b0 in range(0, 14, 4):
        rs = list(range(b0, min(b0+4, 14)))
        if b0 == 8: e("s_cmp_eq_u32 s23, 4\ns_cbranch_scc1 G1_QNEXT")
        for i in rs:
            t = T + 4*(i % 4)
            e(f"ds_read_b128 v[{t}:{t+3}], v250 offset:{i*1024}")
        for i in rs:
            t = T + 4*(i % 4)
            e(f"s_waitcnt lgkmcnt({rs[-1]-i})")
            e(f"v_and_b32 v{t}, v{t}, v251")
            for k_ in range(1, 4): e(f"v_and_b32 v{t+k_}, v{t+k_}, v241")
            e(f"s_mov_b32 s59, {(i//2)*131072 + (i%2)*1024}")
            e(f"buffer_store_dwordx4 v[{t}:{t+3}], v248, s[60:63], s59 offen")
    e("s_branch G1_QNEXT\nG1_QV:")
    body(True, nos)
    e(f"""
    v_bfe_u32 v249, v246, 1, 2
    v_xor_b32 v250, v249, v247
    v_lshlrev_b32 v250, 4, v250
    v_lshl_add_u32 v250, v246, 6, v250
    v_add_u32 v250, s57, v250
    v_or_b32 v251, 2, v247
    v_xor_b32 v251, v249, v251
    v_lshlrev_b32 v251, 4, v251
    v_lshl_add_u32 v251, v246, 6, v251
    v_add_u32 v251, s57, v251
    """)
    cnt = 0
    for j in range(4):
        for q in range(4):
            r = 16*j + 4*q
            t = T + 2*(cnt % 8); cnt += 1
            e(f"v_cvt_pk_bf16_f32 v{t}, v{r}, v{r+1}")
            e(f"v_cvt_pk_bf16_f32 v{t+1}, v{r+2}, v{r+3}")
            e(f"ds_write_b64 v{250 + (q>>1)}, v[{t}:{t+1}] offset:{j*2048 + 8*(q&1)}")
    e(f"""
    v_lshrrev_b32 v248, 2, v245
    v_and_b32 v249, 3, v245
    v_bfe_u32 v250, v245, 3, 2
    v_xor_b32 v250, v250, v249
    v_lshlrev_b32 v250, 4, v250
    v_lshl_add_u32 v250, v248, 6, v250
    v_add_u32 v250, s57, v250
    s_lshl_b32 s59, s56, 5
    s_add_u32 s59, s59, s12
    s_lshl_b32 s59, s59, 1
    s_add_u32 s59, s59, {WS_VT}
    s_lshl_b32 s25, s24, 17
    s_add_u32 s59, s59, s25
    v_lshl_add_u32 v249, v249, 4, s59
    s_movk_i32 s21, 3641
    s_movk_i32 s25, 126
    s_cmp_eq_u32 s23, 4
    s_cselect_b32 s25, 72, s25
    s_waitcnt lgkmcnt(0)
    """)
    for b0 in (0, 4):
        rs = list(range(b0, b0+4))
        for i in rs:
            t = T + 4*(i % 4)
            e(f"ds_read_b128 v[{t}:{t+3}], v250 offset:{i*1024}")
        for i in rs:
            t = T + 4*(i % 4)
            u = T + 16 + 4*(i % 4)
            e(f"""
            v_add_u32 v{u}, {16*i}, v248
            v_mul_u32_u24 v{u+1}, s21, v{u}
            v_lshrrev_b32 v{u+1}, 16, v{u+1}
            v_mul_u32_u24 v{u+2}, 14, v{u+1}
            v_add_u32 v{u+2}, v{u+2}, v{u}
            v_lshl_add_u32 v{u+2}, v{u+2}, 12, v249
            v_cmp_gt_u32 vcc, s25, v{u}
            s_waitcnt lgkmcnt({rs[-1]-i})
            s_mov_b64 exec, vcc
            buffer_store_dwordx4 v[{t}:{t+3}], v{u+2}, s[60:63], 0 offen
            s_mov_b64 exec, -1
            """)
    e("""
    G1_QNEXT:
    s_add_u32 s13, s13, 1
    s_cmp_ge_u32 s13, s19
    s_cbranch_scc1 G1_END
    s_barrier
    s_branch G1_QT
    """)
    e("""
    G1_FFN:
    s_sub_u32 s13, s14, 8
    s_mul_i32 s13, s13, 3
    s_add_u32 s19, s13, 3
    s_mov_b32 s31, s13
    s_movk_i32 s16, 9216
    """)
    srd(e, 44, 6, 7, D_ * F_ * 2)
    srd(e, 48, 8, 9, D_ * F_ * 2)
    e("s_lshl_b32 s15, s31, 6")
    voffw()
    def cursor_next(tag):
        e(f"""
        s_add_u32 s31, s31, 1
        s_cmp_lt_u32 s31, s19
        s_cbranch_scc1 G1_CN{tag}
        s_mov_b32 s46, 0
        s_mov_b32 s50, 0
        G1_CN{tag}:
        s_lshl_b32 s15, s31, 6
        """)
        voffw()
    for g in range(7):
        dma(g)
        for kk in range(4*g, 4*g+4): xload(kk)
    for kk in range(28, 36): xload(kk)
    def mk_sync(waits, tag):
        def sy(s_):
            if "NOWAIT" not in FL: e(f"s_waitcnt vmcnt({waits[s_+1]})")
            if "NOBAR" not in FL: e("s_barrier")
            if s_ == 1: cursor_next(tag)
            dma((s_ - 1) % 9)
        return sy
    first = [44, 40, 36, 32, 28, 24, 20, 12, 12]
    steady = [20, 20, 20, 20, 20, 20, 20, 12, 12]
    def ffn_epi():
        if "NOEPI1" in FL: return
        e(f"""
        s_lshr_b32 s59, s12, 5
        s_add_u32 s59, s59, s56
        s_mul_i32 s59, s59, 331776
        s_lshl_b32 s18, s13, 12
        s_add_u32 s59, s59, s18
        s_add_u32 s59, s59, {WS_H}
        v_lshl_add_u32 v251, v246, 4, s59
        v_lshl_add_u32 v251, v247, 3, v251
        s_mov_b32 s20, {hex(f2u(-LOG2E))}
        """)
        cnt = 0
        for sub in range(2):
            for q in range(4):
                t = T + 10 * (cnt % 3); cnt += 1
                for j in range(4):
                    e(f"v_mul_f32 v{t+j}, s20, v{16*sub+4*q+j}")
                for j in range(4):
                    e(f"v_exp_f32 v{t+j}, v{t+j}")
                for j in range(4):
                    e(f"v_mul_f32 v{t+4+j}, v{16*sub+4*q+j}, v{32+16*sub+4*q+j}")
                for j in range(4):
                    e(f"v_add_f32 v{t+j}, 1.0, v{t+j}")
                for j in range(4):
                    e(f"v_rcp_f32 v{t+j}, v{t+j}")
                e("s_nop 0")
                for j in range(4):
                    e(f"v_mul_f32 v{t+4+j}, v{t+4+j}, v{t+j}")
                e(f"v_cvt_pk_bf16_f32 v{t+8}, v{t+4}, v{t+5}")
                e(f"v_cvt_pk_bf16_f32 v{t+9}, v{t+6}, v{t+7}")
                e(f"buffer_store_dwordx2 v[{t+8}:{t+9}], v251, s[60:63], 0 offen offset:{(2*sub+(q>>1))*1024 + (q&1)*512}")
    mk_sync(first, "X")(-1)
    body(False, mk_sync(first, "A"))
    ffn_epi()
    e("s_add_u32 s13, s13, 1\nG1_FT:")
    mk_sync(steady, "Y")(-1)
    body(False, mk_sync(steady, "B"))
    ffn_epi()
    e("""
    s_add_u32 s13, s13, 1
    s_cmp_lt_u32 s13, s19
    s_cbranch_scc1 G1_FT
    G1_END:
    s_endpgm
    """)

WS_P = 48 * MB
NSPLIT = 5
def gen_gemm2(e):
    XR = 48; WF = 144
    header(e, "gemm2_kernel")
    e(f"""
    s_cmp_ge_u32 s2, 240
    s_cbranch_scc1 G2_END
    s_load_dwordx2 s[4:5], s[0:1], 16
    s_load_dwordx2 s[6:7], s[0:1], 48
    s_load_dwordx2 s[10:11], s[0:1], 72
    s_and_b32 s12, s2, 7
    s_lshr_b32 s13, s2, 3        ; r 0..29
    s_mul_i32 s28, s13, 43
    s_lshr_b32 s28, s28, 8       ; r/6
    s_mul_i32 s14, s28, 6
    s_sub_u32 s13, s13, s14      ; n tile
    s_mul_i32 s12, s12, 5
    s_add_u32 s12, s12, s28      ; pair 0..39
    s_lshr_b32 s28, s12, 3       ; split
    s_and_b32 s12, s12, 7        ; m tile
    s_lshl_b32 s29, s28, 4
    s_add_u32 s29, s29, 1
    s_mov_b32 s30, 16
    s_cmp_lg_u32 s28, 0
    s_cbranch_scc1 G2_SP
    s_mov_b32 s29, 0
    s_mov_b32 s30, 17
    G2_SP:
    v_and_b32 v170, 63, v0
    v_lshrrev_b32 v171, 6, v0
    s_nop 0
    v_readfirstlane_b32 s56, v171
    s_waitcnt lgkmcnt(0)
    s_add_u32 s40, s10, {WS_H}
    s_addc_u32 s41, s11, 0
    s_and_b32 s41, s41, 0xffff
    s_mov_b32 s42, {64*331776}
    s_mov_b32 s43, 0x00020000
    s_mov_b32 s44, s6
    s_and_b32 s45, s7, 0xffff
    s_mov_b32 s46, {F_*D_*2}
    s_mov_b32 s47, 0x00020000
    s_mov_b32 s49, {D_*D_*2}
    s_lshl_b32 s55, s56, 11      ; m0 base within stage buf
    s_cmp_lt_u32 s56, 6
    s_cbranch_scc1 G2_W6
    s_mov_b32 s46, 0
    s_mov_b32 s49, 0
    G2_W6:
    ; X voffset
    s_lshl_b32 s59, s12, 3
    s_add_u32 s59, s59, s56
    s_mul_i32 s58, s59, 331776
    v_lshl_add_u32 v172, v170, 4, s58
    s_lshl_b32 s52, s29, 12      ; X soffset (stage*4096)
    ; W voffset: c = w/2 ; krow = (w&1)*32 + lane/4
    s_and_b32 s58, s56, 1
    s_lshl_b32 s58, s58, 5
    v_lshrrev_b32 v171, 2, v170
    v_add_u32 v171, s58, v171
    v_mul_u32_u24 v171, 1152, v171
    v_and_b32 v173, 3, v170
    v_lshl_add_u32 v171, v173, 4, v171
    s_lshr_b32 s58, s56, 1
    s_lshl_b32 s58, s58, 6
    s_mul_i32 s57, s13, 192
    s_add_u32 s58, s58, s57
    v_add_u32 v174, s58, v171
    v_add_u32 v175, {16*1152}, v174
    s_mul_i32 s53, s29, {64*1152}
    """ + ("""
    s_lshl_b32 s58, s56, 11
    s_mul_i32 s57, s13, 12288
    s_add_u32 s58, s58, s57
    v_lshl_add_u32 v174, v170, 4, s58
    v_add_u32 v175, 1024, v174
    """ if "WLIN" in sys.argv else "") + f"""
    ; tr read addr
    v_lshrrev_b32 v171, 5, v170
    v_bfe_u32 v173, v170, 2, 2
    v_lshl_add_u32 v171, v171, 3, v173
    v_lshlrev_b32 v171, 6, v171
    v_bfe_u32 v173, v170, 4, 1
    v_lshl_add_u32 v171, v173, 5, v171
    v_and_b32 v173, 3, v170
    v_lshl_add_u32 v176, v173, 3, v171
    v_add_u32 v177, 36864, v176
    """)
    for i in range(48): e(f"v_mov_b32 v{i}, 0")
    lab = [0]
    def dma(slot):
        lab[0] += 1
        e(f"""
        s_cmp_lg_u32 s29, 72
        s_cbranch_scc1 G2_NS{lab[0]}
        s_mov_b32 s44, s4
        s_and_b32 s45, s5, 0xffff
        s_mov_b32 s46, s49
        s_mov_b32 s53, 0
        G2_NS{lab[0]}:
        """)
        e(f"s_add_u32 m0, s54, {slot*12288}" if False else f"s_add_u32 m0, s55, {slot*12288}")
        e("s_nop 0")
        e(f"buffer_load_dwordx4 v174, s[44:47], s53 offen lds")
        e(f"s_add_u32 m0, s55, {slot*12288 + 1024}")
        e("s_nop 0")
        e(f"buffer_load_dwordx4 v175, s[44:47], s53 offen lds")
        if "WHOT" not in sys.argv: e(f"s_add_u32 s53, s53, {64*1152}")
        e("s_add_u32 s29, s29, 1")
    def xld(slot):
        for ks in range(4):
            if "NOX2" in sys.argv: continue
            r = XR + 16*slot + 4*ks
            e(f"buffer_load_dwordx4 v[{r}:{r+3}], v172, s[40:43], s52 offen offset:{ks*1024}")
        if "XHOT" not in sys.argv: e("s_add_u32 s52, s52, 4096")
    def reads(slot, ks):
        fs = WF + (ks & 1) * 12
        areg = 176 if slot < 3 else 177
        for c in range(3):
            for h2 in range(2):
                e(f"ds_read_b64_tr_b16 v[{fs+4*c+2*h2}:{fs+4*c+2*h2+1}], v{areg} offset:{(slot%3)*12288 + c*4096 + ks*1024 + h2*256}")
    e("""
    s_cmp_lt_u32 s56, 6
    s_cbranch_scc1 G2_PRO
    s_branch G2_PROB
    G2_PRO:
    """)
    def full(dummy):
        def dm(slot):
            if "NODMA2" in sys.argv: return
            if dummy:
                lab[0] += 1
                e("s_mov_b32 m0, 73728\ns_nop 0")
                e("buffer_load_dwordx4 v174, s[44:47], s53 offen lds")
                e("buffer_load_dwordx4 v175, s[44:47], s53 offen lds")
            else:
                dma(slot)
        tg = "B" if dummy else "A"
        xld(0)
        for v in range(5):
            dm(v); xld(v + 1)
        nd = 0 if "NODMA2" in sys.argv else 2; nx = 0 if "NOX2" in sys.argv else 4
        e(f"s_waitcnt vmcnt({nx+4*(nd+nx)})\ns_barrier")
        reads(0, 0)
        e(f"G2_LOOP{tg}:")
        for u in range(6):
            e(f"s_waitcnt vmcnt({5*(nd+nx)})")
            for ks in range(4):
                if ks == 2:
                    e(f"s_waitcnt vmcnt({nx+3*(nd+nx)})" + ("" if "NOBAR2" in sys.argv else "\ns_barrier"))
                    dm((u + 5) % 6)
                if ks < 3: reads(u, ks + 1)
                else: reads((u + 1) % 6, 0)
                e("s_waitcnt lgkmcnt(6)")
                fs = WF + (ks & 1) * 12
                xr = XR + 16*u + 4*ks
                for c in range(3):
                    if "NOMF2" not in sys.argv: e(f"v_mfma_f32_32x32x16_bf16 v[{16*c}:{16*c+15}], v[{fs+4*c}:{fs+4*c+3}], v[{xr}:{xr+3}], v[{16*c}:{16*c+15}]")
            xld(u)
            e("s_sub_u32 s30, s30, 1\ns_cmp_eq_u32 s30, 0")
            e("s_cbranch_scc1 G2_EPI")
        e(f"s_branch G2_LOOP{tg}")
    full(False)
    e("G2_PROB:")
    full(True)
    e(f"""
    G2_EPI:
    s_waitcnt vmcnt(0) lgkmcnt(0)
    s_nop 15
    s_mul_i32 s29, s28, {S_*D_*2}
    s_add_u32 s29, s29, {WS_P}
    s_add_u32 s60, s10, s29
    s_addc_u32 s61, s11, 0
    s_and_b32 s61, s61, 0xffff
    s_mov_b32 s62, {S_*D_*2}
    s_mov_b32 s63, 0x00020000
    s_lshl_b32 s59, s12, 3
    s_add_u32 s59, s59, s56
    s_mul_i32 s59, s59, 18
    s_mul_i32 s58, s13, 3
    s_add_u32 s59, s59, s58
    s_lshl_b32 s59, s59, 11
    v_lshl_add_u32 v171, v170, 4, s59
    """)
    for c in range(3):
        for hf in range(2):
            t = 48 + 4*(2*c+hf)
            for i in range(4):
                r = 16*c + 8*hf + 2*i
                e(f"v_cvt_pk_bf16_f32 v{t+i}, v{r}, v{r+1}")
            if "NOST2" not in sys.argv: e(f"s_mov_b32 s58, {c*2048}\nbuffer_store_dwordx4 v[{t}:{t+3}], v171, s[60:63], s58 offen offset:{hf*1024}")
    e("s_waitcnt vmcnt(0) lgkmcnt(0)\nG2_END:\ns_endpgm")

def gen_red(e):
    header(e, "red_kernel")
    e(f"""
    s_cmp_ge_u32 s2, 288
    s_cbranch_scc1 RD_END
    s_load_dwordx2 s[4:5], s[0:1], 0
    s_load_dwordx2 s[6:7], s[0:1], 56
    s_load_dwordx2 s[10:11], s[0:1], 72
    s_lshl_b32 s3, s2, 8
    v_add_u32 v1, s3, v0
    v_lshrrev_b32 v2, 6, v1        ; blk
    v_bfe_u32 v3, v1, 1, 5         ; row
    v_and_b32 v4, 1, v1            ; half
    v_lshlrev_b32 v5, 11, v2
    v_lshl_add_u32 v5, v4, 10, v5
    v_lshl_add_u32 v5, v3, 4, v5   ; P offset
    s_mov_b32 s21, 3641
    v_mul_u32_u24 v6, s21, v2
    v_lshrrev_b32 v6, 16, v6       ; mb
    v_mul_u32_u24 v7, 18, v6
    v_sub_u32 v7, v2, v7           ; nb
    v_lshl_add_u32 v6, v6, 5, v3
    v_mul_u32_u24 v6, 1152, v6
    v_lshl_add_u32 v6, v7, 6, v6
    v_lshl_add_u32 v6, v4, 5, v6
    s_waitcnt lgkmcnt(0)
    s_add_u32 s10, s10, {WS_P}
    s_addc_u32 s11, s11, 0
    """)
    srd(e, 12, 4, 5, S_*D_*2); srd(e, 16, 6, 7, S_*D_*2); srd(e, 20, 10, 11, S_*D_*2*NSPLIT)
    e("buffer_load_dwordx4 v[8:11], v6, s[12:15], 0 offen")
    e("buffer_load_dwordx4 v[12:15], v6, s[12:15], 0 offen offset:16")
    for i in range(NSPLIT):
        e(f"s_mov_b32 s24, {i*S_*D_*2}")
        e(f"buffer_load_dwordx4 v[{16+8*i}:{19+8*i}], v5, s[20:23], s24 offen")
        e(f"buffer_load_dwordx4 v[{20+8*i}:{23+8*i}], v5, s[20:23], s24 offen offset:512")
    e(f"s_waitcnt vmcnt({2*NSPLIT})")
    A = 16 + 8*NSPLIT
    for j in range(8):
        e(f"v_lshlrev_b32 v{A+2*j}, 16, v{8+j}\nv_and_b32 v{A+2*j+1}, 0xffff0000, v{8+j}")
    T = A + 16
    for i in range(NSPLIT):
        e(f"s_waitcnt vmcnt({2*(NSPLIT-1-i)})")
        for h in range(2):
            for d in range(4):
                n = 8*(d>>1) + 4*h + 2*(d&1)
                r = 16 + 8*i + 4*h + d
                e(f"v_lshlrev_b32 v{T}, 16, v{r}")
                e(f"v_and_b32 v{T+1}, 0xffff0000, v{r}")
                e(f"v_add_f32 v{A+n}, v{A+n}, v{T}")
                e(f"v_add_f32 v{A+n+1}, v{A+n+1}, v{T+1}")
    for j in range(8):
        e(f"v_cvt_pk_bf16_f32 v{8+j}, v{A+2*j}, v{A+2*j+1}")
    e("buffer_store_dwordx4 v[8:11], v6, s[16:19], 0 offen")
    e("buffer_store_dwordx4 v[12:15], v6, s[16:19], 0 offen offset:16")
    e("RD_END:\ns_endpgm")

def gen_attn(e):
    header(e, "attn_kernel")
    KA = 112; VA = 114; DM = 122
    e(f"""
    s_cmp_ge_u32 s2, 256
    s_cbranch_scc1 AT_END
    s_load_dwordx2 s[10:11], s[0:1], 72
    s_and_b32 s4, s2, 7
    s_lshl_b32 s4, s4, 2
    s_bfe_u32 s5, s2, 0x20003
    s_add_u32 s4, s4, s5          ; head
    s_lshr_b32 s5, s2, 5          ; qblock
    v_and_b32 v127, 63, v0
    v_lshrrev_b32 v16, 6, v0
    s_nop 0
    v_readfirstlane_b32 s56, v16
    v_and_b32 v17, 31, v127      ; l32
    v_lshrrev_b32 v18, 5, v127   ; h
    s_and_b32 s57, s56, 7        ; qt
    s_lshr_b32 s58, s56, 3       ; kh
    s_waitcnt lgkmcnt(0)
    """)
    srd(e, 40, 10, 11, WS_SIZE)
    e(f"""
    s_lshl_b32 s6, s4, 11
    s_lshl_b32 s7, s5, 8
    s_add_u32 s6, s6, s7
    s_lshl_b32 s7, s57, 5
    s_add_u32 s6, s6, s7
    v_add_u32 v19, s6, v17
    v_lshlrev_b32 v19, 6, v19
    v_lshl_add_u32 v19, v18, 4, v19
    v_add_u32 v19, {WS_QP}, v19
    buffer_load_dwordx4 v[64:67], v19, s[40:43], 0 offen
    buffer_load_dwordx4 v[68:71], v19, s[40:43], 0 offen offset:32
    s_lshl_b32 s7, s4, 17
    s_add_u32 s7, s7, {WS_KP}
    s_lshl_b32 s8, s56, 11
    s_add_u32 s7, s7, s8
    v_lshrrev_b32 v20, 2, v127
    v_lshlrev_b32 v20, 6, v20
    v_and_b32 v21, 3, v127
    v_bfe_u32 v22, v127, 4, 2
    v_xor_b32 v21, v21, v22
    v_lshl_add_u32 v20, v21, 4, v20
    v_add_u32 v{DM}, s7, v20
    v_add_u32 v{DM+1}, 1024, v{DM}
    s_lshl_b32 s7, s4, 17
    s_add_u32 s7, s7, {WS_VT}
    s_lshl_b32 s8, s56, 1
    """)
    for j in range(2):
        e(f"""
        s_add_u32 s9, s8, {j}
        s_and_b32 s12, s9, 15
        v_xor_b32 v22, s12, v127
        s_lshl_b32 s9, s9, 12
        s_add_u32 s9, s9, s7
        v_lshl_add_u32 v{DM+2+j}, v22, 4, s9
        """)
    e("""
    v_bfe_u32 v20, v127, 2, 2
    v_lshlrev_b32 v21, 6, v17
    s_lshl_b32 s9, s58, 14
    v_add_u32 v21, s9, v21
    """)
    for ks in range(2):
        e(f"v_or_b32 v22, {2*ks}, v18")
        e("v_xor_b32 v22, v22, v20")
        e(f"v_lshl_add_u32 v{KA+ks}, v22, 4, v21")
    e("v_and_b32 v20, 15, v127\nv_lshlrev_b32 v21, 10, v17\ns_lshl_b32 s9, s58, 9\ns_add_u32 s9, s9, 32768\nv_add_u32 v21, s9, v21")
    for c in range(8):
        e(f"v_or_b32 v22, {2*c}, v18")
        e("v_xor_b32 v22, v22, v20")
        e(f"v_lshl_add_u32 v{VA+c}, v22, 4, v21")
    def dma():
        for j in range(2):
            e(f"s_add_u32 m0, s54, {j*1024}\ns_nop 0")
            e(f"buffer_load_dwordx4 v{DM+j}, s[40:43], s52 offen lds")
        for j in range(2):
            e(f"s_add_u32 m0, s54, {32768 + j*1024}\ns_nop 0")
            e(f"buffer_load_dwordx4 v{DM+2+j}, s[40:43], s53 offen lds")
    KF = [72, 80]; VF = [88, 96]; SB = [16, 32]; P = 104
    def kread(tile):
        kf = KF[tile & 1]
        for ks in range(2):
            e(f"ds_read_b128 v[{kf+4*ks}:{kf+3+4*ks}], v{KA+ks} offset:{tile*2048}")
    def vread(tile):
        vf = VF[tile & 1]
        for c in range(2):
            cc = 2*tile + c
            e(f"ds_read_b128 v[{vf+4*c}:{vf+3+4*c}], v{VA + (cc&7)} offset:{(cc>>3)*256}")
    def smfma(tile):
        kf = KF[tile & 1]; S = SB[tile & 1]
        e(f"v_mfma_f32_32x32x16_bf16 v[{S}:{S+15}], v[{kf}:{kf+3}], v[64:67], v[48:63]")
        e(f"v_mfma_f32_32x32x16_bf16 v[{S}:{S+15}], v[{kf+4}:{kf+7}], v[68:71], v[{S}:{S+15}]")
    AR = [KA, KA+1] + list(range(VA, VA+8))
    def maxchain(S):
        e(f"v_max3_f32 v{P}, v{S}, v{S+1}, v{S+2}")
        for i in range(3, 15, 2):
            e(f"v_max3_f32 v{P}, v{P}, v{S+i}, v{S+i+1}")
        e(f"v_max_f32 v{P}, v{P}, v{S+15}")
    def mainloop(fast, tg):
        e("s_lshl_b32 s54, s56, 11\ns_mov_b32 s52, 0\ns_mov_b32 s53, 0")
        for i in range(16):
            e(f"v_mov_b32 v{i}, 0")
            e(f"v_mov_b32 v{48+i}, 0")
        e("v_mov_b32 v126, 0xff800000\ns_mov_b64 s[34:35], -1")
        dma()
        e(f"s_mov_b32 s30, 0\nAT_LOOP{tg}:")
        e("s_add_u32 s52, s52, 32768\ns_add_u32 s53, s53, 1024\ns_xor_b32 s54, s54, 0x10000")
        dma()
        e("s_waitcnt vmcnt(4)\ns_barrier")
        kread(0); kread(1); vread(0)
        e("s_waitcnt lgkmcnt(4)")
        smfma(0)
        e(f"s_nop 7\ns_mov_b32 s31, 0\nAT_IN{tg}:")
        for tile in range(4):
            S = SB[tile & 1]; vf = VF[tile & 1]
            e("s_waitcnt lgkmcnt(2)")
            smfma(tile + 1)
            kread(tile + 2)
            vread(tile + 1)
            if not fast:
                maxchain(S)
                e(f"v_cmp_lt_f32 vcc, 0x41000000, v{P}")
                e("s_or_b64 vcc, vcc, s[34:35]")
                e(f"s_cbranch_vccnz AT_SLOW{tg}{tile}")
            elif tile == 0:
                e("s_cmp_lg_u32 s34, 0")
                e(f"s_cbranch_scc1 AT_SLOW{tg}{tile}")
            e(f"AT_F{tg}{tile}:")
            for i in range(16):
                e(f"v_exp_f32 v{S+i}, v{S+i}")
            for i in range(8):
                e(f"v_cvt_pk_bf16_f32 v{P+i}, v{S+2*i}, v{S+1+2*i}")
            e("s_waitcnt lgkmcnt(4)\ns_nop 1")
            e(f"v_mfma_f32_32x32x16_bf16 v[0:15], v[{vf}:{vf+3}], v[{P}:{P+3}], v[0:15]")
            e(f"v_mfma_f32_32x32x16_bf16 v[0:15], v[{vf+4}:{vf+7}], v[{P+4}:{P+7}], v[0:15]")
        e(f"v_add_u32 v{KA}, 8192, v{KA}\nv_add_u32 v{KA+1}, 8192, v{KA+1}")
        for r in range(VA, VA+8):
            e(f"v_add_u32 v{r}, 256, v{r}")
        e(f"s_add_u32 s31, s31, 1\ns_cmp_lt_u32 s31, 2\ns_cbranch_scc1 AT_IN{tg}")
        e(f"v_subrev_u32 v{KA}, 16384, v{KA}\nv_subrev_u32 v{KA+1}, 16384, v{KA+1}")
        for r in range(VA, VA+8):
            e(f"v_subrev_u32 v{r}, 512, v{r}")
        for r in AR:
            e(f"v_xor_b32 v{r}, 0x10000, v{r}")
        e("s_waitcnt lgkmcnt(0)\ns_barrier")
        e(f"s_add_u32 s30, s30, 1\ns_cmp_lt_u32 s30, 4\ns_cbranch_scc1 AT_LOOP{tg}")
        e(f"s_branch AT_FIN{tg}")
        for tile in range(4 if not fast else 1):
            S = SB[tile & 1]; S2 = SB[(tile & 1) ^ 1]
            e(f"AT_SLOW{tg}{tile}:")
            if fast: maxchain(S)
            e(f"v_mov_b32 v{P+1}, v{P}\ns_nop 1")
            e(f"v_permlane32_swap_b32 v{P}, v{P+1}")
            e("s_nop 1")
            e(f"v_max3_f32 v{P}, v{P}, v{P+1}, v126")
            e("v_mov_b32 v126, 0\ns_mov_b64 s[34:35], 0")
            e(f"v_exp_f32 v{P+1}, -v{P}")
            e("s_nop 7\ns_nop 7")
            for i in range(16):
                e(f"v_sub_f32 v{S+i}, v{S+i}, v{P}")
                e(f"v_sub_f32 v{48+i}, v{48+i}, v{P}")
                e(f"v_mul_f32 v{i}, v{i}, v{P+1}")
                e(f"v_sub_f32 v{S2+i}, v{S2+i}, v{P}")
            e(f"s_branch AT_F{tg}{tile}")
        e(f"AT_FIN{tg}:\ns_waitcnt vmcnt(0)\ns_nop 15")
    mainloop(True, "A")
    e("""
    s_barrier
    v_mov_b32 v16, 0x71800000
    v_cmp_nlt_f32 vcc, v10, v16
    s_cmp_lg_u64 vcc, 0
    s_cselect_b32 s6, 1, 0
    v_mov_b32 v16, s6
    s_lshl_b32 s6, s56, 2
    s_add_u32 s6, s6, 65536
    v_mov_b32 v17, s6
    ds_write_b32 v17, v16
    v_and_b32 v17, 15, v127
    v_lshlrev_b32 v17, 2, v17
    v_add_u32 v17, 65536, v17
    s_waitcnt lgkmcnt(0)
    s_barrier
    ds_read_b32 v16, v17
    s_waitcnt lgkmcnt(0)
    v_cmp_ne_u32 vcc, 0, v16
    s_cbranch_vccz AT_MERGE
    s_barrier
    """)
    mainloop(False, "B")
    e("AT_MERGE:")
    e("""
    s_lshl_b32 s6, s57, 6
    v_add_u32 v16, s6, v127
    v_lshlrev_b32 v16, 6, v16
    s_barrier
    s_cmp_eq_u32 s58, 0
    s_cbranch_scc1 AT_MRG
    ds_write_b128 v16, v[0:3]
    ds_write_b128 v16, v[4:7] offset:16
    ds_write_b128 v16, v[8:11] offset:32
    ds_write_b32 v16, v48 offset:48
    s_waitcnt lgkmcnt(0)
    s_barrier
    s_branch AT_END
    AT_MRG:
    s_barrier
    ds_read_b128 v[20:23], v16
    ds_read_b128 v[24:27], v16 offset:16
    ds_read_b128 v[28:31], v16 offset:32
    ds_read_b32 v32, v16 offset:48
    s_waitcnt lgkmcnt(0)
    v_min_f32 v33, v48, v32
    v_sub_f32 v34, v33, v48
    v_sub_f32 v35, v33, v32
    v_exp_f32 v34, v34
    v_exp_f32 v35, v35
    s_nop 1
    """)
    for i in range(12):
        e(f"v_mul_f32 v{i}, v{i}, v34")
        e(f"v_fmac_f32 v{i}, v{20+i}, v35")
    e(f"""
    v_and_b32 v17, 31, v127
    v_lshrrev_b32 v18, 5, v127
    v_rcp_f32 v33, v10
    s_lshl_b32 s6, s5, 8
    s_lshl_b32 s7, s57, 5
    s_add_u32 s6, s6, s7
    s_lshr_b32 s6, s6, 5
    s_mul_i32 s6, s6, 331776
    s_add_u32 s6, s6, {WS_H}
    v_lshl_add_u32 v19, v17, 4, s6
    s_mul_i32 s8, s4, 18
    s_add_u32 s8, s8, 4608
    v_lshl_add_u32 v41, v18, 2, s8
    """)
    for i in range(10):
        e(f"v_mul_f32 v{i}, v{i}, v33")
    def oaddr(dst, c):
        e(f"v_add_u32 v{dst}, {c}, v41")
        e(f"v_lshrrev_b32 v46, 3, v{dst}")
        e(f"v_and_b32 v{dst}, 7, v{dst}")
        e(f"v_lshl_add_u32 v{dst}, v{dst}, 1, v19")
        e(f"v_lshl_add_u32 v{dst}, v46, 9, v{dst}")
    for q in range(2):
        e(f"v_cvt_pk_bf16_f32 v{36+2*q}, v{4*q}, v{4*q+1}")
        e(f"v_cvt_pk_bf16_f32 v{37+2*q}, v{4*q+2}, v{4*q+3}")
        oaddr(42+2*q, 8*q); oaddr(43+2*q, 8*q+2)
        e(f"buffer_store_dword v{36+2*q}, v{42+2*q}, s[40:43], 0 offen")
        e(f"buffer_store_dword v{37+2*q}, v{43+2*q}, s[40:43], 0 offen")
    oaddr(47, 16)
    e("""
    v_cvt_pk_bf16_f32 v40, v8, v9
    v_cmp_eq_u32 vcc, 0, v18
    s_and_saveexec_b64 s[24:25], vcc
    s_cbranch_execz AT_SK
    buffer_store_dword v40, v47, s[40:43], 0 offen
    AT_SK:
    s_or_b64 exec, exec, s[24:25]
    AT_END:
    s_endpgm
    """)

def gen_attn8(e, standalone=True):
    if standalone: header(e, "attn_kernel")
    KA = 112; VA = 114; DM = 122
    e(f"""
    s_cmp_ge_u32 s2, 256
    s_cbranch_scc1 AT_END
    s_load_dwordx2 s[10:11], s[0:1], 72
    s_and_b32 s4, s2, 7
    s_lshl_b32 s4, s4, 2
    s_bfe_u32 s5, s2, 0x20003
    s_add_u32 s4, s4, s5          ; head
    s_lshr_b32 s5, s2, 5          ; qblock
    v_and_b32 v127, 63, v0
    v_lshrrev_b32 v16, 6, v0
    s_nop 0
    v_readfirstlane_b32 s56, v16
    v_and_b32 v17, 31, v127      ; l32
    v_lshrrev_b32 v18, 5, v127   ; h
    s_mov_b32 s57, s56           ; qt
    s_waitcnt lgkmcnt(0)
    """)
    srd(e, 40, 10, 11, WS_SIZE)
    e(f"""
    s_lshl_b32 s6, s4, 11
    s_lshl_b32 s7, s5, 8
    s_add_u32 s6, s6, s7
    s_lshl_b32 s7, s57, 5
    s_add_u32 s6, s6, s7
    v_add_u32 v19, s6, v17
    v_lshlrev_b32 v19, 6, v19
    v_lshl_add_u32 v19, v18, 4, v19
    v_add_u32 v19, {WS_QP}, v19
    buffer_load_dwordx4 v[64:67], v19, s[40:43], 0 offen
    buffer_load_dwordx4 v[68:71], v19, s[40:43], 0 offen offset:32
    s_lshl_b32 s7, s4, 17
    s_add_u32 s7, s7, {WS_KP}
    s_lshl_b32 s8, s56, 11
    s_add_u32 s7, s7, s8
    v_lshrrev_b32 v20, 2, v127
    v_lshlrev_b32 v20, 6, v20
    v_and_b32 v21, 3, v127
    v_bfe_u32 v22, v127, 4, 2
    v_xor_b32 v21, v21, v22
    v_lshl_add_u32 v20, v21, 4, v20
    v_add_u32 v{DM}, s7, v20
    v_add_u32 v{DM+1}, 1024, v{DM}
    s_lshl_b32 s7, s4, 17
    s_add_u32 s7, s7, {WS_VT}
    s_lshl_b32 s8, s56, 2
    v_and_b32 v23, 31, v127
    """)
    for j in range(2):
        e(f"""
        s_add_u32 s9, s8, {2*j}
        v_add_u32 v20, s9, v18
        v_and_b32 v21, 15, v20
        v_xor_b32 v21, v21, v23
        v_lshlrev_b32 v20, 12, v20
        v_lshl_add_u32 v20, v21, 4, v20
        v_add_u32 v{DM+2+j}, s7, v20
        """)
    e("""
    v_bfe_u32 v20, v127, 2, 2
    v_lshlrev_b32 v21, 6, v17
    """)
    for ks in range(2):
        e(f"v_or_b32 v22, {2*ks}, v18")
        e("v_xor_b32 v22, v22, v20")
        e(f"v_lshl_add_u32 v{KA+ks}, v22, 4, v21")
    e("v_and_b32 v20, 15, v127\nv_lshlrev_b32 v21, 9, v17\nv_add_u32 v21, 16384, v21")
    for c in range(8):
        e(f"v_or_b32 v22, {2*c}, v18")
        e("v_xor_b32 v22, v22, v20")
        e(f"v_lshl_add_u32 v{VA+c}, v22, 4, v21")
    def dma():
        for j in range(2):
            e(f"s_add_u32 m0, s54, {j*1024}\ns_nop 0")
            e(f"buffer_load_dwordx4 v{DM+j}, s[40:43], s52 offen lds")
        for j in range(2):
            e(f"s_add_u32 m0, s54, {16384 + j*1024}\ns_nop 0")
            e(f"buffer_load_dwordx4 v{DM+2+j}, s[40:43], s53 offen lds")
    KF = [72, 80]; VF = [88, 96]; SB = [16, 32]; P = 104
    def kread(tile):
        kf = KF[tile & 1]
        for ks in range(2):
            e(f"ds_read_b128 v[{kf+4*ks}:{kf+3+4*ks}], v{KA+ks} offset:{tile*2048}")
    def vread(tile):
        vf = VF[tile & 1]
        for c in range(2):
            cc = 2*tile + c
            e(f"ds_read_b128 v[{vf+4*c}:{vf+3+4*c}], v{VA + (cc&7)} offset:{(cc>>3)*256}")
    def smfma(tile):
        kf = KF[tile & 1]; S = SB[tile & 1]
        e(f"v_mfma_f32_32x32x16_bf16 v[{S}:{S+15}], v[{kf}:{kf+3}], v[64:67], v[48:63]")
        e(f"v_mfma_f32_32x32x16_bf16 v[{S}:{S+15}], v[{kf+4}:{kf+7}], v[68:71], v[{S}:{S+15}]")
    AR = [KA, KA+1] + list(range(VA, VA+8))
    def maxchain(S):
        e(f"v_max3_f32 v{P}, v{S}, v{S+1}, v{S+2}")
        for i in range(3, 15, 2):
            e(f"v_max3_f32 v{P}, v{P}, v{S+i}, v{S+i+1}")
        e(f"v_max_f32 v{P}, v{P}, v{S+15}")
    def mainloop(fast, tg):
        e("s_lshl_b32 s54, s56, 11\ns_mov_b32 s52, 0\ns_mov_b32 s53, 0")
        for i in range(16):
            e(f"v_mov_b32 v{i}, 0")
            e(f"v_mov_b32 v{48+i}, 0")
        e("v_mov_b32 v126, 0xff800000\ns_mov_b64 s[34:35], -1")
        dma()
        e(f"s_mov_b32 s30, 0\nAT_LOOP{tg}:")
        e("s_add_u32 s52, s52, 16384\ns_add_u32 s53, s53, 512\ns_xor_b32 s54, s54, 0x8000")
        dma()
        e("s_waitcnt vmcnt(4)\ns_barrier")
        kread(0); kread(1); vread(0)
        e("s_waitcnt lgkmcnt(4)")
        smfma(0)
        e(f"s_nop 7\ns_mov_b32 s31, 0\nAT_IN{tg}:")
        for tile in range(4):
            S = SB[tile & 1]; vf = VF[tile & 1]
            e("s_waitcnt lgkmcnt(2)")
            smfma(tile + 1)
            kread(tile + 2)
            vread(tile + 1)
            if not fast:
                maxchain(S)
                e(f"v_cmp_lt_f32 vcc, 0x41000000, v{P}")
                e("s_or_b64 vcc, vcc, s[34:35]")
                e(f"s_cbranch_vccnz AT_SLOW{tg}{tile}")
            elif tile == 0:
                e("s_cmp_lg_u32 s34, 0")
                e(f"s_cbranch_scc1 AT_SLOW{tg}{tile}")
            e(f"AT_F{tg}{tile}:")
            for i in range(16):
                e(f"v_exp_f32 v{S+i}, v{S+i}")
            for i in range(8):
                e(f"v_cvt_pk_bf16_f32 v{P+i}, v{S+2*i}, v{S+1+2*i}")
            e("s_waitcnt lgkmcnt(4)\ns_nop 1")
            e(f"v_mfma_f32_32x32x16_bf16 v[0:15], v[{vf}:{vf+3}], v[{P}:{P+3}], v[0:15]")
            e(f"v_mfma_f32_32x32x16_bf16 v[0:15], v[{vf+4}:{vf+7}], v[{P+4}:{P+7}], v[0:15]")
        e(f"v_add_u32 v{KA}, 8192, v{KA}\nv_add_u32 v{KA+1}, 8192, v{KA+1}")
        for r in range(VA, VA+8):
            e(f"v_add_u32 v{r}, 256, v{r}")
        e(f"s_add_u32 s31, s31, 1\ns_cmp_lt_u32 s31, 2\ns_cbranch_scc1 AT_IN{tg}")
        e(f"v_subrev_u32 v{KA}, 16384, v{KA}\nv_subrev_u32 v{KA+1}, 16384, v{KA+1}")
        for r in range(VA, VA+8):
            e(f"v_subrev_u32 v{r}, 512, v{r}")
        for r in AR:
            e(f"v_xor_b32 v{r}, 0x8000, v{r}")
        e("s_waitcnt lgkmcnt(0)\ns_barrier")
        e(f"s_add_u32 s30, s30, 1\ns_cmp_lt_u32 s30, 8\ns_cbranch_scc1 AT_LOOP{tg}")
        e(f"s_branch AT_FIN{tg}")
        for tile in range(4 if not fast else 1):
            S = SB[tile & 1]; S2 = SB[(tile & 1) ^ 1]
            e(f"AT_SLOW{tg}{tile}:")
            if fast: maxchain(S)
            e(f"v_mov_b32 v{P+1}, v{P}\ns_nop 1")
            e(f"v_permlane32_swap_b32 v{P}, v{P+1}")
            e("s_nop 1")
            e(f"v_max3_f32 v{P}, v{P}, v{P+1}, v126")
            e("v_mov_b32 v126, 0\ns_mov_b64 s[34:35], 0")
            e(f"v_exp_f32 v{P+1}, -v{P}")
            e("s_nop 7\ns_nop 7")
            for i in range(16):
                e(f"v_sub_f32 v{S+i}, v{S+i}, v{P}")
                e(f"v_sub_f32 v{48+i}, v{48+i}, v{P}")
                e(f"v_mul_f32 v{i}, v{i}, v{P+1}")
                e(f"v_sub_f32 v{S2+i}, v{S2+i}, v{P}")
            e(f"s_branch AT_F{tg}{tile}")
        e(f"AT_FIN{tg}:\ns_waitcnt vmcnt(0)\ns_nop 15")
    mainloop(True, "A")
    e("""
    s_barrier
    v_mov_b32 v16, 0x71800000
    v_cmp_nlt_f32 vcc, v10, v16
    s_cmp_lg_u64 vcc, 0
    s_cselect_b32 s6, 1, 0
    v_mov_b32 v16, s6
    s_lshl_b32 s6, s56, 2
    s_add_u32 s6, s6, 65536
    v_mov_b32 v17, s6
    ds_write_b32 v17, v16
    v_and_b32 v17, 7, v127
    v_lshlrev_b32 v17, 2, v17
    v_add_u32 v17, 65536, v17
    s_waitcnt lgkmcnt(0)
    s_barrier
    ds_read_b32 v16, v17
    s_waitcnt lgkmcnt(0)
    v_cmp_ne_u32 vcc, 0, v16
    s_cbranch_vccz AT_MERGE
    s_barrier
    """)
    mainloop(False, "B")
    e("AT_MERGE:")
    e(f"""
    v_and_b32 v17, 31, v127
    v_lshrrev_b32 v18, 5, v127
    v_rcp_f32 v33, v10
    s_lshl_b32 s6, s5, 8
    s_lshl_b32 s7, s57, 5
    s_add_u32 s6, s6, s7
    s_lshr_b32 s6, s6, 5
    s_mul_i32 s6, s6, 331776
    s_add_u32 s6, s6, {WS_H}
    v_lshl_add_u32 v19, v17, 4, s6
    s_mul_i32 s8, s4, 18
    s_add_u32 s8, s8, 4608
    v_lshl_add_u32 v41, v18, 2, s8
    """)
    for i in range(10):
        e(f"v_mul_f32 v{i}, v{i}, v33")
    def oaddr(dst, c):
        e(f"v_add_u32 v{dst}, {c}, v41")
        e(f"v_lshrrev_b32 v46, 3, v{dst}")
        e(f"v_and_b32 v{dst}, 7, v{dst}")
        e(f"v_lshl_add_u32 v{dst}, v{dst}, 1, v19")
        e(f"v_lshl_add_u32 v{dst}, v46, 9, v{dst}")
    for q in range(2):
        e(f"v_cvt_pk_bf16_f32 v{36+2*q}, v{4*q}, v{4*q+1}")
        e(f"v_cvt_pk_bf16_f32 v{37+2*q}, v{4*q+2}, v{4*q+3}")
        oaddr(42+2*q, 8*q); oaddr(43+2*q, 8*q+2)
        e(f"buffer_store_dword v{36+2*q}, v{42+2*q}, s[40:43], 0 offen")
        e(f"buffer_store_dword v{37+2*q}, v{43+2*q}, s[40:43], 0 offen")
    oaddr(47, 16)
    e("""
    v_cvt_pk_bf16_f32 v40, v8, v9
    v_cmp_eq_u32 vcc, 0, v18
    s_and_saveexec_b64 s[24:25], vcc
    s_cbranch_execz AT_SK
    buffer_store_dword v40, v47, s[40:43], 0 offen
    AT_SK:
    s_or_b64 exec, exec, s[24:25]
    AT_END:
    s_endpgm
    """)

def main():
    e = E()
    hdr = open("parallel_sum__mha_block__glu_gated_swiglu__prompt.s.ref").read().split("; Override")[0]
    txt = hdr
    txt += "; @launch kernel=ln_kernel grid=(704,1,1) block=(256,1,1) lds=0\n"
    txt += f"; @launch kernel=gemm1_kernel grid=(256,1,1) block=(512,1,1) lds=163840\n"
    txt += "; @launch kernel=attn_kernel grid=(256,1,1) block=(512,1,1) lds=66560\n"
    txt += "; @launch kernel=gemm2_kernel grid=(240,1,1) block=(512,1,1) lds=77824\n"
    txt += "; @launch kernel=red_kernel grid=(288,1,1) block=(256,1,1) lds=0\n"
    txt += '.amdgcn_target "amdgcn-amd-amdhsa--gfx950"\n.text\n'
    gen_ln(e); gen_gemm1(e); gen_attn8(e); gen_gemm2(e); gen_red(e)
    txt += e.text()
    txt += kd("ln_kernel", 80) + kd("gemm1_kernel", 256) + kd("attn_kernel", 128) + kd("gemm2_kernel", 180) + kd("red_kernel", 80)
    open(OUT, "w").write(txt)
    print("wrote", len(txt))
main()
```

```python
import sys
OUT = "parallel_sum__mha_block__glu_gated_swiglu__prompt.s" if len(sys.argv)<2 else "var_"+sys.argv[1]+".s"

MB = 1 << 20
WS_XN = 0
WS_QP = 4 * MB
WS_KP = 8 * MB
WS_VT = 12 * MB
WS_H = 16 * MB
WS_O = 40 * MB
WS_SIZE = 268435456
WS_CNT = 47 * MB

S_, D_, F_, H_ = 2048, 576, 4608, 32
LOG2E = 1.4426950408889634
QSCALE = LOG2E * (18 ** -0.5)

import struct
def f2u(x):
    return struct.unpack("<I", struct.pack("<f", x))[0]

class E:
    def __init__(self):
        self.l = []
    def __call__(self, s):
        for ln in s.strip("\n").split("\n"):
            self.l.append("  " + ln.strip() if not ln.strip().endswith(":") else ln.strip())
    def text(self):
        return "\n".join(self.l) + "\n"

def srd(e, d, base_lo, base_hi, nbytes):
    e(f"s_mov_b32 s{d}, s{base_lo}")
    e(f"s_and_b32 s{d+1}, s{base_hi}, 0xffff")
    e(f"s_mov_b32 s{d+2}, {nbytes}")
    e(f"s_mov_b32 s{d+3}, 0x00020000")

def header(e, name):
    e(f".globl {name}\n.p2align 8\n.type {name},@function\n{name}:")

def kd(name, vgpr, sgpr=102):
    acc = (vgpr + 3) // 4 * 4
    return f""".section .rodata,"a"
.p2align 6
.amdhsa_kernel {name}
  .amdhsa_next_free_vgpr {vgpr}
  .amdhsa_next_free_sgpr {sgpr}
  .amdhsa_accum_offset {acc}
  .amdhsa_group_segment_fixed_size 0
  .amdhsa_kernarg_size 80
  .amdhsa_user_sgpr_count 2
  .amdhsa_user_sgpr_kernarg_segment_ptr 1
  .amdhsa_system_sgpr_workgroup_id_x 1
.end_amdhsa_kernel
"""

def gen_ln(e):
    header(e, "ln_kernel")
    PF = ((28, D_*F_*2), (30, D_*F_*2), (26, D_*1728*2))
    def prefetch():
        if "PF" not in sys.argv: return
        for n_, (lo, nb) in enumerate(PF):
            srd(e, 32, lo, lo+1, nb)
            e(f"buffer_load_dword v{71+n_}, v70, s[32:35], 0 offen")
    e("""
    s_cmp_ge_u32 s2, 704
    s_cbranch_scc1 LN_END
    s_load_dwordx2 s[4:5], s[0:1], 0
    s_load_dwordx2 s[6:7], s[0:1], 72
    s_load_dwordx2 s[26:27], s[0:1], 8
    s_load_dwordx2 s[28:29], s[0:1], 32
    s_load_dwordx2 s[30:31], s[0:1], 40
    s_lshl_b32 s3, s2, 8
    v_add_u32 v1, s3, v0
    v_lshlrev_b32 v70, 5, v1
    v_lshrrev_b32 v2, 5, v1
    v_and_b32 v3, 31, v1
    s_movk_i32 s20, 1152
    v_mul_lo_u32 v4, v2, s20
    v_lshl_add_u32 v4, v3, 2, v4
    s_waitcnt lgkmcnt(0)
    """)
    srd(e, 12, 6, 7, WS_SIZE)
    e("s_cmp_lt_u32 s2, 256\ns_cbranch_scc1 LN_MAIN")
    e(f"""
    s_cmp_lg_u32 s2, 256
    s_cbranch_scc1 LN_NZ
    v_lshlrev_b32 v60, 2, v0
    v_add_u32 v60, {WS_CNT}, v60
    v_mov_b32 v61, 0
    buffer_store_dword v61, v60, s[12:15], 0 offen
    LN_NZ:
    """)
    prefetch()
    magic = -(-(1 << 32) // 3584)
    e(f"""
    v_subrev_u32 v30, 65536, v1
    s_mov_b32 s21, {magic}
    v_mul_hi_u32 v31, v30, s21
    s_movk_i32 s21, 3584
    v_mul_lo_u32 v32, v31, s21
    v_sub_u32 v32, v30, v32
    v_lshrrev_b32 v33, 8, v32
    v_and_b32 v34, 255, v32
    v_add_u32 v33, 18, v33
    v_lshl_add_u32 v35, v31, 5, v33
    v_lshlrev_b32 v35, 12, v35
    v_lshl_add_u32 v35, v34, 4, v35
    v_add_u32 v35, {WS_VT}, v35
    v_cmp_eq_u32 vcc, 18, v33
    v_cmp_eq_u32 s[22:23], 22, v33
    s_or_b64 vcc, vcc, s[22:23]
    v_mov_b32 v36, 0x3f803f80
    s_nop 1
    v_cndmask_b32 v44, 0, v36, vcc
    v_mov_b32 v45, v44
    v_mov_b32 v46, v44
    v_mov_b32 v47, v44
    v_cmp_gt_u32 vcc, 114688, v30
    s_and_saveexec_b64 s[24:25], vcc
    s_cbranch_execz LN_END
    buffer_store_dwordx4 v[44:47], v35, s[12:15], 0 offen
    s_branch LN_END
    LN_MAIN:
    """)
    srd(e, 8, 4, 5, S_ * D_ * 2)
    for i in range(9):
        e(f"buffer_load_dword v{10+i}, v4, s[8:11], 0 offen offset:{128*i}")
    prefetch()
    e(f"s_waitcnt vmcnt({0 if 'PF' not in sys.argv else len(PF)})")
    for i in range(9):
        e(f"v_lshlrev_b32 v{50+2*i}, 16, v{10+i}")
        e(f"v_and_b32 v{51+2*i}, 0xffff0000, v{10+i}")
    e("v_add_f32 v20, v50, v51")
    for i in range(2, 18):
        e(f"v_add_f32 v20, v20, v{50+i}")
    def red(v):
        for x in (1, 2, 4, 8, 16):
            e(f"ds_swizzle_b32 v21, v{v} offset:{(x<<10)|0x1f}")
            e("s_waitcnt lgkmcnt(0)")
            e(f"v_add_f32 v{v}, v{v}, v21")
    red(20)
    e(f"v_mul_f32 v20, {hex(f2u(1.0/576))}, v20")
    for i in range(18):
        e(f"v_sub_f32 v{50+i}, v{50+i}, v20")
    e("v_mul_f32 v22, v50, v50")
    for i in range(1, 18):
        e(f"v_fmac_f32 v22, v{50+i}, v{50+i}")
    red(22)
    e(f"v_mov_b32 v23, {hex(f2u(1e-5))}")
    e(f"v_fmac_f32 v23, {hex(f2u(1.0/576))}, v22")
    e("v_rsq_f32 v23, v23")
    e("s_nop 1")
    for i in range(18):
        e(f"v_mul_f32 v{50+i}, v{50+i}, v23")
    for i in range(9):
        e(f"v_cvt_pk_bf16_f32 v{10+i}, v{50+2*i}, v{51+2*i}")
    e("""
    v_lshrrev_b32 v5, 5, v2
    v_mul_u32_u24 v5, 36864, v5
    v_and_b32 v6, 31, v2
    v_lshl_add_u32 v5, v6, 4, v5
    v_lshrrev_b32 v6, 3, v3
    v_lshl_add_u32 v5, v6, 10, v5
    v_bfe_u32 v6, v3, 2, 1
    v_lshl_add_u32 v5, v6, 9, v5
    v_and_b32 v6, 3, v3
    v_lshl_add_u32 v5, v6, 2, v5
    """)
    for i in range(9):
        e(f"s_mov_b32 s20, {4096*i}")
        e(f"buffer_store_dword v{10+i}, v5, s[12:15], s20 offen")
    e("LN_END:\ns_endpgm")

ACC = 0
def acc(p, t):
    b = ACC + p * 32 + t * 16
    return f"v[{b}:{b+15}]"

def gemm_dma(e, buf):
    if "NODMA" in sys.argv: return
    sb = buf * 16384
    for i in range(2):
        e(f"s_add_u32 m0, s54, {sb + i*1024}")
        e("s_nop 0")
        e(f"buffer_load_dwordx4 v{96+i}, s[40:43], s52 offen lds")
    for p in range(2):
        e(f"s_add_u32 m0, s55, {sb + p*4096}")
        e("s_nop 0")
        e(f"buffer_load_dwordx4 v100, s[{44+4*p}:{47+4*p}], s53 offen lds")

def gemm_reads(e, buf, ks):
    fs = 64 + (ks & 1) * 16
    sb = buf * 16384
    for p in range(2):
        for h2 in range(2):
            e(f"ds_read_b64_tr_b16 v[{fs+4*p+2*h2}:{fs+4*p+2*h2+1}], v106 offset:{sb + p*4096 + ks*2048 + h2*512}")
    for t in range(2):
        e(f"ds_read_b128 v[{fs+8+4*t}:{fs+11+4*t}], v{102+ks} offset:{sb + t*2048}")

SWAP = [False]
def gemm_compute(e, buf):
    gemm_reads(e, buf, 0)
    for ks in range(2):
        if ks < 1:
            gemm_reads(e, buf, ks + 1)
            e("s_waitcnt lgkmcnt(6)")
        else:
            e("s_waitcnt lgkmcnt(0)")
        fs = 64 + (ks & 1) * 16
        for p in range(2):
            for t in range(2):
                wfr = f"v[{fs+4*p}:{fs+4*p+3}]"; xfr = f"v[{fs+8+4*t}:{fs+11+4*t}]"
                if SWAP[0]: wfr, xfr = xfr, wfr
                if "NOMF" not in sys.argv: e(f"v_mfma_f32_32x32x16_bf16 {acc(p,t)}, {wfr}, {xfr}, {acc(p,t)}")

def gemm_setup_common(e, m0_sreg):
    e("""
    v_and_b32 v107, 63, v0
    v_lshrrev_b32 v108, 6, v0
    s_nop 0
    v_readfirstlane_b32 s56, v108
    """)
    for i in range(64):
        e(f"v_mov_b32 v{i}, 0")
    e("""
    s_lshr_b32 s57, s56, 1
    s_and_b32 s58, s56, 1
    v_and_b32 v108, 31, v107
    v_lshrrev_b32 v109, 5, v107
    v_bfe_u32 v110, v107, 2, 2
    s_lshl_b32 s59, s57, 12
    v_lshlrev_b32 v111, 6, v108
    v_add_u32 v111, s59, v111
    """)
    for ks in range(2):
        e(f"v_or_b32 v112, {2*ks}, v109")
        e("v_xor_b32 v112, v112, v110")
        e(f"v_lshl_add_u32 v{102+ks}, v112, 4, v111")
    e("""
    v_bfe_u32 v108, v107, 2, 2
    v_lshl_add_u32 v108, v109, 3, v108
    v_lshlrev_b32 v108, 7, v108
    v_bfe_u32 v110, v107, 3, 1
    v_xor_b32 v110, s58, v110
    v_lshl_add_u32 v108, v110, 6, v108
    v_bfe_u32 v110, v107, 4, 1
    v_lshl_add_u32 v108, v110, 5, v108
    v_and_b32 v110, 3, v107
    v_lshl_add_u32 v108, v110, 3, v108
    v_add_u32 v106, 8192, v108
    s_lshl_b32 s54, s56, 11
    s_lshl_b32 s55, s56, 10
    s_add_u32 s55, s55, 8192
    """)

def gemm_setup_x(e, m0_sreg, stride_sreg):
    e(f"""
    s_lshl_b32 s59, s56, 5
    s_add_u32 s59, s59, s{m0_sreg}
    v_lshrrev_b32 v108, 2, v107
    v_add_u32 v108, s59, v108
    v_and_b32 v109, 3, v107
    v_bfe_u32 v110, v107, 4, 2
    v_xor_b32 v112, v109, v110
    """)
    for i in range(2):
        e(f"v_add_u32 v111, {16*i}, v108")
        e(f"v_mul_lo_u32 v111, v111, s{stride_sreg}")
        e(f"v_lshl_add_u32 v{96+i}, v112, 4, v111")

def gemm_setup_w(e, ncol_sreg, stride_sreg):
    e(f"""
    s_lshl_b32 s59, s56, 3
    v_lshrrev_b32 v108, 3, v107
    v_add_u32 v108, s59, v108
    v_and_b32 v109, 7, v107
    v_bfe_u32 v110, v107, 4, 1
    v_lshlrev_b32 v110, 2, v110
    v_xor_b32 v109, v109, v110
    v_lshlrev_b32 v109, 4, v109
    s_lshl_b32 s59, s{ncol_sreg}, 1
    v_add_u32 v109, s59, v109
    v_mul_lo_u32 v111, v108, s{stride_sreg}
    v_add_u32 v100, v111, v109
    """)

def gemm_stage(e, s, nst, adv):
    buf = s & 1
    if s + 1 < nst:
        adv(e)
        gemm_dma(e, buf ^ 1)
        e("s_waitcnt vmcnt(4)")
    else:
        e("s_waitcnt vmcnt(0)")
    e("s_barrier")
    gemm_compute(e, buf)
    e("s_barrier")

def gen_gemm1(e):
    XR = 64; WF = 208; T = WF
    FL = sys.argv
    header(e, "gemm1_kernel")
    e(f"""
    s_cmp_ge_u32 s2, 256
    s_cbranch_scc1 G1_END
    s_load_dwordx2 s[4:5], s[0:1], 8
    s_load_dwordx2 s[6:7], s[0:1], 32
    s_load_dwordx2 s[8:9], s[0:1], 40
    s_load_dwordx2 s[10:11], s[0:1], 72
    s_bfe_u32 s12, s2, 0x30003
    s_lshl_b32 s12, s12, 8
    s_lshr_b32 s13, s2, 6
    s_lshl_b32 s13, s13, 3
    s_and_b32 s14, s2, 7
    s_add_u32 s14, s13, s14      ; group 0..31
    v_and_b32 v245, 63, v0
    v_lshrrev_b32 v246, 6, v0
    s_nop 0
    v_readfirstlane_b32 s56, v246
    v_and_b32 v246, 31, v245
    v_lshrrev_b32 v247, 5, v245
    s_waitcnt lgkmcnt(0)
    """)
    srd(e, 40, 10, 11, S_ * D_ * 2)
    srd(e, 60, 10, 11, WS_SIZE)
    e("""
    v_bfe_u32 v248, v245, 2, 2
    v_lshl_add_u32 v248, v247, 3, v248
    v_lshlrev_b32 v248, 7, v248
    v_bfe_u32 v249, v245, 4, 1
    v_lshl_add_u32 v248, v249, 5, v248
    v_and_b32 v249, 3, v245
    v_lshl_add_u32 v248, v249, 3, v248
    v_bfe_u32 v249, v245, 3, 1
    v_lshl_add_u32 v242, v249, 6, v248
    v_xor_b32 v249, 1, v249
    v_lshl_add_u32 v243, v249, 6, v248
    v_add_u32 v252, 0x10000, v242
    v_add_u32 v253, 0x10000, v243
    v_add_u32 v254, 0x20000, v242
    v_add_u32 v255, 0x20000, v243
    s_lshl_b32 s55, s56, 10
    s_lshr_b32 s59, s12, 5
    s_add_u32 s59, s59, s56
    s_mul_i32 s59, s59, 36864
    v_lshl_add_u32 v244, v245, 4, s59
    """)
    def xload(kk):
        if "NOX1" in FL: return
        e(f"s_mov_b32 s59, {1024*kk}")
        e(f"buffer_load_dwordx4 v[{XR+4*kk}:{XR+4*kk+3}], v244, s[40:43], s59 offen")
    def voffw():
        e(f"""
        s_lshl_b32 s17, s16, 6
        s_lshl_b32 s59, s56, 3
        v_lshrrev_b32 v248, 3, v245
        v_add_u32 v248, s59, v248
        v_and_b32 v249, 7, v245
        v_bfe_u32 v250, v245, 4, 1
        v_lshlrev_b32 v250, 2, v250
        v_xor_b32 v249, v249, v250
        v_lshlrev_b32 v249, 4, v249
        s_lshl_b32 s59, s15, 1
        v_add_u32 v249, s59, v249
        v_mul_lo_u32 v250, v248, s16
        v_add_u32 v240, v250, v249
        s_mov_b32 s53, 0
        s_nop 4
        """)
    def dma(buf):
        for p in range(2):
            if "NODMA1" in FL: continue
            e(f"s_add_u32 m0, s55, {buf*16384 + p*8192}")
            e("s_nop 0")
            e(f"buffer_load_dwordx4 v240, s[{44+4*p}:{47+4*p}], s53 offen lds")
        e("s_add_u32 s53, s53, s17")
    def reads(buf, ks):
        fs = WF + (ks & 1) * 16
        for j in range(4):
            p, sub = j >> 1, j & 1
            for h2 in range(2):
                areg = (242, 252, 254)[buf // 4] + sub
                e(f"ds_read_b64_tr_b16 v[{fs+4*j+2*h2}:{fs+4*j+2*h2+1}], v{areg} offset:{(buf%4)*16384 + p*8192 + ks*2048 + h2*512}")
    def mfmas(st, ks, swap):
        if "NOMF1" in FL: return
        fs = WF + (ks & 1) * 16
        kk = 4 * st + ks
        for j in range(4):
            wfr = f"v[{fs+4*j}:{fs+4*j+3}]"; xfr = f"v[{XR+4*kk}:{XR+4*kk+3}]"
            if swap: wfr, xfr = xfr, wfr
            c = "0" if (st == 0 and ks == 0) else f"v[{16*j}:{16*j+15}]"
            e(f"v_mfma_f32_32x32x16_bf16 v[{16*j}:{16*j+15}], {wfr}, {xfr}, {c}")
    def body(swap, sync):
        reads(0, 0)
        for st in range(9):
            for ks in range(4):
                if ks == 2 and st < 8: sync(st)
                if ks < 3: reads(st, ks + 1)
                elif st < 8: reads(st + 1, 0)
                e("s_waitcnt lgkmcnt(8)" if (ks < 3 or st < 8) else "s_waitcnt lgkmcnt(0)")
                mfmas(st, ks, swap)
        e("s_barrier")
        e("s_nop 15")
    e("s_cmp_ge_u32 s14, 8\ns_cbranch_scc1 " + ("G1_END" if "NOF" in FL else "G1_FFN"))
    if "NOQ" in FL: e("s_branch G1_END")
    e("""
    s_lshl_b32 s13, s14, 1       ; tile
    s_add_u32 s19, s13, 2
    s_min_u32 s19, s19, 15
    s_mov_b32 s30, 0
    s_lshl_b32 s57, s56, 14
    """)
    srd(e, 44, 4, 5, D_ * 1728 * 2)
    e(f"""
    s_add_u32 s48, s4, 128
    s_addc_u32 s49, s5, 0
    s_and_b32 s49, s49, 0xffff
    s_mov_b32 s50, {D_*1728*2-128}
    s_mov_b32 s51, 0x00020000
    G1_QT:
    s_mul_i32 s22, s13, 13
    s_lshr_b32 s22, s22, 6       ; mat
    s_mul_i32 s23, s22, 5
    s_sub_u32 s23, s13, s23      ; t'
    s_mul_i32 s15, s22, 576
    s_mul_i32 s59, s23, 126
    s_add_u32 s15, s15, s59      ; col0
    s_mul_i32 s24, s23, 7        ; head0
    s_movk_i32 s16, 3456
    """)
    voffw()
    for b_ in range(9): dma(b_)
    e("s_cmp_lg_u32 s30, 0\ns_cbranch_scc1 G1_QNX")
    for kk in range(36): xload(kk)
    e("""
    s_mov_b32 s30, 1
    G1_QNX:
    s_waitcnt vmcnt(0)
    s_barrier
    s_cmp_ge_u32 s22, 2
    s_cbranch_scc1 G1_QV
    """)
    nos = lambda s_: None
    body(False, nos)
    e(f"""
    s_mov_b32 s20, {hex(f2u(QSCALE))}
    s_cmp_eq_u32 s22, 0
    s_cselect_b32 s20, s20, 1.0
    v_lshl_add_u32 v248, v246, 6, s57
    v_bfe_u32 v249, v246, 1, 2
    v_lshlrev_b32 v249, 4, v249
    """)
    cnt = 0
    for j in range(4):
        for q in range(4):
            for jj in (0, 2):
                n0 = 32*j + 8*q + jj; n1 = n0 + 4
                o0 = (n0//18)*2048 + (n0%18)*2; o1 = (n1//18)*2048 + (n1%18)*2
                t = T + 4*(cnt % 4); cnt += 1
                r = 16*j + 4*q + jj
                e(f"v_mul_u32_u24 v{t}, {o1-o0}, v247")
                e(f"v_mul_f32 v{t+1}, s20, v{r}")
                e(f"v_mul_f32 v{t+2}, s20, v{r+1}")
                e(f"v_add_u32 v{t}, {o0}, v{t}")
                e(f"v_xor_b32 v{t}, v{t}, v249")
                e(f"v_cvt_pk_bf16_f32 v{t+1}, v{t+1}, v{t+2}")
                e(f"v_add_u32 v{t}, v{t}, v248")
                e(f"ds_write_b32 v{t}, v{t+1}")
    e(f"""
    v_lshrrev_b32 v248, 2, v245
    v_and_b32 v249, 3, v245
    v_bfe_u32 v250, v245, 3, 2
    v_xor_b32 v250, v250, v249
    v_lshlrev_b32 v250, 4, v250
    v_lshl_add_u32 v250, v248, 6, v250
    v_add_u32 v250, s57, v250
    v_cmp_gt_u32 vcc, 3, v249
    v_cndmask_b32 v251, 0, -1, vcc
    v_cmp_gt_u32 vcc, 2, v249
    v_cndmask_b32 v241, 0, -1, vcc
    s_lshl_b32 s59, s56, 5
    s_add_u32 s59, s59, s12
    v_add_u32 v248, s59, v248
    v_lshlrev_b32 v248, 6, v248
    v_lshl_add_u32 v248, v249, 4, v248
    s_lshl_b32 s59, s22, 22
    s_add_u32 s59, s59, {WS_QP}
    s_lshl_b32 s25, s24, 17
    s_add_u32 s59, s59, s25
    v_add_u32 v248, s59, v248
    s_waitcnt lgkmcnt(0)
    """)
    for b0 in range(0, 14, 4):
        rs = list(range(b0, min(b0+4, 14)))
        if b0 == 8: e("s_cmp_eq_u32 s23, 4\ns_cbranch_scc1 G1_QNEXT")
        for i in rs:
            t = T + 4*(i % 4)
            e(f"ds_read_b128 v[{t}:{t+3}], v250 offset:{i*1024}")
        for i in rs:
            t = T + 4*(i % 4)
            e(f"s_waitcnt lgkmcnt({rs[-1]-i})")
            e(f"v_and_b32 v{t}, v{t}, v251")
            for k_ in range(1, 4): e(f"v_and_b32 v{t+k_}, v{t+k_}, v241")
            e(f"s_mov_b32 s59, {(i//2)*131072 + (i%2)*1024}")
            e(f"buffer_store_dwordx4 v[{t}:{t+3}], v248, s[60:63], s59 offen")
    e("s_branch G1_QNEXT\nG1_QV:")
    body(True, nos)
    e(f"""
    v_bfe_u32 v249, v246, 1, 2
    v_xor_b32 v250, v249, v247
    v_lshlrev_b32 v250, 4, v250
    v_lshl_add_u32 v250, v246, 6, v250
    v_add_u32 v250, s57, v250
    v_or_b32 v251, 2, v247
    v_xor_b32 v251, v249, v251
    v_lshlrev_b32 v251, 4, v251
    v_lshl_add_u32 v251, v246, 6, v251
    v_add_u32 v251, s57, v251
    """)
    cnt = 0
    for j in range(4):
        for q in range(4):
            r = 16*j + 4*q
            t = T + 2*(cnt % 8); cnt += 1
            e(f"v_cvt_pk_bf16_f32 v{t}, v{r}, v{r+1}")
            e(f"v_cvt_pk_bf16_f32 v{t+1}, v{r+2}, v{r+3}")
            e(f"ds_write_b64 v{250 + (q>>1)}, v[{t}:{t+1}] offset:{j*2048 + 8*(q&1)}")
    e(f"""
    v_lshrrev_b32 v248, 2, v245
    v_and_b32 v249, 3, v245
    v_bfe_u32 v250, v245, 3, 2
    v_xor_b32 v250, v250, v249
    v_lshlrev_b32 v250, 4, v250
    v_lshl_add_u32 v250, v248, 6, v250
    v_add_u32 v250, s57, v250
    s_lshl_b32 s59, s56, 5
    s_add_u32 s59, s59, s12
    s_lshl_b32 s59, s59, 1
    s_add_u32 s59, s59, {WS_VT}
    s_lshl_b32 s25, s24, 17
    s_add_u32 s59, s59, s25
    v_lshl_add_u32 v249, v249, 4, s59
    s_movk_i32 s21, 3641
    s_movk_i32 s25, 126
    s_cmp_eq_u32 s23, 4
    s_cselect_b32 s25, 72, s25
    s_waitcnt lgkmcnt(0)
    """)
    for b0 in (0, 4):
        rs = list(range(b0, b0+4))
        for i in rs:
            t = T + 4*(i % 4)
            e(f"ds_read_b128 v[{t}:{t+3}], v250 offset:{i*1024}")
        for i in rs:
            t = T + 4*(i % 4)
            u = T + 16 + 4*(i % 4)
            e(f"""
            v_add_u32 v{u}, {16*i}, v248
            v_mul_u32_u24 v{u+1}, s21, v{u}
            v_lshrrev_b32 v{u+1}, 16, v{u+1}
            v_mul_u32_u24 v{u+2}, 14, v{u+1}
            v_add_u32 v{u+2}, v{u+2}, v{u}
            v_lshl_add_u32 v{u+2}, v{u+2}, 12, v249
            v_cmp_gt_u32 vcc, s25, v{u}
            s_waitcnt lgkmcnt({rs[-1]-i})
            s_mov_b64 exec, vcc
            buffer_store_dwordx4 v[{t}:{t+3}], v{u+2}, s[60:63], 0 offen
            s_mov_b64 exec, -1
            """)
    e("""
    G1_QNEXT:
    s_add_u32 s13, s13, 1
    s_cmp_ge_u32 s13, s19
    s_cbranch_scc1 G1_END
    s_barrier
    s_branch G1_QT
    """)
    e("""
    G1_FFN:
    s_sub_u32 s13, s14, 8
    s_mul_i32 s13, s13, 3
    s_add_u32 s19, s13, 3
    s_mov_b32 s31, s13
    s_movk_i32 s16, 9216
    """)
    srd(e, 44, 6, 7, D_ * F_ * 2)
    srd(e, 48, 8, 9, D_ * F_ * 2)
    e("s_lshl_b32 s15, s31, 6")
    voffw()
    def cursor_next(tag):
        e(f"""
        s_add_u32 s31, s31, 1
        s_cmp_lt_u32 s31, s19
        s_cbranch_scc1 G1_CN{tag}
        s_mov_b32 s46, 0
        s_mov_b32 s50, 0
        G1_CN{tag}:
        s_lshl_b32 s15, s31, 6
        """)
        voffw()
    for g in range(7):
        dma(g)
        for kk in range(4*g, 4*g+4): xload(kk)
    for kk in range(28, 36): xload(kk)
    def mk_sync(waits, tag):
        def sy(s_):
            if "NOWAIT" not in FL: e(f"s_waitcnt vmcnt({waits[s_+1]})")
            if "NOBAR" not in FL: e("s_barrier")
            if s_ == 1: cursor_next(tag)
            dma((s_ - 1) % 9)
        return sy
    first = [44, 40, 36, 32, 28, 24, 20, 12, 12]
    steady = [20, 20, 20, 20, 20, 20, 20, 12, 12]
    def ffn_epi():
        if "NOEPI1" in FL: return
        e(f"""
        s_lshr_b32 s59, s12, 5
        s_add_u32 s59, s59, s56
        s_mul_i32 s59, s59, 331776
        s_lshl_b32 s18, s13, 12
        s_add_u32 s59, s59, s18
        s_add_u32 s59, s59, {WS_H}
        v_lshl_add_u32 v251, v246, 4, s59
        v_lshl_add_u32 v251, v247, 3, v251
        s_mov_b32 s20, {hex(f2u(-LOG2E))}
        """)
        cnt = 0
        for sub in range(2):
            for q in range(4):
                t = T + 10 * (cnt % 3); cnt += 1
                for j in range(4):
                    e(f"v_mul_f32 v{t+j}, s20, v{16*sub+4*q+j}")
                for j in range(4):
                    e(f"v_exp_f32 v{t+j}, v{t+j}")
                for j in range(4):
                    e(f"v_mul_f32 v{t+4+j}, v{16*sub+4*q+j}, v{32+16*sub+4*q+j}")
                for j in range(4):
                    e(f"v_add_f32 v{t+j}, 1.0, v{t+j}")
                for j in range(4):
                    e(f"v_rcp_f32 v{t+j}, v{t+j}")
                e("s_nop 0")
                for j in range(4):
                    e(f"v_mul_f32 v{t+4+j}, v{t+4+j}, v{t+j}")
                e(f"v_cvt_pk_bf16_f32 v{t+8}, v{t+4}, v{t+5}")
                e(f"v_cvt_pk_bf16_f32 v{t+9}, v{t+6}, v{t+7}")
                e(f"buffer_store_dwordx2 v[{t+8}:{t+9}], v251, s[60:63], 0 offen offset:{(2*sub+(q>>1))*1024 + (q&1)*512}")
    mk_sync(first, "X")(-1)
    body(False, mk_sync(first, "A"))
    ffn_epi()
    e("s_add_u32 s13, s13, 1\nG1_FT:")
    mk_sync(steady, "Y")(-1)
    body(False, mk_sync(steady, "B"))
    ffn_epi()
    e("""
    s_add_u32 s13, s13, 1
    s_cmp_lt_u32 s13, s19
    s_cbranch_scc1 G1_FT
    G1_END:
    s_endpgm
    """)

WS_P = 48 * MB
NSPLIT = 5
def gen_gemm2(e):
    XR = 48; WF = 144
    header(e, "gemm2_kernel")
    e(f"""
    s_cmp_ge_u32 s2, 240
    s_cbranch_scc1 G2_END
    s_load_dwordx2 s[4:5], s[0:1], 16
    s_load_dwordx2 s[6:7], s[0:1], 48
    s_load_dwordx2 s[10:11], s[0:1], 72
    s_and_b32 s12, s2, 7
    s_lshr_b32 s13, s2, 3        ; r 0..29
    s_mul_i32 s28, s13, 43
    s_lshr_b32 s28, s28, 8       ; r/6
    s_mul_i32 s14, s28, 6
    s_sub_u32 s13, s13, s14      ; n tile
    s_mul_i32 s12, s12, 5
    s_add_u32 s12, s12, s28      ; pair 0..39
    s_lshr_b32 s28, s12, 3       ; split
    s_and_b32 s12, s12, 7        ; m tile
    s_lshl_b32 s29, s28, 4
    s_add_u32 s29, s29, 1
    s_mov_b32 s30, 16
    s_cmp_lg_u32 s28, 0
    s_cbranch_scc1 G2_SP
    s_mov_b32 s29, 0
    s_mov_b32 s30, 17
    G2_SP:
    v_and_b32 v170, 63, v0
    v_lshrrev_b32 v171, 6, v0
    s_nop 0
    v_readfirstlane_b32 s56, v171
    s_waitcnt lgkmcnt(0)
    s_add_u32 s40, s10, {WS_H}
    s_addc_u32 s41, s11, 0
    s_and_b32 s41, s41, 0xffff
    s_mov_b32 s42, {64*331776}
    s_mov_b32 s43, 0x00020000
    s_mov_b32 s44, s6
    s_and_b32 s45, s7, 0xffff
    s_mov_b32 s46, {F_*D_*2}
    s_mov_b32 s47, 0x00020000
    s_mov_b32 s49, {D_*D_*2}
    s_lshl_b32 s55, s56, 11      ; m0 base within stage buf
    s_cmp_lt_u32 s56, 6
    s_cbranch_scc1 G2_W6
    s_mov_b32 s46, 0
    s_mov_b32 s49, 0
    G2_W6:
    ; X voffset
    s_lshl_b32 s59, s12, 3
    s_add_u32 s59, s59, s56
    s_mul_i32 s58, s59, 331776
    v_lshl_add_u32 v172, v170, 4, s58
    s_lshl_b32 s52, s29, 12      ; X soffset (stage*4096)
    ; W voffset: c = w/2 ; krow = (w&1)*32 + lane/4
    s_and_b32 s58, s56, 1
    s_lshl_b32 s58, s58, 5
    v_lshrrev_b32 v171, 2, v170
    v_add_u32 v171, s58, v171
    v_mul_u32_u24 v171, 1152, v171
    v_and_b32 v173, 3, v170
    v_lshl_add_u32 v171, v173, 4, v171
    s_lshr_b32 s58, s56, 1
    s_lshl_b32 s58, s58, 6
    s_mul_i32 s57, s13, 192
    s_add_u32 s58, s58, s57
    v_add_u32 v174, s58, v171
    v_add_u32 v175, {16*1152}, v174
    s_mul_i32 s53, s29, {64*1152}
    """ + ("""
    s_lshl_b32 s58, s56, 11
    s_mul_i32 s57, s13, 12288
    s_add_u32 s58, s58, s57
    v_lshl_add_u32 v174, v170, 4, s58
    v_add_u32 v175, 1024, v174
    """ if "WLIN" in sys.argv else "") + f"""
    ; tr read addr
    v_lshrrev_b32 v171, 5, v170
    v_bfe_u32 v173, v170, 2, 2
    v_lshl_add_u32 v171, v171, 3, v173
    v_lshlrev_b32 v171, 6, v171
    v_bfe_u32 v173, v170, 4, 1
    v_lshl_add_u32 v171, v173, 5, v171
    v_and_b32 v173, 3, v170
    v_lshl_add_u32 v176, v173, 3, v171
    v_add_u32 v177, 36864, v176
    """)
    for i in range(48): e(f"v_mov_b32 v{i}, 0")
    lab = [0]
    def dma(slot):
        lab[0] += 1
        e(f"""
        s_cmp_lg_u32 s29, 72
        s_cbranch_scc1 G2_NS{lab[0]}
        s_mov_b32 s44, s4
        s_and_b32 s45, s5, 0xffff
        s_mov_b32 s46, s49
        s_mov_b32 s53, 0
        G2_NS{lab[0]}:
        """)
        e(f"s_add_u32 m0, s54, {slot*12288}" if False else f"s_add_u32 m0, s55, {slot*12288}")
        e("s_nop 0")
        e(f"buffer_load_dwordx4 v174, s[44:47], s53 offen lds")
        e(f"s_add_u32 m0, s55, {slot*12288 + 1024}")
        e("s_nop 0")
        e(f"buffer_load_dwordx4 v175, s[44:47], s53 offen lds")
        if "WHOT" not in sys.argv: e(f"s_add_u32 s53, s53, {64*1152}")
        e("s_add_u32 s29, s29, 1")
    def xld(slot):
        for ks in range(4):
            if "NOX2" in sys.argv: continue
            r = XR + 16*slot + 4*ks
            e(f"buffer_load_dwordx4 v[{r}:{r+3}], v172, s[40:43], s52 offen offset:{ks*1024}")
        if "XHOT" not in sys.argv: e("s_add_u32 s52, s52, 4096")
    def reads(slot, ks):
        fs = WF + (ks & 1) * 12
        areg = 176 if slot < 3 else 177
        for c in range(3):
            for h2 in range(2):
                e(f"ds_read_b64_tr_b16 v[{fs+4*c+2*h2}:{fs+4*c+2*h2+1}], v{areg} offset:{(slot%3)*12288 + c*4096 + ks*1024 + h2*256}")
    e("""
    s_cmp_lt_u32 s56, 6
    s_cbranch_scc1 G2_PRO
    s_branch G2_PROB
    G2_PRO:
    """)
    def full(dummy):
        def dm(slot):
            if "NODMA2" in sys.argv: return
            if dummy:
                lab[0] += 1
                e("s_mov_b32 m0, 73728\ns_nop 0")
                e("buffer_load_dwordx4 v174, s[44:47], s53 offen lds")
                e("buffer_load_dwordx4 v175, s[44:47], s53 offen lds")
            else:
                dma(slot)
        tg = "B" if dummy else "A"
        xld(0)
        for v in range(5):
            dm(v); xld(v + 1)
        nd = 0 if "NODMA2" in sys.argv else 2; nx = 0 if "NOX2" in sys.argv else 4
        e(f"s_waitcnt vmcnt({nx+4*(nd+nx)})\ns_barrier")
        reads(0, 0)
        e(f"G2_LOOP{tg}:")
        for u in range(6):
            e(f"s_waitcnt vmcnt({5*(nd+nx)})")
            for ks in range(4):
                if ks == 2:
                    e(f"s_waitcnt vmcnt({nx+3*(nd+nx)})" + ("" if "NOBAR2" in sys.argv else "\ns_barrier"))
                    dm((u + 5) % 6)
                if ks < 3: reads(u, ks + 1)
                else: reads((u + 1) % 6, 0)
                e("s_waitcnt lgkmcnt(6)")
                fs = WF + (ks & 1) * 12
                xr = XR + 16*u + 4*ks
                for c in range(3):
                    if "NOMF2" not in sys.argv: e(f"v_mfma_f32_32x32x16_bf16 v[{16*c}:{16*c+15}], v[{fs+4*c}:{fs+4*c+3}], v[{xr}:{xr+3}], v[{16*c}:{16*c+15}]")
            xld(u)
            e("s_sub_u32 s30, s30, 1\ns_cmp_eq_u32 s30, 0")
            e("s_cbranch_scc1 G2_EPI")
        e(f"s_branch G2_LOOP{tg}")
    full(False)
    e("G2_PROB:")
    full(True)
    e(f"""
    G2_EPI:
    s_waitcnt vmcnt(0) lgkmcnt(0)
    s_nop 15
    s_mul_i32 s29, s28, {S_*D_*2}
    s_add_u32 s29, s29, {WS_P}
    s_add_u32 s60, s10, s29
    s_addc_u32 s61, s11, 0
    s_and_b32 s61, s61, 0xffff
    s_mov_b32 s62, {S_*D_*2}
    s_mov_b32 s63, 0x00020000
    s_lshl_b32 s59, s12, 3
    s_add_u32 s59, s59, s56
    s_mul_i32 s59, s59, 18
    s_mul_i32 s58, s13, 3
    s_add_u32 s59, s59, s58
    s_lshl_b32 s59, s59, 11
    v_lshl_add_u32 v171, v170, 4, s59
    """)
    for c in range(3):
        for hf in range(2):
            t = 48 + 4*(2*c+hf)
            for i in range(4):
                r = 16*c + 8*hf + 2*i
                e(f"v_cvt_pk_bf16_f32 v{t+i}, v{r}, v{r+1}")
            if "NOST2" not in sys.argv: e(f"s_mov_b32 s58, {c*2048}\nbuffer_store_dwordx4 v[{t}:{t+3}], v171, s[60:63], s58 offen offset:{hf*1024}")
    e("s_waitcnt vmcnt(0) lgkmcnt(0)\nG2_END:\ns_endpgm")

def ts_end(e, tag):
    if "TS" not in sys.argv: return
    e(f"""
    s_memrealtime s[72:73]
    s_memtime s[82:83]
    s_load_dwordx2 s[76:77], s[0:1], 72
    s_waitcnt lgkmcnt(0)
    s_add_u32 s76, s76, {60*MB}
    s_addc_u32 s77, s77, 0
    s_and_b32 s77, s77, 0xffff
    s_mov_b32 s78, 65536
    s_mov_b32 s79, 0x00020000
    v_mov_b32 v0, s70
    v_mov_b32 v1, s71
    v_mov_b32 v2, s72
    v_mov_b32 v3, s73
    v_mov_b32 v4, s74
    v_lshlrev_b32 v4, 4, v4
    buffer_store_dwordx4 v[0:3], v4, s[76:79], 0 offen
    v_mov_b32 v6, s80
    v_mov_b32 v7, s81
    v_mov_b32 v8, s82
    v_mov_b32 v9, s83
    v_add_u32 v4, 32768, v4
    buffer_store_dwordx4 v[6:9], v4, s[76:79], 0 offen
    s_waitcnt vmcnt(0)
    """)

def gen_gemm2h(e):
    XR = 48; WF = 96
    e("G2_START:")
    if "PG" in sys.argv: e("s_setprio 2")
    if "NOG2" in sys.argv: e("s_endpgm")
    e(f"""
    s_cmp_ge_u32 s2, 240
    s_cbranch_scc1 G2_END
    s_load_dwordx2 s[4:5], s[0:1], 16
    s_load_dwordx2 s[6:7], s[0:1], 48
    s_load_dwordx2 s[10:11], s[0:1], 72
    s_and_b32 s12, s2, 7
    s_lshr_b32 s13, s2, 3        ; r 0..29
    s_mul_i32 s28, s13, 43
    s_lshr_b32 s28, s28, 8       ; r/6
    s_mul_i32 s14, s28, 6
    s_sub_u32 s13, s13, s14      ; n tile
    s_mul_i32 s12, s12, 5
    s_add_u32 s12, s12, s28      ; pair 0..39
    s_lshr_b32 s28, s12, 3       ; split
    s_and_b32 s12, s12, 7        ; m tile
    s_mul_i32 s29, s28, 14
    s_min_u32 s30, s28, 2
    s_add_u32 s29, s29, s30
    s_cmp_lt_u32 s28, 2
    s_cselect_b32 s30, 15, 14
    v_and_b32 v120, 63, v0
    v_lshrrev_b32 v121, 6, v0
    s_nop 0
    v_readfirstlane_b32 s56, v121
    s_waitcnt lgkmcnt(0)
    s_add_u32 s40, s10, {WS_H}
    s_addc_u32 s41, s11, 0
    s_and_b32 s41, s41, 0xffff
    s_mov_b32 s42, {64*331776}
    s_mov_b32 s43, 0x00020000
    s_mov_b32 s44, s6
    s_and_b32 s45, s7, 0xffff
    s_mov_b32 s46, {F_*D_*2}
    s_mov_b32 s47, 0x00020000
    s_mov_b32 s49, {D_*D_*2}
    s_lshl_b32 s55, s56, 11      ; m0 base within stage buf
    s_cmp_lt_u32 s56, 6
    s_cbranch_scc1 G2_W6
    s_mov_b32 s46, 0
    s_mov_b32 s49, 0
    G2_W6:
    ; X voffset
    s_lshl_b32 s59, s12, 3
    s_add_u32 s59, s59, s56
    s_mul_i32 s58, s59, 331776
    v_lshl_add_u32 v122, v120, 4, s58
    s_lshl_b32 s52, s29, 12      ; X soffset (stage*4096)
    ; W voffset: c = w/2 ; krow = (w&1)*32 + lane/4
    s_and_b32 s58, s56, 1
    s_lshl_b32 s58, s58, 5
    v_lshrrev_b32 v121, 2, v120
    v_add_u32 v121, s58, v121
    v_mul_u32_u24 v121, 1152, v121
    v_and_b32 v123, 3, v120
    v_lshl_add_u32 v121, v123, 4, v121
    s_lshr_b32 s58, s56, 1
    s_lshl_b32 s58, s58, 6
    s_mul_i32 s57, s13, 192
    s_add_u32 s58, s58, s57
    v_add_u32 v124, s58, v121
    v_add_u32 v125, {16*1152}, v124
    s_mul_i32 s53, s29, {64*1152}
    """ + ("""
    s_lshl_b32 s58, s56, 11
    s_mul_i32 s57, s13, 12288
    s_add_u32 s58, s58, s57
    v_lshl_add_u32 v124, v120, 4, s58
    v_add_u32 v125, 1024, v124
    """ if "WLIN" in sys.argv else "") + f"""
    ; tr read addr
    v_lshrrev_b32 v121, 5, v120
    v_bfe_u32 v123, v120, 2, 2
    v_lshl_add_u32 v121, v121, 3, v123
    v_lshlrev_b32 v121, 6, v121
    v_bfe_u32 v123, v120, 4, 1
    v_lshl_add_u32 v121, v123, 5, v121
    v_and_b32 v123, 3, v120
    v_lshl_add_u32 v126, v123, 3, v121
    v_add_u32 v127, 36864, v126
    """)
    for i in range(48): e(f"v_mov_b32 v{i}, 0")
    lab = [0]
    def dma(slot):
        e(f"s_add_u32 m0, s54, {slot*12288}" if False else f"s_add_u32 m0, s55, {slot*12288}")
        e("s_nop 0")
        e(f"buffer_load_dwordx4 v124, s[44:47], s53 offen lds")
        e(f"s_add_u32 m0, s55, {slot*12288 + 1024}")
        e("s_nop 0")
        e(f"buffer_load_dwordx4 v125, s[44:47], s53 offen lds")
        if "WHOT" not in sys.argv: e(f"s_add_u32 s53, s53, {64*1152}")
        e("s_add_u32 s29, s29, 1")
    def xld(slot):
        for ks in range(4):
            if "NOX2" in sys.argv: continue
            r = XR + 16*slot + 4*ks
            e(f"buffer_load_dwordx4 v[{r}:{r+3}], v122, s[40:43], s52 offen offset:{ks*1024}")
        if "XHOT" not in sys.argv: e("s_add_u32 s52, s52, 4096")
    def reads(slot, ks):
        fs = WF + (ks & 1) * 12
        areg = 126 if slot < 3 else 127
        for c in range(3):
            for h2 in range(2):
                e(f"ds_read_b64_tr_b16 v[{fs+4*c+2*h2}:{fs+4*c+2*h2+1}], v{areg} offset:{(slot%3)*12288 + c*4096 + ks*1024 + h2*256}")
    e("""
    s_cmp_lt_u32 s56, 6
    s_cbranch_scc1 G2_PRO
    s_branch G2_PROB
    G2_PRO:
    """)
    def full(dummy):
        def dm(slot):
            if "NODMA2" in sys.argv: return
            if dummy:
                lab[0] += 1
                e("s_mov_b32 m0, 73728\ns_nop 0")
                e("buffer_load_dwordx4 v124, s[44:47], s53 offen lds")
                e("buffer_load_dwordx4 v125, s[44:47], s53 offen lds")
            else:
                dma(slot)
        tg = "B" if dummy else "A"
        dm(0); dm(1); dm(2); xld(0); dm(3); xld(1); dm(4); xld(2)
        e("s_waitcnt vmcnt(18)\ns_barrier")
        reads(0, 0)
        e(f"G2_LOOP{tg}:")
        for u in range(6):
            e("s_waitcnt vmcnt(12)")
            for ks in range(4):
                if ks == 2:
                    e("s_waitcnt vmcnt(22)\ns_barrier")
                    dm((u + 5) % 6)
                if ks < 3: reads(u, ks + 1)
                else: reads((u + 1) % 6, 0)
                e("s_waitcnt lgkmcnt(6)")
                fs = WF + (ks & 1) * 12
                xr = XR + 16*(u%3) + 4*ks
                for c in range(3):
                    if "NOMF2" not in sys.argv: e(f"v_mfma_f32_32x32x16_bf16 v[{16*c}:{16*c+15}], v[{fs+4*c}:{fs+4*c+3}], v[{xr}:{xr+3}], v[{16*c}:{16*c+15}]")
            xld(u%3)
            e("s_sub_u32 s30, s30, 1\ns_cmp_eq_u32 s30, 0")
            e("s_cbranch_scc1 G2_EPI")
        e(f"s_branch G2_LOOP{tg}")
    full(False)
    e("G2_PROB:")
    full(True)
    e(f"""
    G2_EPI:
    """ + ("s_setprio 3" if "PE" in sys.argv else "") + f"""
    s_waitcnt vmcnt(0) lgkmcnt(0)
    s_nop 15
    s_mul_i32 s29, s28, {S_*D_*2}
    s_add_u32 s29, s29, {WS_P}
    s_add_u32 s60, s10, s29
    s_addc_u32 s61, s11, 0
    s_and_b32 s61, s61, 0xffff
    s_mov_b32 s62, {S_*D_*2}
    s_mov_b32 s63, 0x00020000
    s_lshl_b32 s59, s12, 3
    s_add_u32 s59, s59, s56
    s_mul_i32 s59, s59, 18
    s_mul_i32 s58, s13, 3
    s_add_u32 s59, s59, s58
    s_lshl_b32 s59, s59, 11
    v_lshl_add_u32 v121, v120, 4, s59
    """)
    for c in range(3):
        for hf in range(2):
            t = 48 + 4*(2*c+hf)
            for i in range(4):
                r = 16*c + 8*hf + 2*i
                e(f"v_cvt_pk_bf16_f32 v{t+i}, v{r}, v{r+1}")
            if "NOST2" not in sys.argv: e(f"s_mov_b32 s58, {c*2048}\nbuffer_store_dwordx4 v[{t}:{t+3}], v121, s[60:63], s58 offen offset:{hf*1024} sc0 sc1")
    e(f"""
    s_waitcnt vmcnt(0) lgkmcnt(0)
    s_barrier
    s_cmp_lg_u32 s56, 0
    s_cbranch_scc1 G2_W
    s_mov_b32 s64, s10
    s_and_b32 s65, s11, 0xffff
    s_mov_b32 s66, {WS_SIZE}
    s_mov_b32 s67, 0x00020000
    s_mul_i32 s58, s12, 6
    s_add_u32 s58, s58, s13
    s_lshl_b32 s58, s58, 2
    s_add_u32 s58, s58, {WS_CNT}
    v_mov_b32 v122, s58
    v_mov_b32 v123, 1
    v_mov_b32 v124, 0
    s_mov_b64 exec, 1
    buffer_atomic_add v123, v122, s[64:67], 0 offen sc0 sc1
    s_waitcnt vmcnt(0)
    ds_write_b32 v124, v123
    s_mov_b64 exec, -1
    s_waitcnt lgkmcnt(0)
    G2_W:
    s_barrier
    v_mov_b32 v124, 0
    ds_read_b32 v123, v124
    s_waitcnt lgkmcnt(0)
    v_readfirstlane_b32 s58, v123
    s_cmp_lg_u32 s58, {NSPLIT-1}
    s_cbranch_scc1 G2_DONE
    s_add_u32 s60, s10, {WS_P}
    s_addc_u32 s61, s11, 0
    s_and_b32 s61, s61, 0xffff
    s_mov_b32 s62, {S_*D_*2*NSPLIT}
    v_add_u32 v122, 4096, v121
    """)
    for j in range(4):
        e(f"""
        s_add_u32 s28, s28, 1
        s_cmp_ge_u32 s28, {NSPLIT}
        s_cselect_b32 s28, 0, s28
        s_mul_i32 s{84+j}, s28, {S_*D_*2}
        """)
    def pld(idx):
        j, u = idx // 6, idx % 6
        r = 48 + 4*(idx % 16)
        e(f"buffer_load_dwordx4 v[{r}:{r+3}], v{121 + u//4}, s[60:63], s{84+j} offen offset:{(u%4)*1024} sc0 sc1")
    for idx in range(16): pld(idx)
    e("""
    v_lshrrev_b32 v124, 5, v120
    v_and_b32 v123, 31, v120
    v_lshlrev_b32 v124, 2, v124
    v_sub_u32 v123, v123, v124
    v_mov_b32 v124, 0x3f80
    v_mov_b32 v125, 0x3f800000
    """)
    for hf in range(2):
        for r in range(4):
            T = 16*hf + 8*(r//2) + 2*(r%2)
            e(f"v_cmp_eq_u32 vcc, {T}, v123")
            e(f"v_cndmask_b32 v{112+4*hf+r}, 0, v124, vcc")
            e(f"v_cmp_eq_u32 vcc, {T+1}, v123")
            e(f"v_cndmask_b32 v{112+4*hf+r}, v{112+4*hf+r}, v125, vcc")
    e("s_nop 1")
    for idx in range(24):
        u = idx % 6; c = u // 2; hf = u % 2
        r = 48 + 4*(idx % 16)
        e(f"s_waitcnt vmcnt({min(24, 16+idx) - idx - 1})")
        e(f"v_mfma_f32_32x32x16_bf16 v[{16*c}:{16*c+15}], v[{112+4*hf}:{115+4*hf}], v[{r}:{r+3}], v[{16*c}:{16*c+15}]")
        if idx + 16 < 24: pld(idx + 16)
    e("s_nop 15\ns_nop 3")
    for u in range(6):
        t = 48 + 4*u
        for i in range(4):
            e(f"v_cvt_pk_bf16_f32 v{t+i}, v{8*u+2*i}, v{8*u+2*i+1}")
        e(f"buffer_store_dwordx4 v[{t}:{t+3}], v{121 + u//4}, s[60:63], 0 offen offset:{(u%4)*1024}")
    e("G2_DONE:\ns_waitcnt vmcnt(0) lgkmcnt(0)")
    ts_end(e, "g")
    e("G2_END:\ns_endpgm")

def gen_fin(e):
    header(e, "fin_kernel")
    XO = 16; PR = 160; XR = 200; WF = 208
    e(f"""
    s_cmp_ge_u32 s2, 288
    s_cbranch_scc1 FN_END
    s_load_dwordx2 s[4:5], s[0:1], 0
    s_load_dwordx2 s[6:7], s[0:1], 56
    s_load_dwordx2 s[8:9], s[0:1], 16
    s_load_dwordx2 s[10:11], s[0:1], 72
    s_and_b32 s12, s2, 7
    s_lshr_b32 s13, s2, 3        ; j 0..35
    s_mul_i32 s14, s13, 57
    s_lshr_b32 s14, s14, 9       ; j/9
    s_mul_i32 s15, s14, 9
    s_sub_u32 s13, s13, s15      ; nt
    s_lshl_b32 s12, s12, 2
    s_add_u32 s12, s12, s14      ; mt
    v_and_b32 v230, 63, v0
    v_lshrrev_b32 v231, 6, v0
    s_nop 0
    v_readfirstlane_b32 s56, v231
    s_lshr_b32 s57, s56, 1       ; wm
    s_and_b32 s58, s56, 1        ; wn
    s_lshl_b32 s12, s12, 1
    s_add_u32 s12, s12, s57      ; rb
    s_lshl_b32 s14, s13, 1
    s_add_u32 s14, s14, s58      ; cb
    s_waitcnt lgkmcnt(0)
    s_add_u32 s40, s10, {WS_H}
    s_addc_u32 s41, s11, 0
    s_add_u32 s10, s10, {WS_P}
    s_addc_u32 s11, s11, 0
    """)
    srd(e, 40, 40, 41, 64*331776); srd(e, 44, 8, 9, D_*D_*2)
    srd(e, 16, 4, 5, S_*D_*2); srd(e, 20, 6, 7, S_*D_*2); srd(e, 24, 10, 11, S_*D_*2*NSPLIT)
    e(f"""
    v_lshrrev_b32 v231, 2, v230
    v_mul_u32_u24 v231, 1152, v231
    v_and_b32 v232, 3, v230
    v_lshl_add_u32 v231, v232, 4, v231
    s_lshl_b32 s15, s14, 6
    s_mul_i32 s59, s57, {288*1152}
    s_add_u32 s15, s15, s59
    v_add_u32 v231, s15, v231     ; W voffset
    s_mul_i32 s54, s58, 36864
    s_mul_i32 s59, s57, 18432
    s_add_u32 s54, s54, s59       ; m0 base
    s_mul_i32 s15, s12, 331776
    s_add_u32 s15, s15, {288*1024}
    v_lshl_add_u32 v232, v230, 4, s15   ; O voffset
    s_mov_b32 s53, 0
    """)
    for j in range(18):
        e(f"s_add_u32 m0, s54, {j*1024}\ns_nop 0")
        e("buffer_load_dwordx4 v231, s[44:47], s53 offen lds")
        e(f"s_add_u32 s53, s53, {16*1152}")
    for kk in range(36):
        if kk % 4 == 0: e(f"s_mov_b32 s52, {kk*1024}")
        e(f"buffer_load_dwordx4 v[{XO+4*kk}:{XO+4*kk+3}], v232, s[40:43], s52 offen offset:{(kk%4)*1024}")
    e(f"""
    v_lshrrev_b32 v233, 5, v230
    v_bfe_u32 v234, v230, 2, 2
    v_lshl_add_u32 v233, v233, 3, v234
    v_lshlrev_b32 v233, 6, v233
    v_bfe_u32 v234, v230, 4, 1
    v_lshl_add_u32 v233, v234, 5, v233
    v_and_b32 v234, 3, v230
    v_lshl_add_u32 v233, v234, 3, v233
    s_mul_i32 s59, s58, 36864
    v_add_u32 v233, s59, v233
    s_mul_i32 s15, s12, 18
    s_add_u32 s15, s15, s14
    s_lshl_b32 s15, s15, 11
    v_lshl_add_u32 v234, v230, 4, s15  ; P offset
    v_and_b32 v235, 31, v230
    s_lshl_b32 s15, s12, 5
    v_add_u32 v235, s15, v235
    v_mul_u32_u24 v235, 1152, v235
    v_lshrrev_b32 v236, 5, v230
    v_lshl_add_u32 v235, v236, 5, v235
    s_lshl_b32 s15, s14, 6
    v_add_u32 v235, s15, v235
    """)
    for i in range(16): e(f"v_mov_b32 v{i}, 0")
    def pl(i):
        e(f"s_mov_b32 s28, {(i//2)*S_*D_*2}")
        e(f"buffer_load_dwordx4 v[{PR+4*i}:{PR+4*i+3}], v234, s[24:27], s28 offen offset:{(i%2)*1024}")
    for i in range(8): pl(i)
    e("s_waitcnt vmcnt(44)\ns_barrier")
    for i in range(8, 2*NSPLIT): pl(i)
    e(f"buffer_load_dwordx4 v[{XR}:{XR+3}], v235, s[16:19], 0 offen")
    e(f"buffer_load_dwordx4 v[{XR+4}:{XR+7}], v235, s[16:19], 0 offen offset:16")
    NL = 2*NSPLIT + 2
    def rd(kk):
        fs = WF + 4*(kk % 4)
        for h2 in range(2):
            e(f"ds_read_b64_tr_b16 v[{fs+2*h2}:{fs+2*h2+1}], v233 offset:{kk*1024 + h2*256}")
    for kk in range(3): rd(kk)
    for kk in range(36):
        if kk + 3 < 36: rd(kk + 3)
        n = min(3, 35 - kk)
        e(f"s_waitcnt vmcnt({35-kk+NL}) lgkmcnt({2*n})")
        fs = WF + 4*(kk % 4)
        e(f"v_mfma_f32_32x32x16_bf16 v[0:15], v[{fs}:{fs+3}], v[{XO+4*kk}:{XO+4*kk+3}], v[0:15]")
    e("s_nop 15\ns_nop 3")
    T = 16
    for i in range(NSPLIT):
        e(f"s_waitcnt vmcnt({NL-2*i-2})")
        for d in range(8):
            r = PR + 8*i + d
            e(f"v_lshlrev_b32 v{T}, 16, v{r}")
            e(f"v_and_b32 v{T+1}, 0xffff0000, v{r}")
            e(f"v_add_f32 v{2*d}, v{2*d}, v{T}")
            e(f"v_add_f32 v{2*d+1}, v{2*d+1}, v{T+1}")
    e("s_nop 1")
    for j in range(8):
        e(f"v_permlane32_swap_b32 v{j}, v{8+j}")
    e("s_nop 1\ns_waitcnt vmcnt(0)")
    order = [0,1,2,3,8,9,10,11,4,5,6,7,12,13,14,15]
    for j in range(8):
        a, b_ = order[2*j], order[2*j+1]
        e(f"v_lshlrev_b32 v{T}, 16, v{XR+j}")
        e(f"v_and_b32 v{T+1}, 0xffff0000, v{XR+j}")
        e(f"v_add_f32 v{a}, v{a}, v{T}")
        e(f"v_add_f32 v{b_}, v{b_}, v{T+1}")
        e(f"v_cvt_pk_bf16_f32 v{XR+j}, v{a}, v{b_}")
    e(f"buffer_store_dwordx4 v[{XR}:{XR+3}], v235, s[20:23], 0 offen")
    e(f"buffer_store_dwordx4 v[{XR+4}:{XR+7}], v235, s[20:23], 0 offen offset:16")
    e("FN_END:\ns_endpgm")

def gen_fin2(e):
    header(e, "fin_kernel")
    NP = 1
    XO = 48; PR = 120; XR = 180; WF = 192; M = 230
    if "TSF" in sys.argv: e("s_memrealtime s[70:71]")
    e(f"""
    s_cmp_ge_u32 s2, 192
    s_cbranch_scc1 FN_END
    s_load_dwordx2 s[4:5], s[0:1], 0
    s_load_dwordx2 s[6:7], s[0:1], 56
    s_load_dwordx2 s[8:9], s[0:1], 16
    s_load_dwordx2 s[10:11], s[0:1], 72
    s_and_b32 s12, s2, 7
    s_lshr_b32 s13, s2, 3        ; j 0..23
    s_mul_i32 s14, s13, 43
    s_lshr_b32 s14, s14, 8       ; j/6
    s_mul_i32 s15, s14, 6
    s_sub_u32 s13, s13, s15      ; nt
    s_lshl_b32 s12, s12, 2
    s_add_u32 s12, s12, s14      ; mt
    v_and_b32 v{M}, 63, v0
    v_lshrrev_b32 v{M+1}, 6, v0
    s_nop 0
    v_readfirstlane_b32 s56, v{M+1}
    s_lshr_b32 s57, s56, 1       ; wm
    s_and_b32 s58, s56, 1        ; kh
    s_lshl_b32 s12, s12, 1
    s_add_u32 s12, s12, s57      ; rb
    s_waitcnt lgkmcnt(0)
    s_add_u32 s40, s10, {WS_H}
    s_addc_u32 s41, s11, 0
    s_add_u32 s10, s10, {WS_P}
    s_addc_u32 s11, s11, 0
    """)
    srd(e, 40, 40, 41, 64*331776); srd(e, 44, 8, 9, D_*D_*2)
    srd(e, 16, 4, 5, S_*D_*2); srd(e, 20, 6, 7, S_*D_*2); srd(e, 24, 10, 11, S_*D_*2*NP)
    e(f"""
    v_lshrrev_b32 v{M+1}, 2, v{M}
    v_mul_u32_u24 v{M+1}, 1152, v{M+1}
    v_and_b32 v{M+2}, 3, v{M}
    v_lshl_add_u32 v{M+1}, v{M+2}, 4, v{M+1}
    s_mul_i32 s15, s13, 192
    s_mul_i32 s59, s56, {9*18432}
    s_add_u32 s15, s15, s59
    v_add_u32 v{M+1}, s15, v{M+1}     ; W voffset
    s_mul_i32 s54, s56, 9216          ; m0 base
    s_mul_i32 s15, s12, 331776
    s_mul_i32 s59, s58, 18432
    s_add_u32 s15, s15, s59
    s_add_u32 s15, s15, {288*1024}
    v_lshl_add_u32 v{M+2}, v{M}, 4, s15   ; O voffset
    s_mov_b32 s53, 0
    """)
    for i in range(9):
        for c in range(3):
            e(f"s_add_u32 m0, s54, {c*36864 + i*1024 - c*64}\ns_nop 0")
            e(f"buffer_load_dwordx4 v{M+1}, s[44:47], s53 offen offset:{c*64} lds")
        e(f"s_add_u32 s53, s53, {16*1152}")
    for kk in range(18):
        if kk % 4 == 0: e(f"s_mov_b32 s52, {kk*1024}")
        e(f"buffer_load_dwordx4 v[{XO+4*kk}:{XO+4*kk+3}], v{M+2}, s[40:43], s52 offen offset:{(kk%4)*1024}")
    e(f"""
    s_mul_i32 s15, s12, 18
    s_mul_i32 s59, s13, 3
    s_add_u32 s15, s15, s59
    s_lshl_b32 s15, s15, 11
    s_mul_i32 s59, s58, 3072
    s_add_u32 s15, s15, s59
    v_lshl_add_u32 v{M+4}, v{M}, 4, s15  ; P offset
    """)
    for i in range(NP):
        e(f"s_mov_b32 s28, {i*S_*D_*2}")
        for j in range(3):
            r = PR + 12*i + 4*j
            e(f"buffer_load_dwordx4 v[{r}:{r+3}], v{M+4}, s[24:27], s28 offen offset:{j*1024}")
    e(f"""
    v_and_b32 v{M+5}, 31, v{M}
    s_lshl_b32 s15, s12, 5
    v_add_u32 v{M+5}, s15, v{M+5}
    v_mul_u32_u24 v{M+5}, 1152, v{M+5}
    v_lshrrev_b32 v{M+6}, 5, v{M}
    v_lshl_add_u32 v{M+5}, v{M+6}, 4, v{M+5}
    s_mul_i32 s15, s13, 192
    s_mul_i32 s59, s58, 96
    s_add_u32 s15, s15, s59
    v_add_u32 v{M+5}, s15, v{M+5}
    """)
    for j in range(3):
        e(f"buffer_load_dwordx4 v[{XR+4*j}:{XR+4*j+3}], v{M+5}, s[16:19], 0 offen offset:{j*32}")
    e(f"""
    v_lshrrev_b32 v{M+7}, 5, v{M}
    v_bfe_u32 v{M+8}, v{M}, 2, 2
    v_lshl_add_u32 v{M+7}, v{M+7}, 3, v{M+8}
    v_lshlrev_b32 v{M+7}, 6, v{M+7}
    v_bfe_u32 v{M+8}, v{M}, 4, 1
    v_lshl_add_u32 v{M+7}, v{M+8}, 5, v{M+7}
    v_and_b32 v{M+8}, 3, v{M}
    v_lshl_add_u32 v{M+7}, v{M+8}, 3, v{M+7}
    s_mul_i32 s59, s58, 18432
    v_add_u32 v{M+7}, s59, v{M+7}
    v_add_u32 v{M+8}, 36864, v{M+7}
    v_add_u32 v{M+9}, {2*36864}, v{M+7}
    s_mul_i32 s59, s56, 6144
    s_add_u32 s59, s59, 110592
    v_lshl_add_u32 v{M+10}, v{M}, 4, s59
    v_xor_b32 v{M+11}, 0, v{M+10}
    s_xor_b32 s60, s56, 1
    s_mul_i32 s60, s60, 6144
    s_add_u32 s60, s60, 110592
    v_lshl_add_u32 v{M+11}, v{M}, 4, s60
    """)
    for i in range(48): e(f"v_mov_b32 v{i}, 0")
    NL = 3*NP + 3
    e(f"s_waitcnt vmcnt({18+NL})\ns_barrier")
    if "TSF" in sys.argv: e("s_memrealtime s[72:73]")
    def rd(i):
        for c in range(3):
            fs = WF + 12*(i % 3) + 4*c
            for h2 in range(2):
                e(f"ds_read_b64_tr_b16 v[{fs+2*h2}:{fs+2*h2+1}], v{M+7+c} offset:{i*1024 + h2*256}")
    rd(0); rd(1)
    for i in range(18):
        if i + 2 < 18: rd(i + 2)
        n = min(2, 17 - i)
        e(f"s_waitcnt vmcnt({17-i+NL}) lgkmcnt({6*n})")
        for c in range(3):
            fs = WF + 12*(i % 3) + 4*c
            e(f"v_mfma_f32_32x32x16_bf16 v[{16*c}:{16*c+15}], v[{fs}:{fs+3}], v[{XO+4*i}:{XO+4*i+3}], v[{16*c}:{16*c+15}]")
    e("s_nop 15\ns_nop 3")
    if "TSF" in sys.argv: e("s_memrealtime s[74:75]")
    e("s_cmp_lg_u32 s58, 0\ns_cbranch_scc1 FN_K1")
    T = WF
    for kh in range(2):
        if kh: e("FN_K1:")
        own = 24*kh; oth = 24*(1-kh)
        for j in range(6):
            e(f"ds_write_b128 v{M+10}, v[{oth+4*j}:{oth+4*j+3}] offset:{j*1024}")
        e("s_waitcnt lgkmcnt(0)\ns_barrier")
        for j in range(6):
            e(f"ds_read_b128 v[{XO+4*j}:{XO+4*j+3}], v{M+11} offset:{j*1024}")
        for i in range(NP):
            e(f"s_waitcnt vmcnt({NL-3*i-3})")
            for d in range(12):
                r = PR + 12*i + d
                e(f"v_lshlrev_b32 v{T}, 16, v{r}")
                e(f"v_and_b32 v{T+1}, 0xffff0000, v{r}")
                e(f"v_add_f32 v{own+2*d}, v{own+2*d}, v{T}")
                e(f"v_add_f32 v{own+2*d+1}, v{own+2*d+1}, v{T+1}")
        e("s_waitcnt lgkmcnt(0)")
        for i in range(24):
            e(f"v_add_f32 v{own+i}, v{own+i}, v{XO+i}")
        e("s_nop 1")
        for j in range(3):
            for i in range(4):
                e(f"v_permlane32_swap_b32 v{own+8*j+i}, v{own+8*j+4+i}")
        e("s_nop 1\ns_waitcnt vmcnt(0)")
        for j in range(3):
            for d in range(4):
                a = own + 8*j + 2*d
                e(f"v_lshlrev_b32 v{T}, 16, v{XR+4*j+d}")
                e(f"v_and_b32 v{T+1}, 0xffff0000, v{XR+4*j+d}")
                e(f"v_add_f32 v{a}, v{a}, v{T}")
                e(f"v_add_f32 v{a+1}, v{a+1}, v{T+1}")
                e(f"v_cvt_pk_bf16_f32 v{XR+4*j+d}, v{a}, v{a+1}")
            e(f"buffer_store_dwordx4 v[{XR+4*j}:{XR+4*j+3}], v{M+5}, s[20:23], 0 offen offset:{j*32}")
        if "TSF" in sys.argv: e(f"""
        s_waitcnt vmcnt(0)
        s_memrealtime s[76:77]
        s_load_dwordx2 s[80:81], s[0:1], 72
        s_waitcnt lgkmcnt(0)
        s_add_u32 s80, s80, {60*MB}
        s_addc_u32 s81, s81, 0
        s_and_b32 s81, s81, 0xffff
        s_mov_b32 s82, 65536
        s_mov_b32 s83, 0x00020000
        v_mov_b32 v0, s70
        v_mov_b32 v1, s72
        v_mov_b32 v2, s74
        v_mov_b32 v3, s76
        s_lshl_b32 s3, s2, 2
        s_add_u32 s3, s3, s56
        s_lshl_b32 s3, s3, 4
        v_mov_b32 v4, s3
        buffer_store_dwordx4 v[0:3], v4, s[80:83], 0 offen
        """)
        e("s_endpgm")
    e("FN_END:\ns_endpgm")

def gen_red(e):
    header(e, "red_kernel")
    e(f"""
    s_cmp_ge_u32 s2, 288
    s_cbranch_scc1 RD_END
    s_load_dwordx2 s[4:5], s[0:1], 0
    s_load_dwordx2 s[6:7], s[0:1], 56
    s_load_dwordx2 s[10:11], s[0:1], 72
    s_lshl_b32 s3, s2, 8
    v_add_u32 v1, s3, v0
    v_lshrrev_b32 v2, 6, v1        ; blk
    v_bfe_u32 v3, v1, 1, 5         ; row
    v_and_b32 v4, 1, v1            ; half
    v_lshlrev_b32 v5, 11, v2
    v_lshl_add_u32 v5, v4, 10, v5
    v_lshl_add_u32 v5, v3, 4, v5   ; P offset
    s_mov_b32 s21, 3641
    v_mul_u32_u24 v6, s21, v2
    v_lshrrev_b32 v6, 16, v6       ; mb
    v_mul_u32_u24 v7, 18, v6
    v_sub_u32 v7, v2, v7           ; nb
    v_lshl_add_u32 v6, v6, 5, v3
    v_mul_u32_u24 v6, 1152, v6
    v_lshl_add_u32 v6, v7, 6, v6
    v_lshl_add_u32 v6, v4, 5, v6
    s_waitcnt lgkmcnt(0)
    s_add_u32 s10, s10, {WS_P}
    s_addc_u32 s11, s11, 0
    """)
    srd(e, 12, 4, 5, S_*D_*2); srd(e, 16, 6, 7, S_*D_*2); srd(e, 20, 10, 11, S_*D_*2*NSPLIT)
    e("buffer_load_dwordx4 v[8:11], v6, s[12:15], 0 offen")
    e("buffer_load_dwordx4 v[12:15], v6, s[12:15], 0 offen offset:16")
    for i in range(NSPLIT):
        e(f"s_mov_b32 s24, {i*S_*D_*2}")
        e(f"buffer_load_dwordx4 v[{16+8*i}:{19+8*i}], v5, s[20:23], s24 offen")
        e(f"buffer_load_dwordx4 v[{20+8*i}:{23+8*i}], v5, s[20:23], s24 offen offset:512")
    e(f"s_waitcnt vmcnt({2*NSPLIT})")
    A = 16 + 8*NSPLIT
    for j in range(8):
        e(f"v_lshlrev_b32 v{A+2*j}, 16, v{8+j}\nv_and_b32 v{A+2*j+1}, 0xffff0000, v{8+j}")
    T = A + 16
    for i in range(NSPLIT):
        e(f"s_waitcnt vmcnt({2*(NSPLIT-1-i)})")
        for h in range(2):
            for d in range(4):
                n = 8*(d>>1) + 4*h + 2*(d&1)
                r = 16 + 8*i + 4*h + d
                e(f"v_lshlrev_b32 v{T}, 16, v{r}")
                e(f"v_and_b32 v{T+1}, 0xffff0000, v{r}")
                e(f"v_add_f32 v{A+n}, v{A+n}, v{T}")
                e(f"v_add_f32 v{A+n+1}, v{A+n+1}, v{T+1}")
    for j in range(8):
        e(f"v_cvt_pk_bf16_f32 v{8+j}, v{A+2*j}, v{A+2*j+1}")
    e("buffer_store_dwordx4 v[8:11], v6, s[16:19], 0 offen")
    e("buffer_store_dwordx4 v[12:15], v6, s[16:19], 0 offen offset:16")
    e("RD_END:\ns_endpgm")

def gen_attn(e):
    header(e, "attn_kernel")
    KA = 112; VA = 114; DM = 122
    e(f"""
    s_cmp_ge_u32 s2, 256
    s_cbranch_scc1 AT_END
    s_load_dwordx2 s[10:11], s[0:1], 72
    s_and_b32 s4, s2, 7
    s_lshl_b32 s4, s4, 2
    s_bfe_u32 s5, s2, 0x20003
    s_add_u32 s4, s4, s5          ; head
    s_lshr_b32 s5, s2, 5          ; qblock
    v_and_b32 v127, 63, v0
    v_lshrrev_b32 v16, 6, v0
    s_nop 0
    v_readfirstlane_b32 s56, v16
    v_and_b32 v17, 31, v127      ; l32
    v_lshrrev_b32 v18, 5, v127   ; h
    s_and_b32 s57, s56, 7        ; qt
    s_lshr_b32 s58, s56, 3       ; kh
    s_waitcnt lgkmcnt(0)
    """)
    srd(e, 40, 10, 11, WS_SIZE)
    e(f"""
    s_lshl_b32 s6, s4, 11
    s_lshl_b32 s7, s5, 8
    s_add_u32 s6, s6, s7
    s_lshl_b32 s7, s57, 5
    s_add_u32 s6, s6, s7
    v_add_u32 v19, s6, v17
    v_lshlrev_b32 v19, 6, v19
    v_lshl_add_u32 v19, v18, 4, v19
    v_add_u32 v19, {WS_QP}, v19
    buffer_load_dwordx4 v[64:67], v19, s[40:43], 0 offen
    buffer_load_dwordx4 v[68:71], v19, s[40:43], 0 offen offset:32
    s_lshl_b32 s7, s4, 17
    s_add_u32 s7, s7, {WS_KP}
    s_lshl_b32 s8, s56, 11
    s_add_u32 s7, s7, s8
    v_lshrrev_b32 v20, 2, v127
    v_lshlrev_b32 v20, 6, v20
    v_and_b32 v21, 3, v127
    v_bfe_u32 v22, v127, 4, 2
    v_xor_b32 v21, v21, v22
    v_lshl_add_u32 v20, v21, 4, v20
    v_add_u32 v{DM}, s7, v20
    v_add_u32 v{DM+1}, 1024, v{DM}
    s_lshl_b32 s7, s4, 17
    s_add_u32 s7, s7, {WS_VT}
    s_lshl_b32 s8, s56, 1
    """)
    for j in range(2):
        e(f"""
        s_add_u32 s9, s8, {j}
        s_and_b32 s12, s9, 15
        v_xor_b32 v22, s12, v127
        s_lshl_b32 s9, s9, 12
        s_add_u32 s9, s9, s7
        v_lshl_add_u32 v{DM+2+j}, v22, 4, s9
        """)
    e("""
    v_bfe_u32 v20, v127, 2, 2
    v_lshlrev_b32 v21, 6, v17
    s_lshl_b32 s9, s58, 14
    v_add_u32 v21, s9, v21
    """)
    for ks in range(2):
        e(f"v_or_b32 v22, {2*ks}, v18")
        e("v_xor_b32 v22, v22, v20")
        e(f"v_lshl_add_u32 v{KA+ks}, v22, 4, v21")
    e("v_and_b32 v20, 15, v127\nv_lshlrev_b32 v21, 10, v17\ns_lshl_b32 s9, s58, 9\ns_add_u32 s9, s9, 32768\nv_add_u32 v21, s9, v21")
    for c in range(8):
        e(f"v_or_b32 v22, {2*c}, v18")
        e("v_xor_b32 v22, v22, v20")
        e(f"v_lshl_add_u32 v{VA+c}, v22, 4, v21")
    def dma():
        for j in range(2):
            e(f"s_add_u32 m0, s54, {j*1024}\ns_nop 0")
            e(f"buffer_load_dwordx4 v{DM+j}, s[40:43], s52 offen lds")
        for j in range(2):
            e(f"s_add_u32 m0, s54, {32768 + j*1024}\ns_nop 0")
            e(f"buffer_load_dwordx4 v{DM+2+j}, s[40:43], s53 offen lds")
    KF = [72, 80]; VF = [88, 96]; SB = [16, 32]; P = 104
    def kread(tile):
        kf = KF[tile & 1]
        for ks in range(2):
            e(f"ds_read_b128 v[{kf+4*ks}:{kf+3+4*ks}], v{KA+ks} offset:{tile*2048}")
    def vread(tile):
        vf = VF[tile & 1]
        for c in range(2):
            cc = 2*tile + c
            e(f"ds_read_b128 v[{vf+4*c}:{vf+3+4*c}], v{VA + (cc&7)} offset:{(cc>>3)*256}")
    def smfma(tile):
        kf = KF[tile & 1]; S = SB[tile & 1]
        e(f"v_mfma_f32_32x32x16_bf16 v[{S}:{S+15}], v[{kf}:{kf+3}], v[64:67], v[48:63]")
        e(f"v_mfma_f32_32x32x16_bf16 v[{S}:{S+15}], v[{kf+4}:{kf+7}], v[68:71], v[{S}:{S+15}]")
    AR = [KA, KA+1] + list(range(VA, VA+8))
    def maxchain(S):
        e(f"v_max3_f32 v{P}, v{S}, v{S+1}, v{S+2}")
        for i in range(3, 15, 2):
            e(f"v_max3_f32 v{P}, v{P}, v{S+i}, v{S+i+1}")
        e(f"v_max_f32 v{P}, v{P}, v{S+15}")
    def mainloop(fast, tg):
        e("s_lshl_b32 s54, s56, 11\ns_mov_b32 s52, 0\ns_mov_b32 s53, 0")
        for i in range(16):
            e(f"v_mov_b32 v{i}, 0")
            e(f"v_mov_b32 v{48+i}, 0")
        e("v_mov_b32 v126, 0xff800000\ns_mov_b64 s[34:35], -1")
        dma()
        e(f"s_mov_b32 s30, 0\nAT_LOOP{tg}:")
        e("s_add_u32 s52, s52, 32768\ns_add_u32 s53, s53, 1024\ns_xor_b32 s54, s54, 0x10000")
        dma()
        e("s_waitcnt vmcnt(4)\ns_barrier")
        kread(0); kread(1); vread(0)
        e("s_waitcnt lgkmcnt(4)")
        smfma(0)
        e(f"s_nop 7\ns_mov_b32 s31, 0\nAT_IN{tg}:")
        for tile in range(4):
            S = SB[tile & 1]; vf = VF[tile & 1]
            e("s_waitcnt lgkmcnt(2)")
            smfma(tile + 1)
            kread(tile + 2)
            vread(tile + 1)
            if not fast:
                maxchain(S)
                e(f"v_cmp_lt_f32 vcc, 0x41000000, v{P}")
                e("s_or_b64 vcc, vcc, s[34:35]")
                e(f"s_cbranch_vccnz AT_SLOW{tg}{tile}")
            elif tile == 0:
                e("s_cmp_lg_u32 s34, 0")
                e(f"s_cbranch_scc1 AT_SLOW{tg}{tile}")
            e(f"AT_F{tg}{tile}:")
            for i in range(16):
                e(f"v_exp_f32 v{S+i}, v{S+i}")
            for i in range(8):
                e(f"v_cvt_pk_bf16_f32 v{P+i}, v{S+2*i}, v{S+1+2*i}")
            e("s_waitcnt lgkmcnt(4)\ns_nop 1")
            e(f"v_mfma_f32_32x32x16_bf16 v[0:15], v[{vf}:{vf+3}], v[{P}:{P+3}], v[0:15]")
            e(f"v_mfma_f32_32x32x16_bf16 v[0:15], v[{vf+4}:{vf+7}], v[{P+4}:{P+7}], v[0:15]")
        e(f"v_add_u32 v{KA}, 8192, v{KA}\nv_add_u32 v{KA+1}, 8192, v{KA+1}")
        for r in range(VA, VA+8):
            e(f"v_add_u32 v{r}, 256, v{r}")
        e(f"s_add_u32 s31, s31, 1\ns_cmp_lt_u32 s31, 2\ns_cbranch_scc1 AT_IN{tg}")
        e(f"v_subrev_u32 v{KA}, 16384, v{KA}\nv_subrev_u32 v{KA+1}, 16384, v{KA+1}")
        for r in range(VA, VA+8):
            e(f"v_subrev_u32 v{r}, 512, v{r}")
        for r in AR:
            e(f"v_xor_b32 v{r}, 0x10000, v{r}")
        e("s_waitcnt lgkmcnt(0)\ns_barrier")
        e(f"s_add_u32 s30, s30, 1\ns_cmp_lt_u32 s30, 4\ns_cbranch_scc1 AT_LOOP{tg}")
        e(f"s_branch AT_FIN{tg}")
        for tile in range(4 if not fast else 1):
            S = SB[tile & 1]; S2 = SB[(tile & 1) ^ 1]
            e(f"AT_SLOW{tg}{tile}:")
            if fast: maxchain(S)
            e(f"v_mov_b32 v{P+1}, v{P}\ns_nop 1")
            e(f"v_permlane32_swap_b32 v{P}, v{P+1}")
            e("s_nop 1")
            e(f"v_max3_f32 v{P}, v{P}, v{P+1}, v126")
            e("v_mov_b32 v126, 0\ns_mov_b64 s[34:35], 0")
            e(f"v_exp_f32 v{P+1}, -v{P}")
            e("s_nop 7\ns_nop 7")
            for i in range(16):
                e(f"v_sub_f32 v{S+i}, v{S+i}, v{P}")
                e(f"v_sub_f32 v{48+i}, v{48+i}, v{P}")
                e(f"v_mul_f32 v{i}, v{i}, v{P+1}")
                e(f"v_sub_f32 v{S2+i}, v{S2+i}, v{P}")
            e(f"s_branch AT_F{tg}{tile}")
        e(f"AT_FIN{tg}:\ns_waitcnt vmcnt(0)\ns_nop 15")
    mainloop(True, "A")
    e("""
    s_barrier
    v_mov_b32 v16, 0x71800000
    v_cmp_nlt_f32 vcc, v10, v16
    s_cmp_lg_u64 vcc, 0
    s_cselect_b32 s6, 1, 0
    v_mov_b32 v16, s6
    s_lshl_b32 s6, s56, 2
    s_add_u32 s6, s6, 65536
    v_mov_b32 v17, s6
    ds_write_b32 v17, v16
    v_and_b32 v17, 15, v127
    v_lshlrev_b32 v17, 2, v17
    v_add_u32 v17, 65536, v17
    s_waitcnt lgkmcnt(0)
    s_barrier
    ds_read_b32 v16, v17
    s_waitcnt lgkmcnt(0)
    v_cmp_ne_u32 vcc, 0, v16
    s_cbranch_vccz AT_MERGE
    s_barrier
    """)
    mainloop(False, "B")
    e("AT_MERGE:")
    e("""
    s_lshl_b32 s6, s57, 6
    v_add_u32 v16, s6, v127
    v_lshlrev_b32 v16, 6, v16
    s_barrier
    s_cmp_eq_u32 s58, 0
    s_cbranch_scc1 AT_MRG
    ds_write_b128 v16, v[0:3]
    ds_write_b128 v16, v[4:7] offset:16
    ds_write_b128 v16, v[8:11] offset:32
    ds_write_b32 v16, v48 offset:48
    s_waitcnt lgkmcnt(0)
    s_barrier
    s_branch AT_END
    AT_MRG:
    s_barrier
    ds_read_b128 v[20:23], v16
    ds_read_b128 v[24:27], v16 offset:16
    ds_read_b128 v[28:31], v16 offset:32
    ds_read_b32 v32, v16 offset:48
    s_waitcnt lgkmcnt(0)
    v_min_f32 v33, v48, v32
    v_sub_f32 v34, v33, v48
    v_sub_f32 v35, v33, v32
    v_exp_f32 v34, v34
    v_exp_f32 v35, v35
    s_nop 1
    """)
    for i in range(12):
        e(f"v_mul_f32 v{i}, v{i}, v34")
        e(f"v_fmac_f32 v{i}, v{20+i}, v35")
    e(f"""
    v_and_b32 v17, 31, v127
    v_lshrrev_b32 v18, 5, v127
    v_rcp_f32 v33, v10
    s_lshl_b32 s6, s5, 8
    s_lshl_b32 s7, s57, 5
    s_add_u32 s6, s6, s7
    s_lshr_b32 s6, s6, 5
    s_mul_i32 s6, s6, 331776
    s_add_u32 s6, s6, {WS_H}
    v_lshl_add_u32 v19, v17, 4, s6
    s_mul_i32 s8, s4, 18
    s_add_u32 s8, s8, 4608
    v_lshl_add_u32 v41, v18, 2, s8
    """)
    for i in range(10):
        e(f"v_mul_f32 v{i}, v{i}, v33")
    def oaddr(dst, c):
        e(f"v_add_u32 v{dst}, {c}, v41")
        e(f"v_lshrrev_b32 v46, 3, v{dst}")
        e(f"v_and_b32 v{dst}, 7, v{dst}")
        e(f"v_lshl_add_u32 v{dst}, v{dst}, 1, v19")
        e(f"v_lshl_add_u32 v{dst}, v46, 9, v{dst}")
    for q in range(2):
        e(f"v_cvt_pk_bf16_f32 v{36+2*q}, v{4*q}, v{4*q+1}")
        e(f"v_cvt_pk_bf16_f32 v{37+2*q}, v{4*q+2}, v{4*q+3}")
        oaddr(42+2*q, 8*q); oaddr(43+2*q, 8*q+2)
        e(f"buffer_store_dword v{36+2*q}, v{42+2*q}, s[40:43], 0 offen")
        e(f"buffer_store_dword v{37+2*q}, v{43+2*q}, s[40:43], 0 offen")
    oaddr(47, 16)
    e("""
    v_cvt_pk_bf16_f32 v40, v8, v9
    v_cmp_eq_u32 vcc, 0, v18
    s_and_saveexec_b64 s[24:25], vcc
    s_cbranch_execz AT_SK
    buffer_store_dword v40, v47, s[40:43], 0 offen
    AT_SK:
    s_or_b64 exec, exec, s[24:25]
    AT_END:
    s_endpgm
    """)

def gen_attn8(e, standalone=True):
    if standalone: header(e, "attn_kernel")
    KA = 112; VA = 114; DM = 122
    e(f"""
    s_cmp_ge_u32 s2, 256
    s_cbranch_scc1 AT_END
    s_load_dwordx2 s[10:11], s[0:1], 72
    s_and_b32 s4, s2, 7
    s_lshl_b32 s4, s4, 2
    s_bfe_u32 s5, s2, 0x20003
    s_add_u32 s4, s4, s5          ; head
    s_lshr_b32 s5, s2, 5          ; qblock
    v_and_b32 v127, 63, v0
    v_lshrrev_b32 v16, 6, v0
    s_nop 0
    v_readfirstlane_b32 s56, v16
    v_and_b32 v17, 31, v127      ; l32
    v_lshrrev_b32 v18, 5, v127   ; h
    s_mov_b32 s57, s56           ; qt
    s_waitcnt lgkmcnt(0)
    """)
    srd(e, 40, 10, 11, WS_SIZE)
    e(f"""
    s_lshl_b32 s6, s4, 11
    s_lshl_b32 s7, s5, 8
    s_add_u32 s6, s6, s7
    s_lshl_b32 s7, s57, 5
    s_add_u32 s6, s6, s7
    v_add_u32 v19, s6, v17
    v_lshlrev_b32 v19, 6, v19
    v_lshl_add_u32 v19, v18, 4, v19
    v_add_u32 v19, {WS_QP}, v19
    buffer_load_dwordx4 v[64:67], v19, s[40:43], 0 offen
    buffer_load_dwordx4 v[68:71], v19, s[40:43], 0 offen offset:32
    s_lshl_b32 s7, s4, 17
    s_add_u32 s7, s7, {WS_KP}
    s_lshl_b32 s8, s56, 11
    s_add_u32 s7, s7, s8
    v_lshrrev_b32 v20, 2, v127
    v_lshlrev_b32 v20, 6, v20
    v_and_b32 v21, 3, v127
    v_bfe_u32 v22, v127, 4, 2
    v_xor_b32 v21, v21, v22
    v_lshl_add_u32 v20, v21, 4, v20
    v_add_u32 v{DM}, s7, v20
    v_add_u32 v{DM+1}, 1024, v{DM}
    s_lshl_b32 s7, s4, 17
    s_add_u32 s7, s7, {WS_VT}
    s_lshl_b32 s8, s56, 2
    v_and_b32 v23, 31, v127
    """)
    for j in range(2):
        e(f"""
        s_add_u32 s9, s8, {2*j}
        v_add_u32 v20, s9, v18
        v_and_b32 v21, 15, v20
        v_xor_b32 v21, v21, v23
        v_lshlrev_b32 v20, 12, v20
        v_lshl_add_u32 v20, v21, 4, v20
        v_add_u32 v{DM+2+j}, s7, v20
        """)
    e("""
    v_bfe_u32 v20, v127, 2, 2
    v_lshlrev_b32 v21, 6, v17
    """)
    for ks in range(2):
        e(f"v_or_b32 v22, {2*ks}, v18")
        e("v_xor_b32 v22, v22, v20")
        e(f"v_lshl_add_u32 v{KA+ks}, v22, 4, v21")
    e("v_and_b32 v20, 15, v127\nv_lshlrev_b32 v21, 9, v17\nv_add_u32 v21, 16384, v21")
    for c in range(8):
        e(f"v_or_b32 v22, {2*c}, v18")
        e("v_xor_b32 v22, v22, v20")
        e(f"v_lshl_add_u32 v{VA+c}, v22, 4, v21")
    def dma():
        for j in range(2):
            e(f"s_add_u32 m0, s54, {j*1024}\ns_nop 0")
            e(f"buffer_load_dwordx4 v{DM+j}, s[40:43], s52 offen lds")
        for j in range(2):
            e(f"s_add_u32 m0, s54, {16384 + j*1024}\ns_nop 0")
            e(f"buffer_load_dwordx4 v{DM+2+j}, s[40:43], s53 offen lds")
    KF = [72, 80]; VF = [88, 96]; SB = [16, 32]; P = 104
    def kread(tile):
        kf = KF[tile & 1]
        for ks in range(2):
            e(f"ds_read_b128 v[{kf+4*ks}:{kf+3+4*ks}], v{KA+ks} offset:{tile*2048}")
    def vread(tile):
        vf = VF[tile & 1]
        for c in range(2):
            cc = 2*tile + c
            e(f"ds_read_b128 v[{vf+4*c}:{vf+3+4*c}], v{VA + (cc&7)} offset:{(cc>>3)*256}")
    def smfma(tile):
        kf = KF[tile & 1]; S = SB[tile & 1]
        e(f"v_mfma_f32_32x32x16_bf16 v[{S}:{S+15}], v[{kf}:{kf+3}], v[64:67], v[48:63]")
        e(f"v_mfma_f32_32x32x16_bf16 v[{S}:{S+15}], v[{kf+4}:{kf+7}], v[68:71], v[{S}:{S+15}]")
    AR = [KA, KA+1] + list(range(VA, VA+8))
    def maxchain(S):
        e(f"v_max3_f32 v{P}, v{S}, v{S+1}, v{S+2}")
        for i in range(3, 15, 2):
            e(f"v_max3_f32 v{P}, v{P}, v{S+i}, v{S+i+1}")
        e(f"v_max_f32 v{P}, v{P}, v{S+15}")
    def mainloop(fast, tg):
        e("s_lshl_b32 s54, s56, 11\ns_mov_b32 s52, 0\ns_mov_b32 s53, 0")
        for i in range(16):
            e(f"v_mov_b32 v{i}, 0")
            e(f"v_mov_b32 v{48+i}, 0")
        e("v_mov_b32 v126, 0xff800000\ns_mov_b64 s[34:35], -1")
        dma()
        e(f"s_mov_b32 s30, 0\nAT_LOOP{tg}:")
        e("s_add_u32 s52, s52, 16384\ns_add_u32 s53, s53, 512\ns_xor_b32 s54, s54, 0x8000")
        dma()
        e("s_waitcnt vmcnt(4)\ns_barrier")
        kread(0); kread(1); vread(0)
        e("s_waitcnt lgkmcnt(4)")
        smfma(0)
        e(f"s_nop 7\ns_mov_b32 s31, 0\nAT_IN{tg}:")
        for tile in range(4):
            S = SB[tile & 1]; vf = VF[tile & 1]
            e("s_waitcnt lgkmcnt(2)")
            smfma(tile + 1)
            kread(tile + 2)
            vread(tile + 1)
            if not fast:
                maxchain(S)
                e(f"v_cmp_lt_f32 vcc, 0x41000000, v{P}")
                e("s_or_b64 vcc, vcc, s[34:35]")
                e(f"s_cbranch_vccnz AT_SLOW{tg}{tile}")
            elif tile == 0:
                e("s_cmp_lg_u32 s34, 0")
                e(f"s_cbranch_scc1 AT_SLOW{tg}{tile}")
            e(f"AT_F{tg}{tile}:")
            for i in range(16):
                e(f"v_exp_f32 v{S+i}, v{S+i}")
            for i in range(8):
                e(f"v_cvt_pk_bf16_f32 v{P+i}, v{S+2*i}, v{S+1+2*i}")
            e("s_waitcnt lgkmcnt(4)\ns_nop 1")
            e(f"v_mfma_f32_32x32x16_bf16 v[0:15], v[{vf}:{vf+3}], v[{P}:{P+3}], v[0:15]")
            e(f"v_mfma_f32_32x32x16_bf16 v[0:15], v[{vf+4}:{vf+7}], v[{P+4}:{P+7}], v[0:15]")
        e(f"v_add_u32 v{KA}, 8192, v{KA}\nv_add_u32 v{KA+1}, 8192, v{KA+1}")
        for r in range(VA, VA+8):
            e(f"v_add_u32 v{r}, 256, v{r}")
        e(f"s_add_u32 s31, s31, 1\ns_cmp_lt_u32 s31, 2\ns_cbranch_scc1 AT_IN{tg}")
        e(f"v_subrev_u32 v{KA}, 16384, v{KA}\nv_subrev_u32 v{KA+1}, 16384, v{KA+1}")
        for r in range(VA, VA+8):
            e(f"v_subrev_u32 v{r}, 512, v{r}")
        for r in AR:
            e(f"v_xor_b32 v{r}, 0x8000, v{r}")
        e("s_waitcnt lgkmcnt(0)\ns_barrier")
        e(f"s_add_u32 s30, s30, 1\ns_cmp_lt_u32 s30, 8\ns_cbranch_scc1 AT_LOOP{tg}")
        e(f"s_branch AT_FIN{tg}")
        for tile in range(4 if not fast else 1):
            S = SB[tile & 1]; S2 = SB[(tile & 1) ^ 1]
            e(f"AT_SLOW{tg}{tile}:")
            if fast: maxchain(S)
            e(f"v_mov_b32 v{P+1}, v{P}\ns_nop 1")
            e(f"v_permlane32_swap_b32 v{P}, v{P+1}")
            e("s_nop 1")
            e(f"v_max3_f32 v{P}, v{P}, v{P+1}, v126")
            e("v_mov_b32 v126, 0\ns_mov_b64 s[34:35], 0")
            e(f"v_exp_f32 v{P+1}, -v{P}")
            e("s_nop 7\ns_nop 7")
            for i in range(16):
                e(f"v_sub_f32 v{S+i}, v{S+i}, v{P}")
                e(f"v_sub_f32 v{48+i}, v{48+i}, v{P}")
                e(f"v_mul_f32 v{i}, v{i}, v{P+1}")
                e(f"v_sub_f32 v{S2+i}, v{S2+i}, v{P}")
            e(f"s_branch AT_F{tg}{tile}")
        e(f"AT_FIN{tg}:\ns_waitcnt vmcnt(0)\ns_nop 15")
    mainloop(True, "A")
    e("""
    s_barrier
    v_mov_b32 v16, 0x71800000
    v_cmp_nlt_f32 vcc, v10, v16
    s_cmp_lg_u64 vcc, 0
    s_cselect_b32 s6, 1, 0
    v_mov_b32 v16, s6
    s_lshl_b32 s6, s56, 2
    s_add_u32 s6, s6, 65536
    v_mov_b32 v17, s6
    ds_write_b32 v17, v16
    v_and_b32 v17, 7, v127
    v_lshlrev_b32 v17, 2, v17
    v_add_u32 v17, 65536, v17
    s_waitcnt lgkmcnt(0)
    s_barrier
    ds_read_b32 v16, v17
    s_waitcnt lgkmcnt(0)
    v_cmp_ne_u32 vcc, 0, v16
    s_cbranch_vccz AT_MERGE
    s_barrier
    """)
    mainloop(False, "B")
    e("AT_MERGE:")
    e(f"""
    v_and_b32 v17, 31, v127
    v_lshrrev_b32 v18, 5, v127
    v_rcp_f32 v33, v10
    s_lshl_b32 s6, s5, 8
    s_lshl_b32 s7, s57, 5
    s_add_u32 s6, s6, s7
    s_lshr_b32 s6, s6, 5
    s_mul_i32 s6, s6, 331776
    s_add_u32 s6, s6, {WS_H}
    v_lshl_add_u32 v19, v17, 4, s6
    s_mul_i32 s8, s4, 18
    s_add_u32 s8, s8, 4608
    v_lshl_add_u32 v41, v18, 2, s8
    """)
    for i in range(10):
        e(f"v_mul_f32 v{i}, v{i}, v33")
    def oaddr(dst, c):
        e(f"v_add_u32 v{dst}, {c}, v41")
        e(f"v_lshrrev_b32 v46, 3, v{dst}")
        e(f"v_and_b32 v{dst}, 7, v{dst}")
        e(f"v_lshl_add_u32 v{dst}, v{dst}, 1, v19")
        e(f"v_lshl_add_u32 v{dst}, v46, 9, v{dst}")
    for q in range(2):
        e(f"v_cvt_pk_bf16_f32 v{36+2*q}, v{4*q}, v{4*q+1}")
        e(f"v_cvt_pk_bf16_f32 v{37+2*q}, v{4*q+2}, v{4*q+3}")
        oaddr(42+2*q, 8*q); oaddr(43+2*q, 8*q+2)
        e(f"buffer_store_dword v{36+2*q}, v{42+2*q}, s[40:43], 0 offen")
        e(f"buffer_store_dword v{37+2*q}, v{43+2*q}, s[40:43], 0 offen")
    oaddr(47, 16)
    e("""
    v_cvt_pk_bf16_f32 v40, v8, v9
    v_cmp_eq_u32 vcc, 0, v18
    s_and_saveexec_b64 s[24:25], vcc
    s_cbranch_execz AT_SK
    buffer_store_dword v40, v47, s[40:43], 0 offen
    AT_SK:
    s_or_b64 exec, exec, s[24:25]
    s_waitcnt vmcnt(0)
    """)
    ts_end(e, "a")
    e("AT_END:\ns_endpgm")

def main():
    e = E()
    hdr = open("parallel_sum__mha_block__glu_gated_swiglu__prompt.s.ref").read().split("; Override")[0]
    txt = hdr
    txt += "; @launch kernel=ln_kernel grid=(704,1,1) block=(256,1,1) lds=0\n"
    txt += f"; @launch kernel=gemm1_kernel grid=(256,1,1) block=(512,1,1) lds=163840\n"
    txt += "; @launch kernel=attn_kernel grid=(512,1,1) block=(512,1,1) lds=77824\n"
    txt += "; @launch kernel=fin_kernel grid=(192,1,1) block=(256,1,1) lds=135168\n"
    txt += '.amdgcn_target "amdgcn-amd-amdhsa--gfx950"\n.text\n'
    gen_ln(e); gen_gemm1(e)
    header(e, "attn_kernel")
    if "TS" in sys.argv: e("s_memrealtime s[70:71]\ns_memtime s[80:81]\ns_mov_b32 s74, s2")
    if "MAPB" in sys.argv:
        e("""
        s_bfe_u32 s3, s2, 0x10003
        s_and_b32 s4, s2, 7
        s_lshr_b32 s2, s2, 4
        s_lshl_b32 s2, s2, 3
        s_or_b32 s2, s2, s4
        s_cmp_lg_u32 s3, 0
        s_cbranch_scc1 G2_START
        """)
    elif "MAPC" in sys.argv:
        e("""
        s_cmp_lt_u32 s2, 256
        s_cbranch_scc1 G2_START
        s_sub_u32 s2, s2, 256
        """)
    else:
        e("""
        s_cmp_lt_u32 s2, 256
        s_cbranch_scc1 AT_START
        s_sub_u32 s2, s2, 256
        s_branch G2_START
        AT_START:
        """)
    if "PA" in sys.argv: e("s_setprio 2")
    if "NOAT" in sys.argv: e("s_endpgm")
    gen_attn8(e, False); gen_gemm2h(e); gen_fin2(e)
    txt += e.text()
    txt += kd("ln_kernel", 80) + kd("gemm1_kernel", 256) + kd("attn_kernel", 128) + kd("fin_kernel", 244)
    open(OUT, "w").write(txt)
    print("wrote", len(txt))
main()
```

```python
import sys
OUT = "parallel_sum__mha_block__glu_gated_swiglu__prompt.s" if len(sys.argv)<2 else "var_"+sys.argv[1]+".s"

MB = 1 << 20
WS_XN = 0
WS_QP = 4 * MB
WS_KP = 8 * MB
WS_VT = 12 * MB
WS_H = 16 * MB
WS_O = 40 * MB
WS_SIZE = 268435456
WS_CNT = 47 * MB

S_, D_, F_, H_ = 2048, 576, 4608, 32
LOG2E = 1.4426950408889634
QSCALE = LOG2E * (18 ** -0.5)

import struct
def f2u(x):
    return struct.unpack("<I", struct.pack("<f", x))[0]

class E:
    def __init__(self):
        self.l = []
    def __call__(self, s):
        for ln in s.strip("\n").split("\n"):
            self.l.append("  " + ln.strip() if not ln.strip().endswith(":") else ln.strip())
    def text(self):
        return "\n".join(self.l) + "\n"

def srd(e, d, base_lo, base_hi, nbytes):
    e(f"s_mov_b32 s{d}, s{base_lo}")
    e(f"s_and_b32 s{d+1}, s{base_hi}, 0xffff")
    e(f"s_mov_b32 s{d+2}, {nbytes}")
    e(f"s_mov_b32 s{d+3}, 0x00020000")

def header(e, name):
    e(f".globl {name}\n.p2align 8\n.type {name},@function\n{name}:")

def kd(name, vgpr, sgpr=102):
    acc = (vgpr + 3) // 4 * 4
    return f""".section .rodata,"a"
.p2align 6
.amdhsa_kernel {name}
  .amdhsa_next_free_vgpr {vgpr}
  .amdhsa_next_free_sgpr {sgpr}
  .amdhsa_accum_offset {acc}
  .amdhsa_group_segment_fixed_size 0
  .amdhsa_kernarg_size 80
  .amdhsa_user_sgpr_count 2
  .amdhsa_user_sgpr_kernarg_segment_ptr 1
  .amdhsa_system_sgpr_workgroup_id_x 1
.end_amdhsa_kernel
"""

def gen_ln(e):
    header(e, "ln_kernel")
    PF = ((28, D_*F_*2), (30, D_*F_*2), (26, D_*1728*2))
    def prefetch():
        if "PF" not in sys.argv: return
        for n_, (lo, nb) in enumerate(PF):
            srd(e, 32, lo, lo+1, nb)
            e(f"buffer_load_dword v{71+n_}, v70, s[32:35], 0 offen")
    e("""
    s_cmp_ge_u32 s2, 704
    s_cbranch_scc1 LN_END
    s_load_dwordx2 s[4:5], s[0:1], 0
    s_load_dwordx2 s[6:7], s[0:1], 72
    s_load_dwordx2 s[26:27], s[0:1], 8
    s_load_dwordx2 s[28:29], s[0:1], 32
    s_load_dwordx2 s[30:31], s[0:1], 40
    s_lshl_b32 s3, s2, 8
    v_add_u32 v1, s3, v0
    v_lshlrev_b32 v70, 5, v1
    v_lshrrev_b32 v2, 5, v1
    v_and_b32 v3, 31, v1
    s_movk_i32 s20, 1152
    v_mul_lo_u32 v4, v2, s20
    v_lshl_add_u32 v4, v3, 2, v4
    s_waitcnt lgkmcnt(0)
    """)
    srd(e, 12, 6, 7, WS_SIZE)
    e("s_cmp_lt_u32 s2, 256\ns_cbranch_scc1 LN_MAIN")
    e(f"""
    s_cmp_lg_u32 s2, 256
    s_cbranch_scc1 LN_NZ
    v_lshlrev_b32 v60, 2, v0
    v_add_u32 v60, {WS_CNT}, v60
    v_mov_b32 v61, 0
    buffer_store_dword v61, v60, s[12:15], 0 offen
    LN_NZ:
    """)
    prefetch()
    magic = -(-(1 << 32) // 3584)
    e(f"""
    v_subrev_u32 v30, 65536, v1
    s_mov_b32 s21, {magic}
    v_mul_hi_u32 v31, v30, s21
    s_movk_i32 s21, 3584
    v_mul_lo_u32 v32, v31, s21
    v_sub_u32 v32, v30, v32
    v_lshrrev_b32 v33, 8, v32
    v_and_b32 v34, 255, v32
    v_add_u32 v33, 18, v33
    v_lshl_add_u32 v35, v31, 5, v33
    v_lshlrev_b32 v35, 12, v35
    v_lshl_add_u32 v35, v34, 4, v35
    v_add_u32 v35, {WS_VT}, v35
    v_cmp_eq_u32 vcc, 18, v33
    v_cmp_eq_u32 s[22:23], 22, v33
    s_or_b64 vcc, vcc, s[22:23]
    v_mov_b32 v36, 0x3f803f80
    s_nop 1
    v_cndmask_b32 v44, 0, v36, vcc
    v_mov_b32 v45, v44
    v_mov_b32 v46, v44
    v_mov_b32 v47, v44
    v_cmp_gt_u32 vcc, 114688, v30
    s_and_saveexec_b64 s[24:25], vcc
    s_cbranch_execz LN_END
    buffer_store_dwordx4 v[44:47], v35, s[12:15], 0 offen
    s_branch LN_END
    LN_MAIN:
    """)
    srd(e, 8, 4, 5, S_ * D_ * 2)
    for i in range(9):
        e(f"buffer_load_dword v{10+i}, v4, s[8:11], 0 offen offset:{128*i}")
    prefetch()
    e(f"s_waitcnt vmcnt({0 if 'PF' not in sys.argv else len(PF)})")
    for i in range(9):
        e(f"v_lshlrev_b32 v{50+2*i}, 16, v{10+i}")
        e(f"v_and_b32 v{51+2*i}, 0xffff0000, v{10+i}")
    e("v_add_f32 v20, v50, v51")
    for i in range(2, 18):
        e(f"v_add_f32 v20, v20, v{50+i}")
    def red(v):
        for x in (1, 2, 4, 8, 16):
            e(f"ds_swizzle_b32 v21, v{v} offset:{(x<<10)|0x1f}")
            e("s_waitcnt lgkmcnt(0)")
            e(f"v_add_f32 v{v}, v{v}, v21")
    red(20)
    e(f"v_mul_f32 v20, {hex(f2u(1.0/576))}, v20")
    for i in range(18):
        e(f"v_sub_f32 v{50+i}, v{50+i}, v20")
    e("v_mul_f32 v22, v50, v50")
    for i in range(1, 18):
        e(f"v_fmac_f32 v22, v{50+i}, v{50+i}")
    red(22)
    e(f"v_mov_b32 v23, {hex(f2u(1e-5))}")
    e(f"v_fmac_f32 v23, {hex(f2u(1.0/576))}, v22")
    e("v_rsq_f32 v23, v23")
    e("s_nop 1")
    for i in range(18):
        e(f"v_mul_f32 v{50+i}, v{50+i}, v23")
    for i in range(9):
        e(f"v_cvt_pk_bf16_f32 v{10+i}, v{50+2*i}, v{51+2*i}")
    e("""
    v_lshrrev_b32 v5, 5, v2
    v_mul_u32_u24 v5, 36864, v5
    v_and_b32 v6, 31, v2
    v_lshl_add_u32 v5, v6, 4, v5
    v_lshrrev_b32 v6, 3, v3
    v_lshl_add_u32 v5, v6, 10, v5
    v_bfe_u32 v6, v3, 2, 1
    v_lshl_add_u32 v5, v6, 9, v5
    v_and_b32 v6, 3, v3
    v_lshl_add_u32 v5, v6, 2, v5
    """)
    for i in range(9):
        e(f"s_mov_b32 s20, {4096*i}")
        e(f"buffer_store_dword v{10+i}, v5, s[12:15], s20 offen")
    e("LN_END:\ns_endpgm")

ACC = 0
def acc(p, t):
    b = ACC + p * 32 + t * 16
    return f"v[{b}:{b+15}]"

def gemm_dma(e, buf):
    if "NODMA" in sys.argv: return
    sb = buf * 16384
    for i in range(2):
        e(f"s_add_u32 m0, s54, {sb + i*1024}")
        e("s_nop 0")
        e(f"buffer_load_dwordx4 v{96+i}, s[40:43], s52 offen lds")
    for p in range(2):
        e(f"s_add_u32 m0, s55, {sb + p*4096}")
        e("s_nop 0")
        e(f"buffer_load_dwordx4 v100, s[{44+4*p}:{47+4*p}], s53 offen lds")

def gemm_reads(e, buf, ks):
    fs = 64 + (ks & 1) * 16
    sb = buf * 16384
    for p in range(2):
        for h2 in range(2):
            e(f"ds_read_b64_tr_b16 v[{fs+4*p+2*h2}:{fs+4*p+2*h2+1}], v106 offset:{sb + p*4096 + ks*2048 + h2*512}")
    for t in range(2):
        e(f"ds_read_b128 v[{fs+8+4*t}:{fs+11+4*t}], v{102+ks} offset:{sb + t*2048}")

SWAP = [False]
def gemm_compute(e, buf):
    gemm_reads(e, buf, 0)
    for ks in range(2):
        if ks < 1:
            gemm_reads(e, buf, ks + 1)
            e("s_waitcnt lgkmcnt(6)")
        else:
            e("s_waitcnt lgkmcnt(0)")
        fs = 64 + (ks & 1) * 16
        for p in range(2):
            for t in range(2):
                wfr = f"v[{fs+4*p}:{fs+4*p+3}]"; xfr = f"v[{fs+8+4*t}:{fs+11+4*t}]"
                if SWAP[0]: wfr, xfr = xfr, wfr
                if "NOMF" not in sys.argv: e(f"v_mfma_f32_32x32x16_bf16 {acc(p,t)}, {wfr}, {xfr}, {acc(p,t)}")

def gemm_setup_common(e, m0_sreg):
    e("""
    v_and_b32 v107, 63, v0
    v_lshrrev_b32 v108, 6, v0
    s_nop 0
    v_readfirstlane_b32 s56, v108
    """)
    for i in range(64):
        e(f"v_mov_b32 v{i}, 0")
    e("""
    s_lshr_b32 s57, s56, 1
    s_and_b32 s58, s56, 1
    v_and_b32 v108, 31, v107
    v_lshrrev_b32 v109, 5, v107
    v_bfe_u32 v110, v107, 2, 2
    s_lshl_b32 s59, s57, 12
    v_lshlrev_b32 v111, 6, v108
    v_add_u32 v111, s59, v111
    """)
    for ks in range(2):
        e(f"v_or_b32 v112, {2*ks}, v109")
        e("v_xor_b32 v112, v112, v110")
        e(f"v_lshl_add_u32 v{102+ks}, v112, 4, v111")
    e("""
    v_bfe_u32 v108, v107, 2, 2
    v_lshl_add_u32 v108, v109, 3, v108
    v_lshlrev_b32 v108, 7, v108
    v_bfe_u32 v110, v107, 3, 1
    v_xor_b32 v110, s58, v110
    v_lshl_add_u32 v108, v110, 6, v108
    v_bfe_u32 v110, v107, 4, 1
    v_lshl_add_u32 v108, v110, 5, v108
    v_and_b32 v110, 3, v107
    v_lshl_add_u32 v108, v110, 3, v108
    v_add_u32 v106, 8192, v108
    s_lshl_b32 s54, s56, 11
    s_lshl_b32 s55, s56, 10
    s_add_u32 s55, s55, 8192
    """)

def gemm_setup_x(e, m0_sreg, stride_sreg):
    e(f"""
    s_lshl_b32 s59, s56, 5
    s_add_u32 s59, s59, s{m0_sreg}
    v_lshrrev_b32 v108, 2, v107
    v_add_u32 v108, s59, v108
    v_and_b32 v109, 3, v107
    v_bfe_u32 v110, v107, 4, 2
    v_xor_b32 v112, v109, v110
    """)
    for i in range(2):
        e(f"v_add_u32 v111, {16*i}, v108")
        e(f"v_mul_lo_u32 v111, v111, s{stride_sreg}")
        e(f"v_lshl_add_u32 v{96+i}, v112, 4, v111")

def gemm_setup_w(e, ncol_sreg, stride_sreg):
    e(f"""
    s_lshl_b32 s59, s56, 3
    v_lshrrev_b32 v108, 3, v107
    v_add_u32 v108, s59, v108
    v_and_b32 v109, 7, v107
    v_bfe_u32 v110, v107, 4, 1
    v_lshlrev_b32 v110, 2, v110
    v_xor_b32 v109, v109, v110
    v_lshlrev_b32 v109, 4, v109
    s_lshl_b32 s59, s{ncol_sreg}, 1
    v_add_u32 v109, s59, v109
    v_mul_lo_u32 v111, v108, s{stride_sreg}
    v_add_u32 v100, v111, v109
    """)

def gemm_stage(e, s, nst, adv):
    buf = s & 1
    if s + 1 < nst:
        adv(e)
        gemm_dma(e, buf ^ 1)
        e("s_waitcnt vmcnt(4)")
    else:
        e("s_waitcnt vmcnt(0)")
    e("s_barrier")
    gemm_compute(e, buf)
    e("s_barrier")

def gen_gemm1(e):
    XR = 64; WF = 208; T = WF
    FL = sys.argv
    header(e, "gemm1_kernel")
    if "TS1" in sys.argv: e("s_memrealtime s[70:71]")
    if "TS1" in sys.argv: e("s_memtime s[84:85]\ns_mov_b32 s72, 0\ns_mov_b32 s74, 0\ns_mov_b32 s76, 0\ns_mov_b32 s78, 0")
    e(f"""
    s_cmp_ge_u32 s2, 256
    s_cbranch_scc1 G1_END
    s_load_dwordx2 s[4:5], s[0:1], 8
    s_load_dwordx2 s[6:7], s[0:1], 32
    s_load_dwordx2 s[8:9], s[0:1], 40
    s_load_dwordx2 s[10:11], s[0:1], 72
    s_bfe_u32 s12, s2, 0x30003
    s_lshl_b32 s12, s12, 8
    s_lshr_b32 s13, s2, 6
    s_lshl_b32 s13, s13, 3
    s_and_b32 s14, s2, 7
    s_add_u32 s14, s13, s14      ; group 0..31
    v_and_b32 v245, 63, v0
    v_lshrrev_b32 v246, 6, v0
    s_nop 0
    v_readfirstlane_b32 s56, v246
    v_and_b32 v246, 31, v245
    v_lshrrev_b32 v247, 5, v245
    s_waitcnt lgkmcnt(0)
    """)
    srd(e, 40, 10, 11, S_ * D_ * 2)
    srd(e, 60, 10, 11, WS_SIZE)
    e("""
    v_bfe_u32 v248, v245, 2, 2
    v_lshl_add_u32 v248, v247, 3, v248
    v_lshlrev_b32 v248, 7, v248
    v_bfe_u32 v249, v245, 4, 1
    v_lshl_add_u32 v248, v249, 5, v248
    v_and_b32 v249, 3, v245
    v_lshl_add_u32 v248, v249, 3, v248
    v_bfe_u32 v249, v245, 3, 1
    v_lshl_add_u32 v242, v249, 6, v248
    v_xor_b32 v249, 1, v249
    v_lshl_add_u32 v243, v249, 6, v248
    v_add_u32 v252, 0x10000, v242
    v_add_u32 v253, 0x10000, v243
    v_add_u32 v254, 0x20000, v242
    v_add_u32 v255, 0x20000, v243
    s_lshl_b32 s55, s56, 10
    s_lshr_b32 s59, s12, 5
    s_add_u32 s59, s59, s56
    s_mul_i32 s59, s59, 36864
    v_lshl_add_u32 v244, v245, 4, s59
    """)
    def xload(kk):
        if "NOX1" in FL: return
        e(f"s_mov_b32 s59, {1024*kk}")
        e(f"buffer_load_dwordx4 v[{XR+4*kk}:{XR+4*kk+3}], v244, s[40:43], s59 offen")
    def voffw():
        e(f"""
        s_lshl_b32 s17, s16, 6
        s_lshl_b32 s59, s56, 3
        v_lshrrev_b32 v248, 3, v245
        v_add_u32 v248, s59, v248
        v_and_b32 v249, 7, v245
        v_bfe_u32 v250, v245, 4, 1
        v_lshlrev_b32 v250, 2, v250
        v_xor_b32 v249, v249, v250
        v_lshlrev_b32 v249, 4, v249
        s_lshl_b32 s59, s15, 1
        v_add_u32 v249, s59, v249
        v_mul_lo_u32 v250, v248, s16
        v_add_u32 v240, v250, v249
        s_mov_b32 s53, 0
        s_nop 4
        """)
    def dma(buf):
        for p in range(2):
            if "NODMA1" in FL: continue
            e(f"s_add_u32 m0, s55, {buf*16384 + p*8192}")
            e("s_nop 0")
            e(f"buffer_load_dwordx4 v240, s[{44+4*p}:{47+4*p}], s53 offen lds")
        e("s_add_u32 s53, s53, s17")
    def reads(buf, ks):
        fs = WF + (ks & 1) * 16
        for j in range(4):
            p, sub = j >> 1, j & 1
            for h2 in range(2):
                areg = (242, 252, 254)[buf // 4] + sub
                e(f"ds_read_b64_tr_b16 v[{fs+4*j+2*h2}:{fs+4*j+2*h2+1}], v{areg} offset:{(buf%4)*16384 + p*8192 + ks*2048 + h2*512}")
    def mfmas(st, ks, swap):
        if "NOMF1" in FL: return
        fs = WF + (ks & 1) * 16
        kk = 4 * st + ks
        for j in range(4):
            wfr = f"v[{fs+4*j}:{fs+4*j+3}]"; xfr = f"v[{XR+4*kk}:{XR+4*kk+3}]"
            if swap: wfr, xfr = xfr, wfr
            c = "0" if (st == 0 and ks == 0) else f"v[{16*j}:{16*j+15}]"
            e(f"v_mfma_f32_32x32x16_bf16 v[{16*j}:{16*j+15}], {wfr}, {xfr}, {c}")
    def body(swap, sync):
        reads(0, 0)
        for st in range(9):
            for ks in range(4):
                if ks == 2 and st < 8: sync(st)
                if ks < 3: reads(st, ks + 1)
                elif st < 8: reads(st + 1, 0)
                e("s_waitcnt lgkmcnt(8)" if (ks < 3 or st < 8) else "s_waitcnt lgkmcnt(0)")
                mfmas(st, ks, swap)
        e("s_barrier")
        e("s_nop 15")
    e("s_cmp_ge_u32 s14, 8\ns_cbranch_scc1 " + ("G1_END" if "NOF" in FL else "G1_FFN"))
    if "NOQ" in FL: e("s_branch G1_END")
    e("""
    s_lshl_b32 s13, s14, 1       ; tile
    s_add_u32 s19, s13, 2
    s_min_u32 s19, s19, 15
    s_mov_b32 s30, 0
    s_lshl_b32 s57, s56, 14
    """)
    srd(e, 44, 4, 5, D_ * 1728 * 2)
    e(f"""
    s_add_u32 s48, s4, 128
    s_addc_u32 s49, s5, 0
    s_and_b32 s49, s49, 0xffff
    s_mov_b32 s50, {D_*1728*2-128}
    s_mov_b32 s51, 0x00020000
    G1_QT:
    s_mul_i32 s22, s13, 13
    s_lshr_b32 s22, s22, 6       ; mat
    s_mul_i32 s23, s22, 5
    s_sub_u32 s23, s13, s23      ; t'
    s_mul_i32 s15, s22, 576
    s_mul_i32 s59, s23, 126
    s_add_u32 s15, s15, s59      ; col0
    s_mul_i32 s24, s23, 7        ; head0
    s_movk_i32 s16, 3456
    """)
    voffw()
    qlab = [0]
    QPRO = 2; QLEAD = 3
    for a_ in FL:
        if a_.startswith("QPRO="): QPRO = int(a_[5:])
        if a_.startswith("QLEAD="): QLEAD = int(a_[6:])
    def mk_qsync():
        qops = []
        def qiss(g, emit=True):
            if emit:
                dma(g)
                for kk in range(4*g, 4*g+4): xload(kk)
            qops.extend([g] * 6)
        for g in range(QPRO): qiss(g, False)
        qn = [QPRO]
        def sy(s_):
            qlab[0] += 1; L = qlab[0]
            last = max(i for i, o in enumerate(qops) if o == s_ + 1)
            e(f"s_cmp_lg_u32 s30, 0\ns_cbranch_scc1 G1_QS{L}")
            e(f"s_waitcnt vmcnt({len(qops) - 1 - last})\ns_barrier")
            for _ in range(2):
                if qn[0] <= min(8, s_ + QLEAD):
                    qiss(qn[0]); qn[0] += 1
            e(f"s_branch G1_QR{L}\nG1_QS{L}:")
            e(f"s_waitcnt vmcnt({2*(8 - (s_+1))})\ns_barrier\nG1_QR{L}:")
        return sy
    e("s_cmp_lg_u32 s30, 0\ns_cbranch_scc1 G1_QNX")
    for g in range(QPRO):
        dma(g)
        for kk in range(4*g, 4*g+4): xload(kk)
    e("s_branch G1_QNY\nG1_QNX:")
    for b_ in range(9): dma(b_)
    e("""
    G1_QNY:
    s_cmp_ge_u32 s22, 2
    s_cbranch_scc1 G1_QV
    """)
    qs = mk_qsync(); qs(-1)
    body(False, qs)
    e("s_mov_b32 s30, 1")
    e(f"""
    s_mov_b32 s20, {hex(f2u(QSCALE))}
    s_cmp_eq_u32 s22, 0
    s_cselect_b32 s20, s20, 1.0
    v_lshl_add_u32 v248, v246, 6, s57
    v_bfe_u32 v249, v246, 1, 2
    v_lshlrev_b32 v249, 4, v249
    """)
    cnt = 0
    for j in range(4):
        for q in range(4):
            for jj in (0, 2):
                n0 = 32*j + 8*q + jj; n1 = n0 + 4
                o0 = (n0//18)*2048 + (n0%18)*2; o1 = (n1//18)*2048 + (n1%18)*2
                t = T + 4*(cnt % 4); cnt += 1
                r = 16*j + 4*q + jj
                e(f"v_mul_u32_u24 v{t}, {o1-o0}, v247")
                e(f"v_mul_f32 v{t+1}, s20, v{r}")
                e(f"v_mul_f32 v{t+2}, s20, v{r+1}")
                e(f"v_add_u32 v{t}, {o0}, v{t}")
                e(f"v_xor_b32 v{t}, v{t}, v249")
                e(f"v_cvt_pk_bf16_f32 v{t+1}, v{t+1}, v{t+2}")
                e(f"v_add_u32 v{t}, v{t}, v248")
                e(f"ds_write_b32 v{t}, v{t+1}")
    e(f"""
    v_lshrrev_b32 v248, 2, v245
    v_and_b32 v249, 3, v245
    v_bfe_u32 v250, v245, 3, 2
    v_xor_b32 v250, v250, v249
    v_lshlrev_b32 v250, 4, v250
    v_lshl_add_u32 v250, v248, 6, v250
    v_add_u32 v250, s57, v250
    v_cmp_gt_u32 vcc, 3, v249
    v_cndmask_b32 v251, 0, -1, vcc
    v_cmp_gt_u32 vcc, 2, v249
    v_cndmask_b32 v241, 0, -1, vcc
    s_lshl_b32 s59, s56, 5
    s_add_u32 s59, s59, s12
    v_add_u32 v248, s59, v248
    v_lshlrev_b32 v248, 6, v248
    v_lshl_add_u32 v248, v249, 4, v248
    s_lshl_b32 s59, s22, 22
    s_add_u32 s59, s59, {WS_QP}
    s_lshl_b32 s25, s24, 17
    s_add_u32 s59, s59, s25
    v_add_u32 v248, s59, v248
    s_waitcnt lgkmcnt(0)
    """)
    for b0 in range(0, 14, 4):
        rs = list(range(b0, min(b0+4, 14)))
        if b0 == 8: e("s_cmp_eq_u32 s23, 4\ns_cbranch_scc1 G1_QNEXT")
        for i in rs:
            t = T + 4*(i % 4)
            e(f"ds_read_b128 v[{t}:{t+3}], v250 offset:{i*1024}")
        for i in rs:
            t = T + 4*(i % 4)
            e(f"s_waitcnt lgkmcnt({rs[-1]-i})")
            e(f"v_and_b32 v{t}, v{t}, v251")
            for k_ in range(1, 4): e(f"v_and_b32 v{t+k_}, v{t+k_}, v241")
            e(f"s_mov_b32 s59, {(i//2)*131072 + (i%2)*1024}")
            e(f"buffer_store_dwordx4 v[{t}:{t+3}], v248, s[60:63], s59 offen")
    e("s_branch G1_QNEXT\nG1_QV:")
    qs = mk_qsync(); qs(-1)
    body(True, qs)
    e("s_mov_b32 s30, 1")
    e(f"""
    v_bfe_u32 v249, v246, 1, 2
    v_xor_b32 v250, v249, v247
    v_lshlrev_b32 v250, 4, v250
    v_lshl_add_u32 v250, v246, 6, v250
    v_add_u32 v250, s57, v250
    v_or_b32 v251, 2, v247
    v_xor_b32 v251, v249, v251
    v_lshlrev_b32 v251, 4, v251
    v_lshl_add_u32 v251, v246, 6, v251
    v_add_u32 v251, s57, v251
    """)
    cnt = 0
    for j in range(4):
        for q in range(4):
            r = 16*j + 4*q
            t = T + 2*(cnt % 8); cnt += 1
            e(f"v_cvt_pk_bf16_f32 v{t}, v{r}, v{r+1}")
            e(f"v_cvt_pk_bf16_f32 v{t+1}, v{r+2}, v{r+3}")
            e(f"ds_write_b64 v{250 + (q>>1)}, v[{t}:{t+1}] offset:{j*2048 + 8*(q&1)}")
    e(f"""
    v_lshrrev_b32 v248, 2, v245
    v_and_b32 v249, 3, v245
    v_bfe_u32 v250, v245, 3, 2
    v_xor_b32 v250, v250, v249
    v_lshlrev_b32 v250, 4, v250
    v_lshl_add_u32 v250, v248, 6, v250
    v_add_u32 v250, s57, v250
    s_lshl_b32 s59, s56, 5
    s_add_u32 s59, s59, s12
    s_lshl_b32 s59, s59, 1
    s_add_u32 s59, s59, {WS_VT}
    s_lshl_b32 s25, s24, 17
    s_add_u32 s59, s59, s25
    v_lshl_add_u32 v249, v249, 4, s59
    s_movk_i32 s21, 3641
    s_movk_i32 s25, 126
    s_cmp_eq_u32 s23, 4
    s_cselect_b32 s25, 72, s25
    s_waitcnt lgkmcnt(0)
    """)
    for b0 in (0, 4):
        rs = list(range(b0, b0+4))
        for i in rs:
            t = T + 4*(i % 4)
            e(f"ds_read_b128 v[{t}:{t+3}], v250 offset:{i*1024}")
        for i in rs:
            t = T + 4*(i % 4)
            u = T + 16 + 4*(i % 4)
            e(f"""
            v_add_u32 v{u}, {16*i}, v248
            v_mul_u32_u24 v{u+1}, s21, v{u}
            v_lshrrev_b32 v{u+1}, 16, v{u+1}
            v_mul_u32_u24 v{u+2}, 14, v{u+1}
            v_add_u32 v{u+2}, v{u+2}, v{u}
            v_lshl_add_u32 v{u+2}, v{u+2}, 12, v249
            v_cmp_gt_u32 vcc, s25, v{u}
            s_waitcnt lgkmcnt({rs[-1]-i})
            s_mov_b64 exec, vcc
            buffer_store_dwordx4 v[{t}:{t+3}], v{u+2}, s[60:63], 0 offen
            s_mov_b64 exec, -1
            """)
    e("""
    G1_QNEXT:
    s_add_u32 s13, s13, 1
    s_cmp_ge_u32 s13, s19
    s_cbranch_scc1 G1_END
    s_barrier
    s_branch G1_QT
    """)
    e("""
    G1_FFN:
    s_sub_u32 s13, s14, 8
    s_mul_i32 s13, s13, 3
    s_add_u32 s19, s13, 3
    s_mov_b32 s31, s13
    s_movk_i32 s16, 9216
    """)
    srd(e, 44, 6, 7, D_ * F_ * 2)
    srd(e, 48, 8, 9, D_ * F_ * 2)
    e("s_lshl_b32 s15, s31, 6")
    voffw()
    def cursor_next(tag):
        e(f"""
        s_add_u32 s31, s31, 1
        s_cmp_lt_u32 s31, s19
        s_cbranch_scc1 G1_CN{tag}
        s_mov_b32 s46, 0
        s_mov_b32 s50, 0
        G1_CN{tag}:
        s_lshl_b32 s15, s31, 6
        """)
        voffw()
    ops = []
    def iss(g):
        if g >= 27: return
        if g % 9 == 0 and g > 0: cursor_next(f"P{g}")
        dma(g % 9); ops.extend([("D", g)] * 2)
        if g < 9:
            for kk in range(4*g, 4*g+4): xload(kk)
            ops.extend([("X", g)] * 4)
    PRO = 2; LEAD0 = 3
    for a_ in FL:
        if a_.startswith("PRO="): PRO = int(a_[4:])
        if a_.startswith("LEAD="): LEAD0 = int(a_[5:])
    for g in range(PRO): iss(g)
    nxt = [PRO]
    def sync_g(tile):
        def sy(s_):
            sg = 9*tile + s_
            last = max(i for i, o in enumerate(ops) if o[1] == sg + 1)
            e(f"s_waitcnt vmcnt({len(ops) - 1 - last})\ns_barrier")
            lead = LEAD0 if tile == 0 else 8
            for _ in range(2):
                if nxt[0] <= sg + lead:
                    iss(nxt[0]); nxt[0] += 1
        return sy
    def mk_sync(waits, tag):
        def sy(s_):
            if "NOWAIT" not in FL: e(f"s_waitcnt vmcnt({waits[s_+1]})")
            if "NOBAR" not in FL: e("s_barrier")
            if s_ == 1: cursor_next(tag)
            dma((s_ - 1) % 9)
        return sy
    first = [44, 40, 36, 32, 28, 24, 20, 12, 12]
    steady = [20, 20, 20, 20, 20, 20, 20, 12, 12]
    def ffn_epi():
        if "NOEPI1" in FL: return
        e(f"""
        s_lshr_b32 s59, s12, 5
        s_add_u32 s59, s59, s56
        s_mul_i32 s59, s59, 331776
        s_lshl_b32 s18, s13, 12
        s_add_u32 s59, s59, s18
        s_add_u32 s59, s59, {WS_H}
        v_lshl_add_u32 v251, v246, 4, s59
        v_lshl_add_u32 v251, v247, 3, v251
        s_mov_b32 s20, {hex(f2u(-LOG2E))}
        """)
        cnt = 0
        for sub in range(2):
            for q in range(4):
                t = T + 10 * (cnt % 3); cnt += 1
                for j in range(4):
                    e(f"v_mul_f32 v{t+j}, s20, v{16*sub+4*q+j}")
                for j in range(4):
                    e(f"v_exp_f32 v{t+j}, v{t+j}")
                for j in range(4):
                    e(f"v_mul_f32 v{t+4+j}, v{16*sub+4*q+j}, v{32+16*sub+4*q+j}")
                for j in range(4):
                    e(f"v_add_f32 v{t+j}, 1.0, v{t+j}")
                for j in range(4):
                    e(f"v_rcp_f32 v{t+j}, v{t+j}")
                e("s_nop 0")
                for j in range(4):
                    e(f"v_mul_f32 v{t+4+j}, v{t+4+j}, v{t+j}")
                e(f"v_cvt_pk_bf16_f32 v{t+8}, v{t+4}, v{t+5}")
                e(f"v_cvt_pk_bf16_f32 v{t+9}, v{t+6}, v{t+7}")
                e(f"buffer_store_dwordx2 v[{t+8}:{t+9}], v251, s[60:63], 0 offen offset:{(2*sub+(q>>1))*1024 + (q&1)*512}")
    for tile in range(3):
        sync_g(tile)(-1)
        if "TS1" in sys.argv and tile == 0: e("s_memrealtime s[72:73]")
        body(False, sync_g(tile))
        if "TS1" in sys.argv and tile == 0: e("s_memrealtime s[74:75]")
        ffn_epi(); ops.extend([("S", -5)] * 8)
        if "TS1" in sys.argv and tile == 0: e("s_memrealtime s[76:77]")
        e("s_add_u32 s13, s13, 1")
    e("""
    G1_END:
    """)
    if "TS1" in sys.argv: e(f"""
        s_cmp_ge_u32 s2, 256
        s_cbranch_scc1 G1_END2
        s_waitcnt vmcnt(0)
        s_memrealtime s[78:79]
        s_memtime s[86:87]
        s_load_dwordx2 s[80:81], s[0:1], 72
        s_waitcnt lgkmcnt(0)
        s_add_u32 s80, s80, {60*MB}
        s_addc_u32 s81, s81, 0
        s_and_b32 s81, s81, 0xffff
        s_mov_b32 s82, 65536
        s_mov_b32 s83, 0x00020000
        v_mov_b32 v0, s70
        v_mov_b32 v1, s72
        v_mov_b32 v2, s74
        v_mov_b32 v3, s76
        v_mov_b32 v4, s78
        s_sub_u32 s86, s86, s84
        v_mov_b32 v5, s86
        v_mov_b32 v6, 0
        v_mov_b32 v7, 0
        s_lshl_b32 s3, s2, 5
        v_mov_b32 v8, s3
        buffer_store_dwordx4 v[0:3], v8, s[80:83], 0 offen
        buffer_store_dwordx4 v[4:7], v8, s[80:83], 0 offen offset:16
        G1_END2:
        """)
    e("s_endpgm")

WS_P = 48 * MB
NSPLIT = 5
def gen_gemm2(e):
    XR = 48; WF = 144
    header(e, "gemm2_kernel")
    e(f"""
    s_cmp_ge_u32 s2, 240
    s_cbranch_scc1 G2_END
    s_load_dwordx2 s[4:5], s[0:1], 16
    s_load_dwordx2 s[6:7], s[0:1], 48
    s_load_dwordx2 s[10:11], s[0:1], 72
    s_and_b32 s12, s2, 7
    s_lshr_b32 s13, s2, 3        ; r 0..29
    s_mul_i32 s28, s13, 43
    s_lshr_b32 s28, s28, 8       ; r/6
    s_mul_i32 s14, s28, 6
    s_sub_u32 s13, s13, s14      ; n tile
    s_mul_i32 s12, s12, 5
    s_add_u32 s12, s12, s28      ; pair 0..39
    s_lshr_b32 s28, s12, 3       ; split
    s_and_b32 s12, s12, 7        ; m tile
    s_lshl_b32 s29, s28, 4
    s_add_u32 s29, s29, 1
    s_mov_b32 s30, 16
    s_cmp_lg_u32 s28, 0
    s_cbranch_scc1 G2_SP
    s_mov_b32 s29, 0
    s_mov_b32 s30, 17
    G2_SP:
    v_and_b32 v170, 63, v0
    v_lshrrev_b32 v171, 6, v0
    s_nop 0
    v_readfirstlane_b32 s56, v171
    s_waitcnt lgkmcnt(0)
    s_add_u32 s40, s10, {WS_H}
    s_addc_u32 s41, s11, 0
    s_and_b32 s41, s41, 0xffff
    s_mov_b32 s42, {64*331776}
    s_mov_b32 s43, 0x00020000
    s_mov_b32 s44, s6
    s_and_b32 s45, s7, 0xffff
    s_mov_b32 s46, {F_*D_*2}
    s_mov_b32 s47, 0x00020000
    s_mov_b32 s49, {D_*D_*2}
    s_lshl_b32 s55, s56, 11      ; m0 base within stage buf
    s_cmp_lt_u32 s56, 6
    s_cbranch_scc1 G2_W6
    s_mov_b32 s46, 0
    s_mov_b32 s49, 0
    G2_W6:
    ; X voffset
    s_lshl_b32 s59, s12, 3
    s_add_u32 s59, s59, s56
    s_mul_i32 s58, s59, 331776
    v_lshl_add_u32 v172, v170, 4, s58
    s_lshl_b32 s52, s29, 12      ; X soffset (stage*4096)
    ; W voffset: c = w/2 ; krow = (w&1)*32 + lane/4
    s_and_b32 s58, s56, 1
    s_lshl_b32 s58, s58, 5
    v_lshrrev_b32 v171, 2, v170
    v_add_u32 v171, s58, v171
    v_mul_u32_u24 v171, 1152, v171
    v_and_b32 v173, 3, v170
    v_lshl_add_u32 v171, v173, 4, v171
    s_lshr_b32 s58, s56, 1
    s_lshl_b32 s58, s58, 6
    s_mul_i32 s57, s13, 192
    s_add_u32 s58, s58, s57
    v_add_u32 v174, s58, v171
    v_add_u32 v175, {16*1152}, v174
    s_mul_i32 s53, s29, {64*1152}
    """ + ("""
    s_lshl_b32 s58, s56, 11
    s_mul_i32 s57, s13, 12288
    s_add_u32 s58, s58, s57
    v_lshl_add_u32 v174, v170, 4, s58
    v_add_u32 v175, 1024, v174
    """ if "WLIN" in sys.argv else "") + f"""
    ; tr read addr
    v_lshrrev_b32 v171, 5, v170
    v_bfe_u32 v173, v170, 2, 2
    v_lshl_add_u32 v171, v171, 3, v173
    v_lshlrev_b32 v171, 6, v171
    v_bfe_u32 v173, v170, 4, 1
    v_lshl_add_u32 v171, v173, 5, v171
    v_and_b32 v173, 3, v170
    v_lshl_add_u32 v176, v173, 3, v171
    v_add_u32 v177, 36864, v176
    """)
    for i in range(48): e(f"v_mov_b32 v{i}, 0")
    lab = [0]
    def dma(slot):
        lab[0] += 1
        e(f"""
        s_cmp_lg_u32 s29, 72
        s_cbranch_scc1 G2_NS{lab[0]}
        s_mov_b32 s44, s4
        s_and_b32 s45, s5, 0xffff
        s_mov_b32 s46, s49
        s_mov_b32 s53, 0
        G2_NS{lab[0]}:
        """)
        e(f"s_add_u32 m0, s54, {slot*12288}" if False else f"s_add_u32 m0, s55, {slot*12288}")
        e("s_nop 0")
        e(f"buffer_load_dwordx4 v174, s[44:47], s53 offen lds")
        e(f"s_add_u32 m0, s55, {slot*12288 + 1024}")
        e("s_nop 0")
        e(f"buffer_load_dwordx4 v175, s[44:47], s53 offen lds")
        if "WHOT" not in sys.argv: e(f"s_add_u32 s53, s53, {64*1152}")
        e("s_add_u32 s29, s29, 1")
    def xld(slot):
        for ks in range(4):
            if "NOX2" in sys.argv: continue
            r = XR + 16*slot + 4*ks
            e(f"buffer_load_dwordx4 v[{r}:{r+3}], v172, s[40:43], s52 offen offset:{ks*1024}")
        if "XHOT" not in sys.argv: e("s_add_u32 s52, s52, 4096")
    def reads(slot, ks):
        fs = WF + (ks & 1) * 12
        areg = 176 if slot < 3 else 177
        for c in range(3):
            for h2 in range(2):
                e(f"ds_read_b64_tr_b16 v[{fs+4*c+2*h2}:{fs+4*c+2*h2+1}], v{areg} offset:{(slot%3)*12288 + c*4096 + ks*1024 + h2*256}")
    e("""
    s_cmp_lt_u32 s56, 6
    s_cbranch_scc1 G2_PRO
    s_branch G2_PROB
    G2_PRO:
    """)
    def full(dummy):
        def dm(slot):
            if "NODMA2" in sys.argv: return
            if dummy:
                lab[0] += 1
                e("s_mov_b32 m0, 73728\ns_nop 0")
                e("buffer_load_dwordx4 v174, s[44:47], s53 offen lds")
                e("buffer_load_dwordx4 v175, s[44:47], s53 offen lds")
            else:
                dma(slot)
        tg = "B" if dummy else "A"
        xld(0)
        for v in range(5):
            dm(v); xld(v + 1)
        nd = 0 if "NODMA2" in sys.argv else 2; nx = 0 if "NOX2" in sys.argv else 4
        e(f"s_waitcnt vmcnt({nx+4*(nd+nx)})\ns_barrier")
        reads(0, 0)
        e(f"G2_LOOP{tg}:")
        for u in range(6):
            e(f"s_waitcnt vmcnt({5*(nd+nx)})")
            for ks in range(4):
                if ks == 2:
                    e(f"s_waitcnt vmcnt({nx+3*(nd+nx)})" + ("" if "NOBAR2" in sys.argv else "\ns_barrier"))
                    dm((u + 5) % 6)
                if ks < 3: reads(u, ks + 1)
                else: reads((u + 1) % 6, 0)
                e("s_waitcnt lgkmcnt(6)")
                fs = WF + (ks & 1) * 12
                xr = XR + 16*u + 4*ks
                for c in range(3):
                    if "NOMF2" not in sys.argv: e(f"v_mfma_f32_32x32x16_bf16 v[{16*c}:{16*c+15}], v[{fs+4*c}:{fs+4*c+3}], v[{xr}:{xr+3}], v[{16*c}:{16*c+15}]")
            xld(u)
            e("s_sub_u32 s30, s30, 1\ns_cmp_eq_u32 s30, 0")
            e("s_cbranch_scc1 G2_EPI")
        e(f"s_branch G2_LOOP{tg}")
    full(False)
    e("G2_PROB:")
    full(True)
    e(f"""
    G2_EPI:
    s_waitcnt vmcnt(0) lgkmcnt(0)
    s_nop 15
    s_mul_i32 s29, s28, {S_*D_*2}
    s_add_u32 s29, s29, {WS_P}
    s_add_u32 s60, s10, s29
    s_addc_u32 s61, s11, 0
    s_and_b32 s61, s61, 0xffff
    s_mov_b32 s62, {S_*D_*2}
    s_mov_b32 s63, 0x00020000
    s_lshl_b32 s59, s12, 3
    s_add_u32 s59, s59, s56
    s_mul_i32 s59, s59, 18
    s_mul_i32 s58, s13, 3
    s_add_u32 s59, s59, s58
    s_lshl_b32 s59, s59, 11
    v_lshl_add_u32 v171, v170, 4, s59
    """)
    for c in range(3):
        for hf in range(2):
            t = 48 + 4*(2*c+hf)
            for i in range(4):
                r = 16*c + 8*hf + 2*i
                e(f"v_cvt_pk_bf16_f32 v{t+i}, v{r}, v{r+1}")
            if "NOST2" not in sys.argv: e(f"s_mov_b32 s58, {c*2048}\nbuffer_store_dwordx4 v[{t}:{t+3}], v171, s[60:63], s58 offen offset:{hf*1024}")
    e("s_waitcnt vmcnt(0) lgkmcnt(0)\nG2_END:\ns_endpgm")

def ts_end(e, tag):
    if "TS" not in sys.argv: return
    e(f"""
    s_memrealtime s[72:73]
    s_memtime s[82:83]
    s_load_dwordx2 s[76:77], s[0:1], 72
    s_waitcnt lgkmcnt(0)
    s_add_u32 s76, s76, {60*MB}
    s_addc_u32 s77, s77, 0
    s_and_b32 s77, s77, 0xffff
    s_mov_b32 s78, 65536
    s_mov_b32 s79, 0x00020000
    v_mov_b32 v0, s70
    v_mov_b32 v1, s71
    v_mov_b32 v2, s72
    v_mov_b32 v3, s73
    v_mov_b32 v4, s74
    v_lshlrev_b32 v4, 4, v4
    buffer_store_dwordx4 v[0:3], v4, s[76:79], 0 offen
    v_mov_b32 v6, s80
    v_mov_b32 v7, s81
    v_mov_b32 v8, s82
    v_mov_b32 v9, s83
    v_add_u32 v4, 32768, v4
    buffer_store_dwordx4 v[6:9], v4, s[76:79], 0 offen
    s_waitcnt vmcnt(0)
    """)

def gen_gemm2h(e):
    XR = 48; WF = 96
    e("G2_START:")
    if "PG" in sys.argv: e("s_setprio 2")
    if "NOG2" in sys.argv: e("s_endpgm")
    e(f"""
    s_cmp_ge_u32 s2, 240
    s_cbranch_scc1 G2_END
    s_load_dwordx2 s[4:5], s[0:1], 16
    s_load_dwordx2 s[6:7], s[0:1], 48
    s_load_dwordx2 s[10:11], s[0:1], 72
    s_and_b32 s12, s2, 7
    s_lshr_b32 s13, s2, 3        ; r 0..29
    s_mul_i32 s28, s13, 43
    s_lshr_b32 s28, s28, 8       ; r/6
    s_mul_i32 s14, s28, 6
    s_sub_u32 s13, s13, s14      ; n tile
    s_mul_i32 s12, s12, 5
    s_add_u32 s12, s12, s28      ; pair 0..39
    s_lshr_b32 s28, s12, 3       ; split
    s_and_b32 s12, s12, 7        ; m tile
    s_mul_i32 s29, s28, 14
    s_min_u32 s30, s28, 2
    s_add_u32 s29, s29, s30
    s_cmp_lt_u32 s28, 2
    s_cselect_b32 s30, 15, 14
    v_and_b32 v120, 63, v0
    v_lshrrev_b32 v121, 6, v0
    s_nop 0
    v_readfirstlane_b32 s56, v121
    s_waitcnt lgkmcnt(0)
    s_add_u32 s40, s10, {WS_H}
    s_addc_u32 s41, s11, 0
    s_and_b32 s41, s41, 0xffff
    s_mov_b32 s42, {64*331776}
    s_mov_b32 s43, 0x00020000
    s_mov_b32 s44, s6
    s_and_b32 s45, s7, 0xffff
    s_mov_b32 s46, {F_*D_*2}
    s_mov_b32 s47, 0x00020000
    s_mov_b32 s49, {D_*D_*2}
    s_lshl_b32 s55, s56, 11      ; m0 base within stage buf
    s_cmp_lt_u32 s56, 6
    s_cbranch_scc1 G2_W6
    s_mov_b32 s46, 0
    s_mov_b32 s49, 0
    G2_W6:
    ; X voffset
    s_lshl_b32 s59, s12, 3
    s_add_u32 s59, s59, s56
    s_mul_i32 s58, s59, 331776
    v_lshl_add_u32 v122, v120, 4, s58
    s_lshl_b32 s52, s29, 12      ; X soffset (stage*4096)
    ; W voffset: c = w/2 ; krow = (w&1)*32 + lane/4
    s_and_b32 s58, s56, 1
    s_lshl_b32 s58, s58, 5
    v_lshrrev_b32 v121, 2, v120
    v_add_u32 v121, s58, v121
    v_mul_u32_u24 v121, 1152, v121
    v_and_b32 v123, 3, v120
    v_lshl_add_u32 v121, v123, 4, v121
    s_lshr_b32 s58, s56, 1
    s_lshl_b32 s58, s58, 6
    s_mul_i32 s57, s13, 192
    s_add_u32 s58, s58, s57
    v_add_u32 v124, s58, v121
    v_add_u32 v125, {16*1152}, v124
    s_mul_i32 s53, s29, {64*1152}
    """ + ("""
    s_lshl_b32 s58, s56, 11
    s_mul_i32 s57, s13, 12288
    s_add_u32 s58, s58, s57
    v_lshl_add_u32 v124, v120, 4, s58
    v_add_u32 v125, 1024, v124
    """ if "WLIN" in sys.argv else "") + f"""
    ; tr read addr
    v_lshrrev_b32 v121, 5, v120
    v_bfe_u32 v123, v120, 2, 2
    v_lshl_add_u32 v121, v121, 3, v123
    v_lshlrev_b32 v121, 6, v121
    v_bfe_u32 v123, v120, 4, 1
    v_lshl_add_u32 v121, v123, 5, v121
    v_and_b32 v123, 3, v120
    v_lshl_add_u32 v126, v123, 3, v121
    v_add_u32 v127, 36864, v126
    """)
    for i in range(48): e(f"v_mov_b32 v{i}, 0")
    lab = [0]
    def dma(slot):
        e(f"s_add_u32 m0, s54, {slot*12288}" if False else f"s_add_u32 m0, s55, {slot*12288}")
        e("s_nop 0")
        e(f"buffer_load_dwordx4 v124, s[44:47], s53 offen lds")
        e(f"s_add_u32 m0, s55, {slot*12288 + 1024}")
        e("s_nop 0")
        e(f"buffer_load_dwordx4 v125, s[44:47], s53 offen lds")
        if "WHOT" not in sys.argv: e(f"s_add_u32 s53, s53, {64*1152}")
        e("s_add_u32 s29, s29, 1")
    def xld(slot):
        for ks in range(4):
            if "NOX2" in sys.argv: continue
            r = XR + 16*slot + 4*ks
            e(f"buffer_load_dwordx4 v[{r}:{r+3}], v122, s[40:43], s52 offen offset:{ks*1024}")
        if "XHOT" not in sys.argv: e("s_add_u32 s52, s52, 4096")
    def reads(slot, ks):
        fs = WF + (ks & 1) * 12
        areg = 126 if slot < 3 else 127
        for c in range(3):
            for h2 in range(2):
                e(f"ds_read_b64_tr_b16 v[{fs+4*c+2*h2}:{fs+4*c+2*h2+1}], v{areg} offset:{(slot%3)*12288 + c*4096 + ks*1024 + h2*256}")
    e("""
    s_cmp_lt_u32 s56, 6
    s_cbranch_scc1 G2_PRO
    s_branch G2_PROB
    G2_PRO:
    """)
    def full(dummy):
        def dm(slot):
            if "NODMA2" in sys.argv: return
            if dummy:
                lab[0] += 1
                e("s_mov_b32 m0, 73728\ns_nop 0")
                e("buffer_load_dwordx4 v124, s[44:47], s53 offen lds")
                e("buffer_load_dwordx4 v125, s[44:47], s53 offen lds")
            else:
                dma(slot)
        tg = "B" if dummy else "A"
        dm(0); dm(1); dm(2); xld(0); dm(3); xld(1); dm(4); xld(2)
        e("s_waitcnt vmcnt(18)\ns_barrier")
        reads(0, 0)
        e(f"G2_LOOP{tg}:")
        for u in range(6):
            e("s_waitcnt vmcnt(12)")
            for ks in range(4):
                if ks == 2:
                    e("s_waitcnt vmcnt(22)\ns_barrier")
                    dm((u + 5) % 6)
                if ks < 3: reads(u, ks + 1)
                else: reads((u + 1) % 6, 0)
                e("s_waitcnt lgkmcnt(6)")
                fs = WF + (ks & 1) * 12
                xr = XR + 16*(u%3) + 4*ks
                for c in range(3):
                    if "NOMF2" not in sys.argv: e(f"v_mfma_f32_32x32x16_bf16 v[{16*c}:{16*c+15}], v[{fs+4*c}:{fs+4*c+3}], v[{xr}:{xr+3}], v[{16*c}:{16*c+15}]")
            xld(u%3)
            e("s_sub_u32 s30, s30, 1\ns_cmp_eq_u32 s30, 0")
            e("s_cbranch_scc1 G2_EPI")
        e(f"s_branch G2_LOOP{tg}")
    full(False)
    e("G2_PROB:")
    full(True)
    e(f"""
    G2_EPI:
    """ + ("s_setprio 3" if "PE" in sys.argv else "") + f"""
    s_waitcnt vmcnt(0) lgkmcnt(0)
    s_nop 15
    s_mul_i32 s29, s28, {S_*D_*2}
    s_add_u32 s29, s29, {WS_P}
    s_add_u32 s60, s10, s29
    s_addc_u32 s61, s11, 0
    s_and_b32 s61, s61, 0xffff
    s_mov_b32 s62, {S_*D_*2}
    s_mov_b32 s63, 0x00020000
    s_lshl_b32 s59, s12, 3
    s_add_u32 s59, s59, s56
    s_mul_i32 s59, s59, 18
    s_mul_i32 s58, s13, 3
    s_add_u32 s59, s59, s58
    s_lshl_b32 s59, s59, 11
    v_lshl_add_u32 v121, v120, 4, s59
    """)
    for c in range(3):
        for hf in range(2):
            t = 48 + 4*(2*c+hf)
            for i in range(4):
                r = 16*c + 8*hf + 2*i
                e(f"v_cvt_pk_bf16_f32 v{t+i}, v{r}, v{r+1}")
            if "NOST2" not in sys.argv: e(f"s_mov_b32 s58, {c*2048}\nbuffer_store_dwordx4 v[{t}:{t+3}], v121, s[60:63], s58 offen offset:{hf*1024} sc0 sc1")
    e(f"""
    s_waitcnt vmcnt(0) lgkmcnt(0)
    s_barrier
    s_cmp_lg_u32 s56, 0
    s_cbranch_scc1 G2_W
    s_mov_b32 s64, s10
    s_and_b32 s65, s11, 0xffff
    s_mov_b32 s66, {WS_SIZE}
    s_mov_b32 s67, 0x00020000
    s_mul_i32 s58, s12, 6
    s_add_u32 s58, s58, s13
    s_lshl_b32 s58, s58, 2
    s_add_u32 s58, s58, {WS_CNT}
    v_mov_b32 v122, s58
    v_mov_b32 v123, 1
    v_mov_b32 v124, 0
    s_mov_b64 exec, 1
    buffer_atomic_add v123, v122, s[64:67], 0 offen sc0 sc1
    s_waitcnt vmcnt(0)
    ds_write_b32 v124, v123
    s_mov_b64 exec, -1
    s_waitcnt lgkmcnt(0)
    G2_W:
    s_barrier
    v_mov_b32 v124, 0
    ds_read_b32 v123, v124
    s_waitcnt lgkmcnt(0)
    v_readfirstlane_b32 s58, v123
    s_mul_hi_u32 s59, s58, 0xcccccccd
    s_lshr_b32 s59, s59, 2
    s_mul_i32 s59, s59, 5
    s_sub_u32 s58, s58, s59
    s_cmp_lg_u32 s58, {NSPLIT-1}
    s_cbranch_scc1 G2_DONE
    s_add_u32 s60, s10, {WS_P}
    s_addc_u32 s61, s11, 0
    s_and_b32 s61, s61, 0xffff
    s_mov_b32 s62, {S_*D_*2*NSPLIT}
    v_add_u32 v122, 4096, v121
    """)
    for j in range(4):
        e(f"""
        s_add_u32 s28, s28, 1
        s_cmp_ge_u32 s28, {NSPLIT}
        s_cselect_b32 s28, 0, s28
        s_mul_i32 s{84+j}, s28, {S_*D_*2}
        """)
    def pld(idx):
        j, u = idx // 6, idx % 6
        r = 48 + 4*(idx % 16)
        e(f"buffer_load_dwordx4 v[{r}:{r+3}], v{121 + u//4}, s[60:63], s{84+j} offen offset:{(u%4)*1024} sc0 sc1")
    for idx in range(16): pld(idx)
    e("""
    v_lshrrev_b32 v124, 5, v120
    v_and_b32 v123, 31, v120
    v_lshlrev_b32 v124, 2, v124
    v_sub_u32 v123, v123, v124
    v_mov_b32 v124, 0x3f80
    v_mov_b32 v125, 0x3f800000
    """)
    for hf in range(2):
        for r in range(4):
            T = 16*hf + 8*(r//2) + 2*(r%2)
            e(f"v_cmp_eq_u32 vcc, {T}, v123")
            e(f"v_cndmask_b32 v{112+4*hf+r}, 0, v124, vcc")
            e(f"v_cmp_eq_u32 vcc, {T+1}, v123")
            e(f"v_cndmask_b32 v{112+4*hf+r}, v{112+4*hf+r}, v125, vcc")
    e("s_nop 1")
    for idx in range(24):
        u = idx % 6; c = u // 2; hf = u % 2
        r = 48 + 4*(idx % 16)
        e(f"s_waitcnt vmcnt({min(24, 16+idx) - idx - 1})")
        e(f"v_mfma_f32_32x32x16_bf16 v[{16*c}:{16*c+15}], v[{112+4*hf}:{115+4*hf}], v[{r}:{r+3}], v[{16*c}:{16*c+15}]")
        if idx + 16 < 24: pld(idx + 16)
    e("s_nop 15\ns_nop 3")
    for u in range(6):
        t = 48 + 4*u
        for i in range(4):
            e(f"v_cvt_pk_bf16_f32 v{t+i}, v{8*u+2*i}, v{8*u+2*i+1}")
        e(f"buffer_store_dwordx4 v[{t}:{t+3}], v{121 + u//4}, s[60:63], 0 offen offset:{(u%4)*1024}")
    e("G2_DONE:\ns_waitcnt vmcnt(0) lgkmcnt(0)")
    ts_end(e, "g")
    e("G2_END:\ns_endpgm")

def gen_fin(e):
    header(e, "fin_kernel")
    XO = 16; PR = 160; XR = 200; WF = 208
    e(f"""
    s_cmp_ge_u32 s2, 288
    s_cbranch_scc1 FN_END
    s_load_dwordx2 s[4:5], s[0:1], 0
    s_load_dwordx2 s[6:7], s[0:1], 56
    s_load_dwordx2 s[8:9], s[0:1], 16
    s_load_dwordx2 s[10:11], s[0:1], 72
    s_and_b32 s12, s2, 7
    s_lshr_b32 s13, s2, 3        ; j 0..35
    s_mul_i32 s14, s13, 57
    s_lshr_b32 s14, s14, 9       ; j/9
    s_mul_i32 s15, s14, 9
    s_sub_u32 s13, s13, s15      ; nt
    s_lshl_b32 s12, s12, 2
    s_add_u32 s12, s12, s14      ; mt
    v_and_b32 v230, 63, v0
    v_lshrrev_b32 v231, 6, v0
    s_nop 0
    v_readfirstlane_b32 s56, v231
    s_lshr_b32 s57, s56, 1       ; wm
    s_and_b32 s58, s56, 1        ; wn
    s_lshl_b32 s12, s12, 1
    s_add_u32 s12, s12, s57      ; rb
    s_lshl_b32 s14, s13, 1
    s_add_u32 s14, s14, s58      ; cb
    s_waitcnt lgkmcnt(0)
    s_add_u32 s40, s10, {WS_H}
    s_addc_u32 s41, s11, 0
    s_add_u32 s10, s10, {WS_P}
    s_addc_u32 s11, s11, 0
    """)
    srd(e, 40, 40, 41, 64*331776); srd(e, 44, 8, 9, D_*D_*2)
    srd(e, 16, 4, 5, S_*D_*2); srd(e, 20, 6, 7, S_*D_*2); srd(e, 24, 10, 11, S_*D_*2*NSPLIT)
    e(f"""
    v_lshrrev_b32 v231, 2, v230
    v_mul_u32_u24 v231, 1152, v231
    v_and_b32 v232, 3, v230
    v_lshl_add_u32 v231, v232, 4, v231
    s_lshl_b32 s15, s14, 6
    s_mul_i32 s59, s57, {288*1152}
    s_add_u32 s15, s15, s59
    v_add_u32 v231, s15, v231     ; W voffset
    s_mul_i32 s54, s58, 36864
    s_mul_i32 s59, s57, 18432
    s_add_u32 s54, s54, s59       ; m0 base
    s_mul_i32 s15, s12, 331776
    s_add_u32 s15, s15, {288*1024}
    v_lshl_add_u32 v232, v230, 4, s15   ; O voffset
    s_mov_b32 s53, 0
    """)
    for j in range(18):
        e(f"s_add_u32 m0, s54, {j*1024}\ns_nop 0")
        e("buffer_load_dwordx4 v231, s[44:47], s53 offen lds")
        e(f"s_add_u32 s53, s53, {16*1152}")
    for kk in range(36):
        if kk % 4 == 0: e(f"s_mov_b32 s52, {kk*1024}")
        e(f"buffer_load_dwordx4 v[{XO+4*kk}:{XO+4*kk+3}], v232, s[40:43], s52 offen offset:{(kk%4)*1024}")
    e(f"""
    v_lshrrev_b32 v233, 5, v230
    v_bfe_u32 v234, v230, 2, 2
    v_lshl_add_u32 v233, v233, 3, v234
    v_lshlrev_b32 v233, 6, v233
    v_bfe_u32 v234, v230, 4, 1
    v_lshl_add_u32 v233, v234, 5, v233
    v_and_b32 v234, 3, v230
    v_lshl_add_u32 v233, v234, 3, v233
    s_mul_i32 s59, s58, 36864
    v_add_u32 v233, s59, v233
    s_mul_i32 s15, s12, 18
    s_add_u32 s15, s15, s14
    s_lshl_b32 s15, s15, 11
    v_lshl_add_u32 v234, v230, 4, s15  ; P offset
    v_and_b32 v235, 31, v230
    s_lshl_b32 s15, s12, 5
    v_add_u32 v235, s15, v235
    v_mul_u32_u24 v235, 1152, v235
    v_lshrrev_b32 v236, 5, v230
    v_lshl_add_u32 v235, v236, 5, v235
    s_lshl_b32 s15, s14, 6
    v_add_u32 v235, s15, v235
    """)
    for i in range(16): e(f"v_mov_b32 v{i}, 0")
    def pl(i):
        e(f"s_mov_b32 s28, {(i//2)*S_*D_*2}")
        e(f"buffer_load_dwordx4 v[{PR+4*i}:{PR+4*i+3}], v234, s[24:27], s28 offen offset:{(i%2)*1024}")
    for i in range(8): pl(i)
    e("s_waitcnt vmcnt(44)\ns_barrier")
    for i in range(8, 2*NSPLIT): pl(i)
    e(f"buffer_load_dwordx4 v[{XR}:{XR+3}], v235, s[16:19], 0 offen")
    e(f"buffer_load_dwordx4 v[{XR+4}:{XR+7}], v235, s[16:19], 0 offen offset:16")
    NL = 2*NSPLIT + 2
    def rd(kk):
        fs = WF + 4*(kk % 4)
        for h2 in range(2):
            e(f"ds_read_b64_tr_b16 v[{fs+2*h2}:{fs+2*h2+1}], v233 offset:{kk*1024 + h2*256}")
    for kk in range(3): rd(kk)
    for kk in range(36):
        if kk + 3 < 36: rd(kk + 3)
        n = min(3, 35 - kk)
        e(f"s_waitcnt vmcnt({35-kk+NL}) lgkmcnt({2*n})")
        fs = WF + 4*(kk % 4)
        e(f"v_mfma_f32_32x32x16_bf16 v[0:15], v[{fs}:{fs+3}], v[{XO+4*kk}:{XO+4*kk+3}], v[0:15]")
    e("s_nop 15\ns_nop 3")
    T = 16
    for i in range(NSPLIT):
        e(f"s_waitcnt vmcnt({NL-2*i-2})")
        for d in range(8):
            r = PR + 8*i + d
            e(f"v_lshlrev_b32 v{T}, 16, v{r}")
            e(f"v_and_b32 v{T+1}, 0xffff0000, v{r}")
            e(f"v_add_f32 v{2*d}, v{2*d}, v{T}")
            e(f"v_add_f32 v{2*d+1}, v{2*d+1}, v{T+1}")
    e("s_nop 1")
    for j in range(8):
        e(f"v_permlane32_swap_b32 v{j}, v{8+j}")
    e("s_nop 1\ns_waitcnt vmcnt(0)")
    order = [0,1,2,3,8,9,10,11,4,5,6,7,12,13,14,15]
    for j in range(8):
        a, b_ = order[2*j], order[2*j+1]
        e(f"v_lshlrev_b32 v{T}, 16, v{XR+j}")
        e(f"v_and_b32 v{T+1}, 0xffff0000, v{XR+j}")
        e(f"v_add_f32 v{a}, v{a}, v{T}")
        e(f"v_add_f32 v{b_}, v{b_}, v{T+1}")
        e(f"v_cvt_pk_bf16_f32 v{XR+j}, v{a}, v{b_}")
    e(f"buffer_store_dwordx4 v[{XR}:{XR+3}], v235, s[20:23], 0 offen")
    e(f"buffer_store_dwordx4 v[{XR+4}:{XR+7}], v235, s[20:23], 0 offen offset:16")
    e("FN_END:\ns_endpgm")

def gen_fin2(e):
    header(e, "fin_kernel")
    NP = 1
    XO = 48; PR = 120; XR = 180; WF = 192; M = 230
    if "TSF" in sys.argv: e("s_memrealtime s[70:71]")
    e(f"""
    s_cmp_ge_u32 s2, 192
    s_cbranch_scc1 FN_END
    s_load_dwordx2 s[4:5], s[0:1], 0
    s_load_dwordx2 s[6:7], s[0:1], 56
    s_load_dwordx2 s[8:9], s[0:1], 16
    s_load_dwordx2 s[10:11], s[0:1], 72
    s_and_b32 s12, s2, 7
    s_lshr_b32 s13, s2, 3        ; j 0..23
    s_mul_i32 s14, s13, 43
    s_lshr_b32 s14, s14, 8       ; j/6
    s_mul_i32 s15, s14, 6
    s_sub_u32 s13, s13, s15      ; nt
    s_lshl_b32 s12, s12, 2
    s_add_u32 s12, s12, s14      ; mt
    v_and_b32 v{M}, 63, v0
    v_lshrrev_b32 v{M+1}, 6, v0
    s_nop 0
    v_readfirstlane_b32 s56, v{M+1}
    s_lshr_b32 s57, s56, 1       ; wm
    s_and_b32 s58, s56, 1        ; kh
    s_lshl_b32 s12, s12, 1
    s_add_u32 s12, s12, s57      ; rb
    s_waitcnt lgkmcnt(0)
    s_add_u32 s40, s10, {WS_H}
    s_addc_u32 s41, s11, 0
    s_add_u32 s10, s10, {WS_P}
    s_addc_u32 s11, s11, 0
    """)
    srd(e, 40, 40, 41, 64*331776); srd(e, 44, 8, 9, D_*D_*2)
    srd(e, 16, 4, 5, S_*D_*2); srd(e, 20, 6, 7, S_*D_*2); srd(e, 24, 10, 11, S_*D_*2*NP)
    e(f"""
    v_lshrrev_b32 v{M+1}, 2, v{M}
    v_mul_u32_u24 v{M+1}, 1152, v{M+1}
    v_and_b32 v{M+2}, 3, v{M}
    v_lshl_add_u32 v{M+1}, v{M+2}, 4, v{M+1}
    s_mul_i32 s15, s13, 192
    s_mul_i32 s59, s56, {9*18432}
    s_add_u32 s15, s15, s59
    v_add_u32 v{M+1}, s15, v{M+1}     ; W voffset
    s_mul_i32 s54, s56, 9216          ; m0 base
    s_mul_i32 s15, s12, 331776
    s_mul_i32 s59, s58, 18432
    s_add_u32 s15, s15, s59
    s_add_u32 s15, s15, {288*1024}
    v_lshl_add_u32 v{M+2}, v{M}, 4, s15   ; O voffset
    s_mov_b32 s53, 0
    """)
    for i in range(9):
        for c in range(3):
            e(f"s_add_u32 m0, s54, {c*36864 + i*1024 - c*64}\ns_nop 0")
            e(f"buffer_load_dwordx4 v{M+1}, s[44:47], s53 offen offset:{c*64} lds")
        e(f"s_add_u32 s53, s53, {16*1152}")
    for kk in range(18):
        if kk % 4 == 0: e(f"s_mov_b32 s52, {kk*1024}")
        e(f"buffer_load_dwordx4 v[{XO+4*kk}:{XO+4*kk+3}], v{M+2}, s[40:43], s52 offen offset:{(kk%4)*1024}")
    e(f"""
    s_mul_i32 s15, s12, 18
    s_mul_i32 s59, s13, 3
    s_add_u32 s15, s15, s59
    s_lshl_b32 s15, s15, 11
    s_mul_i32 s59, s58, 3072
    s_add_u32 s15, s15, s59
    v_lshl_add_u32 v{M+4}, v{M}, 4, s15  ; P offset
    """)
    for i in range(NP):
        e(f"s_mov_b32 s28, {i*S_*D_*2}")
        for j in range(3):
            r = PR + 12*i + 4*j
            e(f"buffer_load_dwordx4 v[{r}:{r+3}], v{M+4}, s[24:27], s28 offen offset:{j*1024}")
    e(f"""
    v_and_b32 v{M+5}, 31, v{M}
    s_lshl_b32 s15, s12, 5
    v_add_u32 v{M+5}, s15, v{M+5}
    v_mul_u32_u24 v{M+5}, 1152, v{M+5}
    v_lshrrev_b32 v{M+6}, 5, v{M}
    v_lshl_add_u32 v{M+5}, v{M+6}, 4, v{M+5}
    s_mul_i32 s15, s13, 192
    s_mul_i32 s59, s58, 96
    s_add_u32 s15, s15, s59
    v_add_u32 v{M+5}, s15, v{M+5}
    """)
    for j in range(3):
        e(f"buffer_load_dwordx4 v[{XR+4*j}:{XR+4*j+3}], v{M+5}, s[16:19], 0 offen offset:{j*32}")
    e(f"""
    v_lshrrev_b32 v{M+7}, 5, v{M}
    v_bfe_u32 v{M+8}, v{M}, 2, 2
    v_lshl_add_u32 v{M+7}, v{M+7}, 3, v{M+8}
    v_lshlrev_b32 v{M+7}, 6, v{M+7}
    v_bfe_u32 v{M+8}, v{M}, 4, 1
    v_lshl_add_u32 v{M+7}, v{M+8}, 5, v{M+7}
    v_and_b32 v{M+8}, 3, v{M}
    v_lshl_add_u32 v{M+7}, v{M+8}, 3, v{M+7}
    s_mul_i32 s59, s58, 18432
    v_add_u32 v{M+7}, s59, v{M+7}
    v_add_u32 v{M+8}, 36864, v{M+7}
    v_add_u32 v{M+9}, {2*36864}, v{M+7}
    s_mul_i32 s59, s56, 6144
    s_add_u32 s59, s59, 110592
    v_lshl_add_u32 v{M+10}, v{M}, 4, s59
    v_xor_b32 v{M+11}, 0, v{M+10}
    s_xor_b32 s60, s56, 1
    s_mul_i32 s60, s60, 6144
    s_add_u32 s60, s60, 110592
    v_lshl_add_u32 v{M+11}, v{M}, 4, s60
    """)
    for i in range(48): e(f"v_mov_b32 v{i}, 0")
    NL = 3*NP + 3
    e(f"s_waitcnt vmcnt({18+NL})\ns_barrier")
    if "TSF" in sys.argv: e("s_memrealtime s[72:73]")
    def rd(i):
        for c in range(3):
            fs = WF + 12*(i % 3) + 4*c
            for h2 in range(2):
                e(f"ds_read_b64_tr_b16 v[{fs+2*h2}:{fs+2*h2+1}], v{M+7+c} offset:{i*1024 + h2*256}")
    rd(0); rd(1)
    for i in range(18):
        if i + 2 < 18: rd(i + 2)
        n = min(2, 17 - i)
        e(f"s_waitcnt vmcnt({17-i+NL}) lgkmcnt({6*n})")
        for c in range(3):
            fs = WF + 12*(i % 3) + 4*c
            e(f"v_mfma_f32_32x32x16_bf16 v[{16*c}:{16*c+15}], v[{fs}:{fs+3}], v[{XO+4*i}:{XO+4*i+3}], v[{16*c}:{16*c+15}]")
    e("s_nop 15\ns_nop 3")
    if "TSF" in sys.argv: e("s_memrealtime s[74:75]")
    e("s_cmp_lg_u32 s58, 0\ns_cbranch_scc1 FN_K1")
    T = WF
    for kh in range(2):
        if kh: e("FN_K1:")
        own = 24*kh; oth = 24*(1-kh)
        for j in range(6):
            e(f"ds_write_b128 v{M+10}, v[{oth+4*j}:{oth+4*j+3}] offset:{j*1024}")
        e("s_waitcnt lgkmcnt(0)\ns_barrier")
        for j in range(6):
            e(f"ds_read_b128 v[{XO+4*j}:{XO+4*j+3}], v{M+11} offset:{j*1024}")
        for i in range(NP):
            e(f"s_waitcnt vmcnt({NL-3*i-3})")
            for d in range(12):
                r = PR + 12*i + d
                e(f"v_lshlrev_b32 v{T}, 16, v{r}")
                e(f"v_and_b32 v{T+1}, 0xffff0000, v{r}")
                e(f"v_add_f32 v{own+2*d}, v{own+2*d}, v{T}")
                e(f"v_add_f32 v{own+2*d+1}, v{own+2*d+1}, v{T+1}")
        e("s_waitcnt lgkmcnt(0)")
        for i in range(24):
            e(f"v_add_f32 v{own+i}, v{own+i}, v{XO+i}")
        e("s_nop 1")
        for j in range(3):
            for i in range(4):
                e(f"v_permlane32_swap_b32 v{own+8*j+i}, v{own+8*j+4+i}")
        e("s_nop 1\ns_waitcnt vmcnt(0)")
        for j in range(3):
            for d in range(4):
                a = own + 8*j + 2*d
                e(f"v_lshlrev_b32 v{T}, 16, v{XR+4*j+d}")
                e(f"v_and_b32 v{T+1}, 0xffff0000, v{XR+4*j+d}")
                e(f"v_add_f32 v{a}, v{a}, v{T}")
                e(f"v_add_f32 v{a+1}, v{a+1}, v{T+1}")
                e(f"v_cvt_pk_bf16_f32 v{XR+4*j+d}, v{a}, v{a+1}")
            e(f"buffer_store_dwordx4 v[{XR+4*j}:{XR+4*j+3}], v{M+5}, s[20:23], 0 offen offset:{j*32}")
        if "TSF" in sys.argv: e(f"""
        s_waitcnt vmcnt(0)
        s_memrealtime s[76:77]
        s_load_dwordx2 s[80:81], s[0:1], 72
        s_waitcnt lgkmcnt(0)
        s_add_u32 s80, s80, {60*MB}
        s_addc_u32 s81, s81, 0
        s_and_b32 s81, s81, 0xffff
        s_mov_b32 s82, 65536
        s_mov_b32 s83, 0x00020000
        v_mov_b32 v0, s70
        v_mov_b32 v1, s72
        v_mov_b32 v2, s74
        v_mov_b32 v3, s76
        s_lshl_b32 s3, s2, 2
        s_add_u32 s3, s3, s56
        s_lshl_b32 s3, s3, 4
        v_mov_b32 v4, s3
        buffer_store_dwordx4 v[0:3], v4, s[80:83], 0 offen
        """)
        e("s_endpgm")
    e("FN_END:\ns_endpgm")

def gen_red(e):
    header(e, "red_kernel")
    e(f"""
    s_cmp_ge_u32 s2, 288
    s_cbranch_scc1 RD_END
    s_load_dwordx2 s[4:5], s[0:1], 0
    s_load_dwordx2 s[6:7], s[0:1], 56
    s_load_dwordx2 s[10:11], s[0:1], 72
    s_lshl_b32 s3, s2, 8
    v_add_u32 v1, s3, v0
    v_lshrrev_b32 v2, 6, v1        ; blk
    v_bfe_u32 v3, v1, 1, 5         ; row
    v_and_b32 v4, 1, v1            ; half
    v_lshlrev_b32 v5, 11, v2
    v_lshl_add_u32 v5, v4, 10, v5
    v_lshl_add_u32 v5, v3, 4, v5   ; P offset
    s_mov_b32 s21, 3641
    v_mul_u32_u24 v6, s21, v2
    v_lshrrev_b32 v6, 16, v6       ; mb
    v_mul_u32_u24 v7, 18, v6
    v_sub_u32 v7, v2, v7           ; nb
    v_lshl_add_u32 v6, v6, 5, v3
    v_mul_u32_u24 v6, 1152, v6
    v_lshl_add_u32 v6, v7, 6, v6
    v_lshl_add_u32 v6, v4, 5, v6
    s_waitcnt lgkmcnt(0)
    s_add_u32 s10, s10, {WS_P}
    s_addc_u32 s11, s11, 0
    """)
    srd(e, 12, 4, 5, S_*D_*2); srd(e, 16, 6, 7, S_*D_*2); srd(e, 20, 10, 11, S_*D_*2*NSPLIT)
    e("buffer_load_dwordx4 v[8:11], v6, s[12:15], 0 offen")
    e("buffer_load_dwordx4 v[12:15], v6, s[12:15], 0 offen offset:16")
    for i in range(NSPLIT):
        e(f"s_mov_b32 s24, {i*S_*D_*2}")
        e(f"buffer_load_dwordx4 v[{16+8*i}:{19+8*i}], v5, s[20:23], s24 offen")
        e(f"buffer_load_dwordx4 v[{20+8*i}:{23+8*i}], v5, s[20:23], s24 offen offset:512")
    e(f"s_waitcnt vmcnt({2*NSPLIT})")
    A = 16 + 8*NSPLIT
    for j in range(8):
        e(f"v_lshlrev_b32 v{A+2*j}, 16, v{8+j}\nv_and_b32 v{A+2*j+1}, 0xffff0000, v{8+j}")
    T = A + 16
    for i in range(NSPLIT):
        e(f"s_waitcnt vmcnt({2*(NSPLIT-1-i)})")
        for h in range(2):
            for d in range(4):
                n = 8*(d>>1) + 4*h + 2*(d&1)
                r = 16 + 8*i + 4*h + d
                e(f"v_lshlrev_b32 v{T}, 16, v{r}")
                e(f"v_and_b32 v{T+1}, 0xffff0000, v{r}")
                e(f"v_add_f32 v{A+n}, v{A+n}, v{T}")
                e(f"v_add_f32 v{A+n+1}, v{A+n+1}, v{T+1}")
    for j in range(8):
        e(f"v_cvt_pk_bf16_f32 v{8+j}, v{A+2*j}, v{A+2*j+1}")
    e("buffer_store_dwordx4 v[8:11], v6, s[16:19], 0 offen")
    e("buffer_store_dwordx4 v[12:15], v6, s[16:19], 0 offen offset:16")
    e("RD_END:\ns_endpgm")

def gen_attn(e):
    header(e, "attn_kernel")
    KA = 112; VA = 114; DM = 122
    e(f"""
    s_cmp_ge_u32 s2, 256
    s_cbranch_scc1 AT_END
    s_load_dwordx2 s[10:11], s[0:1], 72
    s_and_b32 s4, s2, 7
    s_lshl_b32 s4, s4, 2
    s_bfe_u32 s5, s2, 0x20003
    s_add_u32 s4, s4, s5          ; head
    s_lshr_b32 s5, s2, 5          ; qblock
    v_and_b32 v127, 63, v0
    v_lshrrev_b32 v16, 6, v0
    s_nop 0
    v_readfirstlane_b32 s56, v16
    v_and_b32 v17, 31, v127      ; l32
    v_lshrrev_b32 v18, 5, v127   ; h
    s_and_b32 s57, s56, 7        ; qt
    s_lshr_b32 s58, s56, 3       ; kh
    s_waitcnt lgkmcnt(0)
    """)
    srd(e, 40, 10, 11, WS_SIZE)
    e(f"""
    s_lshl_b32 s6, s4, 11
    s_lshl_b32 s7, s5, 8
    s_add_u32 s6, s6, s7
    s_lshl_b32 s7, s57, 5
    s_add_u32 s6, s6, s7
    v_add_u32 v19, s6, v17
    v_lshlrev_b32 v19, 6, v19
    v_lshl_add_u32 v19, v18, 4, v19
    v_add_u32 v19, {WS_QP}, v19
    buffer_load_dwordx4 v[64:67], v19, s[40:43], 0 offen
    buffer_load_dwordx4 v[68:71], v19, s[40:43], 0 offen offset:32
    s_lshl_b32 s7, s4, 17
    s_add_u32 s7, s7, {WS_KP}
    s_lshl_b32 s8, s56, 11
    s_add_u32 s7, s7, s8
    v_lshrrev_b32 v20, 2, v127
    v_lshlrev_b32 v20, 6, v20
    v_and_b32 v21, 3, v127
    v_bfe_u32 v22, v127, 4, 2
    v_xor_b32 v21, v21, v22
    v_lshl_add_u32 v20, v21, 4, v20
    v_add_u32 v{DM}, s7, v20
    v_add_u32 v{DM+1}, 1024, v{DM}
    s_lshl_b32 s7, s4, 17
    s_add_u32 s7, s7, {WS_VT}
    s_lshl_b32 s8, s56, 1
    """)
    for j in range(2):
        e(f"""
        s_add_u32 s9, s8, {j}
        s_and_b32 s12, s9, 15
        v_xor_b32 v22, s12, v127
        s_lshl_b32 s9, s9, 12
        s_add_u32 s9, s9, s7
        v_lshl_add_u32 v{DM+2+j}, v22, 4, s9
        """)
    e("""
    v_bfe_u32 v20, v127, 2, 2
    v_lshlrev_b32 v21, 6, v17
    s_lshl_b32 s9, s58, 14
    v_add_u32 v21, s9, v21
    """)
    for ks in range(2):
        e(f"v_or_b32 v22, {2*ks}, v18")
        e("v_xor_b32 v22, v22, v20")
        e(f"v_lshl_add_u32 v{KA+ks}, v22, 4, v21")
    e("v_and_b32 v20, 15, v127\nv_lshlrev_b32 v21, 10, v17\ns_lshl_b32 s9, s58, 9\ns_add_u32 s9, s9, 32768\nv_add_u32 v21, s9, v21")
    for c in range(8):
        e(f"v_or_b32 v22, {2*c}, v18")
        e("v_xor_b32 v22, v22, v20")
        e(f"v_lshl_add_u32 v{VA+c}, v22, 4, v21")
    def dma():
        for j in range(2):
            e(f"s_add_u32 m0, s54, {j*1024}\ns_nop 0")
            e(f"buffer_load_dwordx4 v{DM+j}, s[40:43], s52 offen lds")
        for j in range(2):
            e(f"s_add_u32 m0, s54, {32768 + j*1024}\ns_nop 0")
            e(f"buffer_load_dwordx4 v{DM+2+j}, s[40:43], s53 offen lds")
    KF = [72, 80]; VF = [88, 96]; SB = [16, 32]; P = 104
    def kread(tile):
        kf = KF[tile & 1]
        for ks in range(2):
            e(f"ds_read_b128 v[{kf+4*ks}:{kf+3+4*ks}], v{KA+ks} offset:{tile*2048}")
    def vread(tile):
        vf = VF[tile & 1]
        for c in range(2):
            cc = 2*tile + c
            e(f"ds_read_b128 v[{vf+4*c}:{vf+3+4*c}], v{VA + (cc&7)} offset:{(cc>>3)*256}")
    def smfma(tile):
        kf = KF[tile & 1]; S = SB[tile & 1]
        e(f"v_mfma_f32_32x32x16_bf16 v[{S}:{S+15}], v[{kf}:{kf+3}], v[64:67], v[48:63]")
        e(f"v_mfma_f32_32x32x16_bf16 v[{S}:{S+15}], v[{kf+4}:{kf+7}], v[68:71], v[{S}:{S+15}]")
    AR = [KA, KA+1] + list(range(VA, VA+8))
    def maxchain(S):
        e(f"v_max3_f32 v{P}, v{S}, v{S+1}, v{S+2}")
        for i in range(3, 15, 2):
            e(f"v_max3_f32 v{P}, v{P}, v{S+i}, v{S+i+1}")
        e(f"v_max_f32 v{P}, v{P}, v{S+15}")
    def mainloop(fast, tg):
        e("s_lshl_b32 s54, s56, 11\ns_mov_b32 s52, 0\ns_mov_b32 s53, 0")
        for i in range(16):
            e(f"v_mov_b32 v{i}, 0")
            e(f"v_mov_b32 v{48+i}, 0")
        e("v_mov_b32 v126, 0xff800000\ns_mov_b64 s[34:35], -1")
        dma()
        e(f"s_mov_b32 s30, 0\nAT_LOOP{tg}:")
        e("s_add_u32 s52, s52, 32768\ns_add_u32 s53, s53, 1024\ns_xor_b32 s54, s54, 0x10000")
        dma()
        e("s_waitcnt vmcnt(4)\ns_barrier")
        kread(0); kread(1); vread(0)
        e("s_waitcnt lgkmcnt(4)")
        smfma(0)
        e(f"s_nop 7\ns_mov_b32 s31, 0\nAT_IN{tg}:")
        for tile in range(4):
            S = SB[tile & 1]; vf = VF[tile & 1]
            e("s_waitcnt lgkmcnt(2)")
            smfma(tile + 1)
            kread(tile + 2)
            vread(tile + 1)
            if not fast:
                maxchain(S)
                e(f"v_cmp_lt_f32 vcc, 0x41000000, v{P}")
                e("s_or_b64 vcc, vcc, s[34:35]")
                e(f"s_cbranch_vccnz AT_SLOW{tg}{tile}")
            elif tile == 0:
                e("s_cmp_lg_u32 s34, 0")
                e(f"s_cbranch_scc1 AT_SLOW{tg}{tile}")
            e(f"AT_F{tg}{tile}:")
            for i in range(16):
                e(f"v_exp_f32 v{S+i}, v{S+i}")
            for i in range(8):
                e(f"v_cvt_pk_bf16_f32 v{P+i}, v{S+2*i}, v{S+1+2*i}")
            e("s_waitcnt lgkmcnt(4)\ns_nop 1")
            e(f"v_mfma_f32_32x32x16_bf16 v[0:15], v[{vf}:{vf+3}], v[{P}:{P+3}], v[0:15]")
            e(f"v_mfma_f32_32x32x16_bf16 v[0:15], v[{vf+4}:{vf+7}], v[{P+4}:{P+7}], v[0:15]")
        e(f"v_add_u32 v{KA}, 8192, v{KA}\nv_add_u32 v{KA+1}, 8192, v{KA+1}")
        for r in range(VA, VA+8):
            e(f"v_add_u32 v{r}, 256, v{r}")
        e(f"s_add_u32 s31, s31, 1\ns_cmp_lt_u32 s31, 2\ns_cbranch_scc1 AT_IN{tg}")
        e(f"v_subrev_u32 v{KA}, 16384, v{KA}\nv_subrev_u32 v{KA+1}, 16384, v{KA+1}")
        for r in range(VA, VA+8):
            e(f"v_subrev_u32 v{r}, 512, v{r}")
        for r in AR:
            e(f"v_xor_b32 v{r}, 0x10000, v{r}")
        e("s_waitcnt lgkmcnt(0)\ns_barrier")
        e(f"s_add_u32 s30, s30, 1\ns_cmp_lt_u32 s30, 4\ns_cbranch_scc1 AT_LOOP{tg}")
        e(f"s_branch AT_FIN{tg}")
        for tile in range(4 if not fast else 1):
            S = SB[tile & 1]; S2 = SB[(tile & 1) ^ 1]
            e(f"AT_SLOW{tg}{tile}:")
            if fast: maxchain(S)
            e(f"v_mov_b32 v{P+1}, v{P}\ns_nop 1")
            e(f"v_permlane32_swap_b32 v{P}, v{P+1}")
            e("s_nop 1")
            e(f"v_max3_f32 v{P}, v{P}, v{P+1}, v126")
            e("v_mov_b32 v126, 0\ns_mov_b64 s[34:35], 0")
            e(f"v_exp_f32 v{P+1}, -v{P}")
            e("s_nop 7\ns_nop 7")
            for i in range(16):
                e(f"v_sub_f32 v{S+i}, v{S+i}, v{P}")
                e(f"v_sub_f32 v{48+i}, v{48+i}, v{P}")
                e(f"v_mul_f32 v{i}, v{i}, v{P+1}")
                e(f"v_sub_f32 v{S2+i}, v{S2+i}, v{P}")
            e(f"s_branch AT_F{tg}{tile}")
        e(f"AT_FIN{tg}:\ns_waitcnt vmcnt(0)\ns_nop 15")
    mainloop(True, "A")
    e("""
    s_barrier
    v_mov_b32 v16, 0x71800000
    v_cmp_nlt_f32 vcc, v10, v16
    s_cmp_lg_u64 vcc, 0
    s_cselect_b32 s6, 1, 0
    v_mov_b32 v16, s6
    s_lshl_b32 s6, s56, 2
    s_add_u32 s6, s6, 65536
    v_mov_b32 v17, s6
    ds_write_b32 v17, v16
    v_and_b32 v17, 15, v127
    v_lshlrev_b32 v17, 2, v17
    v_add_u32 v17, 65536, v17
    s_waitcnt lgkmcnt(0)
    s_barrier
    ds_read_b32 v16, v17
    s_waitcnt lgkmcnt(0)
    v_cmp_ne_u32 vcc, 0, v16
    s_cbranch_vccz AT_MERGE
    s_barrier
    """)
    mainloop(False, "B")
    e("AT_MERGE:")
    e("""
    s_lshl_b32 s6, s57, 6
    v_add_u32 v16, s6, v127
    v_lshlrev_b32 v16, 6, v16
    s_barrier
    s_cmp_eq_u32 s58, 0
    s_cbranch_scc1 AT_MRG
    ds_write_b128 v16, v[0:3]
    ds_write_b128 v16, v[4:7] offset:16
    ds_write_b128 v16, v[8:11] offset:32
    ds_write_b32 v16, v48 offset:48
    s_waitcnt lgkmcnt(0)
    s_barrier
    s_branch AT_END
    AT_MRG:
    s_barrier
    ds_read_b128 v[20:23], v16
    ds_read_b128 v[24:27], v16 offset:16
    ds_read_b128 v[28:31], v16 offset:32
    ds_read_b32 v32, v16 offset:48
    s_waitcnt lgkmcnt(0)
    v_min_f32 v33, v48, v32
    v_sub_f32 v34, v33, v48
    v_sub_f32 v35, v33, v32
    v_exp_f32 v34, v34
    v_exp_f32 v35, v35
    s_nop 1
    """)
    for i in range(12):
        e(f"v_mul_f32 v{i}, v{i}, v34")
        e(f"v_fmac_f32 v{i}, v{20+i}, v35")
    e(f"""
    v_and_b32 v17, 31, v127
    v_lshrrev_b32 v18, 5, v127
    v_rcp_f32 v33, v10
    s_lshl_b32 s6, s5, 8
    s_lshl_b32 s7, s57, 5
    s_add_u32 s6, s6, s7
    s_lshr_b32 s6, s6, 5
    s_mul_i32 s6, s6, 331776
    s_add_u32 s6, s6, {WS_H}
    v_lshl_add_u32 v19, v17, 4, s6
    s_mul_i32 s8, s4, 18
    s_add_u32 s8, s8, 4608
    v_lshl_add_u32 v41, v18, 2, s8
    """)
    for i in range(10):
        e(f"v_mul_f32 v{i}, v{i}, v33")
    def oaddr(dst, c):
        e(f"v_add_u32 v{dst}, {c}, v41")
        e(f"v_lshrrev_b32 v46, 3, v{dst}")
        e(f"v_and_b32 v{dst}, 7, v{dst}")
        e(f"v_lshl_add_u32 v{dst}, v{dst}, 1, v19")
        e(f"v_lshl_add_u32 v{dst}, v46, 9, v{dst}")
    for q in range(2):
        e(f"v_cvt_pk_bf16_f32 v{36+2*q}, v{4*q}, v{4*q+1}")
        e(f"v_cvt_pk_bf16_f32 v{37+2*q}, v{4*q+2}, v{4*q+3}")
        oaddr(42+2*q, 8*q); oaddr(43+2*q, 8*q+2)
        e(f"buffer_store_dword v{36+2*q}, v{42+2*q}, s[40:43], 0 offen")
        e(f"buffer_store_dword v{37+2*q}, v{43+2*q}, s[40:43], 0 offen")
    oaddr(47, 16)
    e("""
    v_cvt_pk_bf16_f32 v40, v8, v9
    v_cmp_eq_u32 vcc, 0, v18
    s_and_saveexec_b64 s[24:25], vcc
    s_cbranch_execz AT_SK
    buffer_store_dword v40, v47, s[40:43], 0 offen
    AT_SK:
    s_or_b64 exec, exec, s[24:25]
    AT_END:
    s_endpgm
    """)

def gen_attn8(e, standalone=True):
    if standalone: header(e, "attn_kernel")
    KA = 112; VA = 114; DM = 122
    e(f"""
    s_cmp_ge_u32 s2, 256
    s_cbranch_scc1 AT_END
    s_load_dwordx2 s[10:11], s[0:1], 72
    s_and_b32 s4, s2, 7
    s_lshl_b32 s4, s4, 2
    s_bfe_u32 s5, s2, 0x20003
    s_add_u32 s4, s4, s5          ; head
    s_lshr_b32 s5, s2, 5          ; qblock
    v_and_b32 v127, 63, v0
    v_lshrrev_b32 v16, 6, v0
    s_nop 0
    v_readfirstlane_b32 s56, v16
    v_and_b32 v17, 31, v127      ; l32
    v_lshrrev_b32 v18, 5, v127   ; h
    s_mov_b32 s57, s56           ; qt
    s_waitcnt lgkmcnt(0)
    """)
    srd(e, 40, 10, 11, WS_SIZE)
    e(f"""
    s_lshl_b32 s6, s4, 11
    s_lshl_b32 s7, s5, 8
    s_add_u32 s6, s6, s7
    s_lshl_b32 s7, s57, 5
    s_add_u32 s6, s6, s7
    v_add_u32 v19, s6, v17
    v_lshlrev_b32 v19, 6, v19
    v_lshl_add_u32 v19, v18, 4, v19
    v_add_u32 v19, {WS_QP}, v19
    buffer_load_dwordx4 v[64:67], v19, s[40:43], 0 offen
    buffer_load_dwordx4 v[68:71], v19, s[40:43], 0 offen offset:32
    s_lshl_b32 s7, s4, 17
    s_add_u32 s7, s7, {WS_KP}
    s_lshl_b32 s8, s56, 11
    s_add_u32 s7, s7, s8
    v_lshrrev_b32 v20, 2, v127
    v_lshlrev_b32 v20, 6, v20
    v_and_b32 v21, 3, v127
    v_bfe_u32 v22, v127, 4, 2
    v_xor_b32 v21, v21, v22
    v_lshl_add_u32 v20, v21, 4, v20
    v_add_u32 v{DM}, s7, v20
    v_add_u32 v{DM+1}, 1024, v{DM}
    s_lshl_b32 s7, s4, 17
    s_add_u32 s7, s7, {WS_VT}
    s_lshl_b32 s8, s56, 2
    v_and_b32 v23, 31, v127
    """)
    for j in range(2):
        e(f"""
        s_add_u32 s9, s8, {2*j}
        v_add_u32 v20, s9, v18
        v_and_b32 v21, 15, v20
        v_xor_b32 v21, v21, v23
        v_lshlrev_b32 v20, 12, v20
        v_lshl_add_u32 v20, v21, 4, v20
        v_add_u32 v{DM+2+j}, s7, v20
        """)
    e("""
    v_bfe_u32 v20, v127, 2, 2
    v_lshlrev_b32 v21, 6, v17
    """)
    for ks in range(2):
        e(f"v_or_b32 v22, {2*ks}, v18")
        e("v_xor_b32 v22, v22, v20")
        e(f"v_lshl_add_u32 v{KA+ks}, v22, 4, v21")
    e("v_and_b32 v20, 15, v127\nv_lshlrev_b32 v21, 9, v17\nv_add_u32 v21, 16384, v21")
    for c in range(8):
        e(f"v_or_b32 v22, {2*c}, v18")
        e("v_xor_b32 v22, v22, v20")
        e(f"v_lshl_add_u32 v{VA+c}, v22, 4, v21")
    def dma():
        for j in range(2):
            e(f"s_add_u32 m0, s54, {j*1024}\ns_nop 0")
            e(f"buffer_load_dwordx4 v{DM+j}, s[40:43], s52 offen lds")
        for j in range(2):
            e(f"s_add_u32 m0, s54, {16384 + j*1024}\ns_nop 0")
            e(f"buffer_load_dwordx4 v{DM+2+j}, s[40:43], s53 offen lds")
    KF = [72, 80]; VF = [88, 96]; SB = [16, 32]; P = 104
    def kread(tile):
        kf = KF[tile & 1]
        for ks in range(2):
            e(f"ds_read_b128 v[{kf+4*ks}:{kf+3+4*ks}], v{KA+ks} offset:{tile*2048}")
    def vread(tile):
        vf = VF[tile & 1]
        for c in range(2):
            cc = 2*tile + c
            e(f"ds_read_b128 v[{vf+4*c}:{vf+3+4*c}], v{VA + (cc&7)} offset:{(cc>>3)*256}")
    def smfma(tile):
        kf = KF[tile & 1]; S = SB[tile & 1]
        e(f"v_mfma_f32_32x32x16_bf16 v[{S}:{S+15}], v[{kf}:{kf+3}], v[64:67], v[48:63]")
        e(f"v_mfma_f32_32x32x16_bf16 v[{S}:{S+15}], v[{kf+4}:{kf+7}], v[68:71], v[{S}:{S+15}]")
    AR = [KA, KA+1] + list(range(VA, VA+8))
    def maxchain(S):
        e(f"v_max3_f32 v{P}, v{S}, v{S+1}, v{S+2}")
        for i in range(3, 15, 2):
            e(f"v_max3_f32 v{P}, v{P}, v{S+i}, v{S+i+1}")
        e(f"v_max_f32 v{P}, v{P}, v{S+15}")
    def mainloop(fast, tg):
        e("s_lshl_b32 s54, s56, 11\ns_mov_b32 s52, 0\ns_mov_b32 s53, 0")
        for i in range(16):
            e(f"v_mov_b32 v{i}, 0")
            e(f"v_mov_b32 v{48+i}, 0")
        e("v_mov_b32 v126, 0xff800000\ns_mov_b64 s[34:35], -1")
        dma()
        e(f"s_mov_b32 s30, 0\nAT_LOOP{tg}:")
        e("s_add_u32 s52, s52, 16384\ns_add_u32 s53, s53, 512\ns_xor_b32 s54, s54, 0x8000")
        dma()
        e("s_waitcnt vmcnt(4)\ns_barrier")
        kread(0); kread(1); vread(0)
        e("s_waitcnt lgkmcnt(4)")
        smfma(0)
        e(f"s_nop 7\ns_mov_b32 s31, 0\nAT_IN{tg}:")
        for tile in range(4):
            S = SB[tile & 1]; vf = VF[tile & 1]
            e("s_waitcnt lgkmcnt(2)")
            smfma(tile + 1)
            kread(tile + 2)
            vread(tile + 1)
            if not fast:
                maxchain(S)
                e(f"v_cmp_lt_f32 vcc, 0x41000000, v{P}")
                e("s_or_b64 vcc, vcc, s[34:35]")
                e(f"s_cbranch_vccnz AT_SLOW{tg}{tile}")
            elif tile == 0:
                e("s_cmp_lg_u32 s34, 0")
                e(f"s_cbranch_scc1 AT_SLOW{tg}{tile}")
            e(f"AT_F{tg}{tile}:")
            for i in range(16):
                e(f"v_exp_f32 v{S+i}, v{S+i}")
            for i in range(8):
                e(f"v_cvt_pk_bf16_f32 v{P+i}, v{S+2*i}, v{S+1+2*i}")
            e("s_waitcnt lgkmcnt(4)\ns_nop 1")
            e(f"v_mfma_f32_32x32x16_bf16 v[0:15], v[{vf}:{vf+3}], v[{P}:{P+3}], v[0:15]")
            e(f"v_mfma_f32_32x32x16_bf16 v[0:15], v[{vf+4}:{vf+7}], v[{P+4}:{P+7}], v[0:15]")
        e(f"v_add_u32 v{KA}, 8192, v{KA}\nv_add_u32 v{KA+1}, 8192, v{KA+1}")
        for r in range(VA, VA+8):
            e(f"v_add_u32 v{r}, 256, v{r}")
        e(f"s_add_u32 s31, s31, 1\ns_cmp_lt_u32 s31, 2\ns_cbranch_scc1 AT_IN{tg}")
        e(f"v_subrev_u32 v{KA}, 16384, v{KA}\nv_subrev_u32 v{KA+1}, 16384, v{KA+1}")
        for r in range(VA, VA+8):
            e(f"v_subrev_u32 v{r}, 512, v{r}")
        for r in AR:
            e(f"v_xor_b32 v{r}, 0x8000, v{r}")
        e("s_waitcnt lgkmcnt(0)\ns_barrier")
        e(f"s_add_u32 s30, s30, 1\ns_cmp_lt_u32 s30, 8\ns_cbranch_scc1 AT_LOOP{tg}")
        e(f"s_branch AT_FIN{tg}")
        for tile in range(4 if not fast else 1):
            S = SB[tile & 1]; S2 = SB[(tile & 1) ^ 1]
            e(f"AT_SLOW{tg}{tile}:")
            if fast: maxchain(S)
            e(f"v_mov_b32 v{P+1}, v{P}\ns_nop 1")
            e(f"v_permlane32_swap_b32 v{P}, v{P+1}")
            e("s_nop 1")
            e(f"v_max3_f32 v{P}, v{P}, v{P+1}, v126")
            e("v_mov_b32 v126, 0\ns_mov_b64 s[34:35], 0")
            e(f"v_exp_f32 v{P+1}, -v{P}")
            e("s_nop 7\ns_nop 7")
            for i in range(16):
                e(f"v_sub_f32 v{S+i}, v{S+i}, v{P}")
                e(f"v_sub_f32 v{48+i}, v{48+i}, v{P}")
                e(f"v_mul_f32 v{i}, v{i}, v{P+1}")
                e(f"v_sub_f32 v{S2+i}, v{S2+i}, v{P}")
            e(f"s_branch AT_F{tg}{tile}")
        e(f"AT_FIN{tg}:\ns_waitcnt vmcnt(0)\ns_nop 15")
    mainloop(True, "A")
    e("""
    s_barrier
    v_mov_b32 v16, 0x71800000
    v_cmp_nlt_f32 vcc, v10, v16
    s_cmp_lg_u64 vcc, 0
    s_cselect_b32 s6, 1, 0
    v_mov_b32 v16, s6
    s_lshl_b32 s6, s56, 2
    s_add_u32 s6, s6, 65536
    v_mov_b32 v17, s6
    ds_write_b32 v17, v16
    v_and_b32 v17, 7, v127
    v_lshlrev_b32 v17, 2, v17
    v_add_u32 v17, 65536, v17
    s_waitcnt lgkmcnt(0)
    s_barrier
    ds_read_b32 v16, v17
    s_waitcnt lgkmcnt(0)
    v_cmp_ne_u32 vcc, 0, v16
    s_cbranch_vccz AT_MERGE
    s_barrier
    """)
    mainloop(False, "B")
    e("AT_MERGE:")
    e(f"""
    v_and_b32 v17, 31, v127
    v_lshrrev_b32 v18, 5, v127
    v_rcp_f32 v33, v10
    s_lshl_b32 s6, s5, 8
    s_lshl_b32 s7, s57, 5
    s_add_u32 s6, s6, s7
    s_lshr_b32 s6, s6, 5
    s_mul_i32 s6, s6, 331776
    s_add_u32 s6, s6, {WS_H}
    v_lshl_add_u32 v19, v17, 4, s6
    s_mul_i32 s8, s4, 18
    s_add_u32 s8, s8, 4608
    v_lshl_add_u32 v41, v18, 2, s8
    """)
    for i in range(10):
        e(f"v_mul_f32 v{i}, v{i}, v33")
    def oaddr(dst, c):
        e(f"v_add_u32 v{dst}, {c}, v41")
        e(f"v_lshrrev_b32 v46, 3, v{dst}")
        e(f"v_and_b32 v{dst}, 7, v{dst}")
        e(f"v_lshl_add_u32 v{dst}, v{dst}, 1, v19")
        e(f"v_lshl_add_u32 v{dst}, v46, 9, v{dst}")
    for q in range(2):
        e(f"v_cvt_pk_bf16_f32 v{36+2*q}, v{4*q}, v{4*q+1}")
        e(f"v_cvt_pk_bf16_f32 v{37+2*q}, v{4*q+2}, v{4*q+3}")
        oaddr(42+2*q, 8*q); oaddr(43+2*q, 8*q+2)
        e(f"buffer_store_dword v{36+2*q}, v{42+2*q}, s[40:43], 0 offen")
        e(f"buffer_store_dword v{37+2*q}, v{43+2*q}, s[40:43], 0 offen")
    oaddr(47, 16)
    e("""
    v_cvt_pk_bf16_f32 v40, v8, v9
    v_cmp_eq_u32 vcc, 0, v18
    s_and_saveexec_b64 s[24:25], vcc
    s_cbranch_execz AT_SK
    buffer_store_dword v40, v47, s[40:43], 0 offen
    AT_SK:
    s_or_b64 exec, exec, s[24:25]
    s_waitcnt vmcnt(0)
    """)
    ts_end(e, "a")
    e("AT_END:\ns_endpgm")

def main():
    e = E()
    hdr = open("parallel_sum__mha_block__glu_gated_swiglu__prompt.s.ref").read().split("; Override")[0]
    txt = hdr
    txt += "; @launch kernel=ln_kernel grid=(704,1,1) block=(256,1,1) lds=0\n"
    txt += f"; @launch kernel=gemm1_kernel grid=(256,1,1) block=(512,1,1) lds=163840\n"
    txt += "; @launch kernel=attn_kernel grid=(512,1,1) block=(512,1,1) lds=77824\n"
    txt += "; @launch kernel=fin_kernel grid=(192,1,1) block=(256,1,1) lds=135168\n"
    txt += '.amdgcn_target "amdgcn-amd-amdhsa--gfx950"\n.text\n'
    gen_ln(e); gen_gemm1(e)
    header(e, "attn_kernel")
    if "TS" in sys.argv: e("s_memrealtime s[70:71]\ns_memtime s[80:81]\ns_mov_b32 s74, s2")
    if "MAPB" in sys.argv:
        e("""
        s_bfe_u32 s3, s2, 0x10003
        s_and_b32 s4, s2, 7
        s_lshr_b32 s2, s2, 4
        s_lshl_b32 s2, s2, 3
        s_or_b32 s2, s2, s4
        s_cmp_lg_u32 s3, 0
        s_cbranch_scc1 G2_START
        """)
    elif "MAPC" in sys.argv:
        e("""
        s_cmp_lt_u32 s2, 256
        s_cbranch_scc1 G2_START
        s_sub_u32 s2, s2, 256
        """)
    else:
        e("""
        s_cmp_lt_u32 s2, 256
        s_cbranch_scc1 AT_START
        s_sub_u32 s2, s2, 256
        s_branch G2_START
        AT_START:
        """)
    if "PA" in sys.argv: e("s_setprio 2")
    if "NOAT" in sys.argv: e("s_endpgm")
    gen_attn8(e, False); gen_gemm2h(e); gen_fin2(e)
    txt += e.text()
    txt += kd("ln_kernel", 80) + kd("gemm1_kernel", 256) + kd("attn_kernel", 128) + kd("fin_kernel", 244)
    open(OUT, "w").write(txt)
    print("wrote", len(txt))
main()
```

```python
import sys
OUT = "parallel_sum__mha_block__glu_gated_swiglu__prompt.s" if len(sys.argv)<2 else "var_"+sys.argv[1]+".s"

MB = 1 << 20
WS_XN = 0
WS_QP = 4 * MB
WS_KP = 8 * MB
WS_VT = 12 * MB
WS_H = 16 * MB
WS_O = 40 * MB
WS_SIZE = 268435456
WS_CNT = 47 * MB

S_, D_, F_, H_ = 2048, 576, 4608, 32
LOG2E = 1.4426950408889634
QSCALE = LOG2E * (18 ** -0.5)

import struct
def f2u(x):
    return struct.unpack("<I", struct.pack("<f", x))[0]

class E:
    def __init__(self):
        self.l = []
    def __call__(self, s):
        for ln in s.strip("\n").split("\n"):
            self.l.append("  " + ln.strip() if not ln.strip().endswith(":") else ln.strip())
    def text(self):
        return "\n".join(self.l) + "\n"

def srd(e, d, base_lo, base_hi, nbytes):
    e(f"s_mov_b32 s{d}, s{base_lo}")
    e(f"s_and_b32 s{d+1}, s{base_hi}, 0xffff")
    e(f"s_mov_b32 s{d+2}, {nbytes}")
    e(f"s_mov_b32 s{d+3}, 0x00020000")

def header(e, name):
    e(f".globl {name}\n.p2align 8\n.type {name},@function\n{name}:")

def kd(name, vgpr, sgpr=102):
    acc = (vgpr + 3) // 4 * 4
    return f""".section .rodata,"a"
.p2align 6
.amdhsa_kernel {name}
  .amdhsa_next_free_vgpr {vgpr}
  .amdhsa_next_free_sgpr {sgpr}
  .amdhsa_accum_offset {acc}
  .amdhsa_group_segment_fixed_size 0
  .amdhsa_kernarg_size 80
  .amdhsa_user_sgpr_count 2
  .amdhsa_user_sgpr_kernarg_segment_ptr 1
  .amdhsa_system_sgpr_workgroup_id_x 1
.end_amdhsa_kernel
"""

def gen_ln(e):
    header(e, "ln_kernel")
    PF = ((28, D_*F_*2), (30, D_*F_*2), (26, D_*1728*2))
    def prefetch():
        if "PF" not in sys.argv: return
        for n_, (lo, nb) in enumerate(PF):
            srd(e, 32, lo, lo+1, nb)
            e(f"buffer_load_dword v{71+n_}, v70, s[32:35], 0 offen")
    e("""
    s_cmp_ge_u32 s2, 704
    s_cbranch_scc1 LN_END
    s_load_dwordx2 s[4:5], s[0:1], 0
    s_load_dwordx2 s[6:7], s[0:1], 72
    s_load_dwordx2 s[26:27], s[0:1], 8
    s_load_dwordx2 s[28:29], s[0:1], 32
    s_load_dwordx2 s[30:31], s[0:1], 40
    s_lshl_b32 s3, s2, 8
    v_add_u32 v1, s3, v0
    v_lshlrev_b32 v70, 5, v1
    v_lshrrev_b32 v2, 5, v1
    v_and_b32 v3, 31, v1
    s_movk_i32 s20, 1152
    v_mul_lo_u32 v4, v2, s20
    v_lshl_add_u32 v4, v3, 2, v4
    s_waitcnt lgkmcnt(0)
    """)
    srd(e, 12, 6, 7, WS_SIZE)
    e("s_cmp_lt_u32 s2, 256\ns_cbranch_scc1 LN_MAIN")
    e(f"""
    s_cmp_lg_u32 s2, 256
    s_cbranch_scc1 LN_NZ
    v_lshlrev_b32 v60, 2, v0
    v_add_u32 v60, {WS_CNT}, v60
    v_mov_b32 v61, 0
    buffer_store_dword v61, v60, s[12:15], 0 offen
    LN_NZ:
    """)
    prefetch()
    magic = -(-(1 << 32) // 3584)
    e(f"""
    v_subrev_u32 v30, 65536, v1
    s_mov_b32 s21, {magic}
    v_mul_hi_u32 v31, v30, s21
    s_movk_i32 s21, 3584
    v_mul_lo_u32 v32, v31, s21
    v_sub_u32 v32, v30, v32
    v_lshrrev_b32 v33, 8, v32
    v_and_b32 v34, 255, v32
    v_add_u32 v33, 18, v33
    v_lshl_add_u32 v35, v31, 5, v33
    v_lshlrev_b32 v35, 12, v35
    v_lshl_add_u32 v35, v34, 4, v35
    v_add_u32 v35, {WS_VT}, v35
    v_cmp_eq_u32 vcc, 18, v33
    v_cmp_eq_u32 s[22:23], 22, v33
    s_or_b64 vcc, vcc, s[22:23]
    v_mov_b32 v36, 0x3f803f80
    s_nop 1
    v_cndmask_b32 v44, 0, v36, vcc
    v_mov_b32 v45, v44
    v_mov_b32 v46, v44
    v_mov_b32 v47, v44
    v_cmp_gt_u32 vcc, 114688, v30
    s_and_saveexec_b64 s[24:25], vcc
    s_cbranch_execz LN_END
    buffer_store_dwordx4 v[44:47], v35, s[12:15], 0 offen
    s_branch LN_END
    LN_MAIN:
    """)
    srd(e, 8, 4, 5, S_ * D_ * 2)
    for i in range(9):
        e(f"buffer_load_dword v{10+i}, v4, s[8:11], 0 offen offset:{128*i}")
    prefetch()
    e(f"s_waitcnt vmcnt({0 if 'PF' not in sys.argv else len(PF)})")
    for i in range(9):
        e(f"v_lshlrev_b32 v{50+2*i}, 16, v{10+i}")
        e(f"v_and_b32 v{51+2*i}, 0xffff0000, v{10+i}")
    e("v_add_f32 v20, v50, v51")
    for i in range(2, 18):
        e(f"v_add_f32 v20, v20, v{50+i}")
    def red(v):
        for x in (1, 2, 4, 8, 16):
            e(f"ds_swizzle_b32 v21, v{v} offset:{(x<<10)|0x1f}")
            e("s_waitcnt lgkmcnt(0)")
            e(f"v_add_f32 v{v}, v{v}, v21")
    red(20)
    e(f"v_mul_f32 v20, {hex(f2u(1.0/576))}, v20")
    for i in range(18):
        e(f"v_sub_f32 v{50+i}, v{50+i}, v20")
    e("v_mul_f32 v22, v50, v50")
    for i in range(1, 18):
        e(f"v_fmac_f32 v22, v{50+i}, v{50+i}")
    red(22)
    e(f"v_mov_b32 v23, {hex(f2u(1e-5))}")
    e(f"v_fmac_f32 v23, {hex(f2u(1.0/576))}, v22")
    e("v_rsq_f32 v23, v23")
    e("s_nop 1")
    for i in range(18):
        e(f"v_mul_f32 v{50+i}, v{50+i}, v23")
    for i in range(9):
        e(f"v_cvt_pk_bf16_f32 v{10+i}, v{50+2*i}, v{51+2*i}")
    e("""
    v_lshrrev_b32 v5, 5, v2
    v_mul_u32_u24 v5, 36864, v5
    v_and_b32 v6, 31, v2
    v_lshl_add_u32 v5, v6, 4, v5
    v_lshrrev_b32 v6, 3, v3
    v_lshl_add_u32 v5, v6, 10, v5
    v_bfe_u32 v6, v3, 2, 1
    v_lshl_add_u32 v5, v6, 9, v5
    v_and_b32 v6, 3, v3
    v_lshl_add_u32 v5, v6, 2, v5
    """)
    for i in range(9):
        e(f"s_mov_b32 s20, {4096*i}")
        e(f"buffer_store_dword v{10+i}, v5, s[12:15], s20 offen")
    e("LN_END:\ns_endpgm")

ACC = 0
def acc(p, t):
    b = ACC + p * 32 + t * 16
    return f"v[{b}:{b+15}]"

def gemm_dma(e, buf):
    if "NODMA" in sys.argv: return
    sb = buf * 16384
    for i in range(2):
        e(f"s_add_u32 m0, s54, {sb + i*1024}")
        e("s_nop 0")
        e(f"buffer_load_dwordx4 v{96+i}, s[40:43], s52 offen lds")
    for p in range(2):
        e(f"s_add_u32 m0, s55, {sb + p*4096}")
        e("s_nop 0")
        e(f"buffer_load_dwordx4 v100, s[{44+4*p}:{47+4*p}], s53 offen lds")

def gemm_reads(e, buf, ks):
    fs = 64 + (ks & 1) * 16
    sb = buf * 16384
    for p in range(2):
        for h2 in range(2):
            e(f"ds_read_b64_tr_b16 v[{fs+4*p+2*h2}:{fs+4*p+2*h2+1}], v106 offset:{sb + p*4096 + ks*2048 + h2*512}")
    for t in range(2):
        e(f"ds_read_b128 v[{fs+8+4*t}:{fs+11+4*t}], v{102+ks} offset:{sb + t*2048}")

SWAP = [False]
def gemm_compute(e, buf):
    gemm_reads(e, buf, 0)
    for ks in range(2):
        if ks < 1:
            gemm_reads(e, buf, ks + 1)
            e("s_waitcnt lgkmcnt(6)")
        else:
            e("s_waitcnt lgkmcnt(0)")
        fs = 64 + (ks & 1) * 16
        for p in range(2):
            for t in range(2):
                wfr = f"v[{fs+4*p}:{fs+4*p+3}]"; xfr = f"v[{fs+8+4*t}:{fs+11+4*t}]"
                if SWAP[0]: wfr, xfr = xfr, wfr
                if "NOMF" not in sys.argv: e(f"v_mfma_f32_32x32x16_bf16 {acc(p,t)}, {wfr}, {xfr}, {acc(p,t)}")

def gemm_setup_common(e, m0_sreg):
    e("""
    v_and_b32 v107, 63, v0
    v_lshrrev_b32 v108, 6, v0
    s_nop 0
    v_readfirstlane_b32 s56, v108
    """)
    for i in range(64):
        e(f"v_mov_b32 v{i}, 0")
    e("""
    s_lshr_b32 s57, s56, 1
    s_and_b32 s58, s56, 1
    v_and_b32 v108, 31, v107
    v_lshrrev_b32 v109, 5, v107
    v_bfe_u32 v110, v107, 2, 2
    s_lshl_b32 s59, s57, 12
    v_lshlrev_b32 v111, 6, v108
    v_add_u32 v111, s59, v111
    """)
    for ks in range(2):
        e(f"v_or_b32 v112, {2*ks}, v109")
        e("v_xor_b32 v112, v112, v110")
        e(f"v_lshl_add_u32 v{102+ks}, v112, 4, v111")
    e("""
    v_bfe_u32 v108, v107, 2, 2
    v_lshl_add_u32 v108, v109, 3, v108
    v_lshlrev_b32 v108, 7, v108
    v_bfe_u32 v110, v107, 3, 1
    v_xor_b32 v110, s58, v110
    v_lshl_add_u32 v108, v110, 6, v108
    v_bfe_u32 v110, v107, 4, 1
    v_lshl_add_u32 v108, v110, 5, v108
    v_and_b32 v110, 3, v107
    v_lshl_add_u32 v108, v110, 3, v108
    v_add_u32 v106, 8192, v108
    s_lshl_b32 s54, s56, 11
    s_lshl_b32 s55, s56, 10
    s_add_u32 s55, s55, 8192
    """)

def gemm_setup_x(e, m0_sreg, stride_sreg):
    e(f"""
    s_lshl_b32 s59, s56, 5
    s_add_u32 s59, s59, s{m0_sreg}
    v_lshrrev_b32 v108, 2, v107
    v_add_u32 v108, s59, v108
    v_and_b32 v109, 3, v107
    v_bfe_u32 v110, v107, 4, 2
    v_xor_b32 v112, v109, v110
    """)
    for i in range(2):
        e(f"v_add_u32 v111, {16*i}, v108")
        e(f"v_mul_lo_u32 v111, v111, s{stride_sreg}")
        e(f"v_lshl_add_u32 v{96+i}, v112, 4, v111")

def gemm_setup_w(e, ncol_sreg, stride_sreg):
    e(f"""
    s_lshl_b32 s59, s56, 3
    v_lshrrev_b32 v108, 3, v107
    v_add_u32 v108, s59, v108
    v_and_b32 v109, 7, v107
    v_bfe_u32 v110, v107, 4, 1
    v_lshlrev_b32 v110, 2, v110
    v_xor_b32 v109, v109, v110
    v_lshlrev_b32 v109, 4, v109
    s_lshl_b32 s59, s{ncol_sreg}, 1
    v_add_u32 v109, s59, v109
    v_mul_lo_u32 v111, v108, s{stride_sreg}
    v_add_u32 v100, v111, v109
    """)

def gemm_stage(e, s, nst, adv):
    buf = s & 1
    if s + 1 < nst:
        adv(e)
        gemm_dma(e, buf ^ 1)
        e("s_waitcnt vmcnt(4)")
    else:
        e("s_waitcnt vmcnt(0)")
    e("s_barrier")
    gemm_compute(e, buf)
    e("s_barrier")

def gen_gemm1(e):
    XR = 64; WF = 208; T = WF
    FL = sys.argv
    header(e, "gemm1_kernel")
    if "TS1" in sys.argv: e("s_memrealtime s[70:71]")
    if "TS1" in sys.argv: e("s_memtime s[84:85]\ns_mov_b32 s72, 0\ns_mov_b32 s74, 0\ns_mov_b32 s76, 0\ns_mov_b32 s78, 0")
    e(f"""
    s_cmp_ge_u32 s2, 256
    s_cbranch_scc1 G1_END
    s_load_dwordx2 s[4:5], s[0:1], 8
    s_load_dwordx2 s[6:7], s[0:1], 32
    s_load_dwordx2 s[8:9], s[0:1], 40
    s_load_dwordx2 s[10:11], s[0:1], 72
    s_bfe_u32 s12, s2, 0x30003
    s_lshl_b32 s12, s12, 8
    s_lshr_b32 s13, s2, 6
    s_lshl_b32 s13, s13, 3
    s_and_b32 s14, s2, 7
    s_add_u32 s14, s13, s14      ; group 0..31
    v_and_b32 v245, 63, v0
    v_lshrrev_b32 v246, 6, v0
    s_nop 0
    v_readfirstlane_b32 s56, v246
    v_and_b32 v246, 31, v245
    v_lshrrev_b32 v247, 5, v245
    s_waitcnt lgkmcnt(0)
    """)
    srd(e, 40, 10, 11, S_ * D_ * 2)
    srd(e, 60, 10, 11, WS_SIZE)
    e("""
    v_bfe_u32 v248, v245, 2, 2
    v_lshl_add_u32 v248, v247, 3, v248
    v_lshlrev_b32 v248, 7, v248
    v_bfe_u32 v249, v245, 4, 1
    v_lshl_add_u32 v248, v249, 5, v248
    v_and_b32 v249, 3, v245
    v_lshl_add_u32 v248, v249, 3, v248
    v_bfe_u32 v249, v245, 3, 1
    v_lshl_add_u32 v242, v249, 6, v248
    v_xor_b32 v249, 1, v249
    v_lshl_add_u32 v243, v249, 6, v248
    v_add_u32 v252, 0x10000, v242
    v_add_u32 v253, 0x10000, v243
    v_add_u32 v254, 0x20000, v242
    v_add_u32 v255, 0x20000, v243
    s_lshl_b32 s55, s56, 10
    s_lshr_b32 s59, s12, 5
    s_add_u32 s59, s59, s56
    s_mul_i32 s59, s59, 36864
    v_lshl_add_u32 v244, v245, 4, s59
    """)
    def xload(kk):
        if "NOX1" in FL: return
        e(f"s_mov_b32 s59, {1024*kk}")
        e(f"buffer_load_dwordx4 v[{XR+4*kk}:{XR+4*kk+3}], v244, s[40:43], s59 offen")
    def voffw():
        e(f"""
        s_lshl_b32 s17, s16, 6
        s_lshl_b32 s59, s56, 3
        v_lshrrev_b32 v248, 3, v245
        v_add_u32 v248, s59, v248
        v_and_b32 v249, 7, v245
        v_bfe_u32 v250, v245, 4, 1
        v_lshlrev_b32 v250, 2, v250
        v_xor_b32 v249, v249, v250
        v_lshlrev_b32 v249, 4, v249
        s_lshl_b32 s59, s15, 1
        v_add_u32 v249, s59, v249
        v_mul_lo_u32 v250, v248, s16
        v_add_u32 v240, v250, v249
        s_mov_b32 s53, 0
        s_nop 4
        """)
    def dma(buf):
        for p in range(2):
            if "NODMA1" in FL: continue
            e(f"s_add_u32 m0, s55, {buf*16384 + p*8192}")
            e("s_nop 0")
            e(f"buffer_load_dwordx4 v240, s[{44+4*p}:{47+4*p}], s53 offen lds")
        e("s_add_u32 s53, s53, s17")
    def reads(buf, ks):
        fs = WF + (ks & 1) * 16
        for j in range(4):
            p, sub = j >> 1, j & 1
            if "HALFRD" in FL and sub: continue
            for h2 in range(2):
                areg = (242, 252, 254)[buf // 4] + sub
                e(f"ds_read_b64_tr_b16 v[{fs+4*j+2*h2}:{fs+4*j+2*h2+1}], v{areg} offset:{(buf%4)*16384 + p*8192 + ks*2048 + h2*512}")
    def mfmas(st, ks, swap):
        if "NOMF1" in FL: return
        fs = WF + (ks & 1) * 16
        kk = 4 * st + ks
        for j in range(4):
            wfr = f"v[{fs+4*j}:{fs+4*j+3}]"; xfr = f"v[{XR+4*kk}:{XR+4*kk+3}]"
            if swap: wfr, xfr = xfr, wfr
            c = "0" if (st == 0 and ks == 0) else f"v[{16*j}:{16*j+15}]"
            e(f"v_mfma_f32_32x32x16_bf16 v[{16*j}:{16*j+15}], {wfr}, {xfr}, {c}")
    def body(swap, sync):
        reads(0, 0)
        for st in range(9):
            for ks in range(4):
                if ks == 2 and st < 8: sync(st)
                if ks < 3: reads(st, ks + 1)
                elif st < 8: reads(st + 1, 0)
                e(("s_waitcnt lgkmcnt(4)" if "HALFRD" in FL else "s_waitcnt lgkmcnt(8)") if (ks < 3 or st < 8) else "s_waitcnt lgkmcnt(0)")
                mfmas(st, ks, swap)
        e("s_barrier")
        e("s_nop 15")
    e("s_cmp_ge_u32 s14, 8\ns_cbranch_scc1 " + ("G1_END" if "NOF" in FL else "G1_FFN"))
    if "NOQ" in FL: e("s_branch G1_END")
    e("""
    s_lshl_b32 s13, s14, 1       ; tile
    s_add_u32 s19, s13, 2
    s_min_u32 s19, s19, 15
    s_mov_b32 s30, 0
    s_lshl_b32 s57, s56, 14
    """)
    srd(e, 44, 4, 5, D_ * 1728 * 2)
    e(f"""
    s_add_u32 s48, s4, 128
    s_addc_u32 s49, s5, 0
    s_and_b32 s49, s49, 0xffff
    s_mov_b32 s50, {D_*1728*2-128}
    s_mov_b32 s51, 0x00020000
    G1_QT:
    s_mul_i32 s22, s13, 13
    s_lshr_b32 s22, s22, 6       ; mat
    s_mul_i32 s23, s22, 5
    s_sub_u32 s23, s13, s23      ; t'
    s_mul_i32 s15, s22, 576
    s_mul_i32 s59, s23, 126
    s_add_u32 s15, s15, s59      ; col0
    s_mul_i32 s24, s23, 7        ; head0
    s_movk_i32 s16, 3456
    """)
    voffw()
    qlab = [0]
    QPRO = 2; QLEAD = 3
    for a_ in FL:
        if a_.startswith("QPRO="): QPRO = int(a_[5:])
        if a_.startswith("QLEAD="): QLEAD = int(a_[6:])
    def mk_qsync():
        qops = []
        def qiss(g, emit=True):
            if emit:
                dma(g)
                for kk in range(4*g, 4*g+4): xload(kk)
            qops.extend([g] * 6)
        for g in range(QPRO): qiss(g, False)
        qn = [QPRO]
        def sy(s_):
            qlab[0] += 1; L = qlab[0]
            last = max(i for i, o in enumerate(qops) if o == s_ + 1)
            e(f"s_cmp_lg_u32 s30, 0\ns_cbranch_scc1 G1_QS{L}")
            e(f"s_waitcnt vmcnt({len(qops) - 1 - last})\ns_barrier")
            for _ in range(2):
                if qn[0] <= min(8, s_ + QLEAD):
                    qiss(qn[0]); qn[0] += 1
            e(f"s_branch G1_QR{L}\nG1_QS{L}:")
            e(f"s_waitcnt vmcnt({2*(8 - (s_+1))})\ns_barrier\nG1_QR{L}:")
        return sy
    e("s_cmp_lg_u32 s30, 0\ns_cbranch_scc1 G1_QNX")
    for g in range(QPRO):
        dma(g)
        for kk in range(4*g, 4*g+4): xload(kk)
    e("s_branch G1_QNY\nG1_QNX:")
    for b_ in range(9): dma(b_)
    e("""
    G1_QNY:
    s_cmp_ge_u32 s22, 2
    s_cbranch_scc1 G1_QV
    """)
    qs = mk_qsync(); qs(-1)
    body(False, qs)
    e("s_mov_b32 s30, 1")
    e(f"""
    s_mov_b32 s20, {hex(f2u(QSCALE))}
    s_cmp_eq_u32 s22, 0
    s_cselect_b32 s20, s20, 1.0
    v_lshl_add_u32 v248, v246, 6, s57
    v_bfe_u32 v249, v246, 1, 2
    v_lshlrev_b32 v249, 4, v249
    """)
    cnt = 0
    for j in range(4):
        for q in range(4):
            for jj in (0, 2):
                n0 = 32*j + 8*q + jj; n1 = n0 + 4
                o0 = (n0//18)*2048 + (n0%18)*2; o1 = (n1//18)*2048 + (n1%18)*2
                t = T + 4*(cnt % 4); cnt += 1
                r = 16*j + 4*q + jj
                e(f"v_mul_u32_u24 v{t}, {o1-o0}, v247")
                e(f"v_mul_f32 v{t+1}, s20, v{r}")
                e(f"v_mul_f32 v{t+2}, s20, v{r+1}")
                e(f"v_add_u32 v{t}, {o0}, v{t}")
                e(f"v_xor_b32 v{t}, v{t}, v249")
                e(f"v_cvt_pk_bf16_f32 v{t+1}, v{t+1}, v{t+2}")
                e(f"v_add_u32 v{t}, v{t}, v248")
                e(f"ds_write_b32 v{t}, v{t+1}")
    e(f"""
    v_lshrrev_b32 v248, 2, v245
    v_and_b32 v249, 3, v245
    v_bfe_u32 v250, v245, 3, 2
    v_xor_b32 v250, v250, v249
    v_lshlrev_b32 v250, 4, v250
    v_lshl_add_u32 v250, v248, 6, v250
    v_add_u32 v250, s57, v250
    v_cmp_gt_u32 vcc, 3, v249
    v_cndmask_b32 v251, 0, -1, vcc
    v_cmp_gt_u32 vcc, 2, v249
    v_cndmask_b32 v241, 0, -1, vcc
    s_lshl_b32 s59, s56, 5
    s_add_u32 s59, s59, s12
    v_add_u32 v248, s59, v248
    v_lshlrev_b32 v248, 6, v248
    v_lshl_add_u32 v248, v249, 4, v248
    s_lshl_b32 s59, s22, 22
    s_add_u32 s59, s59, {WS_QP}
    s_lshl_b32 s25, s24, 17
    s_add_u32 s59, s59, s25
    v_add_u32 v248, s59, v248
    s_waitcnt lgkmcnt(0)
    """)
    for b0 in range(0, 14, 4):
        rs = list(range(b0, min(b0+4, 14)))
        if b0 == 8: e("s_cmp_eq_u32 s23, 4\ns_cbranch_scc1 G1_QNEXT")
        for i in rs:
            t = T + 4*(i % 4)
            e(f"ds_read_b128 v[{t}:{t+3}], v250 offset:{i*1024}")
        for i in rs:
            t = T + 4*(i % 4)
            e(f"s_waitcnt lgkmcnt({rs[-1]-i})")
            e(f"v_and_b32 v{t}, v{t}, v251")
            for k_ in range(1, 4): e(f"v_and_b32 v{t+k_}, v{t+k_}, v241")
            e(f"s_mov_b32 s59, {(i//2)*131072 + (i%2)*1024}")
            e(f"buffer_store_dwordx4 v[{t}:{t+3}], v248, s[60:63], s59 offen")
    e("s_branch G1_QNEXT\nG1_QV:")
    qs = mk_qsync(); qs(-1)
    body(True, qs)
    e("s_mov_b32 s30, 1")
    e(f"""
    v_bfe_u32 v249, v246, 1, 2
    v_xor_b32 v250, v249, v247
    v_lshlrev_b32 v250, 4, v250
    v_lshl_add_u32 v250, v246, 6, v250
    v_add_u32 v250, s57, v250
    v_or_b32 v251, 2, v247
    v_xor_b32 v251, v249, v251
    v_lshlrev_b32 v251, 4, v251
    v_lshl_add_u32 v251, v246, 6, v251
    v_add_u32 v251, s57, v251
    """)
    cnt = 0
    for j in range(4):
        for q in range(4):
            r = 16*j + 4*q
            t = T + 2*(cnt % 8); cnt += 1
            e(f"v_cvt_pk_bf16_f32 v{t}, v{r}, v{r+1}")
            e(f"v_cvt_pk_bf16_f32 v{t+1}, v{r+2}, v{r+3}")
            e(f"ds_write_b64 v{250 + (q>>1)}, v[{t}:{t+1}] offset:{j*2048 + 8*(q&1)}")
    e(f"""
    v_lshrrev_b32 v248, 2, v245
    v_and_b32 v249, 3, v245
    v_bfe_u32 v250, v245, 3, 2
    v_xor_b32 v250, v250, v249
    v_lshlrev_b32 v250, 4, v250
    v_lshl_add_u32 v250, v248, 6, v250
    v_add_u32 v250, s57, v250
    s_lshl_b32 s59, s56, 5
    s_add_u32 s59, s59, s12
    s_lshl_b32 s59, s59, 1
    s_add_u32 s59, s59, {WS_VT}
    s_lshl_b32 s25, s24, 17
    s_add_u32 s59, s59, s25
    v_lshl_add_u32 v249, v249, 4, s59
    s_movk_i32 s21, 3641
    s_movk_i32 s25, 126
    s_cmp_eq_u32 s23, 4
    s_cselect_b32 s25, 72, s25
    s_waitcnt lgkmcnt(0)
    """)
    for b0 in (0, 4):
        rs = list(range(b0, b0+4))
        for i in rs:
            t = T + 4*(i % 4)
            e(f"ds_read_b128 v[{t}:{t+3}], v250 offset:{i*1024}")
        for i in rs:
            t = T + 4*(i % 4)
            u = T + 16 + 4*(i % 4)
            e(f"""
            v_add_u32 v{u}, {16*i}, v248
            v_mul_u32_u24 v{u+1}, s21, v{u}
            v_lshrrev_b32 v{u+1}, 16, v{u+1}
            v_mul_u32_u24 v{u+2}, 14, v{u+1}
            v_add_u32 v{u+2}, v{u+2}, v{u}
            v_lshl_add_u32 v{u+2}, v{u+2}, 12, v249
            v_cmp_gt_u32 vcc, s25, v{u}
            s_waitcnt lgkmcnt({rs[-1]-i})
            s_mov_b64 exec, vcc
            buffer_store_dwordx4 v[{t}:{t+3}], v{u+2}, s[60:63], 0 offen
            s_mov_b64 exec, -1
            """)
    e("""
    G1_QNEXT:
    s_add_u32 s13, s13, 1
    s_cmp_ge_u32 s13, s19
    s_cbranch_scc1 G1_QDONE
    s_barrier
    s_branch G1_QT
    G1_QDONE:
    """)
    if "NOPF2" not in FL:
        e("""
        s_cmp_lg_u32 s14, 7
        s_cbranch_scc1 G1_END
        s_load_dwordx2 s[4:5], s[0:1], 48
        s_load_dwordx2 s[6:7], s[0:1], 16
        s_load_dwordx2 s[8:9], s[0:1], 0
        s_lshr_b32 s59, s12, 5
        s_add_u32 s59, s59, s56        ; idx 0..63
        v_lshlrev_b32 v248, 7, v245
        s_waitcnt lgkmcnt(0)
        """)
        for (lo, nb, n) in ((6, D_*D_*2, 2), (8, S_*D_*2, 5)):
            srd(e, 44, lo, lo+1, nb)
            e(f"s_mul_i32 s58, s59, {n*8192}")
            for i in range(n):
                e(f"buffer_load_dword v{64+i}, v248, s[44:47], s58 offen")
                e("s_add_u32 s58, s58, 8192")
            e("s_waitcnt vmcnt(0)")
    e("s_branch G1_END")
    e("""
    G1_FFN:
    s_sub_u32 s13, s14, 8
    s_mul_i32 s13, s13, 3
    s_add_u32 s19, s13, 3
    s_mov_b32 s31, s13
    s_movk_i32 s16, 9216
    """)
    srd(e, 44, 6, 7, D_ * F_ * 2)
    srd(e, 48, 8, 9, D_ * F_ * 2)
    e("s_lshl_b32 s15, s31, 6")
    voffw()
    def cursor_next(tag):
        e(f"""
        s_add_u32 s31, s31, 1
        s_cmp_lt_u32 s31, s19
        s_cbranch_scc1 G1_CN{tag}
        s_mov_b32 s46, 0
        s_mov_b32 s50, 0
        G1_CN{tag}:
        s_lshl_b32 s15, s31, 6
        """)
        voffw()
    ops = []
    def iss(g):
        if g >= 27: return
        if g % 9 == 0 and g > 0: cursor_next(f"P{g}")
        dma(g % 9); ops.extend([("D", g)] * 2)
        if g < 9:
            for kk in range(4*g, 4*g+4): xload(kk)
            ops.extend([("X", g)] * 4)
    PRO = 2; LEAD0 = 3; S2F = 10
    for a_ in FL:
        if a_.startswith("PRO="): PRO = int(a_[4:])
        if a_.startswith("LEAD="): LEAD0 = int(a_[5:])
        if a_.startswith("S2F="): S2F = int(a_[4:])
    for g in range(PRO): iss(g)
    nxt = [PRO]
    def sync_g(tile):
        def sy(s_):
            sg = 9*tile + s_
            S2 = "SYNC2" in FL and sg >= S2F
            if S2 and (sg & 1): return
            need = min(26, sg + 2) if S2 else sg + 1
            last = max(i for i, o in enumerate(ops) if o[1] == need)
            e(f"s_waitcnt vmcnt({len(ops) - 1 - last})\ns_barrier")
            lead = LEAD0 if tile == 0 else 8
            for _ in range(4 if S2 else 2):
                if nxt[0] <= sg + lead:
                    iss(nxt[0]); nxt[0] += 1
        return sy
    def mk_sync(waits, tag):
        def sy(s_):
            if "NOWAIT" not in FL: e(f"s_waitcnt vmcnt({waits[s_+1]})")
            if "NOBAR" not in FL: e("s_barrier")
            if s_ == 1: cursor_next(tag)
            dma((s_ - 1) % 9)
        return sy
    first = [44, 40, 36, 32, 28, 24, 20, 12, 12]
    steady = [20, 20, 20, 20, 20, 20, 20, 12, 12]
    def ffn_epi():
        if "NOEPI1" in FL: return
        e(f"""
        s_lshr_b32 s59, s12, 5
        s_add_u32 s59, s59, s56
        s_mul_i32 s59, s59, 331776
        s_lshl_b32 s18, s13, 12
        s_add_u32 s59, s59, s18
        s_add_u32 s59, s59, {WS_H}
        v_lshl_add_u32 v251, v246, 4, s59
        v_lshl_add_u32 v251, v247, 3, v251
        s_mov_b32 s20, {hex(f2u(-LOG2E))}
        """)
        cnt = 0
        for sub in range(2):
            for q in range(4):
                t = T + 10 * (cnt % 3); cnt += 1
                for j in range(4):
                    e(f"v_mul_f32 v{t+j}, s20, v{16*sub+4*q+j}")
                for j in range(4):
                    e(f"v_exp_f32 v{t+j}, v{t+j}")
                for j in range(4):
                    e(f"v_mul_f32 v{t+4+j}, v{16*sub+4*q+j}, v{32+16*sub+4*q+j}")
                for j in range(4):
                    e(f"v_add_f32 v{t+j}, 1.0, v{t+j}")
                for j in range(4):
                    e(f"v_rcp_f32 v{t+j}, v{t+j}")
                e("s_nop 0")
                for j in range(4):
                    e(f"v_mul_f32 v{t+4+j}, v{t+4+j}, v{t+j}")
                e(f"v_cvt_pk_bf16_f32 v{t+8}, v{t+4}, v{t+5}")
                e(f"v_cvt_pk_bf16_f32 v{t+9}, v{t+6}, v{t+7}")
                e(f"buffer_store_dwordx2 v[{t+8}:{t+9}], v251, s[60:63], 0 offen offset:{(2*sub+(q>>1))*1024 + (q&1)*512}")
    for tile in range(3):
        sync_g(tile)(-1)
        if "TS1" in sys.argv and tile == 0: e("s_memrealtime s[72:73]")
        body(False, sync_g(tile))
        if "TS1" in sys.argv and tile == 0: e("s_memrealtime s[74:75]")
        ffn_epi(); ops.extend([("S", -5)] * 8)
        if "TS1" in sys.argv and tile == 0: e("s_memrealtime s[76:77]")
        e("s_add_u32 s13, s13, 1")
    e("""
    G1_END:
    """)
    if "TS1" in sys.argv: e(f"""
        s_cmp_ge_u32 s2, 256
        s_cbranch_scc1 G1_END2
        s_waitcnt vmcnt(0)
        s_memrealtime s[78:79]
        s_memtime s[86:87]
        s_load_dwordx2 s[80:81], s[0:1], 72
        s_waitcnt lgkmcnt(0)
        s_add_u32 s80, s80, {60*MB}
        s_addc_u32 s81, s81, 0
        s_and_b32 s81, s81, 0xffff
        s_mov_b32 s82, 65536
        s_mov_b32 s83, 0x00020000
        v_mov_b32 v0, s70
        v_mov_b32 v1, s72
        v_mov_b32 v2, s74
        v_mov_b32 v3, s76
        v_mov_b32 v4, s78
        s_sub_u32 s86, s86, s84
        v_mov_b32 v5, s86
        v_mov_b32 v6, 0
        v_mov_b32 v7, 0
        s_lshl_b32 s3, s2, 5
        v_mov_b32 v8, s3
        buffer_store_dwordx4 v[0:3], v8, s[80:83], 0 offen
        buffer_store_dwordx4 v[4:7], v8, s[80:83], 0 offen offset:16
        G1_END2:
        """)
    e("s_endpgm")

WS_P = 48 * MB
NSPLIT = 5
def gen_gemm2(e):
    XR = 48; WF = 144
    header(e, "gemm2_kernel")
    e(f"""
    s_cmp_ge_u32 s2, 240
    s_cbranch_scc1 G2_END
    s_load_dwordx2 s[4:5], s[0:1], 16
    s_load_dwordx2 s[6:7], s[0:1], 48
    s_load_dwordx2 s[10:11], s[0:1], 72
    s_and_b32 s12, s2, 7
    s_lshr_b32 s13, s2, 3        ; r 0..29
    s_mul_i32 s28, s13, 43
    s_lshr_b32 s28, s28, 8       ; r/6
    s_mul_i32 s14, s28, 6
    s_sub_u32 s13, s13, s14      ; n tile
    s_mul_i32 s12, s12, 5
    s_add_u32 s12, s12, s28      ; pair 0..39
    s_lshr_b32 s28, s12, 3       ; split
    s_and_b32 s12, s12, 7        ; m tile
    s_lshl_b32 s29, s28, 4
    s_add_u32 s29, s29, 1
    s_mov_b32 s30, 16
    s_cmp_lg_u32 s28, 0
    s_cbranch_scc1 G2_SP
    s_mov_b32 s29, 0
    s_mov_b32 s30, 17
    G2_SP:
    v_and_b32 v170, 63, v0
    v_lshrrev_b32 v171, 6, v0
    s_nop 0
    v_readfirstlane_b32 s56, v171
    s_waitcnt lgkmcnt(0)
    s_add_u32 s40, s10, {WS_H}
    s_addc_u32 s41, s11, 0
    s_and_b32 s41, s41, 0xffff
    s_mov_b32 s42, {64*331776}
    s_mov_b32 s43, 0x00020000
    s_mov_b32 s44, s6
    s_and_b32 s45, s7, 0xffff
    s_mov_b32 s46, {F_*D_*2}
    s_mov_b32 s47, 0x00020000
    s_mov_b32 s49, {D_*D_*2}
    s_lshl_b32 s55, s56, 11      ; m0 base within stage buf
    s_cmp_lt_u32 s56, 6
    s_cbranch_scc1 G2_W6
    s_mov_b32 s46, 0
    s_mov_b32 s49, 0
    G2_W6:
    ; X voffset
    s_lshl_b32 s59, s12, 3
    s_add_u32 s59, s59, s56
    s_mul_i32 s58, s59, 331776
    v_lshl_add_u32 v172, v170, 4, s58
    s_lshl_b32 s52, s29, 12      ; X soffset (stage*4096)
    ; W voffset: c = w/2 ; krow = (w&1)*32 + lane/4
    s_and_b32 s58, s56, 1
    s_lshl_b32 s58, s58, 5
    v_lshrrev_b32 v171, 2, v170
    v_add_u32 v171, s58, v171
    v_mul_u32_u24 v171, 1152, v171
    v_and_b32 v173, 3, v170
    v_lshl_add_u32 v171, v173, 4, v171
    s_lshr_b32 s58, s56, 1
    s_lshl_b32 s58, s58, 6
    s_mul_i32 s57, s13, 192
    s_add_u32 s58, s58, s57
    v_add_u32 v174, s58, v171
    v_add_u32 v175, {16*1152}, v174
    s_mul_i32 s53, s29, {64*1152}
    """ + ("""
    s_lshl_b32 s58, s56, 11
    s_mul_i32 s57, s13, 12288
    s_add_u32 s58, s58, s57
    v_lshl_add_u32 v174, v170, 4, s58
    v_add_u32 v175, 1024, v174
    """ if "WLIN" in sys.argv else "") + f"""
    ; tr read addr
    v_lshrrev_b32 v171, 5, v170
    v_bfe_u32 v173, v170, 2, 2
    v_lshl_add_u32 v171, v171, 3, v173
    v_lshlrev_b32 v171, 6, v171
    v_bfe_u32 v173, v170, 4, 1
    v_lshl_add_u32 v171, v173, 5, v171
    v_and_b32 v173, 3, v170
    v_lshl_add_u32 v176, v173, 3, v171
    v_add_u32 v177, 36864, v176
    """)
    for i in range(48): e(f"v_mov_b32 v{i}, 0")
    lab = [0]
    def dma(slot):
        lab[0] += 1
        e(f"""
        s_cmp_lg_u32 s29, 72
        s_cbranch_scc1 G2_NS{lab[0]}
        s_mov_b32 s44, s4
        s_and_b32 s45, s5, 0xffff
        s_mov_b32 s46, s49
        s_mov_b32 s53, 0
        G2_NS{lab[0]}:
        """)
        e(f"s_add_u32 m0, s54, {slot*12288}" if False else f"s_add_u32 m0, s55, {slot*12288}")
        e("s_nop 0")
        e(f"buffer_load_dwordx4 v174, s[44:47], s53 offen lds")
        e(f"s_add_u32 m0, s55, {slot*12288 + 1024}")
        e("s_nop 0")
        e(f"buffer_load_dwordx4 v175, s[44:47], s53 offen lds")
        if "WHOT" not in sys.argv: e(f"s_add_u32 s53, s53, {64*1152}")
        e("s_add_u32 s29, s29, 1")
    def xld(slot):
        for ks in range(4):
            if "NOX2" in sys.argv: continue
            r = XR + 16*slot + 4*ks
            e(f"buffer_load_dwordx4 v[{r}:{r+3}], v172, s[40:43], s52 offen offset:{ks*1024}")
        if "XHOT" not in sys.argv: e("s_add_u32 s52, s52, 4096")
    def reads(slot, ks):
        fs = WF + (ks & 1) * 12
        areg = 176 if slot < 3 else 177
        for c in range(3):
            for h2 in range(2):
                e(f"ds_read_b64_tr_b16 v[{fs+4*c+2*h2}:{fs+4*c+2*h2+1}], v{areg} offset:{(slot%3)*12288 + c*4096 + ks*1024 + h2*256}")
    e("""
    s_cmp_lt_u32 s56, 6
    s_cbranch_scc1 G2_PRO
    s_branch G2_PROB
    G2_PRO:
    """)
    def full(dummy):
        def dm(slot):
            if "NODMA2" in sys.argv: return
            if dummy:
                lab[0] += 1
                e("s_mov_b32 m0, 73728\ns_nop 0")
                e("buffer_load_dwordx4 v174, s[44:47], s53 offen lds")
                e("buffer_load_dwordx4 v175, s[44:47], s53 offen lds")
            else:
                dma(slot)
        tg = "B" if dummy else "A"
        xld(0)
        for v in range(5):
            dm(v); xld(v + 1)
        nd = 0 if "NODMA2" in sys.argv else 2; nx = 0 if "NOX2" in sys.argv else 4
        e(f"s_waitcnt vmcnt({nx+4*(nd+nx)})\ns_barrier")
        reads(0, 0)
        e(f"G2_LOOP{tg}:")
        for u in range(6):
            e(f"s_waitcnt vmcnt({5*(nd+nx)})")
            for ks in range(4):
                if ks == 2:
                    e(f"s_waitcnt vmcnt({nx+3*(nd+nx)})" + ("" if "NOBAR2" in sys.argv else "\ns_barrier"))
                    dm((u + 5) % 6)
                if ks < 3: reads(u, ks + 1)
                else: reads((u + 1) % 6, 0)
                e("s_waitcnt lgkmcnt(6)")
                fs = WF + (ks & 1) * 12
                xr = XR + 16*u + 4*ks
                for c in range(3):
                    if "NOMF2" not in sys.argv: e(f"v_mfma_f32_32x32x16_bf16 v[{16*c}:{16*c+15}], v[{fs+4*c}:{fs+4*c+3}], v[{xr}:{xr+3}], v[{16*c}:{16*c+15}]")
            xld(u)
            e("s_sub_u32 s30, s30, 1\ns_cmp_eq_u32 s30, 0")
            e("s_cbranch_scc1 G2_EPI")
        e(f"s_branch G2_LOOP{tg}")
    full(False)
    e("G2_PROB:")
    full(True)
    e(f"""
    G2_EPI:
    s_waitcnt vmcnt(0) lgkmcnt(0)
    s_nop 15
    s_mul_i32 s29, s28, {S_*D_*2}
    s_add_u32 s29, s29, {WS_P}
    s_add_u32 s60, s10, s29
    s_addc_u32 s61, s11, 0
    s_and_b32 s61, s61, 0xffff
    s_mov_b32 s62, {S_*D_*2}
    s_mov_b32 s63, 0x00020000
    s_lshl_b32 s59, s12, 3
    s_add_u32 s59, s59, s56
    s_mul_i32 s59, s59, 18
    s_mul_i32 s58, s13, 3
    s_add_u32 s59, s59, s58
    s_lshl_b32 s59, s59, 11
    v_lshl_add_u32 v171, v170, 4, s59
    """)
    for c in range(3):
        for hf in range(2):
            t = 48 + 4*(2*c+hf)
            for i in range(4):
                r = 16*c + 8*hf + 2*i
                e(f"v_cvt_pk_bf16_f32 v{t+i}, v{r}, v{r+1}")
            if "NOST2" not in sys.argv: e(f"s_mov_b32 s58, {c*2048}\nbuffer_store_dwordx4 v[{t}:{t+3}], v171, s[60:63], s58 offen offset:{hf*1024}")
    e("s_waitcnt vmcnt(0) lgkmcnt(0)\nG2_END:\ns_endpgm")

def ts_end(e, tag):
    if "TS" not in sys.argv: return
    e(f"""
    s_memrealtime s[72:73]
    s_memtime s[82:83]
    s_load_dwordx2 s[76:77], s[0:1], 72
    s_waitcnt lgkmcnt(0)
    s_add_u32 s76, s76, {60*MB}
    s_addc_u32 s77, s77, 0
    s_and_b32 s77, s77, 0xffff
    s_mov_b32 s78, 65536
    s_mov_b32 s79, 0x00020000
    v_mov_b32 v0, s70
    v_mov_b32 v1, s88
    v_mov_b32 v2, s90
    v_mov_b32 v3, s72
    v_mov_b32 v4, s74
    v_lshlrev_b32 v4, 5, v4
    buffer_store_dwordx4 v[0:3], v4, s[76:79], 0 offen
    s_sub_u32 s82, s82, s80
    v_mov_b32 v6, s82
    buffer_store_dword v6, v4, s[76:79], 0 offen offset:16
    s_waitcnt vmcnt(0)
    """)

def gen_gemm2h(e):
    XR = 48; WF = 96
    e("G2_START:")
    if "PG" in sys.argv: e("s_setprio 2")
    if "NOG2" in sys.argv: e("s_endpgm")
    e(f"""
    s_cmp_ge_u32 s2, 240
    s_cbranch_scc1 G2_END
    s_load_dwordx2 s[4:5], s[0:1], 16
    s_load_dwordx2 s[6:7], s[0:1], 48
    s_load_dwordx2 s[10:11], s[0:1], 72
    s_and_b32 s12, s2, 7
    s_lshr_b32 s13, s2, 3        ; r 0..29
    s_mul_i32 s28, s13, 43
    s_lshr_b32 s28, s28, 8       ; r/6
    s_mul_i32 s14, s28, 6
    s_sub_u32 s13, s13, s14      ; n tile
    s_mul_i32 s12, s12, 5
    s_add_u32 s12, s12, s28      ; pair 0..39
    s_lshr_b32 s28, s12, 3       ; split
    s_and_b32 s12, s12, 7        ; m tile
    s_mul_i32 s29, s28, 14
    s_min_u32 s30, s28, 2
    s_add_u32 s29, s29, s30
    s_cmp_lt_u32 s28, 2
    s_cselect_b32 s30, 15, 14
    v_and_b32 v120, 63, v0
    v_lshrrev_b32 v121, 6, v0
    s_nop 0
    v_readfirstlane_b32 s56, v121
    s_waitcnt lgkmcnt(0)
    s_add_u32 s40, s10, {WS_H}
    s_addc_u32 s41, s11, 0
    s_and_b32 s41, s41, 0xffff
    s_mov_b32 s42, {64*331776}
    s_mov_b32 s43, 0x00020000
    s_mov_b32 s44, s6
    s_and_b32 s45, s7, 0xffff
    s_mov_b32 s46, {F_*D_*2}
    s_mov_b32 s47, 0x00020000
    s_mov_b32 s49, {D_*D_*2}
    s_lshl_b32 s55, s56, 11      ; m0 base within stage buf
    s_cmp_lt_u32 s56, 6
    s_cbranch_scc1 G2_W6
    s_mov_b32 s46, 0
    s_mov_b32 s49, 0
    G2_W6:
    ; X voffset
    s_lshl_b32 s59, s12, 3
    s_add_u32 s59, s59, s56
    s_mul_i32 s58, s59, 331776
    v_lshl_add_u32 v122, v120, 4, s58
    s_lshl_b32 s52, s29, 12      ; X soffset (stage*4096)
    ; W voffset: c = w/2 ; krow = (w&1)*32 + lane/4
    s_and_b32 s58, s56, 1
    s_lshl_b32 s58, s58, 5
    v_lshrrev_b32 v121, 2, v120
    v_add_u32 v121, s58, v121
    v_mul_u32_u24 v121, 1152, v121
    v_and_b32 v123, 3, v120
    v_lshl_add_u32 v121, v123, 4, v121
    s_lshr_b32 s58, s56, 1
    s_lshl_b32 s58, s58, 6
    s_mul_i32 s57, s13, 192
    s_add_u32 s58, s58, s57
    v_add_u32 v124, s58, v121
    v_add_u32 v125, {16*1152}, v124
    s_mul_i32 s53, s29, {64*1152}
    """ + ("""
    s_lshl_b32 s58, s56, 11
    s_mul_i32 s57, s13, 12288
    s_add_u32 s58, s58, s57
    v_lshl_add_u32 v124, v120, 4, s58
    v_add_u32 v125, 1024, v124
    """ if "WLIN" in sys.argv else "") + f"""
    ; tr read addr
    v_lshrrev_b32 v121, 5, v120
    v_bfe_u32 v123, v120, 2, 2
    v_lshl_add_u32 v121, v121, 3, v123
    v_lshlrev_b32 v121, 6, v121
    v_bfe_u32 v123, v120, 4, 1
    v_lshl_add_u32 v121, v123, 5, v121
    v_and_b32 v123, 3, v120
    v_lshl_add_u32 v126, v123, 3, v121
    v_add_u32 v127, 36864, v126
    """)
    for i in range(48): e(f"v_mov_b32 v{i}, 0")
    lab = [0]
    def dma(slot):
        e(f"s_add_u32 m0, s54, {slot*12288}" if False else f"s_add_u32 m0, s55, {slot*12288}")
        e("s_nop 0")
        e(f"buffer_load_dwordx4 v124, s[44:47], s53 offen lds")
        e(f"s_add_u32 m0, s55, {slot*12288 + 1024}")
        e("s_nop 0")
        e(f"buffer_load_dwordx4 v125, s[44:47], s53 offen lds")
        if "WHOT" not in sys.argv: e(f"s_add_u32 s53, s53, {64*1152}")
        e("s_add_u32 s29, s29, 1")
    def xld(slot):
        for ks in range(4):
            if "NOX2" in sys.argv: continue
            r = XR + 16*slot + 4*ks
            e(f"buffer_load_dwordx4 v[{r}:{r+3}], v122, s[40:43], s52 offen offset:{ks*1024}")
        if "XHOT" not in sys.argv: e("s_add_u32 s52, s52, 4096")
    def reads(slot, ks):
        fs = WF + (ks & 1) * 12
        areg = 126 if slot < 3 else 127
        for c in range(3):
            for h2 in range(2):
                e(f"ds_read_b64_tr_b16 v[{fs+4*c+2*h2}:{fs+4*c+2*h2+1}], v{areg} offset:{(slot%3)*12288 + c*4096 + ks*1024 + h2*256}")
    e("""
    s_cmp_lt_u32 s56, 6
    s_cbranch_scc1 G2_PRO
    s_branch G2_PROB
    G2_PRO:
    """)
    def full(dummy):
        def dm(slot):
            if "NODMA2" in sys.argv: return
            if dummy:
                lab[0] += 1
                e("s_mov_b32 m0, 73728\ns_nop 0")
                e("buffer_load_dwordx4 v124, s[44:47], s53 offen lds")
                e("buffer_load_dwordx4 v125, s[44:47], s53 offen lds")
            else:
                dma(slot)
        tg = "B" if dummy else "A"
        dm(0); dm(1); dm(2); xld(0); dm(3); xld(1); dm(4); xld(2)
        e("s_waitcnt vmcnt(18)\ns_barrier")
        if "TS" in sys.argv: e("s_memrealtime s[88:89]")
        reads(0, 0)
        e(f"G2_LOOP{tg}:")
        for u in range(6):
            e("s_waitcnt vmcnt(12)")
            for ks in range(4):
                if ks == 2:
                    e("s_waitcnt vmcnt(22)\ns_barrier")
                    dm((u + 5) % 6)
                if ks < 3: reads(u, ks + 1)
                else: reads((u + 1) % 6, 0)
                e("s_waitcnt lgkmcnt(6)")
                fs = WF + (ks & 1) * 12
                xr = XR + 16*(u%3) + 4*ks
                for c in range(3):
                    if "NOMF2" not in sys.argv: e(f"v_mfma_f32_32x32x16_bf16 v[{16*c}:{16*c+15}], v[{fs+4*c}:{fs+4*c+3}], v[{xr}:{xr+3}], v[{16*c}:{16*c+15}]")
            xld(u%3)
            e("s_sub_u32 s30, s30, 1\ns_cmp_eq_u32 s30, 0")
            e("s_cbranch_scc1 G2_EPI")
        e(f"s_branch G2_LOOP{tg}")
    full(False)
    e("G2_PROB:")
    full(True)
    e(f"""
    G2_EPI:
    """ + ("s_memrealtime s[90:91]\n" if "TS" in sys.argv else "") + ("s_setprio 3" if "PE" in sys.argv else "") + f"""
    s_waitcnt vmcnt(0) lgkmcnt(0)
    s_nop 15
    s_mul_i32 s29, s28, {S_*D_*2}
    s_add_u32 s29, s29, {WS_P}
    s_add_u32 s60, s10, s29
    s_addc_u32 s61, s11, 0
    s_and_b32 s61, s61, 0xffff
    s_mov_b32 s62, {S_*D_*2}
    s_mov_b32 s63, 0x00020000
    s_lshl_b32 s59, s12, 3
    s_add_u32 s59, s59, s56
    s_mul_i32 s59, s59, 18
    s_mul_i32 s58, s13, 3
    s_add_u32 s59, s59, s58
    s_lshl_b32 s59, s59, 11
    v_lshl_add_u32 v121, v120, 4, s59
    """)
    for c in range(3):
        for hf in range(2):
            t = 48 + 4*(2*c+hf)
            for i in range(4):
                r = 16*c + 8*hf + 2*i
                e(f"v_cvt_pk_bf16_f32 v{t+i}, v{r}, v{r+1}")
            if "NOST2" not in sys.argv: e(f"s_mov_b32 s58, {c*2048}\nbuffer_store_dwordx4 v[{t}:{t+3}], v121, s[60:63], s58 offen offset:{hf*1024} sc0 sc1")
    e(f"""
    s_waitcnt vmcnt(0) lgkmcnt(0)
    s_barrier
    s_cmp_lg_u32 s56, 0
    s_cbranch_scc1 G2_W
    s_mov_b32 s64, s10
    s_and_b32 s65, s11, 0xffff
    s_mov_b32 s66, {WS_SIZE}
    s_mov_b32 s67, 0x00020000
    s_mul_i32 s58, s12, 6
    s_add_u32 s58, s58, s13
    s_lshl_b32 s58, s58, 2
    s_add_u32 s58, s58, {WS_CNT}
    v_mov_b32 v122, s58
    v_mov_b32 v123, 1
    v_mov_b32 v124, 0
    s_mov_b64 exec, 1
    buffer_atomic_add v123, v122, s[64:67], 0 offen sc0 sc1
    s_waitcnt vmcnt(0)
    ds_write_b32 v124, v123
    s_mov_b64 exec, -1
    s_waitcnt lgkmcnt(0)
    G2_W:
    s_barrier
    v_mov_b32 v124, 0
    ds_read_b32 v123, v124
    s_waitcnt lgkmcnt(0)
    v_readfirstlane_b32 s58, v123
    s_mul_hi_u32 s59, s58, 0xcccccccd
    s_lshr_b32 s59, s59, 2
    s_mul_i32 s59, s59, 5
    s_sub_u32 s58, s58, s59
    s_cmp_lg_u32 s58, {NSPLIT-1}
    s_cbranch_scc1 G2_DONE
    s_add_u32 s60, s10, {WS_P}
    s_addc_u32 s61, s11, 0
    s_and_b32 s61, s61, 0xffff
    s_mov_b32 s62, {S_*D_*2*NSPLIT}
    v_add_u32 v122, 4096, v121
    """)
    for j in range(4):
        e(f"""
        s_add_u32 s28, s28, 1
        s_cmp_ge_u32 s28, {NSPLIT}
        s_cselect_b32 s28, 0, s28
        s_mul_i32 s{84+j}, s28, {S_*D_*2}
        """)
    def pld(idx):
        j, u = idx // 6, idx % 6
        r = 48 + 4*(idx % 16)
        e(f"buffer_load_dwordx4 v[{r}:{r+3}], v{121 + u//4}, s[60:63], s{84+j} offen offset:{(u%4)*1024} sc0 sc1")
    for idx in range(16): pld(idx)
    e("""
    v_lshrrev_b32 v124, 5, v120
    v_and_b32 v123, 31, v120
    v_lshlrev_b32 v124, 2, v124
    v_sub_u32 v123, v123, v124
    v_mov_b32 v124, 0x3f80
    v_mov_b32 v125, 0x3f800000
    """)
    for hf in range(2):
        for r in range(4):
            T = 16*hf + 8*(r//2) + 2*(r%2)
            e(f"v_cmp_eq_u32 vcc, {T}, v123")
            e(f"v_cndmask_b32 v{112+4*hf+r}, 0, v124, vcc")
            e(f"v_cmp_eq_u32 vcc, {T+1}, v123")
            e(f"v_cndmask_b32 v{112+4*hf+r}, v{112+4*hf+r}, v125, vcc")
    e("s_nop 1")
    for idx in range(24):
        u = idx % 6; c = u // 2; hf = u % 2
        r = 48 + 4*(idx % 16)
        e(f"s_waitcnt vmcnt({min(24, 16+idx) - idx - 1})")
        e(f"v_mfma_f32_32x32x16_bf16 v[{16*c}:{16*c+15}], v[{112+4*hf}:{115+4*hf}], v[{r}:{r+3}], v[{16*c}:{16*c+15}]")
        if idx + 16 < 24: pld(idx + 16)
    e("s_nop 15\ns_nop 3")
    for u in range(6):
        t = 48 + 4*u
        for i in range(4):
            e(f"v_cvt_pk_bf16_f32 v{t+i}, v{8*u+2*i}, v{8*u+2*i+1}")
        e(f"buffer_store_dwordx4 v[{t}:{t+3}], v{121 + u//4}, s[60:63], 0 offen offset:{(u%4)*1024}")
    e("G2_DONE:\ns_waitcnt vmcnt(0) lgkmcnt(0)")
    ts_end(e, "g")
    e("G2_END:\ns_endpgm")

def gen_fin(e):
    header(e, "fin_kernel")
    XO = 16; PR = 160; XR = 200; WF = 208
    e(f"""
    s_cmp_ge_u32 s2, 288
    s_cbranch_scc1 FN_END
    s_load_dwordx2 s[4:5], s[0:1], 0
    s_load_dwordx2 s[6:7], s[0:1], 56
    s_load_dwordx2 s[8:9], s[0:1], 16
    s_load_dwordx2 s[10:11], s[0:1], 72
    s_and_b32 s12, s2, 7
    s_lshr_b32 s13, s2, 3        ; j 0..35
    s_mul_i32 s14, s13, 57
    s_lshr_b32 s14, s14, 9       ; j/9
    s_mul_i32 s15, s14, 9
    s_sub_u32 s13, s13, s15      ; nt
    s_lshl_b32 s12, s12, 2
    s_add_u32 s12, s12, s14      ; mt
    v_and_b32 v230, 63, v0
    v_lshrrev_b32 v231, 6, v0
    s_nop 0
    v_readfirstlane_b32 s56, v231
    s_lshr_b32 s57, s56, 1       ; wm
    s_and_b32 s58, s56, 1        ; wn
    s_lshl_b32 s12, s12, 1
    s_add_u32 s12, s12, s57      ; rb
    s_lshl_b32 s14, s13, 1
    s_add_u32 s14, s14, s58      ; cb
    s_waitcnt lgkmcnt(0)
    s_add_u32 s40, s10, {WS_H}
    s_addc_u32 s41, s11, 0
    s_add_u32 s10, s10, {WS_P}
    s_addc_u32 s11, s11, 0
    """)
    srd(e, 40, 40, 41, 64*331776); srd(e, 44, 8, 9, D_*D_*2)
    srd(e, 16, 4, 5, S_*D_*2); srd(e, 20, 6, 7, S_*D_*2); srd(e, 24, 10, 11, S_*D_*2*NSPLIT)
    e(f"""
    v_lshrrev_b32 v231, 2, v230
    v_mul_u32_u24 v231, 1152, v231
    v_and_b32 v232, 3, v230
    v_lshl_add_u32 v231, v232, 4, v231
    s_lshl_b32 s15, s14, 6
    s_mul_i32 s59, s57, {288*1152}
    s_add_u32 s15, s15, s59
    v_add_u32 v231, s15, v231     ; W voffset
    s_mul_i32 s54, s58, 36864
    s_mul_i32 s59, s57, 18432
    s_add_u32 s54, s54, s59       ; m0 base
    s_mul_i32 s15, s12, 331776
    s_add_u32 s15, s15, {288*1024}
    v_lshl_add_u32 v232, v230, 4, s15   ; O voffset
    s_mov_b32 s53, 0
    """)
    for j in range(18):
        e(f"s_add_u32 m0, s54, {j*1024}\ns_nop 0")
        e("buffer_load_dwordx4 v231, s[44:47], s53 offen lds")
        e(f"s_add_u32 s53, s53, {16*1152}")
    for kk in range(36):
        if kk % 4 == 0: e(f"s_mov_b32 s52, {kk*1024}")
        e(f"buffer_load_dwordx4 v[{XO+4*kk}:{XO+4*kk+3}], v232, s[40:43], s52 offen offset:{(kk%4)*1024}")
    e(f"""
    v_lshrrev_b32 v233, 5, v230
    v_bfe_u32 v234, v230, 2, 2
    v_lshl_add_u32 v233, v233, 3, v234
    v_lshlrev_b32 v233, 6, v233
    v_bfe_u32 v234, v230, 4, 1
    v_lshl_add_u32 v233, v234, 5, v233
    v_and_b32 v234, 3, v230
    v_lshl_add_u32 v233, v234, 3, v233
    s_mul_i32 s59, s58, 36864
    v_add_u32 v233, s59, v233
    s_mul_i32 s15, s12, 18
    s_add_u32 s15, s15, s14
    s_lshl_b32 s15, s15, 11
    v_lshl_add_u32 v234, v230, 4, s15  ; P offset
    v_and_b32 v235, 31, v230
    s_lshl_b32 s15, s12, 5
    v_add_u32 v235, s15, v235
    v_mul_u32_u24 v235, 1152, v235
    v_lshrrev_b32 v236, 5, v230
    v_lshl_add_u32 v235, v236, 5, v235
    s_lshl_b32 s15, s14, 6
    v_add_u32 v235, s15, v235
    """)
    for i in range(16): e(f"v_mov_b32 v{i}, 0")
    def pl(i):
        e(f"s_mov_b32 s28, {(i//2)*S_*D_*2}")
        e(f"buffer_load_dwordx4 v[{PR+4*i}:{PR+4*i+3}], v234, s[24:27], s28 offen offset:{(i%2)*1024}")
    for i in range(8): pl(i)
    e("s_waitcnt vmcnt(44)\ns_barrier")
    for i in range(8, 2*NSPLIT): pl(i)
    e(f"buffer_load_dwordx4 v[{XR}:{XR+3}], v235, s[16:19], 0 offen")
    e(f"buffer_load_dwordx4 v[{XR+4}:{XR+7}], v235, s[16:19], 0 offen offset:16")
    NL = 2*NSPLIT + 2
    def rd(kk):
        fs = WF + 4*(kk % 4)
        for h2 in range(2):
            e(f"ds_read_b64_tr_b16 v[{fs+2*h2}:{fs+2*h2+1}], v233 offset:{kk*1024 + h2*256}")
    for kk in range(3): rd(kk)
    for kk in range(36):
        if kk + 3 < 36: rd(kk + 3)
        n = min(3, 35 - kk)
        e(f"s_waitcnt vmcnt({35-kk+NL}) lgkmcnt({2*n})")
        fs = WF + 4*(kk % 4)
        e(f"v_mfma_f32_32x32x16_bf16 v[0:15], v[{fs}:{fs+3}], v[{XO+4*kk}:{XO+4*kk+3}], v[0:15]")
    e("s_nop 15\ns_nop 3")
    T = 16
    for i in range(NSPLIT):
        e(f"s_waitcnt vmcnt({NL-2*i-2})")
        for d in range(8):
            r = PR + 8*i + d
            e(f"v_lshlrev_b32 v{T}, 16, v{r}")
            e(f"v_and_b32 v{T+1}, 0xffff0000, v{r}")
            e(f"v_add_f32 v{2*d}, v{2*d}, v{T}")
            e(f"v_add_f32 v{2*d+1}, v{2*d+1}, v{T+1}")
    e("s_nop 1")
    for j in range(8):
        e(f"v_permlane32_swap_b32 v{j}, v{8+j}")
    e("s_nop 1\ns_waitcnt vmcnt(0)")
    order = [0,1,2,3,8,9,10,11,4,5,6,7,12,13,14,15]
    for j in range(8):
        a, b_ = order[2*j], order[2*j+1]
        e(f"v_lshlrev_b32 v{T}, 16, v{XR+j}")
        e(f"v_and_b32 v{T+1}, 0xffff0000, v{XR+j}")
        e(f"v_add_f32 v{a}, v{a}, v{T}")
        e(f"v_add_f32 v{b_}, v{b_}, v{T+1}")
        e(f"v_cvt_pk_bf16_f32 v{XR+j}, v{a}, v{b_}")
    e(f"buffer_store_dwordx4 v[{XR}:{XR+3}], v235, s[20:23], 0 offen")
    e(f"buffer_store_dwordx4 v[{XR+4}:{XR+7}], v235, s[20:23], 0 offen offset:16")
    e("FN_END:\ns_endpgm")

def gen_fin2(e):
    header(e, "fin_kernel")
    NP = 1
    XO = 48; PR = 120; XR = 180; WF = 192; M = 230
    if "TSF" in sys.argv: e("s_memrealtime s[70:71]")
    e(f"""
    s_cmp_ge_u32 s2, 192
    s_cbranch_scc1 FN_END
    s_load_dwordx2 s[4:5], s[0:1], 0
    s_load_dwordx2 s[6:7], s[0:1], 56
    s_load_dwordx2 s[8:9], s[0:1], 16
    s_load_dwordx2 s[10:11], s[0:1], 72
    s_and_b32 s12, s2, 7
    s_lshr_b32 s13, s2, 3        ; j 0..23
    s_mul_i32 s14, s13, 43
    s_lshr_b32 s14, s14, 8       ; j/6
    s_mul_i32 s15, s14, 6
    s_sub_u32 s13, s13, s15      ; nt
    s_lshl_b32 s12, s12, 2
    s_add_u32 s12, s12, s14      ; mt
    v_and_b32 v{M}, 63, v0
    v_lshrrev_b32 v{M+1}, 6, v0
    s_nop 0
    v_readfirstlane_b32 s56, v{M+1}
    s_lshr_b32 s57, s56, 1       ; wm
    s_and_b32 s58, s56, 1        ; kh
    s_lshl_b32 s12, s12, 1
    s_add_u32 s12, s12, s57      ; rb
    s_waitcnt lgkmcnt(0)
    s_add_u32 s40, s10, {WS_H}
    s_addc_u32 s41, s11, 0
    s_add_u32 s10, s10, {WS_P}
    s_addc_u32 s11, s11, 0
    """)
    srd(e, 40, 40, 41, 64*331776); srd(e, 44, 8, 9, D_*D_*2)
    srd(e, 16, 4, 5, S_*D_*2); srd(e, 20, 6, 7, S_*D_*2); srd(e, 24, 10, 11, S_*D_*2*NP)
    e(f"""
    v_lshrrev_b32 v{M+1}, 2, v{M}
    v_mul_u32_u24 v{M+1}, 1152, v{M+1}
    v_and_b32 v{M+2}, 3, v{M}
    v_lshl_add_u32 v{M+1}, v{M+2}, 4, v{M+1}
    s_mul_i32 s15, s13, 192
    s_mul_i32 s59, s56, {9*18432}
    s_add_u32 s15, s15, s59
    v_add_u32 v{M+1}, s15, v{M+1}     ; W voffset
    s_mul_i32 s54, s56, 9216          ; m0 base
    s_mul_i32 s15, s12, 331776
    s_mul_i32 s59, s58, 18432
    s_add_u32 s15, s15, s59
    s_add_u32 s15, s15, {288*1024}
    v_lshl_add_u32 v{M+2}, v{M}, 4, s15   ; O voffset
    s_mov_b32 s53, 0
    """)
    for i in range(9):
        for c in range(3):
            e(f"s_add_u32 m0, s54, {c*36864 + i*1024 - c*64}\ns_nop 0")
            e(f"buffer_load_dwordx4 v{M+1}, s[44:47], s53 offen offset:{c*64} lds")
        e(f"s_add_u32 s53, s53, {16*1152}")
    for kk in range(18):
        if kk % 4 == 0: e(f"s_mov_b32 s52, {kk*1024}")
        e(f"buffer_load_dwordx4 v[{XO+4*kk}:{XO+4*kk+3}], v{M+2}, s[40:43], s52 offen offset:{(kk%4)*1024}")
    e(f"""
    s_mul_i32 s15, s12, 18
    s_mul_i32 s59, s13, 3
    s_add_u32 s15, s15, s59
    s_lshl_b32 s15, s15, 11
    s_mul_i32 s59, s58, 3072
    s_add_u32 s15, s15, s59
    v_lshl_add_u32 v{M+4}, v{M}, 4, s15  ; P offset
    """)
    for i in range(NP):
        e(f"s_mov_b32 s28, {i*S_*D_*2}")
        for j in range(3):
            r = PR + 12*i + 4*j
            e(f"buffer_load_dwordx4 v[{r}:{r+3}], v{M+4}, s[24:27], s28 offen offset:{j*1024}")
    e(f"""
    v_and_b32 v{M+5}, 31, v{M}
    s_lshl_b32 s15, s12, 5
    v_add_u32 v{M+5}, s15, v{M+5}
    v_mul_u32_u24 v{M+5}, 1152, v{M+5}
    v_lshrrev_b32 v{M+6}, 5, v{M}
    v_lshl_add_u32 v{M+5}, v{M+6}, 4, v{M+5}
    s_mul_i32 s15, s13, 192
    s_mul_i32 s59, s58, 96
    s_add_u32 s15, s15, s59
    v_add_u32 v{M+5}, s15, v{M+5}
    """)
    for j in range(3):
        e(f"buffer_load_dwordx4 v[{XR+4*j}:{XR+4*j+3}], v{M+5}, s[16:19], 0 offen offset:{j*32}")
    e(f"""
    v_lshrrev_b32 v{M+7}, 5, v{M}
    v_bfe_u32 v{M+8}, v{M}, 2, 2
    v_lshl_add_u32 v{M+7}, v{M+7}, 3, v{M+8}
    v_lshlrev_b32 v{M+7}, 6, v{M+7}
    v_bfe_u32 v{M+8}, v{M}, 4, 1
    v_lshl_add_u32 v{M+7}, v{M+8}, 5, v{M+7}
    v_and_b32 v{M+8}, 3, v{M}
    v_lshl_add_u32 v{M+7}, v{M+8}, 3, v{M+7}
    s_mul_i32 s59, s58, 18432
    v_add_u32 v{M+7}, s59, v{M+7}
    v_add_u32 v{M+8}, 36864, v{M+7}
    v_add_u32 v{M+9}, {2*36864}, v{M+7}
    s_mul_i32 s59, s56, 6144
    s_add_u32 s59, s59, 110592
    v_lshl_add_u32 v{M+10}, v{M}, 4, s59
    v_xor_b32 v{M+11}, 0, v{M+10}
    s_xor_b32 s60, s56, 1
    s_mul_i32 s60, s60, 6144
    s_add_u32 s60, s60, 110592
    v_lshl_add_u32 v{M+11}, v{M}, 4, s60
    """)
    for i in range(48): e(f"v_mov_b32 v{i}, 0")
    NL = 3*NP + 3
    e(f"s_waitcnt vmcnt({18+NL})\ns_barrier")
    if "TSF" in sys.argv: e("s_memrealtime s[72:73]")
    def rd(i):
        for c in range(3):
            fs = WF + 12*(i % 3) + 4*c
            for h2 in range(2):
                e(f"ds_read_b64_tr_b16 v[{fs+2*h2}:{fs+2*h2+1}], v{M+7+c} offset:{i*1024 + h2*256}")
    rd(0); rd(1)
    for i in range(18):
        if i + 2 < 18: rd(i + 2)
        n = min(2, 17 - i)
        e(f"s_waitcnt vmcnt({17-i+NL}) lgkmcnt({6*n})")
        for c in range(3):
            fs = WF + 12*(i % 3) + 4*c
            e(f"v_mfma_f32_32x32x16_bf16 v[{16*c}:{16*c+15}], v[{fs}:{fs+3}], v[{XO+4*i}:{XO+4*i+3}], v[{16*c}:{16*c+15}]")
    e("s_nop 15\ns_nop 3")
    if "TSF" in sys.argv: e("s_memrealtime s[74:75]")
    e("s_cmp_lg_u32 s58, 0\ns_cbranch_scc1 FN_K1")
    T = WF
    for kh in range(2):
        if kh: e("FN_K1:")
        own = 24*kh; oth = 24*(1-kh)
        for j in range(6):
            e(f"ds_write_b128 v{M+10}, v[{oth+4*j}:{oth+4*j+3}] offset:{j*1024}")
        e("s_waitcnt lgkmcnt(0)\ns_barrier")
        for j in range(6):
            e(f"ds_read_b128 v[{XO+4*j}:{XO+4*j+3}], v{M+11} offset:{j*1024}")
        for i in range(NP):
            e(f"s_waitcnt vmcnt({NL-3*i-3})")
            for d in range(12):
                r = PR + 12*i + d
                e(f"v_lshlrev_b32 v{T}, 16, v{r}")
                e(f"v_and_b32 v{T+1}, 0xffff0000, v{r}")
                e(f"v_add_f32 v{own+2*d}, v{own+2*d}, v{T}")
                e(f"v_add_f32 v{own+2*d+1}, v{own+2*d+1}, v{T+1}")
        e("s_waitcnt lgkmcnt(0)")
        for i in range(24):
            e(f"v_add_f32 v{own+i}, v{own+i}, v{XO+i}")
        e("s_nop 1")
        for j in range(3):
            for i in range(4):
                e(f"v_permlane32_swap_b32 v{own+8*j+i}, v{own+8*j+4+i}")
        e("s_nop 1\ns_waitcnt vmcnt(0)")
        for j in range(3):
            for d in range(4):
                a = own + 8*j + 2*d
                e(f"v_lshlrev_b32 v{T}, 16, v{XR+4*j+d}")
                e(f"v_and_b32 v{T+1}, 0xffff0000, v{XR+4*j+d}")
                e(f"v_add_f32 v{a}, v{a}, v{T}")
                e(f"v_add_f32 v{a+1}, v{a+1}, v{T+1}")
                e(f"v_cvt_pk_bf16_f32 v{XR+4*j+d}, v{a}, v{a+1}")
            e(f"buffer_store_dwordx4 v[{XR+4*j}:{XR+4*j+3}], v{M+5}, s[20:23], 0 offen offset:{j*32}")
        if "TSF" in sys.argv: e(f"""
        s_waitcnt vmcnt(0)
        s_memrealtime s[76:77]
        s_load_dwordx2 s[80:81], s[0:1], 72
        s_waitcnt lgkmcnt(0)
        s_add_u32 s80, s80, {60*MB}
        s_addc_u32 s81, s81, 0
        s_and_b32 s81, s81, 0xffff
        s_mov_b32 s82, 65536
        s_mov_b32 s83, 0x00020000
        v_mov_b32 v0, s70
        v_mov_b32 v1, s72
        v_mov_b32 v2, s74
        v_mov_b32 v3, s76
        s_lshl_b32 s3, s2, 2
        s_add_u32 s3, s3, s56
        s_lshl_b32 s3, s3, 4
        v_mov_b32 v4, s3
        buffer_store_dwordx4 v[0:3], v4, s[80:83], 0 offen
        """)
        e("s_endpgm")
    e("FN_END:\ns_endpgm")

def gen_red(e):
    header(e, "red_kernel")
    e(f"""
    s_cmp_ge_u32 s2, 288
    s_cbranch_scc1 RD_END
    s_load_dwordx2 s[4:5], s[0:1], 0
    s_load_dwordx2 s[6:7], s[0:1], 56
    s_load_dwordx2 s[10:11], s[0:1], 72
    s_lshl_b32 s3, s2, 8
    v_add_u32 v1, s3, v0
    v_lshrrev_b32 v2, 6, v1        ; blk
    v_bfe_u32 v3, v1, 1, 5         ; row
    v_and_b32 v4, 1, v1            ; half
    v_lshlrev_b32 v5, 11, v2
    v_lshl_add_u32 v5, v4, 10, v5
    v_lshl_add_u32 v5, v3, 4, v5   ; P offset
    s_mov_b32 s21, 3641
    v_mul_u32_u24 v6, s21, v2
    v_lshrrev_b32 v6, 16, v6       ; mb
    v_mul_u32_u24 v7, 18, v6
    v_sub_u32 v7, v2, v7           ; nb
    v_lshl_add_u32 v6, v6, 5, v3
    v_mul_u32_u24 v6, 1152, v6
    v_lshl_add_u32 v6, v7, 6, v6
    v_lshl_add_u32 v6, v4, 5, v6
    s_waitcnt lgkmcnt(0)
    s_add_u32 s10, s10, {WS_P}
    s_addc_u32 s11, s11, 0
    """)
    srd(e, 12, 4, 5, S_*D_*2); srd(e, 16, 6, 7, S_*D_*2); srd(e, 20, 10, 11, S_*D_*2*NSPLIT)
    e("buffer_load_dwordx4 v[8:11], v6, s[12:15], 0 offen")
    e("buffer_load_dwordx4 v[12:15], v6, s[12:15], 0 offen offset:16")
    for i in range(NSPLIT):
        e(f"s_mov_b32 s24, {i*S_*D_*2}")
        e(f"buffer_load_dwordx4 v[{16+8*i}:{19+8*i}], v5, s[20:23], s24 offen")
        e(f"buffer_load_dwordx4 v[{20+8*i}:{23+8*i}], v5, s[20:23], s24 offen offset:512")
    e(f"s_waitcnt vmcnt({2*NSPLIT})")
    A = 16 + 8*NSPLIT
    for j in range(8):
        e(f"v_lshlrev_b32 v{A+2*j}, 16, v{8+j}\nv_and_b32 v{A+2*j+1}, 0xffff0000, v{8+j}")
    T = A + 16
    for i in range(NSPLIT):
        e(f"s_waitcnt vmcnt({2*(NSPLIT-1-i)})")
        for h in range(2):
            for d in range(4):
                n = 8*(d>>1) + 4*h + 2*(d&1)
                r = 16 + 8*i + 4*h + d
                e(f"v_lshlrev_b32 v{T}, 16, v{r}")
                e(f"v_and_b32 v{T+1}, 0xffff0000, v{r}")
                e(f"v_add_f32 v{A+n}, v{A+n}, v{T}")
                e(f"v_add_f32 v{A+n+1}, v{A+n+1}, v{T+1}")
    for j in range(8):
        e(f"v_cvt_pk_bf16_f32 v{8+j}, v{A+2*j}, v{A+2*j+1}")
    e("buffer_store_dwordx4 v[8:11], v6, s[16:19], 0 offen")
    e("buffer_store_dwordx4 v[12:15], v6, s[16:19], 0 offen offset:16")
    e("RD_END:\ns_endpgm")

def gen_attn(e):
    header(e, "attn_kernel")
    KA = 112; VA = 114; DM = 122
    e(f"""
    s_cmp_ge_u32 s2, 256
    s_cbranch_scc1 AT_END
    s_load_dwordx2 s[10:11], s[0:1], 72
    s_and_b32 s4, s2, 7
    s_lshl_b32 s4, s4, 2
    s_bfe_u32 s5, s2, 0x20003
    s_add_u32 s4, s4, s5          ; head
    s_lshr_b32 s5, s2, 5          ; qblock
    v_and_b32 v127, 63, v0
    v_lshrrev_b32 v16, 6, v0
    s_nop 0
    v_readfirstlane_b32 s56, v16
    v_and_b32 v17, 31, v127      ; l32
    v_lshrrev_b32 v18, 5, v127   ; h
    s_and_b32 s57, s56, 7        ; qt
    s_lshr_b32 s58, s56, 3       ; kh
    s_waitcnt lgkmcnt(0)
    """)
    srd(e, 40, 10, 11, WS_SIZE)
    e(f"""
    s_lshl_b32 s6, s4, 11
    s_lshl_b32 s7, s5, 8
    s_add_u32 s6, s6, s7
    s_lshl_b32 s7, s57, 5
    s_add_u32 s6, s6, s7
    v_add_u32 v19, s6, v17
    v_lshlrev_b32 v19, 6, v19
    v_lshl_add_u32 v19, v18, 4, v19
    v_add_u32 v19, {WS_QP}, v19
    buffer_load_dwordx4 v[64:67], v19, s[40:43], 0 offen
    buffer_load_dwordx4 v[68:71], v19, s[40:43], 0 offen offset:32
    s_lshl_b32 s7, s4, 17
    s_add_u32 s7, s7, {WS_KP}
    s_lshl_b32 s8, s56, 11
    s_add_u32 s7, s7, s8
    v_lshrrev_b32 v20, 2, v127
    v_lshlrev_b32 v20, 6, v20
    v_and_b32 v21, 3, v127
    v_bfe_u32 v22, v127, 4, 2
    v_xor_b32 v21, v21, v22
    v_lshl_add_u32 v20, v21, 4, v20
    v_add_u32 v{DM}, s7, v20
    v_add_u32 v{DM+1}, 1024, v{DM}
    s_lshl_b32 s7, s4, 17
    s_add_u32 s7, s7, {WS_VT}
    s_lshl_b32 s8, s56, 1
    """)
    for j in range(2):
        e(f"""
        s_add_u32 s9, s8, {j}
        s_and_b32 s12, s9, 15
        v_xor_b32 v22, s12, v127
        s_lshl_b32 s9, s9, 12
        s_add_u32 s9, s9, s7
        v_lshl_add_u32 v{DM+2+j}, v22, 4, s9
        """)
    e("""
    v_bfe_u32 v20, v127, 2, 2
    v_lshlrev_b32 v21, 6, v17
    s_lshl_b32 s9, s58, 14
    v_add_u32 v21, s9, v21
    """)
    for ks in range(2):
        e(f"v_or_b32 v22, {2*ks}, v18")
        e("v_xor_b32 v22, v22, v20")
        e(f"v_lshl_add_u32 v{KA+ks}, v22, 4, v21")
    e("v_and_b32 v20, 15, v127\nv_lshlrev_b32 v21, 10, v17\ns_lshl_b32 s9, s58, 9\ns_add_u32 s9, s9, 32768\nv_add_u32 v21, s9, v21")
    for c in range(8):
        e(f"v_or_b32 v22, {2*c}, v18")
        e("v_xor_b32 v22, v22, v20")
        e(f"v_lshl_add_u32 v{VA+c}, v22, 4, v21")
    def dma():
        for j in range(2):
            e(f"s_add_u32 m0, s54, {j*1024}\ns_nop 0")
            e(f"buffer_load_dwordx4 v{DM+j}, s[40:43], s52 offen lds")
        for j in range(2):
            e(f"s_add_u32 m0, s54, {32768 + j*1024}\ns_nop 0")
            e(f"buffer_load_dwordx4 v{DM+2+j}, s[40:43], s53 offen lds")
    KF = [72, 80]; VF = [88, 96]; SB = [16, 32]; P = 104
    def kread(tile):
        kf = KF[tile & 1]
        for ks in range(2):
            e(f"ds_read_b128 v[{kf+4*ks}:{kf+3+4*ks}], v{KA+ks} offset:{tile*2048}")
    def vread(tile):
        vf = VF[tile & 1]
        for c in range(2):
            cc = 2*tile + c
            e(f"ds_read_b128 v[{vf+4*c}:{vf+3+4*c}], v{VA + (cc&7)} offset:{(cc>>3)*256}")
    def smfma(tile):
        kf = KF[tile & 1]; S = SB[tile & 1]
        e(f"v_mfma_f32_32x32x16_bf16 v[{S}:{S+15}], v[{kf}:{kf+3}], v[64:67], v[48:63]")
        e(f"v_mfma_f32_32x32x16_bf16 v[{S}:{S+15}], v[{kf+4}:{kf+7}], v[68:71], v[{S}:{S+15}]")
    AR = [KA, KA+1] + list(range(VA, VA+8))
    def maxchain(S):
        e(f"v_max3_f32 v{P}, v{S}, v{S+1}, v{S+2}")
        for i in range(3, 15, 2):
            e(f"v_max3_f32 v{P}, v{P}, v{S+i}, v{S+i+1}")
        e(f"v_max_f32 v{P}, v{P}, v{S+15}")
    def mainloop(fast, tg):
        e("s_lshl_b32 s54, s56, 11\ns_mov_b32 s52, 0\ns_mov_b32 s53, 0")
        for i in range(16):
            e(f"v_mov_b32 v{i}, 0")
            e(f"v_mov_b32 v{48+i}, 0")
        e("v_mov_b32 v126, 0xff800000\ns_mov_b64 s[34:35], -1")
        dma()
        e(f"s_mov_b32 s30, 0\nAT_LOOP{tg}:")
        e("s_add_u32 s52, s52, 32768\ns_add_u32 s53, s53, 1024\ns_xor_b32 s54, s54, 0x10000")
        dma()
        e("s_waitcnt vmcnt(4)\ns_barrier")
        kread(0); kread(1); vread(0)
        e("s_waitcnt lgkmcnt(4)")
        smfma(0)
        e(f"s_nop 7\ns_mov_b32 s31, 0\nAT_IN{tg}:")
        for tile in range(4):
            S = SB[tile & 1]; vf = VF[tile & 1]
            e("s_waitcnt lgkmcnt(2)")
            smfma(tile + 1)
            kread(tile + 2)
            vread(tile + 1)
            if not fast:
                maxchain(S)
                e(f"v_cmp_lt_f32 vcc, 0x41000000, v{P}")
                e("s_or_b64 vcc, vcc, s[34:35]")
                e(f"s_cbranch_vccnz AT_SLOW{tg}{tile}")
            elif tile == 0:
                e("s_cmp_lg_u32 s34, 0")
                e(f"s_cbranch_scc1 AT_SLOW{tg}{tile}")
            e(f"AT_F{tg}{tile}:")
            for i in range(16):
                e(f"v_exp_f32 v{S+i}, v{S+i}")
            for i in range(8):
                e(f"v_cvt_pk_bf16_f32 v{P+i}, v{S+2*i}, v{S+1+2*i}")
            e("s_waitcnt lgkmcnt(4)\ns_nop 1")
            e(f"v_mfma_f32_32x32x16_bf16 v[0:15], v[{vf}:{vf+3}], v[{P}:{P+3}], v[0:15]")
            e(f"v_mfma_f32_32x32x16_bf16 v[0:15], v[{vf+4}:{vf+7}], v[{P+4}:{P+7}], v[0:15]")
        e(f"v_add_u32 v{KA}, 8192, v{KA}\nv_add_u32 v{KA+1}, 8192, v{KA+1}")
        for r in range(VA, VA+8):
            e(f"v_add_u32 v{r}, 256, v{r}")
        e(f"s_add_u32 s31, s31, 1\ns_cmp_lt_u32 s31, 2\ns_cbranch_scc1 AT_IN{tg}")
        e(f"v_subrev_u32 v{KA}, 16384, v{KA}\nv_subrev_u32 v{KA+1}, 16384, v{KA+1}")
        for r in range(VA, VA+8):
            e(f"v_subrev_u32 v{r}, 512, v{r}")
        for r in AR:
            e(f"v_xor_b32 v{r}, 0x10000, v{r}")
        e("s_waitcnt lgkmcnt(0)\ns_barrier")
        e(f"s_add_u32 s30, s30, 1\ns_cmp_lt_u32 s30, 4\ns_cbranch_scc1 AT_LOOP{tg}")
        e(f"s_branch AT_FIN{tg}")
        for tile in range(4 if not fast else 1):
            S = SB[tile & 1]; S2 = SB[(tile & 1) ^ 1]
            e(f"AT_SLOW{tg}{tile}:")
            if fast: maxchain(S)
            e(f"v_mov_b32 v{P+1}, v{P}\ns_nop 1")
            e(f"v_permlane32_swap_b32 v{P}, v{P+1}")
            e("s_nop 1")
            e(f"v_max3_f32 v{P}, v{P}, v{P+1}, v126")
            e("v_mov_b32 v126, 0\ns_mov_b64 s[34:35], 0")
            e(f"v_exp_f32 v{P+1}, -v{P}")
            e("s_nop 7\ns_nop 7")
            for i in range(16):
                e(f"v_sub_f32 v{S+i}, v{S+i}, v{P}")
                e(f"v_sub_f32 v{48+i}, v{48+i}, v{P}")
                e(f"v_mul_f32 v{i}, v{i}, v{P+1}")
                e(f"v_sub_f32 v{S2+i}, v{S2+i}, v{P}")
            e(f"s_branch AT_F{tg}{tile}")
        e(f"AT_FIN{tg}:\ns_waitcnt vmcnt(0)\ns_nop 15")
    mainloop(True, "A")
    e("""
    s_barrier
    v_mov_b32 v16, 0x71800000
    v_cmp_nlt_f32 vcc, v10, v16
    s_cmp_lg_u64 vcc, 0
    s_cselect_b32 s6, 1, 0
    v_mov_b32 v16, s6
    s_lshl_b32 s6, s56, 2
    s_add_u32 s6, s6, 65536
    v_mov_b32 v17, s6
    ds_write_b32 v17, v16
    v_and_b32 v17, 15, v127
    v_lshlrev_b32 v17, 2, v17
    v_add_u32 v17, 65536, v17
    s_waitcnt lgkmcnt(0)
    s_barrier
    ds_read_b32 v16, v17
    s_waitcnt lgkmcnt(0)
    v_cmp_ne_u32 vcc, 0, v16
    s_cbranch_vccz AT_MERGE
    s_barrier
    """)
    mainloop(False, "B")
    e("AT_MERGE:")
    e("""
    s_lshl_b32 s6, s57, 6
    v_add_u32 v16, s6, v127
    v_lshlrev_b32 v16, 6, v16
    s_barrier
    s_cmp_eq_u32 s58, 0
    s_cbranch_scc1 AT_MRG
    ds_write_b128 v16, v[0:3]
    ds_write_b128 v16, v[4:7] offset:16
    ds_write_b128 v16, v[8:11] offset:32
    ds_write_b32 v16, v48 offset:48
    s_waitcnt lgkmcnt(0)
    s_barrier
    s_branch AT_END
    AT_MRG:
    s_barrier
    ds_read_b128 v[20:23], v16
    ds_read_b128 v[24:27], v16 offset:16
    ds_read_b128 v[28:31], v16 offset:32
    ds_read_b32 v32, v16 offset:48
    s_waitcnt lgkmcnt(0)
    v_min_f32 v33, v48, v32
    v_sub_f32 v34, v33, v48
    v_sub_f32 v35, v33, v32
    v_exp_f32 v34, v34
    v_exp_f32 v35, v35
    s_nop 1
    """)
    for i in range(12):
        e(f"v_mul_f32 v{i}, v{i}, v34")
        e(f"v_fmac_f32 v{i}, v{20+i}, v35")
    e(f"""
    v_and_b32 v17, 31, v127
    v_lshrrev_b32 v18, 5, v127
    v_rcp_f32 v33, v10
    s_lshl_b32 s6, s5, 8
    s_lshl_b32 s7, s57, 5
    s_add_u32 s6, s6, s7
    s_lshr_b32 s6, s6, 5
    s_mul_i32 s6, s6, 331776
    s_add_u32 s6, s6, {WS_H}
    v_lshl_add_u32 v19, v17, 4, s6
    s_mul_i32 s8, s4, 18
    s_add_u32 s8, s8, 4608
    v_lshl_add_u32 v41, v18, 2, s8
    """)
    for i in range(10):
        e(f"v_mul_f32 v{i}, v{i}, v33")
    def oaddr(dst, c):
        e(f"v_add_u32 v{dst}, {c}, v41")
        e(f"v_lshrrev_b32 v46, 3, v{dst}")
        e(f"v_and_b32 v{dst}, 7, v{dst}")
        e(f"v_lshl_add_u32 v{dst}, v{dst}, 1, v19")
        e(f"v_lshl_add_u32 v{dst}, v46, 9, v{dst}")
    for q in range(2):
        e(f"v_cvt_pk_bf16_f32 v{36+2*q}, v{4*q}, v{4*q+1}")
        e(f"v_cvt_pk_bf16_f32 v{37+2*q}, v{4*q+2}, v{4*q+3}")
        oaddr(42+2*q, 8*q); oaddr(43+2*q, 8*q+2)
        e(f"buffer_store_dword v{36+2*q}, v{42+2*q}, s[40:43], 0 offen")
        e(f"buffer_store_dword v{37+2*q}, v{43+2*q}, s[40:43], 0 offen")
    oaddr(47, 16)
    e("""
    v_cvt_pk_bf16_f32 v40, v8, v9
    v_cmp_eq_u32 vcc, 0, v18
    s_and_saveexec_b64 s[24:25], vcc
    s_cbranch_execz AT_SK
    buffer_store_dword v40, v47, s[40:43], 0 offen
    AT_SK:
    s_or_b64 exec, exec, s[24:25]
    AT_END:
    s_endpgm
    """)

def gen_attn8(e, standalone=True):
    if standalone: header(e, "attn_kernel")
    KA = 112; VA = 114; DM = 122
    e(f"""
    s_cmp_ge_u32 s2, 256
    s_cbranch_scc1 AT_END
    s_load_dwordx2 s[10:11], s[0:1], 72
    s_and_b32 s4, s2, 7
    s_lshl_b32 s4, s4, 2
    s_bfe_u32 s5, s2, 0x20003
    s_add_u32 s4, s4, s5          ; head
    s_lshr_b32 s5, s2, 5          ; qblock
    v_and_b32 v127, 63, v0
    v_lshrrev_b32 v16, 6, v0
    s_nop 0
    v_readfirstlane_b32 s56, v16
    v_and_b32 v17, 31, v127      ; l32
    v_lshrrev_b32 v18, 5, v127   ; h
    s_mov_b32 s57, s56           ; qt
    s_waitcnt lgkmcnt(0)
    """)
    srd(e, 40, 10, 11, WS_SIZE)
    e(f"""
    s_lshl_b32 s6, s4, 11
    s_lshl_b32 s7, s5, 8
    s_add_u32 s6, s6, s7
    s_lshl_b32 s7, s57, 5
    s_add_u32 s6, s6, s7
    v_add_u32 v19, s6, v17
    v_lshlrev_b32 v19, 6, v19
    v_lshl_add_u32 v19, v18, 4, v19
    v_add_u32 v19, {WS_QP}, v19
    buffer_load_dwordx4 v[64:67], v19, s[40:43], 0 offen
    buffer_load_dwordx4 v[68:71], v19, s[40:43], 0 offen offset:32
    s_lshl_b32 s7, s4, 17
    s_add_u32 s7, s7, {WS_KP}
    s_lshl_b32 s8, s56, 11
    s_add_u32 s7, s7, s8
    v_lshrrev_b32 v20, 2, v127
    v_lshlrev_b32 v20, 6, v20
    v_and_b32 v21, 3, v127
    v_bfe_u32 v22, v127, 4, 2
    v_xor_b32 v21, v21, v22
    v_lshl_add_u32 v20, v21, 4, v20
    v_add_u32 v{DM}, s7, v20
    v_add_u32 v{DM+1}, 1024, v{DM}
    s_lshl_b32 s7, s4, 17
    s_add_u32 s7, s7, {WS_VT}
    s_lshl_b32 s8, s56, 2
    v_and_b32 v23, 31, v127
    """)
    for j in range(2):
        e(f"""
        s_add_u32 s9, s8, {2*j}
        v_add_u32 v20, s9, v18
        v_and_b32 v21, 15, v20
        v_xor_b32 v21, v21, v23
        v_lshlrev_b32 v20, 12, v20
        v_lshl_add_u32 v20, v21, 4, v20
        v_add_u32 v{DM+2+j}, s7, v20
        """)
    e("""
    v_bfe_u32 v20, v127, 2, 2
    v_lshlrev_b32 v21, 6, v17
    """)
    for ks in range(2):
        e(f"v_or_b32 v22, {2*ks}, v18")
        e("v_xor_b32 v22, v22, v20")
        e(f"v_lshl_add_u32 v{KA+ks}, v22, 4, v21")
    e("v_and_b32 v20, 15, v127\nv_lshlrev_b32 v21, 9, v17\nv_add_u32 v21, 16384, v21")
    for c in range(8):
        e(f"v_or_b32 v22, {2*c}, v18")
        e("v_xor_b32 v22, v22, v20")
        e(f"v_lshl_add_u32 v{VA+c}, v22, 4, v21")
    def dma():
        for j in range(2):
            e(f"s_add_u32 m0, s54, {j*1024}\ns_nop 0")
            e(f"buffer_load_dwordx4 v{DM+j}, s[40:43], s52 offen lds")
        for j in range(2):
            e(f"s_add_u32 m0, s54, {16384 + j*1024}\ns_nop 0")
            e(f"buffer_load_dwordx4 v{DM+2+j}, s[40:43], s53 offen lds")
    KF = [72, 80]; VF = [88, 96]; SB = [16, 32]; P = 104
    def kread(tile):
        kf = KF[tile & 1]
        for ks in range(2):
            e(f"ds_read_b128 v[{kf+4*ks}:{kf+3+4*ks}], v{KA+ks} offset:{tile*2048}")
    def vread(tile):
        vf = VF[tile & 1]
        for c in range(2):
            cc = 2*tile + c
            e(f"ds_read_b128 v[{vf+4*c}:{vf+3+4*c}], v{VA + (cc&7)} offset:{(cc>>3)*256}")
    def smfma(tile):
        kf = KF[tile & 1]; S = SB[tile & 1]
        e(f"v_mfma_f32_32x32x16_bf16 v[{S}:{S+15}], v[{kf}:{kf+3}], v[64:67], v[48:63]")
        e(f"v_mfma_f32_32x32x16_bf16 v[{S}:{S+15}], v[{kf+4}:{kf+7}], v[68:71], v[{S}:{S+15}]")
    AR = [KA, KA+1] + list(range(VA, VA+8))
    def maxchain(S):
        e(f"v_max3_f32 v{P}, v{S}, v{S+1}, v{S+2}")
        for i in range(3, 15, 2):
            e(f"v_max3_f32 v{P}, v{P}, v{S+i}, v{S+i+1}")
        e(f"v_max_f32 v{P}, v{P}, v{S+15}")
    def mainloop(fast, tg):
        e("s_lshl_b32 s54, s56, 11\ns_mov_b32 s52, 0\ns_mov_b32 s53, 0")
        for i in range(16):
            e(f"v_mov_b32 v{i}, 0")
            e(f"v_mov_b32 v{48+i}, 0")
        e("v_mov_b32 v126, 0xff800000\ns_mov_b64 s[34:35], -1")
        dma()
        e(f"s_mov_b32 s30, 0\nAT_LOOP{tg}:")
        e("s_add_u32 s52, s52, 16384\ns_add_u32 s53, s53, 512\ns_xor_b32 s54, s54, 0x8000")
        dma()
        e("s_waitcnt vmcnt(4)\ns_barrier")
        if "TS" in sys.argv: e(f"s_cmp_lg_u32 s30, 0\ns_cbranch_scc1 AT_TS{tg}\ns_memrealtime s[88:89]\nAT_TS{tg}:\ns_cmp_lg_u32 s30, 4\ns_cbranch_scc1 AT_TU{tg}\ns_memrealtime s[90:91]\nAT_TU{tg}:")
        kread(0); kread(1); vread(0)
        e("s_waitcnt lgkmcnt(4)")
        smfma(0)
        e(f"s_nop 7\ns_mov_b32 s31, 0\nAT_IN{tg}:")
        for tile in range(4):
            S = SB[tile & 1]; vf = VF[tile & 1]
            e("s_waitcnt lgkmcnt(2)")
            smfma(tile + 1)
            kread(tile + 2)
            vread(tile + 1)
            if not fast:
                maxchain(S)
                e(f"v_cmp_lt_f32 vcc, 0x41000000, v{P}")
                e("s_or_b64 vcc, vcc, s[34:35]")
                e(f"s_cbranch_vccnz AT_SLOW{tg}{tile}")
            elif tile == 0:
                e("s_cmp_lg_u32 s34, 0")
                e(f"s_cbranch_scc1 AT_SLOW{tg}{tile}")
            e(f"AT_F{tg}{tile}:")
            for i in range(16):
                e(f"v_exp_f32 v{S+i}, v{S+i}")
            for i in range(8):
                e(f"v_cvt_pk_bf16_f32 v{P+i}, v{S+2*i}, v{S+1+2*i}")
            e("s_waitcnt lgkmcnt(4)\ns_nop 1")
            e(f"v_mfma_f32_32x32x16_bf16 v[0:15], v[{vf}:{vf+3}], v[{P}:{P+3}], v[0:15]")
            e(f"v_mfma_f32_32x32x16_bf16 v[0:15], v[{vf+4}:{vf+7}], v[{P+4}:{P+7}], v[0:15]")
        e(f"v_add_u32 v{KA}, 8192, v{KA}\nv_add_u32 v{KA+1}, 8192, v{KA+1}")
        for r in range(VA, VA+8):
            e(f"v_add_u32 v{r}, 256, v{r}")
        e(f"s_add_u32 s31, s31, 1\ns_cmp_lt_u32 s31, 2\ns_cbranch_scc1 AT_IN{tg}")
        e(f"v_subrev_u32 v{KA}, 16384, v{KA}\nv_subrev_u32 v{KA+1}, 16384, v{KA+1}")
        for r in range(VA, VA+8):
            e(f"v_subrev_u32 v{r}, 512, v{r}")
        for r in AR:
            e(f"v_xor_b32 v{r}, 0x8000, v{r}")
        e("s_waitcnt lgkmcnt(0)\ns_barrier")
        e(f"s_add_u32 s30, s30, 1\ns_cmp_lt_u32 s30, 8\ns_cbranch_scc1 AT_LOOP{tg}")
        e(f"s_branch AT_FIN{tg}")
        for tile in range(4 if not fast else 1):
            S = SB[tile & 1]; S2 = SB[(tile & 1) ^ 1]
            e(f"AT_SLOW{tg}{tile}:")
            if fast: maxchain(S)
            e(f"v_mov_b32 v{P+1}, v{P}\ns_nop 1")
            e(f"v_permlane32_swap_b32 v{P}, v{P+1}")
            e("s_nop 1")
            e(f"v_max3_f32 v{P}, v{P}, v{P+1}, v126")
            e("v_mov_b32 v126, 0\ns_mov_b64 s[34:35], 0")
            e(f"v_exp_f32 v{P+1}, -v{P}")
            e("s_nop 7\ns_nop 7")
            for i in range(16):
                e(f"v_sub_f32 v{S+i}, v{S+i}, v{P}")
                e(f"v_sub_f32 v{48+i}, v{48+i}, v{P}")
                e(f"v_mul_f32 v{i}, v{i}, v{P+1}")
                e(f"v_sub_f32 v{S2+i}, v{S2+i}, v{P}")
            e(f"s_branch AT_F{tg}{tile}")
        e(f"AT_FIN{tg}:\ns_waitcnt vmcnt(0)\ns_nop 15")
    mainloop(True, "A")
    e("""
    s_barrier
    v_mov_b32 v16, 0x71800000
    v_cmp_nlt_f32 vcc, v10, v16
    s_cmp_lg_u64 vcc, 0
    s_cselect_b32 s6, 1, 0
    v_mov_b32 v16, s6
    s_lshl_b32 s6, s56, 2
    s_add_u32 s6, s6, 65536
    v_mov_b32 v17, s6
    ds_write_b32 v17, v16
    v_and_b32 v17, 7, v127
    v_lshlrev_b32 v17, 2, v17
    v_add_u32 v17, 65536, v17
    s_waitcnt lgkmcnt(0)
    s_barrier
    ds_read_b32 v16, v17
    s_waitcnt lgkmcnt(0)
    v_cmp_ne_u32 vcc, 0, v16
    s_cbranch_vccz AT_MERGE
    s_barrier
    """)
    mainloop(False, "B")
    e("AT_MERGE:")
    e(f"""
    v_and_b32 v17, 31, v127
    v_lshrrev_b32 v18, 5, v127
    v_rcp_f32 v33, v10
    s_lshl_b32 s6, s5, 8
    s_lshl_b32 s7, s57, 5
    s_add_u32 s6, s6, s7
    s_lshr_b32 s6, s6, 5
    s_mul_i32 s6, s6, 331776
    s_add_u32 s6, s6, {WS_H}
    v_lshl_add_u32 v19, v17, 4, s6
    s_mul_i32 s8, s4, 18
    s_add_u32 s8, s8, 4608
    v_lshl_add_u32 v41, v18, 2, s8
    """)
    for i in range(10):
        e(f"v_mul_f32 v{i}, v{i}, v33")
    def oaddr(dst, c):
        e(f"v_add_u32 v{dst}, {c}, v41")
        e(f"v_lshrrev_b32 v46, 3, v{dst}")
        e(f"v_and_b32 v{dst}, 7, v{dst}")
        e(f"v_lshl_add_u32 v{dst}, v{dst}, 1, v19")
        e(f"v_lshl_add_u32 v{dst}, v46, 9, v{dst}")
    for q in range(2):
        e(f"v_cvt_pk_bf16_f32 v{36+2*q}, v{4*q}, v{4*q+1}")
        e(f"v_cvt_pk_bf16_f32 v{37+2*q}, v{4*q+2}, v{4*q+3}")
        oaddr(42+2*q, 8*q); oaddr(43+2*q, 8*q+2)
        e(f"buffer_store_dword v{36+2*q}, v{42+2*q}, s[40:43], 0 offen")
        e(f"buffer_store_dword v{37+2*q}, v{43+2*q}, s[40:43], 0 offen")
    oaddr(47, 16)
    e("""
    v_cvt_pk_bf16_f32 v40, v8, v9
    v_cmp_eq_u32 vcc, 0, v18
    s_and_saveexec_b64 s[24:25], vcc
    s_cbranch_execz AT_SK
    buffer_store_dword v40, v47, s[40:43], 0 offen
    AT_SK:
    s_or_b64 exec, exec, s[24:25]
    s_waitcnt vmcnt(0)
    """)
    ts_end(e, "a")
    e("AT_END:\ns_endpgm")

def main():
    e = E()
    hdr = open("parallel_sum__mha_block__glu_gated_swiglu__prompt.s.ref").read().split("; Override")[0]
    txt = hdr
    txt += "; @launch kernel=ln_kernel grid=(704,1,1) block=(256,1,1) lds=0\n"
    txt += f"; @launch kernel=gemm1_kernel grid=(256,1,1) block=(512,1,1) lds=163840\n"
    txt += "; @launch kernel=attn_kernel grid=(512,1,1) block=(512,1,1) lds=77824\n"
    txt += "; @launch kernel=fin_kernel grid=(192,1,1) block=(256,1,1) lds=135168\n"
    txt += '.amdgcn_target "amdgcn-amd-amdhsa--gfx950"\n.text\n'
    gen_ln(e); gen_gemm1(e)
    header(e, "attn_kernel")
    if "TS" in sys.argv: e("s_memrealtime s[70:71]\ns_memtime s[80:81]\ns_mov_b32 s74, s2")
    if "MAPB" in sys.argv:
        e("""
        s_bfe_u32 s3, s2, 0x10003
        s_and_b32 s4, s2, 7
        s_lshr_b32 s2, s2, 4
        s_lshl_b32 s2, s2, 3
        s_or_b32 s2, s2, s4
        s_cmp_lg_u32 s3, 0
        s_cbranch_scc1 G2_START
        """)
    elif "MAPC" in sys.argv:
        e("""
        s_cmp_lt_u32 s2, 256
        s_cbranch_scc1 G2_START
        s_sub_u32 s2, s2, 256
        """)
    else:
        e("""
        s_cmp_lt_u32 s2, 256
        s_cbranch_scc1 AT_START
        s_sub_u32 s2, s2, 256
        s_branch G2_START
        AT_START:
        """)
    if "PA" in sys.argv: e("s_setprio 2")
    if "NOAT" in sys.argv: e("s_endpgm")
    gen_attn8(e, False); gen_gemm2h(e); gen_fin2(e)
    txt += e.text()
    txt += kd("ln_kernel", 80) + kd("gemm1_kernel", 256) + kd("attn_kernel", 128) + kd("fin_kernel", 244)
    open(OUT, "w").write(txt)
    print("wrote", len(txt))
main()
```

```python
import sys
OUT = "parallel_sum__mha_block__glu_gated_swiglu__prompt.s" if len(sys.argv)<2 else "var_"+sys.argv[1]+".s"

MB = 1 << 20
WS_XN = 0
WS_QP = 4 * MB
WS_KP = 8 * MB
WS_VT = 12 * MB
WS_H = 16 * MB
WS_O = 40 * MB
WS_SIZE = 268435456
WS_CNT = 47 * MB

S_, D_, F_, H_ = 2048, 576, 4608, 32
LOG2E = 1.4426950408889634
QSCALE = LOG2E * (18 ** -0.5)

import struct
def f2u(x):
    return struct.unpack("<I", struct.pack("<f", x))[0]

class E:
    def __init__(self):
        self.l = []
    def __call__(self, s):
        for ln in s.strip("\n").split("\n"):
            self.l.append("  " + ln.strip() if not ln.strip().endswith(":") else ln.strip())
    def text(self):
        return "\n".join(self.l) + "\n"

def srd(e, d, base_lo, base_hi, nbytes):
    e(f"s_mov_b32 s{d}, s{base_lo}")
    e(f"s_and_b32 s{d+1}, s{base_hi}, 0xffff")
    e(f"s_mov_b32 s{d+2}, {nbytes}")
    e(f"s_mov_b32 s{d+3}, 0x00020000")

def header(e, name):
    e(f".globl {name}\n.p2align 8\n.type {name},@function\n{name}:")

def kd(name, vgpr, sgpr=102):
    acc = (vgpr + 3) // 4 * 4
    return f""".section .rodata,"a"
.p2align 6
.amdhsa_kernel {name}
  .amdhsa_next_free_vgpr {vgpr}
  .amdhsa_next_free_sgpr {sgpr}
  .amdhsa_accum_offset {acc}
  .amdhsa_group_segment_fixed_size 0
  .amdhsa_kernarg_size 80
  .amdhsa_user_sgpr_count 2
  .amdhsa_user_sgpr_kernarg_segment_ptr 1
  .amdhsa_system_sgpr_workgroup_id_x 1
.end_amdhsa_kernel
"""

def gen_ln(e):
    header(e, "ln_kernel")
    PF = ((28, D_*F_*2), (30, D_*F_*2), (26, D_*1728*2))
    def prefetch():
        if "PF" not in sys.argv: return
        for n_, (lo, nb) in enumerate(PF):
            srd(e, 32, lo, lo+1, nb)
            e(f"buffer_load_dword v{71+n_}, v70, s[32:35], 0 offen")
    e("""
    s_cmp_ge_u32 s2, 704
    s_cbranch_scc1 LN_END
    s_load_dwordx2 s[4:5], s[0:1], 0
    s_load_dwordx2 s[6:7], s[0:1], 72
    s_load_dwordx2 s[26:27], s[0:1], 8
    s_load_dwordx2 s[28:29], s[0:1], 32
    s_load_dwordx2 s[30:31], s[0:1], 40
    s_lshl_b32 s3, s2, 8
    v_add_u32 v1, s3, v0
    v_lshlrev_b32 v70, 5, v1
    v_lshrrev_b32 v2, 5, v1
    v_and_b32 v3, 31, v1
    s_movk_i32 s20, 1152
    v_mul_lo_u32 v4, v2, s20
    v_lshl_add_u32 v4, v3, 2, v4
    s_waitcnt lgkmcnt(0)
    """)
    srd(e, 12, 6, 7, WS_SIZE)
    e("s_cmp_lt_u32 s2, 256\ns_cbranch_scc1 LN_MAIN")
    e(f"""
    s_cmp_lg_u32 s2, 256
    s_cbranch_scc1 LN_NZ
    v_lshlrev_b32 v60, 2, v0
    v_add_u32 v60, {WS_CNT}, v60
    v_mov_b32 v61, 0
    buffer_store_dword v61, v60, s[12:15], 0 offen
    LN_NZ:
    """)
    prefetch()
    magic = -(-(1 << 32) // 3584)
    e(f"""
    v_subrev_u32 v30, 65536, v1
    s_mov_b32 s21, {magic}
    v_mul_hi_u32 v31, v30, s21
    s_movk_i32 s21, 3584
    v_mul_lo_u32 v32, v31, s21
    v_sub_u32 v32, v30, v32
    v_lshrrev_b32 v33, 8, v32
    v_and_b32 v34, 255, v32
    v_add_u32 v33, 18, v33
    v_lshl_add_u32 v35, v31, 5, v33
    v_lshlrev_b32 v35, 12, v35
    v_lshl_add_u32 v35, v34, 4, v35
    v_add_u32 v35, {WS_VT}, v35
    v_cmp_eq_u32 vcc, 18, v33
    v_cmp_eq_u32 s[22:23], 22, v33
    s_or_b64 vcc, vcc, s[22:23]
    v_mov_b32 v36, 0x3f803f80
    s_nop 1
    v_cndmask_b32 v44, 0, v36, vcc
    v_mov_b32 v45, v44
    v_mov_b32 v46, v44
    v_mov_b32 v47, v44
    v_cmp_gt_u32 vcc, 114688, v30
    s_and_saveexec_b64 s[24:25], vcc
    s_cbranch_execz LN_END
    buffer_store_dwordx4 v[44:47], v35, s[12:15], 0 offen
    s_branch LN_END
    LN_MAIN:
    """)
    srd(e, 8, 4, 5, S_ * D_ * 2)
    for i in range(9):
        e(f"buffer_load_dword v{10+i}, v4, s[8:11], 0 offen offset:{128*i}")
    prefetch()
    e(f"s_waitcnt vmcnt({0 if 'PF' not in sys.argv else len(PF)})")
    for i in range(9):
        e(f"v_lshlrev_b32 v{50+2*i}, 16, v{10+i}")
        e(f"v_and_b32 v{51+2*i}, 0xffff0000, v{10+i}")
    e("v_add_f32 v20, v50, v51")
    for i in range(2, 18):
        e(f"v_add_f32 v20, v20, v{50+i}")
    def red(v):
        for x in (1, 2, 4, 8, 16):
            e(f"ds_swizzle_b32 v21, v{v} offset:{(x<<10)|0x1f}")
            e("s_waitcnt lgkmcnt(0)")
            e(f"v_add_f32 v{v}, v{v}, v21")
    red(20)
    e(f"v_mul_f32 v20, {hex(f2u(1.0/576))}, v20")
    for i in range(18):
        e(f"v_sub_f32 v{50+i}, v{50+i}, v20")
    e("v_mul_f32 v22, v50, v50")
    for i in range(1, 18):
        e(f"v_fmac_f32 v22, v{50+i}, v{50+i}")
    red(22)
    e(f"v_mov_b32 v23, {hex(f2u(1e-5))}")
    e(f"v_fmac_f32 v23, {hex(f2u(1.0/576))}, v22")
    e("v_rsq_f32 v23, v23")
    e("s_nop 1")
    for i in range(18):
        e(f"v_mul_f32 v{50+i}, v{50+i}, v23")
    for i in range(9):
        e(f"v_cvt_pk_bf16_f32 v{10+i}, v{50+2*i}, v{51+2*i}")
    e("""
    v_lshrrev_b32 v5, 5, v2
    v_mul_u32_u24 v5, 36864, v5
    v_and_b32 v6, 31, v2
    v_lshl_add_u32 v5, v6, 4, v5
    v_lshrrev_b32 v6, 3, v3
    v_lshl_add_u32 v5, v6, 10, v5
    v_bfe_u32 v6, v3, 2, 1
    v_lshl_add_u32 v5, v6, 9, v5
    v_and_b32 v6, 3, v3
    v_lshl_add_u32 v5, v6, 2, v5
    """)
    for i in range(9):
        e(f"s_mov_b32 s20, {4096*i}")
        e(f"buffer_store_dword v{10+i}, v5, s[12:15], s20 offen")
    e("LN_END:\ns_endpgm")

ACC = 0
def acc(p, t):
    b = ACC + p * 32 + t * 16
    return f"v[{b}:{b+15}]"

def gemm_dma(e, buf):
    if "NODMA" in sys.argv: return
    sb = buf * 16384
    for i in range(2):
        e(f"s_add_u32 m0, s54, {sb + i*1024}")
        e("s_nop 0")
        e(f"buffer_load_dwordx4 v{96+i}, s[40:43], s52 offen lds")
    for p in range(2):
        e(f"s_add_u32 m0, s55, {sb + p*4096}")
        e("s_nop 0")
        e(f"buffer_load_dwordx4 v100, s[{44+4*p}:{47+4*p}], s53 offen lds")

def gemm_reads(e, buf, ks):
    fs = 64 + (ks & 1) * 16
    sb = buf * 16384
    for p in range(2):
        for h2 in range(2):
            e(f"ds_read_b64_tr_b16 v[{fs+4*p+2*h2}:{fs+4*p+2*h2+1}], v106 offset:{sb + p*4096 + ks*2048 + h2*512}")
    for t in range(2):
        e(f"ds_read_b128 v[{fs+8+4*t}:{fs+11+4*t}], v{102+ks} offset:{sb + t*2048}")

SWAP = [False]
def gemm_compute(e, buf):
    gemm_reads(e, buf, 0)
    for ks in range(2):
        if ks < 1:
            gemm_reads(e, buf, ks + 1)
            e("s_waitcnt lgkmcnt(6)")
        else:
            e("s_waitcnt lgkmcnt(0)")
        fs = 64 + (ks & 1) * 16
        for p in range(2):
            for t in range(2):
                wfr = f"v[{fs+4*p}:{fs+4*p+3}]"; xfr = f"v[{fs+8+4*t}:{fs+11+4*t}]"
                if SWAP[0]: wfr, xfr = xfr, wfr
                if "NOMF" not in sys.argv: e(f"v_mfma_f32_32x32x16_bf16 {acc(p,t)}, {wfr}, {xfr}, {acc(p,t)}")

def gemm_setup_common(e, m0_sreg):
    e("""
    v_and_b32 v107, 63, v0
    v_lshrrev_b32 v108, 6, v0
    s_nop 0
    v_readfirstlane_b32 s56, v108
    """)
    for i in range(64):
        e(f"v_mov_b32 v{i}, 0")
    e("""
    s_lshr_b32 s57, s56, 1
    s_and_b32 s58, s56, 1
    v_and_b32 v108, 31, v107
    v_lshrrev_b32 v109, 5, v107
    v_bfe_u32 v110, v107, 2, 2
    s_lshl_b32 s59, s57, 12
    v_lshlrev_b32 v111, 6, v108
    v_add_u32 v111, s59, v111
    """)
    for ks in range(2):
        e(f"v_or_b32 v112, {2*ks}, v109")
        e("v_xor_b32 v112, v112, v110")
        e(f"v_lshl_add_u32 v{102+ks}, v112, 4, v111")
    e("""
    v_bfe_u32 v108, v107, 2, 2
    v_lshl_add_u32 v108, v109, 3, v108
    v_lshlrev_b32 v108, 7, v108
    v_bfe_u32 v110, v107, 3, 1
    v_xor_b32 v110, s58, v110
    v_lshl_add_u32 v108, v110, 6, v108
    v_bfe_u32 v110, v107, 4, 1
    v_lshl_add_u32 v108, v110, 5, v108
    v_and_b32 v110, 3, v107
    v_lshl_add_u32 v108, v110, 3, v108
    v_add_u32 v106, 8192, v108
    s_lshl_b32 s54, s56, 11
    s_lshl_b32 s55, s56, 10
    s_add_u32 s55, s55, 8192
    """)

def gemm_setup_x(e, m0_sreg, stride_sreg):
    e(f"""
    s_lshl_b32 s59, s56, 5
    s_add_u32 s59, s59, s{m0_sreg}
    v_lshrrev_b32 v108, 2, v107
    v_add_u32 v108, s59, v108
    v_and_b32 v109, 3, v107
    v_bfe_u32 v110, v107, 4, 2
    v_xor_b32 v112, v109, v110
    """)
    for i in range(2):
        e(f"v_add_u32 v111, {16*i}, v108")
        e(f"v_mul_lo_u32 v111, v111, s{stride_sreg}")
        e(f"v_lshl_add_u32 v{96+i}, v112, 4, v111")

def gemm_setup_w(e, ncol_sreg, stride_sreg):
    e(f"""
    s_lshl_b32 s59, s56, 3
    v_lshrrev_b32 v108, 3, v107
    v_add_u32 v108, s59, v108
    v_and_b32 v109, 7, v107
    v_bfe_u32 v110, v107, 4, 1
    v_lshlrev_b32 v110, 2, v110
    v_xor_b32 v109, v109, v110
    v_lshlrev_b32 v109, 4, v109
    s_lshl_b32 s59, s{ncol_sreg}, 1
    v_add_u32 v109, s59, v109
    v_mul_lo_u32 v111, v108, s{stride_sreg}
    v_add_u32 v100, v111, v109
    """)

def gemm_stage(e, s, nst, adv):
    buf = s & 1
    if s + 1 < nst:
        adv(e)
        gemm_dma(e, buf ^ 1)
        e("s_waitcnt vmcnt(4)")
    else:
        e("s_waitcnt vmcnt(0)")
    e("s_barrier")
    gemm_compute(e, buf)
    e("s_barrier")

def gen_gemm1(e):
    XR = 64; WF = 208; T = WF
    FL = sys.argv
    header(e, "gemm1_kernel")
    if "TS1" in sys.argv: e("s_memrealtime s[70:71]")
    if "TS1" in sys.argv: e("s_memtime s[84:85]\ns_mov_b32 s72, 0\ns_mov_b32 s74, 0\ns_mov_b32 s76, 0\ns_mov_b32 s78, 0")
    e(f"""
    s_cmp_ge_u32 s2, 256
    s_cbranch_scc1 G1_END
    s_load_dwordx2 s[4:5], s[0:1], 8
    s_load_dwordx2 s[6:7], s[0:1], 32
    s_load_dwordx2 s[8:9], s[0:1], 40
    s_load_dwordx2 s[10:11], s[0:1], 72
    s_bfe_u32 s12, s2, 0x30003
    s_lshl_b32 s12, s12, 8
    s_lshr_b32 s13, s2, 6
    s_lshl_b32 s13, s13, 3
    s_and_b32 s14, s2, 7
    s_add_u32 s14, s13, s14      ; group 0..31
    v_and_b32 v245, 63, v0
    v_lshrrev_b32 v246, 6, v0
    s_nop 0
    v_readfirstlane_b32 s56, v246
    v_and_b32 v246, 31, v245
    v_lshrrev_b32 v247, 5, v245
    s_waitcnt lgkmcnt(0)
    """)
    srd(e, 40, 10, 11, S_ * D_ * 2)
    srd(e, 60, 10, 11, WS_SIZE)
    e("""
    v_bfe_u32 v248, v245, 2, 2
    v_lshl_add_u32 v248, v247, 3, v248
    v_lshlrev_b32 v248, 7, v248
    v_bfe_u32 v249, v245, 4, 1
    v_lshl_add_u32 v248, v249, 5, v248
    v_and_b32 v249, 3, v245
    v_lshl_add_u32 v248, v249, 3, v248
    v_bfe_u32 v249, v245, 3, 1
    v_lshl_add_u32 v242, v249, 6, v248
    v_xor_b32 v249, 1, v249
    v_lshl_add_u32 v243, v249, 6, v248
    v_add_u32 v252, 0x10000, v242
    v_add_u32 v253, 0x10000, v243
    v_add_u32 v254, 0x20000, v242
    v_add_u32 v255, 0x20000, v243
    s_lshl_b32 s55, s56, 10
    s_lshr_b32 s59, s12, 5
    s_add_u32 s59, s59, s56
    s_mul_i32 s59, s59, 36864
    v_lshl_add_u32 v244, v245, 4, s59
    """)
    def xload(kk):
        if "NOX1" in FL: return
        e(f"s_mov_b32 s59, {1024*kk}")
        e(f"buffer_load_dwordx4 v[{XR+4*kk}:{XR+4*kk+3}], v244, s[40:43], s59 offen")
    def voffw():
        e(f"""
        s_lshl_b32 s17, s16, 6
        s_lshl_b32 s59, s56, 3
        v_lshrrev_b32 v248, 3, v245
        v_add_u32 v248, s59, v248
        v_and_b32 v249, 7, v245
        v_bfe_u32 v250, v245, 4, 1
        v_lshlrev_b32 v250, 2, v250
        v_xor_b32 v249, v249, v250
        v_lshlrev_b32 v249, 4, v249
        s_lshl_b32 s59, s15, 1
        v_add_u32 v249, s59, v249
        v_mul_lo_u32 v250, v248, s16
        v_add_u32 v240, v250, v249
        s_mov_b32 s53, 0
        s_nop 4
        """)
    def dma(buf):
        for p in range(2):
            if "NODMA1" in FL: continue
            e(f"s_add_u32 m0, s55, {buf*16384 + p*8192}")
            e("s_nop 0")
            e(f"buffer_load_dwordx4 v240, s[{44+4*p}:{47+4*p}], s53 offen lds")
        e("s_add_u32 s53, s53, s17")
    def reads(buf, ks):
        fs = WF + (ks & 1) * 16
        for j in range(4):
            p, sub = j >> 1, j & 1
            if "HALFRD" in FL and sub: continue
            for h2 in range(2):
                areg = (242, 252, 254)[buf // 4] + sub
                e(f"ds_read_b64_tr_b16 v[{fs+4*j+2*h2}:{fs+4*j+2*h2+1}], v{areg} offset:{(buf%4)*16384 + p*8192 + ks*2048 + h2*512}")
    def mfmas(st, ks, swap):
        if "NOMF1" in FL: return
        fs = WF + (ks & 1) * 16
        kk = 4 * st + ks
        for j in range(4):
            wfr = f"v[{fs+4*j}:{fs+4*j+3}]"; xfr = f"v[{XR+4*kk}:{XR+4*kk+3}]"
            if swap: wfr, xfr = xfr, wfr
            c = "0" if (st == 0 and ks == 0) else f"v[{16*j}:{16*j+15}]"
            e(f"v_mfma_f32_32x32x16_bf16 v[{16*j}:{16*j+15}], {wfr}, {xfr}, {c}")
    def body(swap, sync):
        reads(0, 0)
        for st in range(9):
            for ks in range(4):
                if ks == 2 and st < 8: sync(st)
                if ks < 3: reads(st, ks + 1)
                elif st < 8: reads(st + 1, 0)
                e(("s_waitcnt lgkmcnt(4)" if "HALFRD" in FL else "s_waitcnt lgkmcnt(8)") if (ks < 3 or st < 8) else "s_waitcnt lgkmcnt(0)")
                mfmas(st, ks, swap)
        e("s_barrier")
        e("s_nop 15")
    e("s_cmp_ge_u32 s14, 8\ns_cbranch_scc1 " + ("G1_END" if "NOF" in FL else "G1_FFN"))
    if "NOQ" in FL: e("s_branch G1_END")
    e("""
    s_lshl_b32 s13, s14, 1       ; tile
    s_add_u32 s19, s13, 2
    s_min_u32 s19, s19, 15
    s_mov_b32 s30, 0
    s_lshl_b32 s57, s56, 14
    """)
    srd(e, 44, 4, 5, D_ * 1728 * 2)
    e(f"""
    s_add_u32 s48, s4, 128
    s_addc_u32 s49, s5, 0
    s_and_b32 s49, s49, 0xffff
    s_mov_b32 s50, {D_*1728*2-128}
    s_mov_b32 s51, 0x00020000
    G1_QT:
    s_mul_i32 s22, s13, 13
    s_lshr_b32 s22, s22, 6       ; mat
    s_mul_i32 s23, s22, 5
    s_sub_u32 s23, s13, s23      ; t'
    s_mul_i32 s15, s22, 576
    s_mul_i32 s59, s23, 126
    s_add_u32 s15, s15, s59      ; col0
    s_mul_i32 s24, s23, 7        ; head0
    s_movk_i32 s16, 3456
    """)
    voffw()
    qlab = [0]
    QPRO = 2; QLEAD = 3
    for a_ in FL:
        if a_.startswith("QPRO="): QPRO = int(a_[5:])
        if a_.startswith("QLEAD="): QLEAD = int(a_[6:])
    def mk_qsync():
        qops = []
        def qiss(g, emit=True):
            if emit:
                dma(g)
                for kk in range(4*g, 4*g+4): xload(kk)
            qops.extend([g] * 6)
        for g in range(QPRO): qiss(g, False)
        qn = [QPRO]
        def sy(s_):
            qlab[0] += 1; L = qlab[0]
            last = max(i for i, o in enumerate(qops) if o == s_ + 1)
            e(f"s_cmp_lg_u32 s30, 0\ns_cbranch_scc1 G1_QS{L}")
            e(f"s_waitcnt vmcnt({len(qops) - 1 - last})\ns_barrier")
            for _ in range(2):
                if qn[0] <= min(8, s_ + QLEAD):
                    qiss(qn[0]); qn[0] += 1
            e(f"s_branch G1_QR{L}\nG1_QS{L}:")
            e(f"s_waitcnt vmcnt({2*(8 - (s_+1))})\ns_barrier\nG1_QR{L}:")
        return sy
    e("s_cmp_lg_u32 s30, 0\ns_cbranch_scc1 G1_QNX")
    for g in range(QPRO):
        dma(g)
        for kk in range(4*g, 4*g+4): xload(kk)
    e("s_branch G1_QNY\nG1_QNX:")
    for b_ in range(9): dma(b_)
    e("""
    G1_QNY:
    s_cmp_ge_u32 s22, 2
    s_cbranch_scc1 G1_QV
    """)
    qs = mk_qsync(); qs(-1)
    body(False, qs)
    e("s_mov_b32 s30, 1")
    e(f"""
    s_mov_b32 s20, {hex(f2u(QSCALE))}
    s_cmp_eq_u32 s22, 0
    s_cselect_b32 s20, s20, 1.0
    v_lshl_add_u32 v248, v246, 6, s57
    v_bfe_u32 v249, v246, 1, 2
    v_lshlrev_b32 v249, 4, v249
    """)
    cnt = 0
    for j in range(4):
        for q in range(4):
            for jj in (0, 2):
                n0 = 32*j + 8*q + jj; n1 = n0 + 4
                o0 = (n0//18)*2048 + (n0%18)*2; o1 = (n1//18)*2048 + (n1%18)*2
                t = T + 4*(cnt % 4); cnt += 1
                r = 16*j + 4*q + jj
                e(f"v_mul_u32_u24 v{t}, {o1-o0}, v247")
                e(f"v_mul_f32 v{t+1}, s20, v{r}")
                e(f"v_mul_f32 v{t+2}, s20, v{r+1}")
                e(f"v_add_u32 v{t}, {o0}, v{t}")
                e(f"v_xor_b32 v{t}, v{t}, v249")
                e(f"v_cvt_pk_bf16_f32 v{t+1}, v{t+1}, v{t+2}")
                e(f"v_add_u32 v{t}, v{t}, v248")
                e(f"ds_write_b32 v{t}, v{t+1}")
    e(f"""
    v_lshrrev_b32 v248, 2, v245
    v_and_b32 v249, 3, v245
    v_bfe_u32 v250, v245, 3, 2
    v_xor_b32 v250, v250, v249
    v_lshlrev_b32 v250, 4, v250
    v_lshl_add_u32 v250, v248, 6, v250
    v_add_u32 v250, s57, v250
    v_cmp_gt_u32 vcc, 3, v249
    v_cndmask_b32 v251, 0, -1, vcc
    v_cmp_gt_u32 vcc, 2, v249
    v_cndmask_b32 v241, 0, -1, vcc
    s_lshl_b32 s59, s56, 5
    s_add_u32 s59, s59, s12
    v_add_u32 v248, s59, v248
    v_lshlrev_b32 v248, 6, v248
    v_lshl_add_u32 v248, v249, 4, v248
    s_lshl_b32 s59, s22, 22
    s_add_u32 s59, s59, {WS_QP}
    s_lshl_b32 s25, s24, 17
    s_add_u32 s59, s59, s25
    v_add_u32 v248, s59, v248
    s_waitcnt lgkmcnt(0)
    """)
    for b0 in range(0, 14, 4):
        rs = list(range(b0, min(b0+4, 14)))
        if b0 == 8: e("s_cmp_eq_u32 s23, 4\ns_cbranch_scc1 G1_QNEXT")
        for i in rs:
            t = T + 4*(i % 4)
            e(f"ds_read_b128 v[{t}:{t+3}], v250 offset:{i*1024}")
        for i in rs:
            t = T + 4*(i % 4)
            e(f"s_waitcnt lgkmcnt({rs[-1]-i})")
            e(f"v_and_b32 v{t}, v{t}, v251")
            for k_ in range(1, 4): e(f"v_and_b32 v{t+k_}, v{t+k_}, v241")
            e(f"s_mov_b32 s59, {(i//2)*131072 + (i%2)*1024}")
            e(f"buffer_store_dwordx4 v[{t}:{t+3}], v248, s[60:63], s59 offen")
    e("s_branch G1_QNEXT\nG1_QV:")
    qs = mk_qsync(); qs(-1)
    body(True, qs)
    e("s_mov_b32 s30, 1")
    e(f"""
    v_bfe_u32 v249, v246, 1, 2
    v_xor_b32 v250, v249, v247
    v_lshlrev_b32 v250, 4, v250
    v_lshl_add_u32 v250, v246, 6, v250
    v_add_u32 v250, s57, v250
    v_or_b32 v251, 2, v247
    v_xor_b32 v251, v249, v251
    v_lshlrev_b32 v251, 4, v251
    v_lshl_add_u32 v251, v246, 6, v251
    v_add_u32 v251, s57, v251
    """)
    cnt = 0
    for j in range(4):
        for q in range(4):
            r = 16*j + 4*q
            t = T + 2*(cnt % 8); cnt += 1
            e(f"v_cvt_pk_bf16_f32 v{t}, v{r}, v{r+1}")
            e(f"v_cvt_pk_bf16_f32 v{t+1}, v{r+2}, v{r+3}")
            e(f"ds_write_b64 v{250 + (q>>1)}, v[{t}:{t+1}] offset:{j*2048 + 8*(q&1)}")
    e(f"""
    v_lshrrev_b32 v248, 2, v245
    v_and_b32 v249, 3, v245
    v_bfe_u32 v250, v245, 3, 2
    v_xor_b32 v250, v250, v249
    v_lshlrev_b32 v250, 4, v250
    v_lshl_add_u32 v250, v248, 6, v250
    v_add_u32 v250, s57, v250
    s_lshl_b32 s59, s56, 5
    s_add_u32 s59, s59, s12
    s_lshl_b32 s59, s59, 1
    s_add_u32 s59, s59, {WS_VT}
    s_lshl_b32 s25, s24, 17
    s_add_u32 s59, s59, s25
    v_lshl_add_u32 v249, v249, 4, s59
    s_movk_i32 s21, 3641
    s_movk_i32 s25, 126
    s_cmp_eq_u32 s23, 4
    s_cselect_b32 s25, 72, s25
    s_waitcnt lgkmcnt(0)
    """)
    for b0 in (0, 4):
        rs = list(range(b0, b0+4))
        for i in rs:
            t = T + 4*(i % 4)
            e(f"ds_read_b128 v[{t}:{t+3}], v250 offset:{i*1024}")
        for i in rs:
            t = T + 4*(i % 4)
            u = T + 16 + 4*(i % 4)
            e(f"""
            v_add_u32 v{u}, {16*i}, v248
            v_mul_u32_u24 v{u+1}, s21, v{u}
            v_lshrrev_b32 v{u+1}, 16, v{u+1}
            v_mul_u32_u24 v{u+2}, 14, v{u+1}
            v_add_u32 v{u+2}, v{u+2}, v{u}
            v_lshl_add_u32 v{u+2}, v{u+2}, 12, v249
            v_cmp_gt_u32 vcc, s25, v{u}
            s_waitcnt lgkmcnt({rs[-1]-i})
            s_mov_b64 exec, vcc
            buffer_store_dwordx4 v[{t}:{t+3}], v{u+2}, s[60:63], 0 offen
            s_mov_b64 exec, -1
            """)
    e("""
    G1_QNEXT:
    s_add_u32 s13, s13, 1
    s_cmp_ge_u32 s13, s19
    s_cbranch_scc1 G1_QDONE
    s_barrier
    s_branch G1_QT
    G1_QDONE:
    """)
    if "NOPF2" not in FL:
        e("""
        s_cmp_lg_u32 s14, 7
        s_cbranch_scc1 G1_END
        s_load_dwordx2 s[4:5], s[0:1], 48
        s_load_dwordx2 s[6:7], s[0:1], 16
        s_load_dwordx2 s[8:9], s[0:1], 0
        s_lshr_b32 s59, s12, 5
        s_add_u32 s59, s59, s56        ; idx 0..63
        v_lshlrev_b32 v248, 7, v245
        s_waitcnt lgkmcnt(0)
        """)
        for (lo, nb, n) in ((6, D_*D_*2, 2), (8, S_*D_*2, 5)):
            srd(e, 44, lo, lo+1, nb)
            e(f"s_mul_i32 s58, s59, {n*8192}")
            for i in range(n):
                e(f"buffer_load_dword v{64+i}, v248, s[44:47], s58 offen")
                e("s_add_u32 s58, s58, 8192")
            e("s_waitcnt vmcnt(0)")
    e("s_branch G1_END")
    e("""
    G1_FFN:
    s_sub_u32 s13, s14, 8
    s_mul_i32 s13, s13, 3
    s_add_u32 s19, s13, 3
    s_mov_b32 s31, s13
    s_movk_i32 s16, 9216
    """)
    srd(e, 44, 6, 7, D_ * F_ * 2)
    srd(e, 48, 8, 9, D_ * F_ * 2)
    e("s_lshl_b32 s15, s31, 6")
    voffw()
    def cursor_next(tag):
        e(f"""
        s_add_u32 s31, s31, 1
        s_cmp_lt_u32 s31, s19
        s_cbranch_scc1 G1_CN{tag}
        s_mov_b32 s46, 0
        s_mov_b32 s50, 0
        G1_CN{tag}:
        s_lshl_b32 s15, s31, 6
        """)
        voffw()
    ops = []
    def iss(g):
        if g >= 27: return
        if g % 9 == 0 and g > 0: cursor_next(f"P{g}")
        dma(g % 9); ops.extend([("D", g)] * 2)
        if g < 9:
            for kk in range(4*g, 4*g+4): xload(kk)
            ops.extend([("X", g)] * 4)
    PRO = 2; LEAD0 = 3; S2F = 10
    for a_ in FL:
        if a_.startswith("PRO="): PRO = int(a_[4:])
        if a_.startswith("LEAD="): LEAD0 = int(a_[5:])
        if a_.startswith("S2F="): S2F = int(a_[4:])
    STAG = "STAG" in FL
    if not STAG:
        for g in range(PRO): iss(g)
    nxt = [PRO]
    def sync_g(tile):
        def sy(s_):
            sg = 9*tile + s_
            S2 = "SYNC2" in FL and sg >= S2F
            if S2 and (sg & 1): return
            need = min(26, sg + 2) if S2 else sg + 1
            last = max(i for i, o in enumerate(ops) if o[1] == need)
            e(f"s_waitcnt vmcnt({len(ops) - 1 - last})\ns_barrier")
            lead = LEAD0 if tile == 0 else 8
            for _ in range(4 if S2 else 2):
                if nxt[0] <= sg + lead:
                    iss(nxt[0]); nxt[0] += 1
        return sy
    def mk_sync(waits, tag):
        def sy(s_):
            if "NOWAIT" not in FL: e(f"s_waitcnt vmcnt({waits[s_+1]})")
            if "NOBAR" not in FL: e("s_barrier")
            if s_ == 1: cursor_next(tag)
            dma((s_ - 1) % 9)
        return sy
    first = [44, 40, 36, 32, 28, 24, 20, 12, 12]
    steady = [20, 20, 20, 20, 20, 20, 20, 12, 12]
    def ffn_epi(subs=(0, 1)):
        if "NOEPI1" in FL: return
        if 0 in subs: e(f"""
        s_lshr_b32 s59, s12, 5
        s_add_u32 s59, s59, s56
        s_mul_i32 s59, s59, 331776
        s_lshl_b32 s18, s13, 12
        s_add_u32 s59, s59, s18
        s_add_u32 s59, s59, {WS_H}
        v_lshl_add_u32 v251, v246, 4, s59
        v_lshl_add_u32 v251, v247, 3, v251
        s_mov_b32 s20, {hex(f2u(-LOG2E))}
        s_mov_b32 s21, s20
        s_mov_b32 s26, 1.0
        s_mov_b32 s27, 1.0
        """)
        cnt = 0
        for sub in subs:
            for q in range(4):
                t = T + 10 * (cnt % 3); cnt += 1
                g0 = 16*sub+4*q
                if "NOPK" in FL:
                    for j in range(4):
                        e(f"v_mul_f32 v{t+j}, s20, v{16*sub+4*q+j}")
                    for j in range(4):
                        e(f"v_exp_f32 v{t+j}, v{t+j}")
                    for j in range(4):
                        e(f"v_mul_f32 v{t+4+j}, v{16*sub+4*q+j}, v{32+16*sub+4*q+j}")
                    for j in range(4):
                        e(f"v_add_f32 v{t+j}, 1.0, v{t+j}")
                    for j in range(4):
                        e(f"v_rcp_f32 v{t+j}, v{t+j}")
                    e("s_nop 0")
                    for j in range(4):
                        e(f"v_mul_f32 v{t+4+j}, v{t+4+j}, v{t+j}")
                else:
                    for j in (0, 2):
                        e(f"v_pk_mul_f32 v[{t+j}:{t+j+1}], v[{g0+j}:{g0+j+1}], s[20:21]")
                    for j in range(4):
                        e(f"v_exp_f32 v{t+j}, v{t+j}")
                    for j in (0, 2):
                        e(f"v_pk_mul_f32 v[{t+4+j}:{t+5+j}], v[{g0+j}:{g0+j+1}], v[{32+g0+j}:{33+g0+j}]")
                    for j in (0, 2):
                        e(f"v_pk_add_f32 v[{t+j}:{t+j+1}], v[{t+j}:{t+j+1}], s[26:27]")
                    for j in range(4):
                        e(f"v_rcp_f32 v{t+j}, v{t+j}")
                    e("s_nop 0")
                    for j in (0, 2):
                        e(f"v_pk_mul_f32 v[{t+4+j}:{t+5+j}], v[{t+4+j}:{t+5+j}], v[{t+j}:{t+j+1}]")
                e(f"v_cvt_pk_bf16_f32 v{t+8}, v{t+4}, v{t+5}")
                e(f"v_cvt_pk_bf16_f32 v{t+9}, v{t+6}, v{t+7}")
                e(f"buffer_store_dwordx2 v[{t+8}:{t+9}], v251, s[60:63], 0 offen offset:{(2*sub+(q>>1))*1024 + (q&1)*512}")
    def stag_group(G, d):
        def items(off):
            it = {}
            k = off
            for t in range(3):
                for st in range(9): it[k] = ("S", 9*t + st); k += 1
                it[k] = ("E", t, 0); k += 1
                it[k] = ("E", t, 1); k += 1
            return it
        A = items(0); B = items(d); mine = A if G == 0 else B
        gops = []; gn = [PRO]
        def giss(g):
            if g >= 27: return
            if g % 9 == 0 and g > 0: cursor_next(f"G{G}_{g}")
            dma(g % 9); gops.extend([g] * 2)
            if g < 9:
                for kk in range(4*g, 4*g+4): xload(kk)
                gops.extend([g] * 4)
        def sync(k):
            a = A.get(k); b = B.get(k)
            need = None
            if k == -1: need = 0
            elif a is not None and a[0] == "S" and a[1] % 9 != 8: need = a[1] + 1
            elif a is not None and a[0] == "E" and a[2] == 1 and a[1] < 2: need = 9*a[1] + 9
            if need is not None:
                last = max(i for i, o in enumerate(gops) if o == need)
                e(f"s_waitcnt vmcnt({len(gops) - 1 - last})")
            e("s_barrier")
            if b is None: cons = -1
            elif b[0] == "S": cons = b[1] - 1
            else: cons = 9*b[1] + 8
            if a is None: sa = -1 if k < 0 else 99
            elif a[0] == "S": sa = a[1]
            else: sa = 9*a[1] + 8
            lim = cons + 9
            if sa < 9: lim = min(lim, sa + LEAD0)
            for _ in range(2):
                if gn[0] <= lim:
                    giss(gn[0]); gn[0] += 1
        for g in range(PRO): giss(g)
        sync(-1)
        for k in range(0, 33 + (d if G else 0)):
            it = mine.get(k)
            if it is None:
                sync(k); continue
            if it[0] == "S":
                g = it[1]; st = g % 9
                if st == 0: reads(0, 0)
                for ks in range(4):
                    if ks == 2: sync(k)
                    if ks < 3: reads(st, ks + 1)
                    elif st < 8: reads(st + 1, 0)
                    e("s_waitcnt lgkmcnt(8)" if (ks < 3 or st < 8) else "s_waitcnt lgkmcnt(0)")
                    mfmas(st, ks, False)
                if st == 8: e("s_nop 15")
            else:
                ffn_epi((it[2],)); gops.extend([-5] * 4)
                if it[2] == 1: e("s_add_u32 s13, s13, 1")
                if not (it[1] == 2 and it[2] == 1 and G == 1): sync(k)
        e("s_branch G1_END")
    if STAG:
        DD = 2
        for a_ in FL:
            if a_.startswith("DD="): DD = int(a_[3:])
        e("s_bitcmp1_b32 s56, 0\ns_cbranch_scc1 G1_GB" if "PAR" in FL else "s_cmp_ge_u32 s56, 4\ns_cbranch_scc1 G1_GB")
        stag_group(0, DD)
        e("G1_GB:")
        stag_group(1, DD)
    else:
      for tile in range(3):
        sync_g(tile)(-1)
        if "TS1" in sys.argv and tile == 0: e("s_memrealtime s[72:73]")
        body(False, sync_g(tile))
        if "TS1" in sys.argv and tile == 0: e("s_memrealtime s[74:75]")
        ffn_epi(); ops.extend([("S", -5)] * 8)
        if "TS1" in sys.argv and tile == 0: e("s_memrealtime s[76:77]")
        e("s_add_u32 s13, s13, 1")
    e("""
    G1_END:
    """)
    if "TS1" in sys.argv: e(f"""
        s_cmp_ge_u32 s2, 256
        s_cbranch_scc1 G1_END2
        s_waitcnt vmcnt(0)
        s_memrealtime s[78:79]
        s_memtime s[86:87]
        s_load_dwordx2 s[80:81], s[0:1], 72
        s_waitcnt lgkmcnt(0)
        s_add_u32 s80, s80, {60*MB}
        s_addc_u32 s81, s81, 0
        s_and_b32 s81, s81, 0xffff
        s_mov_b32 s82, 65536
        s_mov_b32 s83, 0x00020000
        v_mov_b32 v0, s70
        v_mov_b32 v1, s72
        v_mov_b32 v2, s74
        v_mov_b32 v3, s76
        v_mov_b32 v4, s78
        s_sub_u32 s86, s86, s84
        v_mov_b32 v5, s86
        v_mov_b32 v6, 0
        v_mov_b32 v7, 0
        s_lshl_b32 s3, s2, 5
        v_mov_b32 v8, s3
        buffer_store_dwordx4 v[0:3], v8, s[80:83], 0 offen
        buffer_store_dwordx4 v[4:7], v8, s[80:83], 0 offen offset:16
        G1_END2:
        """)
    e("s_endpgm")

WS_P = 48 * MB
NSPLIT = 5
def gen_gemm2(e):
    XR = 48; WF = 144
    header(e, "gemm2_kernel")
    e(f"""
    s_cmp_ge_u32 s2, 240
    s_cbranch_scc1 G2_END
    s_load_dwordx2 s[4:5], s[0:1], 16
    s_load_dwordx2 s[6:7], s[0:1], 48
    s_load_dwordx2 s[10:11], s[0:1], 72
    s_and_b32 s12, s2, 7
    s_lshr_b32 s13, s2, 3        ; r 0..29
    s_mul_i32 s28, s13, 43
    s_lshr_b32 s28, s28, 8       ; r/6
    s_mul_i32 s14, s28, 6
    s_sub_u32 s13, s13, s14      ; n tile
    s_mul_i32 s12, s12, 5
    s_add_u32 s12, s12, s28      ; pair 0..39
    s_lshr_b32 s28, s12, 3       ; split
    s_and_b32 s12, s12, 7        ; m tile
    s_lshl_b32 s29, s28, 4
    s_add_u32 s29, s29, 1
    s_mov_b32 s30, 16
    s_cmp_lg_u32 s28, 0
    s_cbranch_scc1 G2_SP
    s_mov_b32 s29, 0
    s_mov_b32 s30, 17
    G2_SP:
    v_and_b32 v170, 63, v0
    v_lshrrev_b32 v171, 6, v0
    s_nop 0
    v_readfirstlane_b32 s56, v171
    s_waitcnt lgkmcnt(0)
    s_add_u32 s40, s10, {WS_H}
    s_addc_u32 s41, s11, 0
    s_and_b32 s41, s41, 0xffff
    s_mov_b32 s42, {64*331776}
    s_mov_b32 s43, 0x00020000
    s_mov_b32 s44, s6
    s_and_b32 s45, s7, 0xffff
    s_mov_b32 s46, {F_*D_*2}
    s_mov_b32 s47, 0x00020000
    s_mov_b32 s49, {D_*D_*2}
    s_lshl_b32 s55, s56, 11      ; m0 base within stage buf
    s_cmp_lt_u32 s56, 6
    s_cbranch_scc1 G2_W6
    s_mov_b32 s46, 0
    s_mov_b32 s49, 0
    G2_W6:
    ; X voffset
    s_lshl_b32 s59, s12, 3
    s_add_u32 s59, s59, s56
    s_mul_i32 s58, s59, 331776
    v_lshl_add_u32 v172, v170, 4, s58
    s_lshl_b32 s52, s29, 12      ; X soffset (stage*4096)
    ; W voffset: c = w/2 ; krow = (w&1)*32 + lane/4
    s_and_b32 s58, s56, 1
    s_lshl_b32 s58, s58, 5
    v_lshrrev_b32 v171, 2, v170
    v_add_u32 v171, s58, v171
    v_mul_u32_u24 v171, 1152, v171
    v_and_b32 v173, 3, v170
    v_lshl_add_u32 v171, v173, 4, v171
    s_lshr_b32 s58, s56, 1
    s_lshl_b32 s58, s58, 6
    s_mul_i32 s57, s13, 192
    s_add_u32 s58, s58, s57
    v_add_u32 v174, s58, v171
    v_add_u32 v175, {16*1152}, v174
    s_mul_i32 s53, s29, {64*1152}
    """ + ("""
    s_lshl_b32 s58, s56, 11
    s_mul_i32 s57, s13, 12288
    s_add_u32 s58, s58, s57
    v_lshl_add_u32 v174, v170, 4, s58
    v_add_u32 v175, 1024, v174
    """ if "WLIN" in sys.argv else "") + f"""
    ; tr read addr
    v_lshrrev_b32 v171, 5, v170
    v_bfe_u32 v173, v170, 2, 2
    v_lshl_add_u32 v171, v171, 3, v173
    v_lshlrev_b32 v171, 6, v171
    v_bfe_u32 v173, v170, 4, 1
    v_lshl_add_u32 v171, v173, 5, v171
    v_and_b32 v173, 3, v170
    v_lshl_add_u32 v176, v173, 3, v171
    v_add_u32 v177, 36864, v176
    """)
    for i in range(48): e(f"v_mov_b32 v{i}, 0")
    lab = [0]
    def dma(slot):
        lab[0] += 1
        e(f"""
        s_cmp_lg_u32 s29, 72
        s_cbranch_scc1 G2_NS{lab[0]}
        s_mov_b32 s44, s4
        s_and_b32 s45, s5, 0xffff
        s_mov_b32 s46, s49
        s_mov_b32 s53, 0
        G2_NS{lab[0]}:
        """)
        e(f"s_add_u32 m0, s54, {slot*12288}" if False else f"s_add_u32 m0, s55, {slot*12288}")
        e("s_nop 0")
        e(f"buffer_load_dwordx4 v174, s[44:47], s53 offen lds")
        e(f"s_add_u32 m0, s55, {slot*12288 + 1024}")
        e("s_nop 0")
        e(f"buffer_load_dwordx4 v175, s[44:47], s53 offen lds")
        if "WHOT" not in sys.argv: e(f"s_add_u32 s53, s53, {64*1152}")
        e("s_add_u32 s29, s29, 1")
    def xld(slot):
        for ks in range(4):
            if "NOX2" in sys.argv: continue
            r = XR + 16*slot + 4*ks
            e(f"buffer_load_dwordx4 v[{r}:{r+3}], v172, s[40:43], s52 offen offset:{ks*1024}")
        if "XHOT" not in sys.argv: e("s_add_u32 s52, s52, 4096")
    def reads(slot, ks):
        fs = WF + (ks & 1) * 12
        areg = 176 if slot < 3 else 177
        for c in range(3):
            for h2 in range(2):
                e(f"ds_read_b64_tr_b16 v[{fs+4*c+2*h2}:{fs+4*c+2*h2+1}], v{areg} offset:{(slot%3)*12288 + c*4096 + ks*1024 + h2*256}")
    e("""
    s_cmp_lt_u32 s56, 6
    s_cbranch_scc1 G2_PRO
    s_branch G2_PROB
    G2_PRO:
    """)
    def full(dummy):
        def dm(slot):
            if "NODMA2" in sys.argv: return
            if dummy:
                lab[0] += 1
                e("s_mov_b32 m0, 73728\ns_nop 0")
                e("buffer_load_dwordx4 v174, s[44:47], s53 offen lds")
                e("buffer_load_dwordx4 v175, s[44:47], s53 offen lds")
            else:
                dma(slot)
        tg = "B" if dummy else "A"
        xld(0)
        for v in range(5):
            dm(v); xld(v + 1)
        nd = 0 if "NODMA2" in sys.argv else 2; nx = 0 if "NOX2" in sys.argv else 4
        e(f"s_waitcnt vmcnt({nx+4*(nd+nx)})\ns_barrier")
        reads(0, 0)
        e(f"G2_LOOP{tg}:")
        for u in range(6):
            e(f"s_waitcnt vmcnt({5*(nd+nx)})")
            for ks in range(4):
                if ks == 2:
                    e(f"s_waitcnt vmcnt({nx+3*(nd+nx)})" + ("" if "NOBAR2" in sys.argv else "\ns_barrier"))
                    dm((u + 5) % 6)
                if ks < 3: reads(u, ks + 1)
                else: reads((u + 1) % 6, 0)
                e("s_waitcnt lgkmcnt(6)")
                fs = WF + (ks & 1) * 12
                xr = XR + 16*u + 4*ks
                for c in range(3):
                    if "NOMF2" not in sys.argv: e(f"v_mfma_f32_32x32x16_bf16 v[{16*c}:{16*c+15}], v[{fs+4*c}:{fs+4*c+3}], v[{xr}:{xr+3}], v[{16*c}:{16*c+15}]")
            xld(u)
            e("s_sub_u32 s30, s30, 1\ns_cmp_eq_u32 s30, 0")
            e("s_cbranch_scc1 G2_EPI")
        e(f"s_branch G2_LOOP{tg}")
    full(False)
    e("G2_PROB:")
    full(True)
    e(f"""
    G2_EPI:
    s_waitcnt vmcnt(0) lgkmcnt(0)
    s_nop 15
    s_mul_i32 s29, s28, {S_*D_*2}
    s_add_u32 s29, s29, {WS_P}
    s_add_u32 s60, s10, s29
    s_addc_u32 s61, s11, 0
    s_and_b32 s61, s61, 0xffff
    s_mov_b32 s62, {S_*D_*2}
    s_mov_b32 s63, 0x00020000
    s_lshl_b32 s59, s12, 3
    s_add_u32 s59, s59, s56
    s_mul_i32 s59, s59, 18
    s_mul_i32 s58, s13, 3
    s_add_u32 s59, s59, s58
    s_lshl_b32 s59, s59, 11
    v_lshl_add_u32 v171, v170, 4, s59
    """)
    for c in range(3):
        for hf in range(2):
            t = 48 + 4*(2*c+hf)
            for i in range(4):
                r = 16*c + 8*hf + 2*i
                e(f"v_cvt_pk_bf16_f32 v{t+i}, v{r}, v{r+1}")
            if "NOST2" not in sys.argv: e(f"s_mov_b32 s58, {c*2048}\nbuffer_store_dwordx4 v[{t}:{t+3}], v171, s[60:63], s58 offen offset:{hf*1024}")
    e("s_waitcnt vmcnt(0) lgkmcnt(0)\nG2_END:\ns_endpgm")

def ts_end(e, tag):
    if "TS" not in sys.argv: return
    e(f"""
    s_memrealtime s[72:73]
    s_memtime s[82:83]
    s_load_dwordx2 s[76:77], s[0:1], 72
    s_waitcnt lgkmcnt(0)
    s_add_u32 s76, s76, {60*MB}
    s_addc_u32 s77, s77, 0
    s_and_b32 s77, s77, 0xffff
    s_mov_b32 s78, 65536
    s_mov_b32 s79, 0x00020000
    v_mov_b32 v0, s70
    v_mov_b32 v1, s88
    v_mov_b32 v2, s90
    v_mov_b32 v3, s72
    v_mov_b32 v4, s74
    v_lshlrev_b32 v4, 5, v4
    buffer_store_dwordx4 v[0:3], v4, s[76:79], 0 offen
    s_sub_u32 s82, s82, s80
    v_mov_b32 v6, s82
    buffer_store_dword v6, v4, s[76:79], 0 offen offset:16
    s_waitcnt vmcnt(0)
    """)

def gen_gemm2h(e):
    XR = 48; WF = 96
    e("G2_START:")
    if "PG" in sys.argv: e("s_setprio 2")
    if "NOG2" in sys.argv: e("s_endpgm")
    e(f"""
    s_cmp_ge_u32 s2, 240
    s_cbranch_scc1 G2_END
    s_load_dwordx2 s[4:5], s[0:1], 16
    s_load_dwordx2 s[6:7], s[0:1], 48
    s_load_dwordx2 s[10:11], s[0:1], 72
    s_and_b32 s12, s2, 7
    s_lshr_b32 s13, s2, 3        ; r 0..29
    s_mul_i32 s28, s13, 43
    s_lshr_b32 s28, s28, 8       ; r/6
    s_mul_i32 s14, s28, 6
    s_sub_u32 s13, s13, s14      ; n tile
    s_mul_i32 s12, s12, 5
    s_add_u32 s12, s12, s28      ; pair 0..39
    s_lshr_b32 s28, s12, 3       ; split
    s_and_b32 s12, s12, 7        ; m tile
    s_mul_i32 s29, s28, 14
    s_min_u32 s30, s28, 2
    s_add_u32 s29, s29, s30
    s_cmp_lt_u32 s28, 2
    s_cselect_b32 s30, 15, 14
    v_and_b32 v120, 63, v0
    v_lshrrev_b32 v121, 6, v0
    s_nop 0
    v_readfirstlane_b32 s56, v121
    s_waitcnt lgkmcnt(0)
    s_add_u32 s40, s10, {WS_H}
    s_addc_u32 s41, s11, 0
    s_and_b32 s41, s41, 0xffff
    s_mov_b32 s42, {64*331776}
    s_mov_b32 s43, 0x00020000
    s_mov_b32 s44, s6
    s_and_b32 s45, s7, 0xffff
    s_mov_b32 s46, {F_*D_*2}
    s_mov_b32 s47, 0x00020000
    s_mov_b32 s49, {D_*D_*2}
    s_lshl_b32 s55, s56, 11      ; m0 base within stage buf
    s_cmp_lt_u32 s56, 6
    s_cbranch_scc1 G2_W6
    s_mov_b32 s46, 0
    s_mov_b32 s49, 0
    G2_W6:
    ; X voffset
    s_lshl_b32 s59, s12, 3
    s_add_u32 s59, s59, s56
    s_mul_i32 s58, s59, 331776
    v_lshl_add_u32 v122, v120, 4, s58
    s_lshl_b32 s52, s29, 12      ; X soffset (stage*4096)
    ; W voffset: c = w/2 ; krow = (w&1)*32 + lane/4
    s_and_b32 s58, s56, 1
    s_lshl_b32 s58, s58, 5
    v_lshrrev_b32 v121, 2, v120
    v_add_u32 v121, s58, v121
    v_mul_u32_u24 v121, 1152, v121
    v_and_b32 v123, 3, v120
    v_lshl_add_u32 v121, v123, 4, v121
    s_lshr_b32 s58, s56, 1
    s_lshl_b32 s58, s58, 6
    s_mul_i32 s57, s13, 192
    s_add_u32 s58, s58, s57
    v_add_u32 v124, s58, v121
    v_add_u32 v125, {16*1152}, v124
    s_mul_i32 s53, s29, {64*1152}
    """ + ("""
    s_lshl_b32 s58, s56, 11
    s_mul_i32 s57, s13, 12288
    s_add_u32 s58, s58, s57
    v_lshl_add_u32 v124, v120, 4, s58
    v_add_u32 v125, 1024, v124
    """ if "WLIN" in sys.argv else "") + f"""
    ; tr read addr
    v_lshrrev_b32 v121, 5, v120
    v_bfe_u32 v123, v120, 2, 2
    v_lshl_add_u32 v121, v121, 3, v123
    v_lshlrev_b32 v121, 6, v121
    v_bfe_u32 v123, v120, 4, 1
    v_lshl_add_u32 v121, v123, 5, v121
    v_and_b32 v123, 3, v120
    v_lshl_add_u32 v126, v123, 3, v121
    v_add_u32 v127, 36864, v126
    """)
    for i in range(48): e(f"v_mov_b32 v{i}, 0")
    lab = [0]
    def dma(slot):
        e(f"s_add_u32 m0, s54, {slot*12288}" if False else f"s_add_u32 m0, s55, {slot*12288}")
        e("s_nop 0")
        e(f"buffer_load_dwordx4 v124, s[44:47], s53 offen lds")
        e(f"s_add_u32 m0, s55, {slot*12288 + 1024}")
        e("s_nop 0")
        e(f"buffer_load_dwordx4 v125, s[44:47], s53 offen lds")
        if "WHOT" not in sys.argv: e(f"s_add_u32 s53, s53, {64*1152}")
        e("s_add_u32 s29, s29, 1")
    def xld(slot):
        for ks in range(4):
            if "NOX2" in sys.argv: continue
            r = XR + 16*slot + 4*ks
            e(f"buffer_load_dwordx4 v[{r}:{r+3}], v122, s[40:43], s52 offen offset:{ks*1024}")
        if "XHOT" not in sys.argv: e("s_add_u32 s52, s52, 4096")
    def reads(slot, ks):
        fs = WF + (ks & 1) * 12
        areg = 126 if slot < 3 else 127
        for c in range(3):
            for h2 in range(2):
                e(f"ds_read_b64_tr_b16 v[{fs+4*c+2*h2}:{fs+4*c+2*h2+1}], v{areg} offset:{(slot%3)*12288 + c*4096 + ks*1024 + h2*256}")
    e("""
    s_cmp_lt_u32 s56, 6
    s_cbranch_scc1 G2_PRO
    s_branch G2_PROB
    G2_PRO:
    """)
    def full(dummy):
        def dm(slot):
            if "NODMA2" in sys.argv: return
            if dummy:
                lab[0] += 1
                e("s_mov_b32 m0, 73728\ns_nop 0")
                e("buffer_load_dwordx4 v124, s[44:47], s53 offen lds")
                e("buffer_load_dwordx4 v125, s[44:47], s53 offen lds")
            else:
                dma(slot)
        tg = "B" if dummy else "A"
        if "G2T" in sys.argv:
            dm(0); dm(1); dm(2); xld(0)
            e("s_waitcnt vmcnt(8)")
            dm(3); xld(1); dm(4); xld(2)
        elif "G2U" in sys.argv:
            dm(0); dm(1); dm(2); xld(0); dm(3); xld(1)
            e("s_waitcnt vmcnt(14)")
            dm(4); xld(2)
        else:
            dm(0); dm(1); dm(2); xld(0); dm(3); xld(1); dm(4); xld(2)
        e("s_waitcnt vmcnt(18)\ns_barrier")
        if "TS" in sys.argv: e("s_memrealtime s[88:89]")
        reads(0, 0)
        e(f"G2_LOOP{tg}:")
        for u in range(6):
            e("s_waitcnt vmcnt(12)")
            for ks in range(4):
                if ks == 2:
                    e("s_waitcnt vmcnt(22)\ns_barrier")
                    dm((u + 5) % 6)
                if ks < 3: reads(u, ks + 1)
                else: reads((u + 1) % 6, 0)
                e("s_waitcnt lgkmcnt(6)")
                fs = WF + (ks & 1) * 12
                xr = XR + 16*(u%3) + 4*ks
                for c in range(3):
                    if "NOMF2" not in sys.argv: e(f"v_mfma_f32_32x32x16_bf16 v[{16*c}:{16*c+15}], v[{fs+4*c}:{fs+4*c+3}], v[{xr}:{xr+3}], v[{16*c}:{16*c+15}]")
            xld(u%3)
            e("s_sub_u32 s30, s30, 1\ns_cmp_eq_u32 s30, 0")
            e("s_cbranch_scc1 G2_EPI")
        e(f"s_branch G2_LOOP{tg}")
    full(False)
    e("G2_PROB:")
    full(True)
    e(f"""
    G2_EPI:
    """ + ("s_memrealtime s[90:91]\n" if "TS" in sys.argv else "") + ("s_setprio 3" if "PE" in sys.argv else "") + f"""
    s_waitcnt vmcnt(0) lgkmcnt(0)
    s_nop 15
    s_mul_i32 s29, s28, {S_*D_*2}
    s_add_u32 s29, s29, {WS_P}
    s_add_u32 s60, s10, s29
    s_addc_u32 s61, s11, 0
    s_and_b32 s61, s61, 0xffff
    s_mov_b32 s62, {S_*D_*2}
    s_mov_b32 s63, 0x00020000
    s_lshl_b32 s59, s12, 3
    s_add_u32 s59, s59, s56
    s_mul_i32 s59, s59, 18
    s_mul_i32 s58, s13, 3
    s_add_u32 s59, s59, s58
    s_lshl_b32 s59, s59, 11
    v_lshl_add_u32 v121, v120, 4, s59
    """)
    for c in range(3):
        for hf in range(2):
            t = 48 + 4*(2*c+hf)
            for i in range(4):
                r = 16*c + 8*hf + 2*i
                e(f"v_cvt_pk_bf16_f32 v{t+i}, v{r}, v{r+1}")
            if "NOST2" not in sys.argv: e(f"s_mov_b32 s58, {c*2048}\nbuffer_store_dwordx4 v[{t}:{t+3}], v121, s[60:63], s58 offen offset:{hf*1024} sc0 sc1")
    e(f"""
    s_waitcnt vmcnt(0) lgkmcnt(0)
    s_barrier
    s_cmp_lg_u32 s56, 0
    s_cbranch_scc1 G2_W
    s_mov_b32 s64, s10
    s_and_b32 s65, s11, 0xffff
    s_mov_b32 s66, {WS_SIZE}
    s_mov_b32 s67, 0x00020000
    s_mul_i32 s58, s12, 6
    s_add_u32 s58, s58, s13
    s_lshl_b32 s58, s58, 2
    s_add_u32 s58, s58, {WS_CNT}
    v_mov_b32 v122, s58
    v_mov_b32 v123, 1
    v_mov_b32 v124, 0
    s_mov_b64 exec, 1
    buffer_atomic_add v123, v122, s[64:67], 0 offen sc0 sc1
    s_waitcnt vmcnt(0)
    ds_write_b32 v124, v123
    s_mov_b64 exec, -1
    s_waitcnt lgkmcnt(0)
    G2_W:
    s_barrier
    v_mov_b32 v124, 0
    ds_read_b32 v123, v124
    s_waitcnt lgkmcnt(0)
    v_readfirstlane_b32 s58, v123
    s_mul_hi_u32 s59, s58, 0xcccccccd
    s_lshr_b32 s59, s59, 2
    s_mul_i32 s59, s59, 5
    s_sub_u32 s58, s58, s59
    s_cmp_lg_u32 s58, {NSPLIT-1}
    s_cbranch_scc1 G2_DONE
    s_add_u32 s60, s10, {WS_P}
    s_addc_u32 s61, s11, 0
    s_and_b32 s61, s61, 0xffff
    s_mov_b32 s62, {S_*D_*2*NSPLIT}
    v_add_u32 v122, 4096, v121
    """)
    for j in range(4):
        e(f"""
        s_add_u32 s28, s28, 1
        s_cmp_ge_u32 s28, {NSPLIT}
        s_cselect_b32 s28, 0, s28
        s_mul_i32 s{84+j}, s28, {S_*D_*2}
        """)
    def pld(idx):
        j, u = idx // 6, idx % 6
        r = 48 + 4*(idx % 16)
        e(f"buffer_load_dwordx4 v[{r}:{r+3}], v{121 + u//4}, s[60:63], s{84+j} offen offset:{(u%4)*1024} sc0 sc1")
    for idx in range(16): pld(idx)
    e("""
    v_lshrrev_b32 v124, 5, v120
    v_and_b32 v123, 31, v120
    v_lshlrev_b32 v124, 2, v124
    v_sub_u32 v123, v123, v124
    v_mov_b32 v124, 0x3f80
    v_mov_b32 v125, 0x3f800000
    """)
    for hf in range(2):
        for r in range(4):
            T = 16*hf + 8*(r//2) + 2*(r%2)
            e(f"v_cmp_eq_u32 vcc, {T}, v123")
            e(f"v_cndmask_b32 v{112+4*hf+r}, 0, v124, vcc")
            e(f"v_cmp_eq_u32 vcc, {T+1}, v123")
            e(f"v_cndmask_b32 v{112+4*hf+r}, v{112+4*hf+r}, v125, vcc")
    e("s_nop 1")
    for idx in range(24):
        u = idx % 6; c = u // 2; hf = u % 2
        r = 48 + 4*(idx % 16)
        e(f"s_waitcnt vmcnt({min(24, 16+idx) - idx - 1})")
        e(f"v_mfma_f32_32x32x16_bf16 v[{16*c}:{16*c+15}], v[{112+4*hf}:{115+4*hf}], v[{r}:{r+3}], v[{16*c}:{16*c+15}]")
        if idx + 16 < 24: pld(idx + 16)
    e("s_nop 15\ns_nop 3")
    for u in range(6):
        t = 48 + 4*u
        for i in range(4):
            e(f"v_cvt_pk_bf16_f32 v{t+i}, v{8*u+2*i}, v{8*u+2*i+1}")
        e(f"buffer_store_dwordx4 v[{t}:{t+3}], v{121 + u//4}, s[60:63], 0 offen offset:{(u%4)*1024}")
    e("G2_DONE:\ns_waitcnt vmcnt(0) lgkmcnt(0)")
    ts_end(e, "g")
    e("G2_END:\ns_endpgm")

def gen_fin(e):
    header(e, "fin_kernel")
    XO = 16; PR = 160; XR = 200; WF = 208
    e(f"""
    s_cmp_ge_u32 s2, 288
    s_cbranch_scc1 FN_END
    s_load_dwordx2 s[4:5], s[0:1], 0
    s_load_dwordx2 s[6:7], s[0:1], 56
    s_load_dwordx2 s[8:9], s[0:1], 16
    s_load_dwordx2 s[10:11], s[0:1], 72
    s_and_b32 s12, s2, 7
    s_lshr_b32 s13, s2, 3        ; j 0..35
    s_mul_i32 s14, s13, 57
    s_lshr_b32 s14, s14, 9       ; j/9
    s_mul_i32 s15, s14, 9
    s_sub_u32 s13, s13, s15      ; nt
    s_lshl_b32 s12, s12, 2
    s_add_u32 s12, s12, s14      ; mt
    v_and_b32 v230, 63, v0
    v_lshrrev_b32 v231, 6, v0
    s_nop 0
    v_readfirstlane_b32 s56, v231
    s_lshr_b32 s57, s56, 1       ; wm
    s_and_b32 s58, s56, 1        ; wn
    s_lshl_b32 s12, s12, 1
    s_add_u32 s12, s12, s57      ; rb
    s_lshl_b32 s14, s13, 1
    s_add_u32 s14, s14, s58      ; cb
    s_waitcnt lgkmcnt(0)
    s_add_u32 s40, s10, {WS_H}
    s_addc_u32 s41, s11, 0
    s_add_u32 s10, s10, {WS_P}
    s_addc_u32 s11, s11, 0
    """)
    srd(e, 40, 40, 41, 64*331776); srd(e, 44, 8, 9, D_*D_*2)
    srd(e, 16, 4, 5, S_*D_*2); srd(e, 20, 6, 7, S_*D_*2); srd(e, 24, 10, 11, S_*D_*2*NSPLIT)
    e(f"""
    v_lshrrev_b32 v231, 2, v230
    v_mul_u32_u24 v231, 1152, v231
    v_and_b32 v232, 3, v230
    v_lshl_add_u32 v231, v232, 4, v231
    s_lshl_b32 s15, s14, 6
    s_mul_i32 s59, s57, {288*1152}
    s_add_u32 s15, s15, s59
    v_add_u32 v231, s15, v231     ; W voffset
    s_mul_i32 s54, s58, 36864
    s_mul_i32 s59, s57, 18432
    s_add_u32 s54, s54, s59       ; m0 base
    s_mul_i32 s15, s12, 331776
    s_add_u32 s15, s15, {288*1024}
    v_lshl_add_u32 v232, v230, 4, s15   ; O voffset
    s_mov_b32 s53, 0
    """)
    for j in range(18):
        e(f"s_add_u32 m0, s54, {j*1024}\ns_nop 0")
        e("buffer_load_dwordx4 v231, s[44:47], s53 offen lds")
        e(f"s_add_u32 s53, s53, {16*1152}")
    for kk in range(36):
        if kk % 4 == 0: e(f"s_mov_b32 s52, {kk*1024}")
        e(f"buffer_load_dwordx4 v[{XO+4*kk}:{XO+4*kk+3}], v232, s[40:43], s52 offen offset:{(kk%4)*1024}")
    e(f"""
    v_lshrrev_b32 v233, 5, v230
    v_bfe_u32 v234, v230, 2, 2
    v_lshl_add_u32 v233, v233, 3, v234
    v_lshlrev_b32 v233, 6, v233
    v_bfe_u32 v234, v230, 4, 1
    v_lshl_add_u32 v233, v234, 5, v233
    v_and_b32 v234, 3, v230
    v_lshl_add_u32 v233, v234, 3, v233
    s_mul_i32 s59, s58, 36864
    v_add_u32 v233, s59, v233
    s_mul_i32 s15, s12, 18
    s_add_u32 s15, s15, s14
    s_lshl_b32 s15, s15, 11
    v_lshl_add_u32 v234, v230, 4, s15  ; P offset
    v_and_b32 v235, 31, v230
    s_lshl_b32 s15, s12, 5
    v_add_u32 v235, s15, v235
    v_mul_u32_u24 v235, 1152, v235
    v_lshrrev_b32 v236, 5, v230
    v_lshl_add_u32 v235, v236, 5, v235
    s_lshl_b32 s15, s14, 6
    v_add_u32 v235, s15, v235
    """)
    for i in range(16): e(f"v_mov_b32 v{i}, 0")
    def pl(i):
        e(f"s_mov_b32 s28, {(i//2)*S_*D_*2}")
        e(f"buffer_load_dwordx4 v[{PR+4*i}:{PR+4*i+3}], v234, s[24:27], s28 offen offset:{(i%2)*1024}")
    for i in range(8): pl(i)
    e("s_waitcnt vmcnt(44)\ns_barrier")
    for i in range(8, 2*NSPLIT): pl(i)
    e(f"buffer_load_dwordx4 v[{XR}:{XR+3}], v235, s[16:19], 0 offen")
    e(f"buffer_load_dwordx4 v[{XR+4}:{XR+7}], v235, s[16:19], 0 offen offset:16")
    NL = 2*NSPLIT + 2
    def rd(kk):
        fs = WF + 4*(kk % 4)
        for h2 in range(2):
            e(f"ds_read_b64_tr_b16 v[{fs+2*h2}:{fs+2*h2+1}], v233 offset:{kk*1024 + h2*256}")
    for kk in range(3): rd(kk)
    for kk in range(36):
        if kk + 3 < 36: rd(kk + 3)
        n = min(3, 35 - kk)
        e(f"s_waitcnt vmcnt({35-kk+NL}) lgkmcnt({2*n})")
        fs = WF + 4*(kk % 4)
        e(f"v_mfma_f32_32x32x16_bf16 v[0:15], v[{fs}:{fs+3}], v[{XO+4*kk}:{XO+4*kk+3}], v[0:15]")
    e("s_nop 15\ns_nop 3")
    T = 16
    for i in range(NSPLIT):
        e(f"s_waitcnt vmcnt({NL-2*i-2})")
        for d in range(8):
            r = PR + 8*i + d
            e(f"v_lshlrev_b32 v{T}, 16, v{r}")
            e(f"v_and_b32 v{T+1}, 0xffff0000, v{r}")
            e(f"v_add_f32 v{2*d}, v{2*d}, v{T}")
            e(f"v_add_f32 v{2*d+1}, v{2*d+1}, v{T+1}")
    e("s_nop 1")
    for j in range(8):
        e(f"v_permlane32_swap_b32 v{j}, v{8+j}")
    e("s_nop 1\ns_waitcnt vmcnt(0)")
    order = [0,1,2,3,8,9,10,11,4,5,6,7,12,13,14,15]
    for j in range(8):
        a, b_ = order[2*j], order[2*j+1]
        e(f"v_lshlrev_b32 v{T}, 16, v{XR+j}")
        e(f"v_and_b32 v{T+1}, 0xffff0000, v{XR+j}")
        e(f"v_add_f32 v{a}, v{a}, v{T}")
        e(f"v_add_f32 v{b_}, v{b_}, v{T+1}")
        e(f"v_cvt_pk_bf16_f32 v{XR+j}, v{a}, v{b_}")
    e(f"buffer_store_dwordx4 v[{XR}:{XR+3}], v235, s[20:23], 0 offen")
    e(f"buffer_store_dwordx4 v[{XR+4}:{XR+7}], v235, s[20:23], 0 offen offset:16")
    e("FN_END:\ns_endpgm")

def gen_fin2(e):
    header(e, "fin_kernel")
    NP = 1
    XO = 48; PR = 120; XR = 180; WF = 192; M = 230
    if "TSF" in sys.argv: e("s_memrealtime s[70:71]")
    e(f"""
    s_cmp_ge_u32 s2, 192
    s_cbranch_scc1 FN_END
    s_load_dwordx2 s[4:5], s[0:1], 0
    s_load_dwordx2 s[6:7], s[0:1], 56
    s_load_dwordx2 s[8:9], s[0:1], 16
    s_load_dwordx2 s[10:11], s[0:1], 72
    s_and_b32 s12, s2, 7
    s_lshr_b32 s13, s2, 3        ; j 0..23
    s_mul_i32 s14, s13, 43
    s_lshr_b32 s14, s14, 8       ; j/6
    s_mul_i32 s15, s14, 6
    s_sub_u32 s13, s13, s15      ; nt
    s_lshl_b32 s12, s12, 2
    s_add_u32 s12, s12, s14      ; mt
    v_and_b32 v{M}, 63, v0
    v_lshrrev_b32 v{M+1}, 6, v0
    s_nop 0
    v_readfirstlane_b32 s56, v{M+1}
    s_lshr_b32 s57, s56, 1       ; wm
    s_and_b32 s58, s56, 1        ; kh
    s_lshl_b32 s12, s12, 1
    s_add_u32 s12, s12, s57      ; rb
    s_waitcnt lgkmcnt(0)
    s_add_u32 s40, s10, {WS_H}
    s_addc_u32 s41, s11, 0
    s_add_u32 s10, s10, {WS_P}
    s_addc_u32 s11, s11, 0
    """)
    srd(e, 40, 40, 41, 64*331776); srd(e, 44, 8, 9, D_*D_*2)
    srd(e, 16, 4, 5, S_*D_*2); srd(e, 20, 6, 7, S_*D_*2); srd(e, 24, 10, 11, S_*D_*2*NP)
    e(f"""
    v_lshrrev_b32 v{M+1}, 2, v{M}
    v_mul_u32_u24 v{M+1}, 1152, v{M+1}
    v_and_b32 v{M+2}, 3, v{M}
    v_lshl_add_u32 v{M+1}, v{M+2}, 4, v{M+1}
    s_mul_i32 s15, s13, 192
    s_mul_i32 s59, s56, {9*18432}
    s_add_u32 s15, s15, s59
    v_add_u32 v{M+1}, s15, v{M+1}     ; W voffset
    s_mul_i32 s54, s56, 9216          ; m0 base
    s_mul_i32 s15, s12, 331776
    s_mul_i32 s59, s58, 18432
    s_add_u32 s15, s15, s59
    s_add_u32 s15, s15, {288*1024}
    v_lshl_add_u32 v{M+2}, v{M}, 4, s15   ; O voffset
    s_mov_b32 s53, 0
    """)
    for i in range(9):
        for c in range(3):
            e(f"s_add_u32 m0, s54, {c*36864 + i*1024 - c*64}\ns_nop 0")
            e(f"buffer_load_dwordx4 v{M+1}, s[44:47], s53 offen offset:{c*64} lds")
        e(f"s_add_u32 s53, s53, {16*1152}")
    for kk in range(18):
        if kk % 4 == 0: e(f"s_mov_b32 s52, {kk*1024}")
        e(f"buffer_load_dwordx4 v[{XO+4*kk}:{XO+4*kk+3}], v{M+2}, s[40:43], s52 offen offset:{(kk%4)*1024}")
    e(f"""
    s_mul_i32 s15, s12, 18
    s_mul_i32 s59, s13, 3
    s_add_u32 s15, s15, s59
    s_lshl_b32 s15, s15, 11
    s_mul_i32 s59, s58, 3072
    s_add_u32 s15, s15, s59
    v_lshl_add_u32 v{M+4}, v{M}, 4, s15  ; P offset
    """)
    for i in range(NP):
        e(f"s_mov_b32 s28, {i*S_*D_*2}")
        for j in range(3):
            r = PR + 12*i + 4*j
            e(f"buffer_load_dwordx4 v[{r}:{r+3}], v{M+4}, s[24:27], s28 offen offset:{j*1024}")
    e(f"""
    v_and_b32 v{M+5}, 31, v{M}
    s_lshl_b32 s15, s12, 5
    v_add_u32 v{M+5}, s15, v{M+5}
    v_mul_u32_u24 v{M+5}, 1152, v{M+5}
    v_lshrrev_b32 v{M+6}, 5, v{M}
    v_lshl_add_u32 v{M+5}, v{M+6}, 4, v{M+5}
    s_mul_i32 s15, s13, 192
    s_mul_i32 s59, s58, 96
    s_add_u32 s15, s15, s59
    v_add_u32 v{M+5}, s15, v{M+5}
    """)
    for j in range(3):
        e(f"buffer_load_dwordx4 v[{XR+4*j}:{XR+4*j+3}], v{M+5}, s[16:19], 0 offen offset:{j*32}")
    e(f"""
    v_lshrrev_b32 v{M+7}, 5, v{M}
    v_bfe_u32 v{M+8}, v{M}, 2, 2
    v_lshl_add_u32 v{M+7}, v{M+7}, 3, v{M+8}
    v_lshlrev_b32 v{M+7}, 6, v{M+7}
    v_bfe_u32 v{M+8}, v{M}, 4, 1
    v_lshl_add_u32 v{M+7}, v{M+8}, 5, v{M+7}
    v_and_b32 v{M+8}, 3, v{M}
    v_lshl_add_u32 v{M+7}, v{M+8}, 3, v{M+7}
    s_mul_i32 s59, s58, 18432
    v_add_u32 v{M+7}, s59, v{M+7}
    v_add_u32 v{M+8}, 36864, v{M+7}
    v_add_u32 v{M+9}, {2*36864}, v{M+7}
    s_mul_i32 s59, s56, 6144
    s_add_u32 s59, s59, 110592
    v_lshl_add_u32 v{M+10}, v{M}, 4, s59
    v_xor_b32 v{M+11}, 0, v{M+10}
    s_xor_b32 s60, s56, 1
    s_mul_i32 s60, s60, 6144
    s_add_u32 s60, s60, 110592
    v_lshl_add_u32 v{M+11}, v{M}, 4, s60
    """)
    for i in range(48): e(f"v_mov_b32 v{i}, 0")
    NL = 3*NP + 3
    e(f"s_waitcnt vmcnt({18+NL})\ns_barrier")
    if "TSF" in sys.argv: e("s_memrealtime s[72:73]")
    def rd(i):
        for c in range(3):
            fs = WF + 12*(i % 3) + 4*c
            for h2 in range(2):
                e(f"ds_read_b64_tr_b16 v[{fs+2*h2}:{fs+2*h2+1}], v{M+7+c} offset:{i*1024 + h2*256}")
    rd(0); rd(1)
    for i in range(18):
        if i + 2 < 18: rd(i + 2)
        n = min(2, 17 - i)
        e(f"s_waitcnt vmcnt({17-i+NL}) lgkmcnt({6*n})")
        for c in range(3):
            fs = WF + 12*(i % 3) + 4*c
            e(f"v_mfma_f32_32x32x16_bf16 v[{16*c}:{16*c+15}], v[{fs}:{fs+3}], v[{XO+4*i}:{XO+4*i+3}], v[{16*c}:{16*c+15}]")
    e("s_nop 15\ns_nop 3")
    if "TSF" in sys.argv: e("s_memrealtime s[74:75]")
    e("s_cmp_lg_u32 s58, 0\ns_cbranch_scc1 FN_K1")
    T = WF
    for kh in range(2):
        if kh: e("FN_K1:")
        own = 24*kh; oth = 24*(1-kh)
        for j in range(6):
            e(f"ds_write_b128 v{M+10}, v[{oth+4*j}:{oth+4*j+3}] offset:{j*1024}")
        e("s_waitcnt lgkmcnt(0)\ns_barrier")
        for j in range(6):
            e(f"ds_read_b128 v[{XO+4*j}:{XO+4*j+3}], v{M+11} offset:{j*1024}")
        for i in range(NP):
            e(f"s_waitcnt vmcnt({NL-3*i-3})")
            for d in range(12):
                r = PR + 12*i + d
                e(f"v_lshlrev_b32 v{T}, 16, v{r}")
                e(f"v_and_b32 v{T+1}, 0xffff0000, v{r}")
                e(f"v_add_f32 v{own+2*d}, v{own+2*d}, v{T}")
                e(f"v_add_f32 v{own+2*d+1}, v{own+2*d+1}, v{T+1}")
        e("s_waitcnt lgkmcnt(0)")
        for i in range(24):
            e(f"v_add_f32 v{own+i}, v{own+i}, v{XO+i}")
        e("s_nop 1")
        for j in range(3):
            for i in range(4):
                e(f"v_permlane32_swap_b32 v{own+8*j+i}, v{own+8*j+4+i}")
        e("s_nop 1\ns_waitcnt vmcnt(0)")
        for j in range(3):
            for d in range(4):
                a = own + 8*j + 2*d
                e(f"v_lshlrev_b32 v{T}, 16, v{XR+4*j+d}")
                e(f"v_and_b32 v{T+1}, 0xffff0000, v{XR+4*j+d}")
                e(f"v_add_f32 v{a}, v{a}, v{T}")
                e(f"v_add_f32 v{a+1}, v{a+1}, v{T+1}")
                e(f"v_cvt_pk_bf16_f32 v{XR+4*j+d}, v{a}, v{a+1}")
            e(f"buffer_store_dwordx4 v[{XR+4*j}:{XR+4*j+3}], v{M+5}, s[20:23], 0 offen offset:{j*32}")
        if "TSF" in sys.argv: e(f"""
        s_waitcnt vmcnt(0)
        s_memrealtime s[76:77]
        s_load_dwordx2 s[80:81], s[0:1], 72
        s_waitcnt lgkmcnt(0)
        s_add_u32 s80, s80, {60*MB}
        s_addc_u32 s81, s81, 0
        s_and_b32 s81, s81, 0xffff
        s_mov_b32 s82, 65536
        s_mov_b32 s83, 0x00020000
        v_mov_b32 v0, s70
        v_mov_b32 v1, s72
        v_mov_b32 v2, s74
        v_mov_b32 v3, s76
        s_lshl_b32 s3, s2, 2
        s_add_u32 s3, s3, s56
        s_lshl_b32 s3, s3, 4
        v_mov_b32 v4, s3
        buffer_store_dwordx4 v[0:3], v4, s[80:83], 0 offen
        """)
        e("s_endpgm")
    e("FN_END:\ns_endpgm")

def gen_red(e):
    header(e, "red_kernel")
    e(f"""
    s_cmp_ge_u32 s2, 288
    s_cbranch_scc1 RD_END
    s_load_dwordx2 s[4:5], s[0:1], 0
    s_load_dwordx2 s[6:7], s[0:1], 56
    s_load_dwordx2 s[10:11], s[0:1], 72
    s_lshl_b32 s3, s2, 8
    v_add_u32 v1, s3, v0
    v_lshrrev_b32 v2, 6, v1        ; blk
    v_bfe_u32 v3, v1, 1, 5         ; row
    v_and_b32 v4, 1, v1            ; half
    v_lshlrev_b32 v5, 11, v2
    v_lshl_add_u32 v5, v4, 10, v5
    v_lshl_add_u32 v5, v3, 4, v5   ; P offset
    s_mov_b32 s21, 3641
    v_mul_u32_u24 v6, s21, v2
    v_lshrrev_b32 v6, 16, v6       ; mb
    v_mul_u32_u24 v7, 18, v6
    v_sub_u32 v7, v2, v7           ; nb
    v_lshl_add_u32 v6, v6, 5, v3
    v_mul_u32_u24 v6, 1152, v6
    v_lshl_add_u32 v6, v7, 6, v6
    v_lshl_add_u32 v6, v4, 5, v6
    s_waitcnt lgkmcnt(0)
    s_add_u32 s10, s10, {WS_P}
    s_addc_u32 s11, s11, 0
    """)
    srd(e, 12, 4, 5, S_*D_*2); srd(e, 16, 6, 7, S_*D_*2); srd(e, 20, 10, 11, S_*D_*2*NSPLIT)
    e("buffer_load_dwordx4 v[8:11], v6, s[12:15], 0 offen")
    e("buffer_load_dwordx4 v[12:15], v6, s[12:15], 0 offen offset:16")
    for i in range(NSPLIT):
        e(f"s_mov_b32 s24, {i*S_*D_*2}")
        e(f"buffer_load_dwordx4 v[{16+8*i}:{19+8*i}], v5, s[20:23], s24 offen")
        e(f"buffer_load_dwordx4 v[{20+8*i}:{23+8*i}], v5, s[20:23], s24 offen offset:512")
    e(f"s_waitcnt vmcnt({2*NSPLIT})")
    A = 16 + 8*NSPLIT
    for j in range(8):
        e(f"v_lshlrev_b32 v{A+2*j}, 16, v{8+j}\nv_and_b32 v{A+2*j+1}, 0xffff0000, v{8+j}")
    T = A + 16
    for i in range(NSPLIT):
        e(f"s_waitcnt vmcnt({2*(NSPLIT-1-i)})")
        for h in range(2):
            for d in range(4):
                n = 8*(d>>1) + 4*h + 2*(d&1)
                r = 16 + 8*i + 4*h + d
                e(f"v_lshlrev_b32 v{T}, 16, v{r}")
                e(f"v_and_b32 v{T+1}, 0xffff0000, v{r}")
                e(f"v_add_f32 v{A+n}, v{A+n}, v{T}")
                e(f"v_add_f32 v{A+n+1}, v{A+n+1}, v{T+1}")
    for j in range(8):
        e(f"v_cvt_pk_bf16_f32 v{8+j}, v{A+2*j}, v{A+2*j+1}")
    e("buffer_store_dwordx4 v[8:11], v6, s[16:19], 0 offen")
    e("buffer_store_dwordx4 v[12:15], v6, s[16:19], 0 offen offset:16")
    e("RD_END:\ns_endpgm")

def gen_attn(e):
    header(e, "attn_kernel")
    KA = 112; VA = 114; DM = 122
    e(f"""
    s_cmp_ge_u32 s2, 256
    s_cbranch_scc1 AT_END
    s_load_dwordx2 s[10:11], s[0:1], 72
    s_and_b32 s4, s2, 7
    s_lshl_b32 s4, s4, 2
    s_bfe_u32 s5, s2, 0x20003
    s_add_u32 s4, s4, s5          ; head
    s_lshr_b32 s5, s2, 5          ; qblock
    v_and_b32 v127, 63, v0
    v_lshrrev_b32 v16, 6, v0
    s_nop 0
    v_readfirstlane_b32 s56, v16
    v_and_b32 v17, 31, v127      ; l32
    v_lshrrev_b32 v18, 5, v127   ; h
    s_and_b32 s57, s56, 7        ; qt
    s_lshr_b32 s58, s56, 3       ; kh
    s_waitcnt lgkmcnt(0)
    """)
    srd(e, 40, 10, 11, WS_SIZE)
    e(f"""
    s_lshl_b32 s6, s4, 11
    s_lshl_b32 s7, s5, 8
    s_add_u32 s6, s6, s7
    s_lshl_b32 s7, s57, 5
    s_add_u32 s6, s6, s7
    v_add_u32 v19, s6, v17
    v_lshlrev_b32 v19, 6, v19
    v_lshl_add_u32 v19, v18, 4, v19
    v_add_u32 v19, {WS_QP}, v19
    buffer_load_dwordx4 v[64:67], v19, s[40:43], 0 offen
    buffer_load_dwordx4 v[68:71], v19, s[40:43], 0 offen offset:32
    s_lshl_b32 s7, s4, 17
    s_add_u32 s7, s7, {WS_KP}
    s_lshl_b32 s8, s56, 11
    s_add_u32 s7, s7, s8
    v_lshrrev_b32 v20, 2, v127
    v_lshlrev_b32 v20, 6, v20
    v_and_b32 v21, 3, v127
    v_bfe_u32 v22, v127, 4, 2
    v_xor_b32 v21, v21, v22
    v_lshl_add_u32 v20, v21, 4, v20
    v_add_u32 v{DM}, s7, v20
    v_add_u32 v{DM+1}, 1024, v{DM}
    s_lshl_b32 s7, s4, 17
    s_add_u32 s7, s7, {WS_VT}
    s_lshl_b32 s8, s56, 1
    """)
    for j in range(2):
        e(f"""
        s_add_u32 s9, s8, {j}
        s_and_b32 s12, s9, 15
        v_xor_b32 v22, s12, v127
        s_lshl_b32 s9, s9, 12
        s_add_u32 s9, s9, s7
        v_lshl_add_u32 v{DM+2+j}, v22, 4, s9
        """)
    e("""
    v_bfe_u32 v20, v127, 2, 2
    v_lshlrev_b32 v21, 6, v17
    s_lshl_b32 s9, s58, 14
    v_add_u32 v21, s9, v21
    """)
    for ks in range(2):
        e(f"v_or_b32 v22, {2*ks}, v18")
        e("v_xor_b32 v22, v22, v20")
        e(f"v_lshl_add_u32 v{KA+ks}, v22, 4, v21")
    e("v_and_b32 v20, 15, v127\nv_lshlrev_b32 v21, 10, v17\ns_lshl_b32 s9, s58, 9\ns_add_u32 s9, s9, 32768\nv_add_u32 v21, s9, v21")
    for c in range(8):
        e(f"v_or_b32 v22, {2*c}, v18")
        e("v_xor_b32 v22, v22, v20")
        e(f"v_lshl_add_u32 v{VA+c}, v22, 4, v21")
    def dma():
        for j in range(2):
            e(f"s_add_u32 m0, s54, {j*1024}\ns_nop 0")
            e(f"buffer_load_dwordx4 v{DM+j}, s[40:43], s52 offen lds")
        for j in range(2):
            e(f"s_add_u32 m0, s54, {32768 + j*1024}\ns_nop 0")
            e(f"buffer_load_dwordx4 v{DM+2+j}, s[40:43], s53 offen lds")
    KF = [72, 80]; VF = [88, 96]; SB = [16, 32]; P = 104
    def kread(tile):
        kf = KF[tile & 1]
        for ks in range(2):
            e(f"ds_read_b128 v[{kf+4*ks}:{kf+3+4*ks}], v{KA+ks} offset:{tile*2048}")
    def vread(tile):
        vf = VF[tile & 1]
        for c in range(2):
            cc = 2*tile + c
            e(f"ds_read_b128 v[{vf+4*c}:{vf+3+4*c}], v{VA + (cc&7)} offset:{(cc>>3)*256}")
    def smfma(tile):
        kf = KF[tile & 1]; S = SB[tile & 1]
        e(f"v_mfma_f32_32x32x16_bf16 v[{S}:{S+15}], v[{kf}:{kf+3}], v[64:67], v[48:63]")
        e(f"v_mfma_f32_32x32x16_bf16 v[{S}:{S+15}], v[{kf+4}:{kf+7}], v[68:71], v[{S}:{S+15}]")
    AR = [KA, KA+1] + list(range(VA, VA+8))
    def maxchain(S):
        e(f"v_max3_f32 v{P}, v{S}, v{S+1}, v{S+2}")
        for i in range(3, 15, 2):
            e(f"v_max3_f32 v{P}, v{P}, v{S+i}, v{S+i+1}")
        e(f"v_max_f32 v{P}, v{P}, v{S+15}")
    def mainloop(fast, tg):
        e("s_lshl_b32 s54, s56, 11\ns_mov_b32 s52, 0\ns_mov_b32 s53, 0")
        for i in range(16):
            e(f"v_mov_b32 v{i}, 0")
            e(f"v_mov_b32 v{48+i}, 0")
        e("v_mov_b32 v126, 0xff800000\ns_mov_b64 s[34:35], -1")
        dma()
        e(f"s_mov_b32 s30, 0\nAT_LOOP{tg}:")
        e("s_add_u32 s52, s52, 32768\ns_add_u32 s53, s53, 1024\ns_xor_b32 s54, s54, 0x10000")
        dma()
        e("s_waitcnt vmcnt(4)\ns_barrier")
        kread(0); kread(1); vread(0)
        e("s_waitcnt lgkmcnt(4)")
        smfma(0)
        e(f"s_nop 7\ns_mov_b32 s31, 0\nAT_IN{tg}:")
        for tile in range(4):
            S = SB[tile & 1]; vf = VF[tile & 1]
            e("s_waitcnt lgkmcnt(2)")
            smfma(tile + 1)
            kread(tile + 2)
            vread(tile + 1)
            if not fast:
                maxchain(S)
                e(f"v_cmp_lt_f32 vcc, 0x41000000, v{P}")
                e("s_or_b64 vcc, vcc, s[34:35]")
                e(f"s_cbranch_vccnz AT_SLOW{tg}{tile}")
            elif tile == 0:
                e("s_cmp_lg_u32 s34, 0")
                e(f"s_cbranch_scc1 AT_SLOW{tg}{tile}")
            e(f"AT_F{tg}{tile}:")
            for i in range(16):
                e(f"v_exp_f32 v{S+i}, v{S+i}")
            for i in range(8):
                e(f"v_cvt_pk_bf16_f32 v{P+i}, v{S+2*i}, v{S+1+2*i}")
            e("s_waitcnt lgkmcnt(4)\ns_nop 1")
            e(f"v_mfma_f32_32x32x16_bf16 v[0:15], v[{vf}:{vf+3}], v[{P}:{P+3}], v[0:15]")
            e(f"v_mfma_f32_32x32x16_bf16 v[0:15], v[{vf+4}:{vf+7}], v[{P+4}:{P+7}], v[0:15]")
        e(f"v_add_u32 v{KA}, 8192, v{KA}\nv_add_u32 v{KA+1}, 8192, v{KA+1}")
        for r in range(VA, VA+8):
            e(f"v_add_u32 v{r}, 256, v{r}")
        e(f"s_add_u32 s31, s31, 1\ns_cmp_lt_u32 s31, 2\ns_cbranch_scc1 AT_IN{tg}")
        e(f"v_subrev_u32 v{KA}, 16384, v{KA}\nv_subrev_u32 v{KA+1}, 16384, v{KA+1}")
        for r in range(VA, VA+8):
            e(f"v_subrev_u32 v{r}, 512, v{r}")
        for r in AR:
            e(f"v_xor_b32 v{r}, 0x10000, v{r}")
        e("s_waitcnt lgkmcnt(0)\ns_barrier")
        e(f"s_add_u32 s30, s30, 1\ns_cmp_lt_u32 s30, 4\ns_cbranch_scc1 AT_LOOP{tg}")
        e(f"s_branch AT_FIN{tg}")
        for tile in range(4 if not fast else 1):
            S = SB[tile & 1]; S2 = SB[(tile & 1) ^ 1]
            e(f"AT_SLOW{tg}{tile}:")
            if fast: maxchain(S)
            e(f"v_mov_b32 v{P+1}, v{P}\ns_nop 1")
            e(f"v_permlane32_swap_b32 v{P}, v{P+1}")
            e("s_nop 1")
            e(f"v_max3_f32 v{P}, v{P}, v{P+1}, v126")
            e("v_mov_b32 v126, 0\ns_mov_b64 s[34:35], 0")
            e(f"v_exp_f32 v{P+1}, -v{P}")
            e("s_nop 7\ns_nop 7")
            for i in range(16):
                e(f"v_sub_f32 v{S+i}, v{S+i}, v{P}")
                e(f"v_sub_f32 v{48+i}, v{48+i}, v{P}")
                e(f"v_mul_f32 v{i}, v{i}, v{P+1}")
                e(f"v_sub_f32 v{S2+i}, v{S2+i}, v{P}")
            e(f"s_branch AT_F{tg}{tile}")
        e(f"AT_FIN{tg}:\ns_waitcnt vmcnt(0)\ns_nop 15")
    mainloop(True, "A")
    e("""
    s_barrier
    v_mov_b32 v16, 0x71800000
    v_cmp_nlt_f32 vcc, v10, v16
    s_cmp_lg_u64 vcc, 0
    s_cselect_b32 s6, 1, 0
    v_mov_b32 v16, s6
    s_lshl_b32 s6, s56, 2
    s_add_u32 s6, s6, 65536
    v_mov_b32 v17, s6
    ds_write_b32 v17, v16
    v_and_b32 v17, 15, v127
    v_lshlrev_b32 v17, 2, v17
    v_add_u32 v17, 65536, v17
    s_waitcnt lgkmcnt(0)
    s_barrier
    ds_read_b32 v16, v17
    s_waitcnt lgkmcnt(0)
    v_cmp_ne_u32 vcc, 0, v16
    s_cbranch_vccz AT_MERGE
    s_barrier
    """)
    mainloop(False, "B")
    e("AT_MERGE:")
    e("""
    s_lshl_b32 s6, s57, 6
    v_add_u32 v16, s6, v127
    v_lshlrev_b32 v16, 6, v16
    s_barrier
    s_cmp_eq_u32 s58, 0
    s_cbranch_scc1 AT_MRG
    ds_write_b128 v16, v[0:3]
    ds_write_b128 v16, v[4:7] offset:16
    ds_write_b128 v16, v[8:11] offset:32
    ds_write_b32 v16, v48 offset:48
    s_waitcnt lgkmcnt(0)
    s_barrier
    s_branch AT_END
    AT_MRG:
    s_barrier
    ds_read_b128 v[20:23], v16
    ds_read_b128 v[24:27], v16 offset:16
    ds_read_b128 v[28:31], v16 offset:32
    ds_read_b32 v32, v16 offset:48
    s_waitcnt lgkmcnt(0)
    v_min_f32 v33, v48, v32
    v_sub_f32 v34, v33, v48
    v_sub_f32 v35, v33, v32
    v_exp_f32 v34, v34
    v_exp_f32 v35, v35
    s_nop 1
    """)
    for i in range(12):
        e(f"v_mul_f32 v{i}, v{i}, v34")
        e(f"v_fmac_f32 v{i}, v{20+i}, v35")
    e(f"""
    v_and_b32 v17, 31, v127
    v_lshrrev_b32 v18, 5, v127
    v_rcp_f32 v33, v10
    s_lshl_b32 s6, s5, 8
    s_lshl_b32 s7, s57, 5
    s_add_u32 s6, s6, s7
    s_lshr_b32 s6, s6, 5
    s_mul_i32 s6, s6, 331776
    s_add_u32 s6, s6, {WS_H}
    v_lshl_add_u32 v19, v17, 4, s6
    s_mul_i32 s8, s4, 18
    s_add_u32 s8, s8, 4608
    v_lshl_add_u32 v41, v18, 2, s8
    """)
    for i in range(10):
        e(f"v_mul_f32 v{i}, v{i}, v33")
    def oaddr(dst, c):
        e(f"v_add_u32 v{dst}, {c}, v41")
        e(f"v_lshrrev_b32 v46, 3, v{dst}")
        e(f"v_and_b32 v{dst}, 7, v{dst}")
        e(f"v_lshl_add_u32 v{dst}, v{dst}, 1, v19")
        e(f"v_lshl_add_u32 v{dst}, v46, 9, v{dst}")
    for q in range(2):
        e(f"v_cvt_pk_bf16_f32 v{36+2*q}, v{4*q}, v{4*q+1}")
        e(f"v_cvt_pk_bf16_f32 v{37+2*q}, v{4*q+2}, v{4*q+3}")
        oaddr(42+2*q, 8*q); oaddr(43+2*q, 8*q+2)
        e(f"buffer_store_dword v{36+2*q}, v{42+2*q}, s[40:43], 0 offen")
        e(f"buffer_store_dword v{37+2*q}, v{43+2*q}, s[40:43], 0 offen")
    oaddr(47, 16)
    e("""
    v_cvt_pk_bf16_f32 v40, v8, v9
    v_cmp_eq_u32 vcc, 0, v18
    s_and_saveexec_b64 s[24:25], vcc
    s_cbranch_execz AT_SK
    buffer_store_dword v40, v47, s[40:43], 0 offen
    AT_SK:
    s_or_b64 exec, exec, s[24:25]
    AT_END:
    s_endpgm
    """)

def gen_attn8(e, standalone=True):
    if standalone: header(e, "attn_kernel")
    KA = 112; VA = 114; DM = 122
    e(f"""
    s_cmp_ge_u32 s2, 256
    s_cbranch_scc1 AT_END
    s_load_dwordx2 s[10:11], s[0:1], 72
    s_and_b32 s4, s2, 7
    s_lshl_b32 s4, s4, 2
    s_bfe_u32 s5, s2, 0x20003
    s_add_u32 s4, s4, s5          ; head
    s_lshr_b32 s5, s2, 5          ; qblock
    v_and_b32 v127, 63, v0
    v_lshrrev_b32 v16, 6, v0
    s_nop 0
    v_readfirstlane_b32 s56, v16
    v_and_b32 v17, 31, v127      ; l32
    v_lshrrev_b32 v18, 5, v127   ; h
    s_mov_b32 s57, s56           ; qt
    s_waitcnt lgkmcnt(0)
    """)
    srd(e, 40, 10, 11, WS_SIZE)
    e(f"""
    s_lshl_b32 s6, s4, 11
    s_lshl_b32 s7, s5, 8
    s_add_u32 s6, s6, s7
    s_lshl_b32 s7, s57, 5
    s_add_u32 s6, s6, s7
    v_add_u32 v19, s6, v17
    v_lshlrev_b32 v19, 6, v19
    v_lshl_add_u32 v19, v18, 4, v19
    v_add_u32 v19, {WS_QP}, v19
    buffer_load_dwordx4 v[64:67], v19, s[40:43], 0 offen
    buffer_load_dwordx4 v[68:71], v19, s[40:43], 0 offen offset:32
    s_lshl_b32 s7, s4, 17
    s_add_u32 s7, s7, {WS_KP}
    s_lshl_b32 s8, s56, 11
    s_add_u32 s7, s7, s8
    v_lshrrev_b32 v20, 2, v127
    v_lshlrev_b32 v20, 6, v20
    v_and_b32 v21, 3, v127
    v_bfe_u32 v22, v127, 4, 2
    v_xor_b32 v21, v21, v22
    v_lshl_add_u32 v20, v21, 4, v20
    v_add_u32 v{DM}, s7, v20
    v_add_u32 v{DM+1}, 1024, v{DM}
    s_lshl_b32 s7, s4, 17
    s_add_u32 s7, s7, {WS_VT}
    s_lshl_b32 s8, s56, 2
    v_and_b32 v23, 31, v127
    """)
    for j in range(2):
        e(f"""
        s_add_u32 s9, s8, {2*j}
        v_add_u32 v20, s9, v18
        v_and_b32 v21, 15, v20
        v_xor_b32 v21, v21, v23
        v_lshlrev_b32 v20, 12, v20
        v_lshl_add_u32 v20, v21, 4, v20
        v_add_u32 v{DM+2+j}, s7, v20
        """)
    e("""
    v_bfe_u32 v20, v127, 2, 2
    v_lshlrev_b32 v21, 6, v17
    """)
    for ks in range(2):
        e(f"v_or_b32 v22, {2*ks}, v18")
        e("v_xor_b32 v22, v22, v20")
        e(f"v_lshl_add_u32 v{KA+ks}, v22, 4, v21")
    e("v_and_b32 v20, 15, v127\nv_lshlrev_b32 v21, 9, v17\nv_add_u32 v21, 16384, v21")
    for c in range(8):
        e(f"v_or_b32 v22, {2*c}, v18")
        e("v_xor_b32 v22, v22, v20")
        e(f"v_lshl_add_u32 v{VA+c}, v22, 4, v21")
    def dma():
        for j in range(2):
            e(f"s_add_u32 m0, s54, {j*1024}\ns_nop 0")
            e(f"buffer_load_dwordx4 v{DM+j}, s[40:43], s52 offen lds")
        for j in range(2):
            e(f"s_add_u32 m0, s54, {16384 + j*1024}\ns_nop 0")
            e(f"buffer_load_dwordx4 v{DM+2+j}, s[40:43], s53 offen lds")
    KF = [72, 80]; VF = [88, 96]; SB = [16, 32]; P = 104
    def kread(tile):
        kf = KF[tile & 1]
        for ks in range(2):
            e(f"ds_read_b128 v[{kf+4*ks}:{kf+3+4*ks}], v{KA+ks} offset:{tile*2048}")
    def vread(tile):
        vf = VF[tile & 1]
        for c in range(2):
            cc = 2*tile + c
            e(f"ds_read_b128 v[{vf+4*c}:{vf+3+4*c}], v{VA + (cc&7)} offset:{(cc>>3)*256}")
    def smfma(tile):
        kf = KF[tile & 1]; S = SB[tile & 1]
        e(f"v_mfma_f32_32x32x16_bf16 v[{S}:{S+15}], v[{kf}:{kf+3}], v[64:67], v[48:63]")
        e(f"v_mfma_f32_32x32x16_bf16 v[{S}:{S+15}], v[{kf+4}:{kf+7}], v[68:71], v[{S}:{S+15}]")
    AR = [KA, KA+1] + list(range(VA, VA+8))
    def maxchain(S):
        e(f"v_max3_f32 v{P}, v{S}, v{S+1}, v{S+2}")
        for i in range(3, 15, 2):
            e(f"v_max3_f32 v{P}, v{P}, v{S+i}, v{S+i+1}")
        e(f"v_max_f32 v{P}, v{P}, v{S+15}")
    def mainloop(fast, tg):
        e("s_lshl_b32 s54, s56, 11\ns_mov_b32 s52, 0\ns_mov_b32 s53, 0")
        for i in range(16):
            e(f"v_mov_b32 v{i}, 0")
            e(f"v_mov_b32 v{48+i}, 0")
        e("v_mov_b32 v126, 0xff800000\ns_mov_b64 s[34:35], -1")
        dma()
        e(f"s_mov_b32 s30, 0\nAT_LOOP{tg}:")
        e("s_add_u32 s52, s52, 16384\ns_add_u32 s53, s53, 512\ns_xor_b32 s54, s54, 0x8000")
        dma()
        e("s_waitcnt vmcnt(4)\ns_barrier")
        if "TS" in sys.argv: e(f"s_cmp_lg_u32 s30, 0\ns_cbranch_scc1 AT_TS{tg}\ns_memrealtime s[88:89]\nAT_TS{tg}:\ns_cmp_lg_u32 s30, 4\ns_cbranch_scc1 AT_TU{tg}\ns_memrealtime s[90:91]\nAT_TU{tg}:")
        kread(0); kread(1); vread(0)
        e("s_waitcnt lgkmcnt(4)")
        smfma(0)
        e(f"s_nop 7\ns_mov_b32 s31, 0\nAT_IN{tg}:")
        for tile in range(4):
            S = SB[tile & 1]; vf = VF[tile & 1]
            e("s_waitcnt lgkmcnt(2)")
            smfma(tile + 1)
            kread(tile + 2)
            vread(tile + 1)
            if not fast:
                maxchain(S)
                e(f"v_cmp_lt_f32 vcc, 0x41000000, v{P}")
                e("s_or_b64 vcc, vcc, s[34:35]")
                e(f"s_cbranch_vccnz AT_SLOW{tg}{tile}")
            elif tile == 0:
                e("s_cmp_lg_u32 s34, 0")
                e(f"s_cbranch_scc1 AT_SLOW{tg}{tile}")
            e(f"AT_F{tg}{tile}:")
            for i in range(16):
                e(f"v_exp_f32 v{S+i}, v{S+i}")
            for i in range(8):
                e(f"v_cvt_pk_bf16_f32 v{P+i}, v{S+2*i}, v{S+1+2*i}")
            e("s_waitcnt lgkmcnt(4)\ns_nop 1")
            e(f"v_mfma_f32_32x32x16_bf16 v[0:15], v[{vf}:{vf+3}], v[{P}:{P+3}], v[0:15]")
            e(f"v_mfma_f32_32x32x16_bf16 v[0:15], v[{vf+4}:{vf+7}], v[{P+4}:{P+7}], v[0:15]")
        e(f"v_add_u32 v{KA}, 8192, v{KA}\nv_add_u32 v{KA+1}, 8192, v{KA+1}")
        for r in range(VA, VA+8):
            e(f"v_add_u32 v{r}, 256, v{r}")
        e(f"s_add_u32 s31, s31, 1\ns_cmp_lt_u32 s31, 2\ns_cbranch_scc1 AT_IN{tg}")
        e(f"v_subrev_u32 v{KA}, 16384, v{KA}\nv_subrev_u32 v{KA+1}, 16384, v{KA+1}")
        for r in range(VA, VA+8):
            e(f"v_subrev_u32 v{r}, 512, v{r}")
        for r in AR:
            e(f"v_xor_b32 v{r}, 0x8000, v{r}")
        e("s_waitcnt lgkmcnt(0)\ns_barrier")
        e(f"s_add_u32 s30, s30, 1\ns_cmp_lt_u32 s30, 8\ns_cbranch_scc1 AT_LOOP{tg}")
        e(f"s_branch AT_FIN{tg}")
        for tile in range(4 if not fast else 1):
            S = SB[tile & 1]; S2 = SB[(tile & 1) ^ 1]
            e(f"AT_SLOW{tg}{tile}:")
            if fast: maxchain(S)
            e(f"v_mov_b32 v{P+1}, v{P}\ns_nop 1")
            e(f"v_permlane32_swap_b32 v{P}, v{P+1}")
            e("s_nop 1")
            e(f"v_max3_f32 v{P}, v{P}, v{P+1}, v126")
            e("v_mov_b32 v126, 0\ns_mov_b64 s[34:35], 0")
            e(f"v_exp_f32 v{P+1}, -v{P}")
            e("s_nop 7\ns_nop 7")
            for i in range(16):
                e(f"v_sub_f32 v{S+i}, v{S+i}, v{P}")
                e(f"v_sub_f32 v{48+i}, v{48+i}, v{P}")
                e(f"v_mul_f32 v{i}, v{i}, v{P+1}")
                e(f"v_sub_f32 v{S2+i}, v{S2+i}, v{P}")
            e(f"s_branch AT_F{tg}{tile}")
        e(f"AT_FIN{tg}:\ns_waitcnt vmcnt(0)\ns_nop 15")
    mainloop(True, "A")
    e("""
    s_barrier
    v_mov_b32 v16, 0x71800000
    v_cmp_nlt_f32 vcc, v10, v16
    s_cmp_lg_u64 vcc, 0
    s_cselect_b32 s6, 1, 0
    v_mov_b32 v16, s6
    s_lshl_b32 s6, s56, 2
    s_add_u32 s6, s6, 65536
    v_mov_b32 v17, s6
    ds_write_b32 v17, v16
    v_and_b32 v17, 7, v127
    v_lshlrev_b32 v17, 2, v17
    v_add_u32 v17, 65536, v17
    s_waitcnt lgkmcnt(0)
    s_barrier
    ds_read_b32 v16, v17
    s_waitcnt lgkmcnt(0)
    v_cmp_ne_u32 vcc, 0, v16
    s_cbranch_vccz AT_MERGE
    s_barrier
    """)
    mainloop(False, "B")
    e("AT_MERGE:")
    e(f"""
    v_and_b32 v17, 31, v127
    v_lshrrev_b32 v18, 5, v127
    v_rcp_f32 v33, v10
    s_lshl_b32 s6, s5, 8
    s_lshl_b32 s7, s57, 5
    s_add_u32 s6, s6, s7
    s_lshr_b32 s6, s6, 5
    s_mul_i32 s6, s6, 331776
    s_add_u32 s6, s6, {WS_H}
    v_lshl_add_u32 v19, v17, 4, s6
    s_mul_i32 s8, s4, 18
    s_add_u32 s8, s8, 4608
    v_lshl_add_u32 v41, v18, 2, s8
    """)
    for i in range(10):
        e(f"v_mul_f32 v{i}, v{i}, v33")
    def oaddr(dst, c):
        e(f"v_add_u32 v{dst}, {c}, v41")
        e(f"v_lshrrev_b32 v46, 3, v{dst}")
        e(f"v_and_b32 v{dst}, 7, v{dst}")
        e(f"v_lshl_add_u32 v{dst}, v{dst}, 1, v19")
        e(f"v_lshl_add_u32 v{dst}, v46, 9, v{dst}")
    for q in range(2):
        e(f"v_cvt_pk_bf16_f32 v{36+2*q}, v{4*q}, v{4*q+1}")
        e(f"v_cvt_pk_bf16_f32 v{37+2*q}, v{4*q+2}, v{4*q+3}")
        oaddr(42+2*q, 8*q); oaddr(43+2*q, 8*q+2)
        e(f"buffer_store_dword v{36+2*q}, v{42+2*q}, s[40:43], 0 offen")
        e(f"buffer_store_dword v{37+2*q}, v{43+2*q}, s[40:43], 0 offen")
    oaddr(47, 16)
    e("""
    v_cvt_pk_bf16_f32 v40, v8, v9
    v_cmp_eq_u32 vcc, 0, v18
    s_and_saveexec_b64 s[24:25], vcc
    s_cbranch_execz AT_SK
    buffer_store_dword v40, v47, s[40:43], 0 offen
    AT_SK:
    s_or_b64 exec, exec, s[24:25]
    s_waitcnt vmcnt(0)
    """)
    ts_end(e, "a")
    e("AT_END:\ns_endpgm")

def main():
    e = E()
    hdr = open("parallel_sum__mha_block__glu_gated_swiglu__prompt.s.ref").read().split("; Override")[0]
    txt = hdr
    txt += "; @launch kernel=ln_kernel grid=(704,1,1) block=(256,1,1) lds=0\n"
    txt += f"; @launch kernel=gemm1_kernel grid=(256,1,1) block=(512,1,1) lds=163840\n"
    txt += "; @launch kernel=attn_kernel grid=(512,1,1) block=(512,1,1) lds=77824\n"
    txt += "; @launch kernel=fin_kernel grid=(192,1,1) block=(256,1,1) lds=135168\n"
    txt += '.amdgcn_target "amdgcn-amd-amdhsa--gfx950"\n.text\n'
    gen_ln(e); gen_gemm1(e)
    header(e, "attn_kernel")
    if "TS" in sys.argv: e("s_memrealtime s[70:71]\ns_memtime s[80:81]\ns_mov_b32 s74, s2")
    if "MAPB" in sys.argv:
        e("""
        s_bfe_u32 s3, s2, 0x10003
        s_and_b32 s4, s2, 7
        s_lshr_b32 s2, s2, 4
        s_lshl_b32 s2, s2, 3
        s_or_b32 s2, s2, s4
        s_cmp_lg_u32 s3, 0
        s_cbranch_scc1 G2_START
        """)
    elif "MAPC" in sys.argv:
        e("""
        s_cmp_lt_u32 s2, 256
        s_cbranch_scc1 G2_START
        s_sub_u32 s2, s2, 256
        """)
    else:
        e("""
        s_cmp_lt_u32 s2, 256
        s_cbranch_scc1 AT_START
        s_sub_u32 s2, s2, 256
        s_branch G2_START
        AT_START:
        """)
    if "PA" in sys.argv: e("s_setprio 2")
    if "NOAT" in sys.argv: e("s_endpgm")
    gen_attn8(e, False); gen_gemm2h(e); gen_fin2(e)
    txt += e.text()
    txt += kd("ln_kernel", 80) + kd("gemm1_kernel", 256) + kd("attn_kernel", 128) + kd("fin_kernel", 244)
    open(OUT, "w").write(txt)
    print("wrote", len(txt))
main()
```

```python
import sys
OUT = "parallel_sum__mha_block__glu_gated_swiglu__prompt.s" if len(sys.argv)<2 else "var_"+sys.argv[1]+".s"

MB = 1 << 20
WS_XN = 0
WS_QP = 4 * MB
WS_KP = 8 * MB
WS_VT = 12 * MB
WS_H = 16 * MB
WS_O = 40 * MB
WS_SIZE = 268435456
WS_CNT = 47 * MB

S_, D_, F_, H_ = 2048, 576, 4608, 32
LOG2E = 1.4426950408889634
QSCALE = LOG2E * (18 ** -0.5)

import struct
def f2u(x):
    return struct.unpack("<I", struct.pack("<f", x))[0]

class E:
    def __init__(self):
        self.l = []
    def __call__(self, s):
        for ln in s.strip("\n").split("\n"):
            self.l.append("  " + ln.strip() if not ln.strip().endswith(":") else ln.strip())
    def text(self):
        return "\n".join(self.l) + "\n"

def srd(e, d, base_lo, base_hi, nbytes):
    e(f"s_mov_b32 s{d}, s{base_lo}")
    e(f"s_and_b32 s{d+1}, s{base_hi}, 0xffff")
    e(f"s_mov_b32 s{d+2}, {nbytes}")
    e(f"s_mov_b32 s{d+3}, 0x00020000")

def header(e, name):
    e(f".globl {name}\n.p2align 8\n.type {name},@function\n{name}:")

def kd(name, vgpr, sgpr=102):
    acc = (vgpr + 3) // 4 * 4
    return f""".section .rodata,"a"
.p2align 6
.amdhsa_kernel {name}
  .amdhsa_next_free_vgpr {vgpr}
  .amdhsa_next_free_sgpr {sgpr}
  .amdhsa_accum_offset {acc}
  .amdhsa_group_segment_fixed_size 0
  .amdhsa_kernarg_size 80
  .amdhsa_user_sgpr_count 2
  .amdhsa_user_sgpr_kernarg_segment_ptr 1
  .amdhsa_system_sgpr_workgroup_id_x 1
.end_amdhsa_kernel
"""

def gen_ln(e):
    header(e, "ln_kernel")
    PF = ((28, D_*F_*2), (30, D_*F_*2), (26, D_*1728*2))
    def prefetch():
        if "PF" not in sys.argv: return
        for n_, (lo, nb) in enumerate(PF):
            srd(e, 32, lo, lo+1, nb)
            e(f"buffer_load_dword v{71+n_}, v70, s[32:35], 0 offen")
    e("""
    s_cmp_ge_u32 s2, 704
    s_cbranch_scc1 LN_END
    s_load_dwordx2 s[4:5], s[0:1], 0
    s_load_dwordx2 s[6:7], s[0:1], 72
    s_load_dwordx2 s[26:27], s[0:1], 8
    s_load_dwordx2 s[28:29], s[0:1], 32
    s_load_dwordx2 s[30:31], s[0:1], 40
    s_lshl_b32 s3, s2, 8
    v_add_u32 v1, s3, v0
    v_lshlrev_b32 v70, 5, v1
    v_lshrrev_b32 v2, 5, v1
    v_and_b32 v3, 31, v1
    s_movk_i32 s20, 1152
    v_mul_lo_u32 v4, v2, s20
    v_lshl_add_u32 v4, v3, 2, v4
    s_waitcnt lgkmcnt(0)
    """)
    srd(e, 12, 6, 7, WS_SIZE)
    e("s_cmp_lt_u32 s2, 256\ns_cbranch_scc1 LN_MAIN")
    e(f"""
    s_cmp_lg_u32 s2, 256
    s_cbranch_scc1 LN_NZ
    v_lshlrev_b32 v60, 2, v0
    v_add_u32 v60, {WS_CNT}, v60
    v_mov_b32 v61, 0
    buffer_store_dword v61, v60, s[12:15], 0 offen
    LN_NZ:
    """)
    prefetch()
    magic = -(-(1 << 32) // 3584)
    e(f"""
    v_subrev_u32 v30, 65536, v1
    s_mov_b32 s21, {magic}
    v_mul_hi_u32 v31, v30, s21
    s_movk_i32 s21, 3584
    v_mul_lo_u32 v32, v31, s21
    v_sub_u32 v32, v30, v32
    v_lshrrev_b32 v33, 8, v32
    v_and_b32 v34, 255, v32
    v_add_u32 v33, 18, v33
    v_lshl_add_u32 v35, v31, 5, v33
    v_lshlrev_b32 v35, 12, v35
    v_lshl_add_u32 v35, v34, 4, v35
    v_add_u32 v35, {WS_VT}, v35
    v_cmp_eq_u32 vcc, 18, v33
    v_cmp_eq_u32 s[22:23], 22, v33
    s_or_b64 vcc, vcc, s[22:23]
    v_mov_b32 v36, 0x3f803f80
    s_nop 1
    v_cndmask_b32 v44, 0, v36, vcc
    v_mov_b32 v45, v44
    v_mov_b32 v46, v44
    v_mov_b32 v47, v44
    v_cmp_gt_u32 vcc, 114688, v30
    s_and_saveexec_b64 s[24:25], vcc
    s_cbranch_execz LN_END
    buffer_store_dwordx4 v[44:47], v35, s[12:15], 0 offen
    s_branch LN_END
    LN_MAIN:
    """)
    srd(e, 8, 4, 5, S_ * D_ * 2)
    for i in range(9):
        e(f"buffer_load_dword v{10+i}, v4, s[8:11], 0 offen offset:{128*i}")
    prefetch()
    e(f"s_waitcnt vmcnt({0 if 'PF' not in sys.argv else len(PF)})")
    for i in range(9):
        e(f"v_lshlrev_b32 v{50+2*i}, 16, v{10+i}")
        e(f"v_and_b32 v{51+2*i}, 0xffff0000, v{10+i}")
    e("v_add_f32 v20, v50, v51")
    for i in range(2, 18):
        e(f"v_add_f32 v20, v20, v{50+i}")
    def red(v):
        for x in (1, 2, 4, 8, 16):
            e(f"ds_swizzle_b32 v21, v{v} offset:{(x<<10)|0x1f}")
            e("s_waitcnt lgkmcnt(0)")
            e(f"v_add_f32 v{v}, v{v}, v21")
    red(20)
    e(f"v_mul_f32 v20, {hex(f2u(1.0/576))}, v20")
    for i in range(18):
        e(f"v_sub_f32 v{50+i}, v{50+i}, v20")
    e("v_mul_f32 v22, v50, v50")
    for i in range(1, 18):
        e(f"v_fmac_f32 v22, v{50+i}, v{50+i}")
    red(22)
    e(f"v_mov_b32 v23, {hex(f2u(1e-5))}")
    e(f"v_fmac_f32 v23, {hex(f2u(1.0/576))}, v22")
    e("v_rsq_f32 v23, v23")
    e("s_nop 1")
    for i in range(18):
        e(f"v_mul_f32 v{50+i}, v{50+i}, v23")
    for i in range(9):
        e(f"v_cvt_pk_bf16_f32 v{10+i}, v{50+2*i}, v{51+2*i}")
    e("""
    v_lshrrev_b32 v5, 5, v2
    v_mul_u32_u24 v5, 36864, v5
    v_and_b32 v6, 31, v2
    v_lshl_add_u32 v5, v6, 4, v5
    v_lshrrev_b32 v6, 3, v3
    v_lshl_add_u32 v5, v6, 10, v5
    v_bfe_u32 v6, v3, 2, 1
    v_lshl_add_u32 v5, v6, 9, v5
    v_and_b32 v6, 3, v3
    v_lshl_add_u32 v5, v6, 2, v5
    """)
    for i in range(9):
        e(f"s_mov_b32 s20, {4096*i}")
        e(f"buffer_store_dword v{10+i}, v5, s[12:15], s20 offen")
    e("LN_END:\ns_endpgm")

ACC = 0
def acc(p, t):
    b = ACC + p * 32 + t * 16
    return f"v[{b}:{b+15}]"

def gemm_dma(e, buf):
    if "NODMA" in sys.argv: return
    sb = buf * 16384
    for i in range(2):
        e(f"s_add_u32 m0, s54, {sb + i*1024}")
        e("s_nop 0")
        e(f"buffer_load_dwordx4 v{96+i}, s[40:43], s52 offen lds")
    for p in range(2):
        e(f"s_add_u32 m0, s55, {sb + p*4096}")
        e("s_nop 0")
        e(f"buffer_load_dwordx4 v100, s[{44+4*p}:{47+4*p}], s53 offen lds")

def gemm_reads(e, buf, ks):
    fs = 64 + (ks & 1) * 16
    sb = buf * 16384
    for p in range(2):
        for h2 in range(2):
            e(f"ds_read_b64_tr_b16 v[{fs+4*p+2*h2}:{fs+4*p+2*h2+1}], v106 offset:{sb + p*4096 + ks*2048 + h2*512}")
    for t in range(2):
        e(f"ds_read_b128 v[{fs+8+4*t}:{fs+11+4*t}], v{102+ks} offset:{sb + t*2048}")

SWAP = [False]
def gemm_compute(e, buf):
    gemm_reads(e, buf, 0)
    for ks in range(2):
        if ks < 1:
            gemm_reads(e, buf, ks + 1)
            e("s_waitcnt lgkmcnt(6)")
        else:
            e("s_waitcnt lgkmcnt(0)")
        fs = 64 + (ks & 1) * 16
        for p in range(2):
            for t in range(2):
                wfr = f"v[{fs+4*p}:{fs+4*p+3}]"; xfr = f"v[{fs+8+4*t}:{fs+11+4*t}]"
                if SWAP[0]: wfr, xfr = xfr, wfr
                if "NOMF" not in sys.argv: e(f"v_mfma_f32_32x32x16_bf16 {acc(p,t)}, {wfr}, {xfr}, {acc(p,t)}")

def gemm_setup_common(e, m0_sreg):
    e("""
    v_and_b32 v107, 63, v0
    v_lshrrev_b32 v108, 6, v0
    s_nop 0
    v_readfirstlane_b32 s56, v108
    """)
    for i in range(64):
        e(f"v_mov_b32 v{i}, 0")
    e("""
    s_lshr_b32 s57, s56, 1
    s_and_b32 s58, s56, 1
    v_and_b32 v108, 31, v107
    v_lshrrev_b32 v109, 5, v107
    v_bfe_u32 v110, v107, 2, 2
    s_lshl_b32 s59, s57, 12
    v_lshlrev_b32 v111, 6, v108
    v_add_u32 v111, s59, v111
    """)
    for ks in range(2):
        e(f"v_or_b32 v112, {2*ks}, v109")
        e("v_xor_b32 v112, v112, v110")
        e(f"v_lshl_add_u32 v{102+ks}, v112, 4, v111")
    e("""
    v_bfe_u32 v108, v107, 2, 2
    v_lshl_add_u32 v108, v109, 3, v108
    v_lshlrev_b32 v108, 7, v108
    v_bfe_u32 v110, v107, 3, 1
    v_xor_b32 v110, s58, v110
    v_lshl_add_u32 v108, v110, 6, v108
    v_bfe_u32 v110, v107, 4, 1
    v_lshl_add_u32 v108, v110, 5, v108
    v_and_b32 v110, 3, v107
    v_lshl_add_u32 v108, v110, 3, v108
    v_add_u32 v106, 8192, v108
    s_lshl_b32 s54, s56, 11
    s_lshl_b32 s55, s56, 10
    s_add_u32 s55, s55, 8192
    """)

def gemm_setup_x(e, m0_sreg, stride_sreg):
    e(f"""
    s_lshl_b32 s59, s56, 5
    s_add_u32 s59, s59, s{m0_sreg}
    v_lshrrev_b32 v108, 2, v107
    v_add_u32 v108, s59, v108
    v_and_b32 v109, 3, v107
    v_bfe_u32 v110, v107, 4, 2
    v_xor_b32 v112, v109, v110
    """)
    for i in range(2):
        e(f"v_add_u32 v111, {16*i}, v108")
        e(f"v_mul_lo_u32 v111, v111, s{stride_sreg}")
        e(f"v_lshl_add_u32 v{96+i}, v112, 4, v111")

def gemm_setup_w(e, ncol_sreg, stride_sreg):
    e(f"""
    s_lshl_b32 s59, s56, 3
    v_lshrrev_b32 v108, 3, v107
    v_add_u32 v108, s59, v108
    v_and_b32 v109, 7, v107
    v_bfe_u32 v110, v107, 4, 1
    v_lshlrev_b32 v110, 2, v110
    v_xor_b32 v109, v109, v110
    v_lshlrev_b32 v109, 4, v109
    s_lshl_b32 s59, s{ncol_sreg}, 1
    v_add_u32 v109, s59, v109
    v_mul_lo_u32 v111, v108, s{stride_sreg}
    v_add_u32 v100, v111, v109
    """)

def gemm_stage(e, s, nst, adv):
    buf = s & 1
    if s + 1 < nst:
        adv(e)
        gemm_dma(e, buf ^ 1)
        e("s_waitcnt vmcnt(4)")
    else:
        e("s_waitcnt vmcnt(0)")
    e("s_barrier")
    gemm_compute(e, buf)
    e("s_barrier")

def gen_gemm1(e):
    XR = 64; WF = 208; T = WF
    FL = sys.argv
    header(e, "gemm1_kernel")
    if "TS1" in sys.argv: e("s_memrealtime s[70:71]")
    if "TS1" in sys.argv: e("s_memtime s[84:85]\ns_mov_b32 s72, 0\ns_mov_b32 s74, 0\ns_mov_b32 s76, 0\ns_mov_b32 s78, 0")
    e(f"""
    s_cmp_ge_u32 s2, 256
    s_cbranch_scc1 G1_END
    s_load_dwordx2 s[4:5], s[0:1], 8
    s_load_dwordx2 s[6:7], s[0:1], 32
    s_load_dwordx2 s[8:9], s[0:1], 40
    s_load_dwordx2 s[10:11], s[0:1], 72
    s_bfe_u32 s12, s2, 0x30003
    s_lshl_b32 s12, s12, 8
    s_lshr_b32 s13, s2, 6
    s_lshl_b32 s13, s13, 3
    s_and_b32 s14, s2, 7
    s_add_u32 s14, s13, s14      ; group 0..31
    v_and_b32 v245, 63, v0
    v_lshrrev_b32 v246, 6, v0
    s_nop 0
    v_readfirstlane_b32 s56, v246
    v_and_b32 v246, 31, v245
    v_lshrrev_b32 v247, 5, v245
    s_waitcnt lgkmcnt(0)
    """)
    srd(e, 40, 10, 11, S_ * D_ * 2)
    srd(e, 60, 10, 11, WS_SIZE)
    e("""
    v_bfe_u32 v248, v245, 2, 2
    v_lshl_add_u32 v248, v247, 3, v248
    v_lshlrev_b32 v248, 7, v248
    v_bfe_u32 v249, v245, 4, 1
    v_lshl_add_u32 v248, v249, 5, v248
    v_and_b32 v249, 3, v245
    v_lshl_add_u32 v248, v249, 3, v248
    v_bfe_u32 v249, v245, 3, 1
    v_lshl_add_u32 v242, v249, 6, v248
    v_xor_b32 v249, 1, v249
    v_lshl_add_u32 v243, v249, 6, v248
    v_add_u32 v252, 0x10000, v242
    v_add_u32 v253, 0x10000, v243
    v_add_u32 v254, 0x20000, v242
    v_add_u32 v255, 0x20000, v243
    s_lshl_b32 s55, s56, 10
    s_lshr_b32 s59, s12, 5
    s_add_u32 s59, s59, s56
    s_mul_i32 s59, s59, 36864
    v_lshl_add_u32 v244, v245, 4, s59
    """)
    def xload(kk):
        if "NOX1" in FL: return
        e(f"s_mov_b32 s59, {1024*kk}")
        e(f"buffer_load_dwordx4 v[{XR+4*kk}:{XR+4*kk+3}], v244, s[40:43], s59 offen")
    def voffw():
        e(f"""
        s_lshl_b32 s17, s16, 6
        s_lshl_b32 s59, s56, 3
        v_lshrrev_b32 v248, 3, v245
        v_add_u32 v248, s59, v248
        v_and_b32 v249, 7, v245
        v_bfe_u32 v250, v245, 4, 1
        v_lshlrev_b32 v250, 2, v250
        v_xor_b32 v249, v249, v250
        v_lshlrev_b32 v249, 4, v249
        s_lshl_b32 s59, s15, 1
        v_add_u32 v249, s59, v249
        v_mul_lo_u32 v250, v248, s16
        v_add_u32 v240, v250, v249
        s_mov_b32 s53, 0
        s_nop 4
        """)
    def dma(buf):
        for p in range(2):
            if "NODMA1" in FL: continue
            e(f"s_add_u32 m0, s55, {buf*16384 + p*8192}")
            e("s_nop 0")
            e(f"buffer_load_dwordx4 v240, s[{44+4*p}:{47+4*p}], s53 offen lds")
        e("s_add_u32 s53, s53, s17")
    def reads(buf, ks):
        fs = WF + (ks & 1) * 16
        for j in range(4):
            p, sub = j >> 1, j & 1
            if "HALFRD" in FL and sub: continue
            for h2 in range(2):
                areg = (242, 252, 254)[buf // 4] + sub
                e(f"ds_read_b64_tr_b16 v[{fs+4*j+2*h2}:{fs+4*j+2*h2+1}], v{areg} offset:{(buf%4)*16384 + p*8192 + ks*2048 + h2*512}")
    def mfmas(st, ks, swap):
        if "NOMF1" in FL: return
        fs = WF + (ks & 1) * 16
        kk = 4 * st + ks
        for j in range(4):
            wfr = f"v[{fs+4*j}:{fs+4*j+3}]"; xfr = f"v[{XR+4*kk}:{XR+4*kk+3}]"
            if swap: wfr, xfr = xfr, wfr
            c = "0" if (st == 0 and ks == 0) else f"v[{16*j}:{16*j+15}]"
            e(f"v_mfma_f32_32x32x16_bf16 v[{16*j}:{16*j+15}], {wfr}, {xfr}, {c}")
    def body(swap, sync):
        reads(0, 0)
        for st in range(9):
            for ks in range(4):
                if ks == 2 and st < 8: sync(st)
                if ks < 3: reads(st, ks + 1)
                elif st < 8: reads(st + 1, 0)
                e(("s_waitcnt lgkmcnt(4)" if "HALFRD" in FL else "s_waitcnt lgkmcnt(8)") if (ks < 3 or st < 8) else "s_waitcnt lgkmcnt(0)")
                mfmas(st, ks, swap)
        e("s_barrier")
        e("s_nop 15")
    e("s_cmp_ge_u32 s14, 8\ns_cbranch_scc1 " + ("G1_END" if "NOF" in FL else "G1_FFN"))
    if "NOQ" in FL: e("s_branch G1_END")
    e("""
    s_lshl_b32 s13, s14, 1       ; tile
    s_add_u32 s19, s13, 2
    s_min_u32 s19, s19, 15
    s_mov_b32 s30, 0
    s_lshl_b32 s57, s56, 14
    """)
    srd(e, 44, 4, 5, D_ * 1728 * 2)
    e(f"""
    s_add_u32 s48, s4, 128
    s_addc_u32 s49, s5, 0
    s_and_b32 s49, s49, 0xffff
    s_mov_b32 s50, {D_*1728*2-128}
    s_mov_b32 s51, 0x00020000
    G1_QT:
    s_mul_i32 s22, s13, 13
    s_lshr_b32 s22, s22, 6       ; mat
    s_mul_i32 s23, s22, 5
    s_sub_u32 s23, s13, s23      ; t'
    s_mul_i32 s15, s22, 576
    s_mul_i32 s59, s23, 126
    s_add_u32 s15, s15, s59      ; col0
    s_mul_i32 s24, s23, 7        ; head0
    s_movk_i32 s16, 3456
    """)
    voffw()
    qlab = [0]
    QPRO = 2; QLEAD = 3
    for a_ in FL:
        if a_.startswith("QPRO="): QPRO = int(a_[5:])
        if a_.startswith("QLEAD="): QLEAD = int(a_[6:])
    def mk_qsync():
        qops = []
        def qiss(g, emit=True):
            if emit:
                dma(g)
                for kk in range(4*g, 4*g+4): xload(kk)
            qops.extend([g] * 6)
        for g in range(QPRO): qiss(g, False)
        qn = [QPRO]
        def sy(s_):
            qlab[0] += 1; L = qlab[0]
            last = max(i for i, o in enumerate(qops) if o == s_ + 1)
            e(f"s_cmp_lg_u32 s30, 0\ns_cbranch_scc1 G1_QS{L}")
            e(f"s_waitcnt vmcnt({len(qops) - 1 - last})\ns_barrier")
            for _ in range(2):
                if qn[0] <= min(8, s_ + QLEAD):
                    qiss(qn[0]); qn[0] += 1
            e(f"s_branch G1_QR{L}\nG1_QS{L}:")
            e(f"s_waitcnt vmcnt({2*(8 - (s_+1))})\ns_barrier\nG1_QR{L}:")
        return sy
    e("s_cmp_lg_u32 s30, 0\ns_cbranch_scc1 G1_QNX")
    for g in range(QPRO):
        dma(g)
        for kk in range(4*g, 4*g+4): xload(kk)
    e("s_branch G1_QNY\nG1_QNX:")
    for b_ in range(9): dma(b_)
    e("""
    G1_QNY:
    s_cmp_ge_u32 s22, 2
    s_cbranch_scc1 G1_QV
    """)
    qs = mk_qsync(); qs(-1)
    body(False, qs)
    e("s_mov_b32 s30, 1")
    e(f"""
    s_mov_b32 s20, {hex(f2u(QSCALE))}
    s_cmp_eq_u32 s22, 0
    s_cselect_b32 s20, s20, 1.0
    v_lshl_add_u32 v248, v246, 6, s57
    v_bfe_u32 v249, v246, 1, 2
    v_lshlrev_b32 v249, 4, v249
    """)
    cnt = 0
    for j in range(4):
        for q in range(4):
            for jj in (0, 2):
                n0 = 32*j + 8*q + jj; n1 = n0 + 4
                o0 = (n0//18)*2048 + (n0%18)*2; o1 = (n1//18)*2048 + (n1%18)*2
                t = T + 4*(cnt % 4); cnt += 1
                r = 16*j + 4*q + jj
                e(f"v_mul_u32_u24 v{t}, {o1-o0}, v247")
                e(f"v_mul_f32 v{t+1}, s20, v{r}")
                e(f"v_mul_f32 v{t+2}, s20, v{r+1}")
                e(f"v_add_u32 v{t}, {o0}, v{t}")
                e(f"v_xor_b32 v{t}, v{t}, v249")
                e(f"v_cvt_pk_bf16_f32 v{t+1}, v{t+1}, v{t+2}")
                e(f"v_add_u32 v{t}, v{t}, v248")
                e(f"ds_write_b32 v{t}, v{t+1}")
    e(f"""
    v_lshrrev_b32 v248, 2, v245
    v_and_b32 v249, 3, v245
    v_bfe_u32 v250, v245, 3, 2
    v_xor_b32 v250, v250, v249
    v_lshlrev_b32 v250, 4, v250
    v_lshl_add_u32 v250, v248, 6, v250
    v_add_u32 v250, s57, v250
    v_cmp_gt_u32 vcc, 3, v249
    v_cndmask_b32 v251, 0, -1, vcc
    v_cmp_gt_u32 vcc, 2, v249
    v_cndmask_b32 v241, 0, -1, vcc
    s_lshl_b32 s59, s56, 5
    s_add_u32 s59, s59, s12
    v_add_u32 v248, s59, v248
    v_lshlrev_b32 v248, 6, v248
    v_lshl_add_u32 v248, v249, 4, v248
    s_lshl_b32 s59, s22, 22
    s_add_u32 s59, s59, {WS_QP}
    s_lshl_b32 s25, s24, 17
    s_add_u32 s59, s59, s25
    v_add_u32 v248, s59, v248
    s_waitcnt lgkmcnt(0)
    """)
    for b0 in range(0, 14, 4):
        rs = list(range(b0, min(b0+4, 14)))
        if b0 == 8: e("s_cmp_eq_u32 s23, 4\ns_cbranch_scc1 G1_QNEXT")
        for i in rs:
            t = T + 4*(i % 4)
            e(f"ds_read_b128 v[{t}:{t+3}], v250 offset:{i*1024}")
        for i in rs:
            t = T + 4*(i % 4)
            e(f"s_waitcnt lgkmcnt({rs[-1]-i})")
            e(f"v_and_b32 v{t}, v{t}, v251")
            for k_ in range(1, 4): e(f"v_and_b32 v{t+k_}, v{t+k_}, v241")
            e(f"s_mov_b32 s59, {(i//2)*131072 + (i%2)*1024}")
            e(f"buffer_store_dwordx4 v[{t}:{t+3}], v248, s[60:63], s59 offen")
    e("s_branch G1_QNEXT\nG1_QV:")
    qs = mk_qsync(); qs(-1)
    body(True, qs)
    e("s_mov_b32 s30, 1")
    e(f"""
    v_bfe_u32 v249, v246, 1, 2
    v_xor_b32 v250, v249, v247
    v_lshlrev_b32 v250, 4, v250
    v_lshl_add_u32 v250, v246, 6, v250
    v_add_u32 v250, s57, v250
    v_or_b32 v251, 2, v247
    v_xor_b32 v251, v249, v251
    v_lshlrev_b32 v251, 4, v251
    v_lshl_add_u32 v251, v246, 6, v251
    v_add_u32 v251, s57, v251
    """)
    cnt = 0
    for j in range(4):
        for q in range(4):
            r = 16*j + 4*q
            t = T + 2*(cnt % 8); cnt += 1
            e(f"v_cvt_pk_bf16_f32 v{t}, v{r}, v{r+1}")
            e(f"v_cvt_pk_bf16_f32 v{t+1}, v{r+2}, v{r+3}")
            e(f"ds_write_b64 v{250 + (q>>1)}, v[{t}:{t+1}] offset:{j*2048 + 8*(q&1)}")
    e(f"""
    v_lshrrev_b32 v248, 2, v245
    v_and_b32 v249, 3, v245
    v_bfe_u32 v250, v245, 3, 2
    v_xor_b32 v250, v250, v249
    v_lshlrev_b32 v250, 4, v250
    v_lshl_add_u32 v250, v248, 6, v250
    v_add_u32 v250, s57, v250
    s_lshl_b32 s59, s56, 5
    s_add_u32 s59, s59, s12
    s_lshl_b32 s59, s59, 1
    s_add_u32 s59, s59, {WS_VT}
    s_lshl_b32 s25, s24, 17
    s_add_u32 s59, s59, s25
    v_lshl_add_u32 v249, v249, 4, s59
    s_movk_i32 s21, 3641
    s_movk_i32 s25, 126
    s_cmp_eq_u32 s23, 4
    s_cselect_b32 s25, 72, s25
    s_waitcnt lgkmcnt(0)
    """)
    for b0 in (0, 4):
        rs = list(range(b0, b0+4))
        for i in rs:
            t = T + 4*(i % 4)
            e(f"ds_read_b128 v[{t}:{t+3}], v250 offset:{i*1024}")
        for i in rs:
            t = T + 4*(i % 4)
            u = T + 16 + 4*(i % 4)
            e(f"""
            v_add_u32 v{u}, {16*i}, v248
            v_mul_u32_u24 v{u+1}, s21, v{u}
            v_lshrrev_b32 v{u+1}, 16, v{u+1}
            v_mul_u32_u24 v{u+2}, 14, v{u+1}
            v_add_u32 v{u+2}, v{u+2}, v{u}
            v_lshl_add_u32 v{u+2}, v{u+2}, 12, v249
            v_cmp_gt_u32 vcc, s25, v{u}
            s_waitcnt lgkmcnt({rs[-1]-i})
            s_mov_b64 exec, vcc
            buffer_store_dwordx4 v[{t}:{t+3}], v{u+2}, s[60:63], 0 offen
            s_mov_b64 exec, -1
            """)
    e("""
    G1_QNEXT:
    s_add_u32 s13, s13, 1
    s_cmp_ge_u32 s13, s19
    s_cbranch_scc1 G1_QDONE
    s_barrier
    s_branch G1_QT
    G1_QDONE:
    """)
    if "NOPF2" not in FL:
        e("""
        s_cmp_lg_u32 s14, 7
        s_cbranch_scc1 G1_END
        s_load_dwordx2 s[4:5], s[0:1], 48
        s_load_dwordx2 s[6:7], s[0:1], 16
        s_load_dwordx2 s[8:9], s[0:1], 0
        s_lshr_b32 s59, s12, 5
        s_add_u32 s59, s59, s56        ; idx 0..63
        v_lshlrev_b32 v248, 7, v245
        s_waitcnt lgkmcnt(0)
        """)
        for (lo, nb, n) in ((6, D_*D_*2, 2), (8, S_*D_*2, 5)):
            srd(e, 44, lo, lo+1, nb)
            e(f"s_mul_i32 s58, s59, {n*8192}")
            for i in range(n):
                e(f"buffer_load_dword v{64+i}, v248, s[44:47], s58 offen")
                e("s_add_u32 s58, s58, 8192")
            e("s_waitcnt vmcnt(0)")
    e("s_branch G1_END")
    e("""
    G1_FFN:
    s_sub_u32 s13, s14, 8
    """)
    if "MAP9" in FL:
        e("""
        s_lshr_b32 s22, s13, 3
        s_and_b32 s23, s13, 7
        s_mul_i32 s24, s23, 9
        s_mul_i32 s22, s22, 3
        s_add_u32 s24, s24, s22
        """)
    else:
        e("s_mul_i32 s24, s13, 3")
    if "ROT" in FL:
        e("""
        s_lshr_b32 s22, s12, 8
        s_mul_i32 s23, s22, 11
        s_lshr_b32 s23, s23, 5
        s_mul_i32 s23, s23, 3
        s_sub_u32 s22, s22, s23
        s_add_u32 s13, s24, s22
        """)
    else:
        e("s_mov_b32 s13, s24")
    e("""
    s_add_u32 s19, s24, 3
    s_mov_b32 s31, s13
    s_movk_i32 s16, 9216
    """)
    srd(e, 44, 6, 7, D_ * F_ * 2)
    srd(e, 48, 8, 9, D_ * F_ * 2)
    e("s_lshl_b32 s15, s31, 6")
    voffw()
    def cursor_next(tag):
        e(f"""
        s_add_u32 s31, s31, 1
        s_cmp_lt_u32 s31, s19
        s_cselect_b32 s31, s31, s24
        s_lshl_b32 s15, s31, 6
        """)
        voffw()
    ops = []
    def iss(g):
        if g >= 27: return
        if g % 9 == 0 and g > 0: cursor_next(f"P{g}")
        dma(g % 9); ops.extend([("D", g)] * 2)
        if g < 9:
            for kk in range(4*g, 4*g+4): xload(kk)
            ops.extend([("X", g)] * 4)
    PRO = 2; LEAD0 = 3; S2F = 10
    for a_ in FL:
        if a_.startswith("PRO="): PRO = int(a_[4:])
        if a_.startswith("LEAD="): LEAD0 = int(a_[5:])
        if a_.startswith("S2F="): S2F = int(a_[4:])
    STAG = "STAG" in FL
    if not STAG:
        for g in range(PRO): iss(g)
    nxt = [PRO]
    def sync_g(tile):
        def sy(s_):
            sg = 9*tile + s_
            S2 = "SYNC2" in FL and sg >= S2F
            if S2 and (sg & 1): return
            need = min(26, sg + 2) if S2 else sg + 1
            last = max(i for i, o in enumerate(ops) if o[1] == need)
            e(f"s_waitcnt vmcnt({len(ops) - 1 - last})\ns_barrier")
            lead = LEAD0 if tile == 0 else 8
            for _ in range(4 if S2 else 2):
                if nxt[0] <= sg + lead:
                    iss(nxt[0]); nxt[0] += 1
        return sy
    def mk_sync(waits, tag):
        def sy(s_):
            if "NOWAIT" not in FL: e(f"s_waitcnt vmcnt({waits[s_+1]})")
            if "NOBAR" not in FL: e("s_barrier")
            if s_ == 1: cursor_next(tag)
            dma((s_ - 1) % 9)
        return sy
    first = [44, 40, 36, 32, 28, 24, 20, 12, 12]
    steady = [20, 20, 20, 20, 20, 20, 20, 12, 12]
    def ffn_epi(subs=(0, 1)):
        if "NOEPI1" in FL: return
        if 0 in subs: e(f"""
        s_lshr_b32 s59, s12, 5
        s_add_u32 s59, s59, s56
        s_mul_i32 s59, s59, 331776
        s_lshl_b32 s18, s13, 12
        s_add_u32 s59, s59, s18
        s_add_u32 s59, s59, {WS_H}
        v_lshl_add_u32 v251, v246, 4, s59
        v_lshl_add_u32 v251, v247, 3, v251
        s_mov_b32 s20, {hex(f2u(-LOG2E))}
        s_mov_b32 s21, s20
        s_mov_b32 s26, 1.0
        s_mov_b32 s27, 1.0
        """)
        cnt = 0
        for sub in subs:
            for q in range(4):
                t = T + 10 * (cnt % 3); cnt += 1
                g0 = 16*sub+4*q
                if "NOPK" in FL:
                    for j in range(4):
                        e(f"v_mul_f32 v{t+j}, s20, v{16*sub+4*q+j}")
                    for j in range(4):
                        e(f"v_exp_f32 v{t+j}, v{t+j}")
                    for j in range(4):
                        e(f"v_mul_f32 v{t+4+j}, v{16*sub+4*q+j}, v{32+16*sub+4*q+j}")
                    for j in range(4):
                        e(f"v_add_f32 v{t+j}, 1.0, v{t+j}")
                    for j in range(4):
                        e(f"v_rcp_f32 v{t+j}, v{t+j}")
                    e("s_nop 0")
                    for j in range(4):
                        e(f"v_mul_f32 v{t+4+j}, v{t+4+j}, v{t+j}")
                else:
                    for j in (0, 2):
                        e(f"v_pk_mul_f32 v[{t+j}:{t+j+1}], v[{g0+j}:{g0+j+1}], s[20:21]")
                    for j in range(4):
                        e(f"v_exp_f32 v{t+j}, v{t+j}")
                    for j in (0, 2):
                        e(f"v_pk_mul_f32 v[{t+4+j}:{t+5+j}], v[{g0+j}:{g0+j+1}], v[{32+g0+j}:{33+g0+j}]")
                    for j in (0, 2):
                        e(f"v_pk_add_f32 v[{t+j}:{t+j+1}], v[{t+j}:{t+j+1}], s[26:27]")
                    for j in range(4):
                        e(f"v_rcp_f32 v{t+j}, v{t+j}")
                    e("s_nop 0")
                    for j in (0, 2):
                        e(f"v_pk_mul_f32 v[{t+4+j}:{t+5+j}], v[{t+4+j}:{t+5+j}], v[{t+j}:{t+j+1}]")
                e(f"v_cvt_pk_bf16_f32 v{t+8}, v{t+4}, v{t+5}")
                e(f"v_cvt_pk_bf16_f32 v{t+9}, v{t+6}, v{t+7}")
                e(f"buffer_store_dwordx2 v[{t+8}:{t+9}], v251, s[60:63], 0 offen offset:{(2*sub+(q>>1))*1024 + (q&1)*512}")
    def stag_group(G, d):
        def items(off):
            it = {}
            k = off
            for t in range(3):
                for st in range(9): it[k] = ("S", 9*t + st); k += 1
                it[k] = ("E", t, 0); k += 1
                it[k] = ("E", t, 1); k += 1
            return it
        A = items(0); B = items(d); mine = A if G == 0 else B
        gops = []; gn = [PRO]
        def giss(g):
            if g >= 27: return
            if g % 9 == 0 and g > 0: cursor_next(f"G{G}_{g}")
            dma(g % 9); gops.extend([g] * 2)
            if g < 9:
                for kk in range(4*g, 4*g+4): xload(kk)
                gops.extend([g] * 4)
        def sync(k):
            a = A.get(k); b = B.get(k)
            need = None
            if k == -1: need = 0
            elif a is not None and a[0] == "S" and a[1] % 9 != 8: need = a[1] + 1
            elif a is not None and a[0] == "E" and a[2] == 1 and a[1] < 2: need = 9*a[1] + 9
            if need is not None:
                last = max(i for i, o in enumerate(gops) if o == need)
                e(f"s_waitcnt vmcnt({len(gops) - 1 - last})")
            e("s_barrier")
            if b is None: cons = -1
            elif b[0] == "S": cons = b[1] - 1
            else: cons = 9*b[1] + 8
            if a is None: sa = -1 if k < 0 else 99
            elif a[0] == "S": sa = a[1]
            else: sa = 9*a[1] + 8
            lim = cons + 9
            if sa < 9: lim = min(lim, sa + LEAD0)
            for _ in range(2):
                if gn[0] <= lim:
                    giss(gn[0]); gn[0] += 1
        for g in range(PRO): giss(g)
        sync(-1)
        for k in range(0, 33 + (d if G else 0)):
            it = mine.get(k)
            if it is None:
                sync(k); continue
            if it[0] == "S":
                g = it[1]; st = g % 9
                if st == 0: reads(0, 0)
                for ks in range(4):
                    if ks == 2: sync(k)
                    if ks < 3: reads(st, ks + 1)
                    elif st < 8: reads(st + 1, 0)
                    e("s_waitcnt lgkmcnt(8)" if (ks < 3 or st < 8) else "s_waitcnt lgkmcnt(0)")
                    mfmas(st, ks, False)
                if st == 8: e("s_nop 15")
            else:
                ffn_epi((it[2],)); gops.extend([-5] * 4)
                if it[2] == 1: e("s_add_u32 s13, s13, 1")
                if not (it[1] == 2 and it[2] == 1 and G == 1): sync(k)
        e("s_branch G1_END")
    if STAG:
        DD = 2
        for a_ in FL:
            if a_.startswith("DD="): DD = int(a_[3:])
        e("s_bitcmp1_b32 s56, 0\ns_cbranch_scc1 G1_GB" if "PAR" in FL else "s_cmp_ge_u32 s56, 4\ns_cbranch_scc1 G1_GB")
        stag_group(0, DD)
        e("G1_GB:")
        stag_group(1, DD)
    else:
      for tile in range(3):
        sync_g(tile)(-1)
        if "TS1" in sys.argv and tile == 0: e("s_memrealtime s[72:73]")
        body(False, sync_g(tile))
        if "TS1" in sys.argv and tile == 0: e("s_memrealtime s[74:75]")
        ffn_epi(); ops.extend([("S", -5)] * 8)
        if "TS1" in sys.argv and tile == 0: e("s_memrealtime s[76:77]")
        e("s_add_u32 s13, s13, 1\ns_cmp_lt_u32 s13, s19\ns_cselect_b32 s13, s13, s24")
    e("""
    G1_END:
    """)
    if "TS1" in sys.argv: e(f"""
        s_cmp_ge_u32 s2, 256
        s_cbranch_scc1 G1_END2
        s_waitcnt vmcnt(0)
        s_memrealtime s[78:79]
        s_memtime s[86:87]
        s_load_dwordx2 s[80:81], s[0:1], 72
        s_waitcnt lgkmcnt(0)
        s_add_u32 s80, s80, {60*MB}
        s_addc_u32 s81, s81, 0
        s_and_b32 s81, s81, 0xffff
        s_mov_b32 s82, 65536
        s_mov_b32 s83, 0x00020000
        v_mov_b32 v0, s70
        v_mov_b32 v1, s72
        v_mov_b32 v2, s74
        v_mov_b32 v3, s76
        v_mov_b32 v4, s78
        s_sub_u32 s86, s86, s84
        v_mov_b32 v5, s86
        v_mov_b32 v6, 0
        v_mov_b32 v7, 0
        s_lshl_b32 s3, s2, 5
        v_mov_b32 v8, s3
        buffer_store_dwordx4 v[0:3], v8, s[80:83], 0 offen
        buffer_store_dwordx4 v[4:7], v8, s[80:83], 0 offen offset:16
        G1_END2:
        """)
    e("s_endpgm")

WS_P = 48 * MB
NSPLIT = 5
def gen_gemm2(e):
    XR = 48; WF = 144
    header(e, "gemm2_kernel")
    e(f"""
    s_cmp_ge_u32 s2, 240
    s_cbranch_scc1 G2_END
    s_load_dwordx2 s[4:5], s[0:1], 16
    s_load_dwordx2 s[6:7], s[0:1], 48
    s_load_dwordx2 s[10:11], s[0:1], 72
    s_and_b32 s12, s2, 7
    s_lshr_b32 s13, s2, 3        ; r 0..29
    s_mul_i32 s28, s13, 43
    s_lshr_b32 s28, s28, 8       ; r/6
    s_mul_i32 s14, s28, 6
    s_sub_u32 s13, s13, s14      ; n tile
    s_mul_i32 s12, s12, 5
    s_add_u32 s12, s12, s28      ; pair 0..39
    s_lshr_b32 s28, s12, 3       ; split
    s_and_b32 s12, s12, 7        ; m tile
    s_lshl_b32 s29, s28, 4
    s_add_u32 s29, s29, 1
    s_mov_b32 s30, 16
    s_cmp_lg_u32 s28, 0
    s_cbranch_scc1 G2_SP
    s_mov_b32 s29, 0
    s_mov_b32 s30, 17
    G2_SP:
    v_and_b32 v170, 63, v0
    v_lshrrev_b32 v171, 6, v0
    s_nop 0
    v_readfirstlane_b32 s56, v171
    s_waitcnt lgkmcnt(0)
    s_add_u32 s40, s10, {WS_H}
    s_addc_u32 s41, s11, 0
    s_and_b32 s41, s41, 0xffff
    s_mov_b32 s42, {64*331776}
    s_mov_b32 s43, 0x00020000
    s_mov_b32 s44, s6
    s_and_b32 s45, s7, 0xffff
    s_mov_b32 s46, {F_*D_*2}
    s_mov_b32 s47, 0x00020000
    s_mov_b32 s49, {D_*D_*2}
    s_lshl_b32 s55, s56, 11      ; m0 base within stage buf
    s_cmp_lt_u32 s56, 6
    s_cbranch_scc1 G2_W6
    s_mov_b32 s46, 0
    s_mov_b32 s49, 0
    G2_W6:
    ; X voffset
    s_lshl_b32 s59, s12, 3
    s_add_u32 s59, s59, s56
    s_mul_i32 s58, s59, 331776
    v_lshl_add_u32 v172, v170, 4, s58
    s_lshl_b32 s52, s29, 12      ; X soffset (stage*4096)
    ; W voffset: c = w/2 ; krow = (w&1)*32 + lane/4
    s_and_b32 s58, s56, 1
    s_lshl_b32 s58, s58, 5
    v_lshrrev_b32 v171, 2, v170
    v_add_u32 v171, s58, v171
    v_mul_u32_u24 v171, 1152, v171
    v_and_b32 v173, 3, v170
    v_lshl_add_u32 v171, v173, 4, v171
    s_lshr_b32 s58, s56, 1
    s_lshl_b32 s58, s58, 6
    s_mul_i32 s57, s13, 192
    s_add_u32 s58, s58, s57
    v_add_u32 v174, s58, v171
    v_add_u32 v175, {16*1152}, v174
    s_mul_i32 s53, s29, {64*1152}
    """ + ("""
    s_lshl_b32 s58, s56, 11
    s_mul_i32 s57, s13, 12288
    s_add_u32 s58, s58, s57
    v_lshl_add_u32 v174, v170, 4, s58
    v_add_u32 v175, 1024, v174
    """ if "WLIN" in sys.argv else "") + f"""
    ; tr read addr
    v_lshrrev_b32 v171, 5, v170
    v_bfe_u32 v173, v170, 2, 2
    v_lshl_add_u32 v171, v171, 3, v173
    v_lshlrev_b32 v171, 6, v171
    v_bfe_u32 v173, v170, 4, 1
    v_lshl_add_u32 v171, v173, 5, v171
    v_and_b32 v173, 3, v170
    v_lshl_add_u32 v176, v173, 3, v171
    v_add_u32 v177, 36864, v176
    """)
    for i in range(48): e(f"v_mov_b32 v{i}, 0")
    lab = [0]
    def dma(slot):
        lab[0] += 1
        e(f"""
        s_cmp_lg_u32 s29, 72
        s_cbranch_scc1 G2_NS{lab[0]}
        s_mov_b32 s44, s4
        s_and_b32 s45, s5, 0xffff
        s_mov_b32 s46, s49
        s_mov_b32 s53, 0
        G2_NS{lab[0]}:
        """)
        e(f"s_add_u32 m0, s54, {slot*12288}" if False else f"s_add_u32 m0, s55, {slot*12288}")
        e("s_nop 0")
        e(f"buffer_load_dwordx4 v174, s[44:47], s53 offen lds")
        e(f"s_add_u32 m0, s55, {slot*12288 + 1024}")
        e("s_nop 0")
        e(f"buffer_load_dwordx4 v175, s[44:47], s53 offen lds")
        if "WHOT" not in sys.argv: e(f"s_add_u32 s53, s53, {64*1152}")
        e("s_add_u32 s29, s29, 1")
    def xld(slot):
        for ks in range(4):
            if "NOX2" in sys.argv: continue
            r = XR + 16*slot + 4*ks
            e(f"buffer_load_dwordx4 v[{r}:{r+3}], v172, s[40:43], s52 offen offset:{ks*1024}")
        if "XHOT" not in sys.argv: e("s_add_u32 s52, s52, 4096")
    def reads(slot, ks):
        fs = WF + (ks & 1) * 12
        areg = 176 if slot < 3 else 177
        for c in range(3):
            for h2 in range(2):
                e(f"ds_read_b64_tr_b16 v[{fs+4*c+2*h2}:{fs+4*c+2*h2+1}], v{areg} offset:{(slot%3)*12288 + c*4096 + ks*1024 + h2*256}")
    e("""
    s_cmp_lt_u32 s56, 6
    s_cbranch_scc1 G2_PRO
    s_branch G2_PROB
    G2_PRO:
    """)
    def full(dummy):
        def dm(slot):
            if "NODMA2" in sys.argv: return
            if dummy:
                lab[0] += 1
                e("s_mov_b32 m0, 73728\ns_nop 0")
                e("buffer_load_dwordx4 v174, s[44:47], s53 offen lds")
                e("buffer_load_dwordx4 v175, s[44:47], s53 offen lds")
            else:
                dma(slot)
        tg = "B" if dummy else "A"
        xld(0)
        for v in range(5):
            dm(v); xld(v + 1)
        nd = 0 if "NODMA2" in sys.argv else 2; nx = 0 if "NOX2" in sys.argv else 4
        e(f"s_waitcnt vmcnt({nx+4*(nd+nx)})\ns_barrier")
        reads(0, 0)
        e(f"G2_LOOP{tg}:")
        for u in range(6):
            e(f"s_waitcnt vmcnt({5*(nd+nx)})")
            for ks in range(4):
                if ks == 2:
                    e(f"s_waitcnt vmcnt({nx+3*(nd+nx)})" + ("" if "NOBAR2" in sys.argv else "\ns_barrier"))
                    dm((u + 5) % 6)
                if ks < 3: reads(u, ks + 1)
                else: reads((u + 1) % 6, 0)
                e("s_waitcnt lgkmcnt(6)")
                fs = WF + (ks & 1) * 12
                xr = XR + 16*u + 4*ks
                for c in range(3):
                    if "NOMF2" not in sys.argv: e(f"v_mfma_f32_32x32x16_bf16 v[{16*c}:{16*c+15}], v[{fs+4*c}:{fs+4*c+3}], v[{xr}:{xr+3}], v[{16*c}:{16*c+15}]")
            xld(u)
            e("s_sub_u32 s30, s30, 1\ns_cmp_eq_u32 s30, 0")
            e("s_cbranch_scc1 G2_EPI")
        e(f"s_branch G2_LOOP{tg}")
    full(False)
    e("G2_PROB:")
    full(True)
    e(f"""
    G2_EPI:
    s_waitcnt vmcnt(0) lgkmcnt(0)
    s_nop 15
    s_mul_i32 s29, s28, {S_*D_*2}
    s_add_u32 s29, s29, {WS_P}
    s_add_u32 s60, s10, s29
    s_addc_u32 s61, s11, 0
    s_and_b32 s61, s61, 0xffff
    s_mov_b32 s62, {S_*D_*2}
    s_mov_b32 s63, 0x00020000
    s_lshl_b32 s59, s12, 3
    s_add_u32 s59, s59, s56
    s_mul_i32 s59, s59, 18
    s_mul_i32 s58, s13, 3
    s_add_u32 s59, s59, s58
    s_lshl_b32 s59, s59, 11
    v_lshl_add_u32 v171, v170, 4, s59
    """)
    for c in range(3):
        for hf in range(2):
            t = 48 + 4*(2*c+hf)
            for i in range(4):
                r = 16*c + 8*hf + 2*i
                e(f"v_cvt_pk_bf16_f32 v{t+i}, v{r}, v{r+1}")
            if "NOST2" not in sys.argv: e(f"s_mov_b32 s58, {c*2048}\nbuffer_store_dwordx4 v[{t}:{t+3}], v171, s[60:63], s58 offen offset:{hf*1024}")
    e("s_waitcnt vmcnt(0) lgkmcnt(0)\nG2_END:\ns_endpgm")

def ts_end(e, tag):
    if "TS" not in sys.argv: return
    e(f"""
    s_memrealtime s[72:73]
    s_memtime s[82:83]
    s_load_dwordx2 s[76:77], s[0:1], 72
    s_waitcnt lgkmcnt(0)
    s_add_u32 s76, s76, {60*MB}
    s_addc_u32 s77, s77, 0
    s_and_b32 s77, s77, 0xffff
    s_mov_b32 s78, 65536
    s_mov_b32 s79, 0x00020000
    v_mov_b32 v0, s70
    v_mov_b32 v1, s88
    v_mov_b32 v2, s90
    v_mov_b32 v3, s72
    v_mov_b32 v4, s74
    v_lshlrev_b32 v4, 5, v4
    buffer_store_dwordx4 v[0:3], v4, s[76:79], 0 offen
    s_sub_u32 s82, s82, s80
    v_mov_b32 v6, s82
    buffer_store_dword v6, v4, s[76:79], 0 offen offset:16
    s_waitcnt vmcnt(0)
    """)

def gen_gemm2h(e):
    XR = 48; WF = 96
    e("G2_START:")
    if "PG" in sys.argv: e("s_setprio 2")
    if "NOG2" in sys.argv: e("s_endpgm")
    e(f"""
    s_cmp_ge_u32 s2, 240
    s_cbranch_scc1 G2_END
    s_load_dwordx2 s[4:5], s[0:1], 16
    s_load_dwordx2 s[6:7], s[0:1], 48
    s_load_dwordx2 s[10:11], s[0:1], 72
    s_and_b32 s12, s2, 7
    s_lshr_b32 s13, s2, 3        ; r 0..29
    s_mul_i32 s28, s13, 43
    s_lshr_b32 s28, s28, 8       ; r/6
    s_mul_i32 s14, s28, 6
    s_sub_u32 s13, s13, s14      ; n tile
    s_mul_i32 s12, s12, 5
    s_add_u32 s12, s12, s28      ; pair 0..39
    s_lshr_b32 s28, s12, 3       ; split
    s_and_b32 s12, s12, 7        ; m tile
    s_mul_i32 s29, s28, 14
    s_min_u32 s30, s28, 2
    s_add_u32 s29, s29, s30
    s_cmp_lt_u32 s28, 2
    s_cselect_b32 s30, 15, 14
    v_and_b32 v120, 63, v0
    v_lshrrev_b32 v121, 6, v0
    s_nop 0
    v_readfirstlane_b32 s56, v121
    s_waitcnt lgkmcnt(0)
    s_add_u32 s40, s10, {WS_H}
    s_addc_u32 s41, s11, 0
    s_and_b32 s41, s41, 0xffff
    s_mov_b32 s42, {64*331776}
    s_mov_b32 s43, 0x00020000
    s_mov_b32 s44, s6
    s_and_b32 s45, s7, 0xffff
    s_mov_b32 s46, {F_*D_*2}
    s_mov_b32 s47, 0x00020000
    s_mov_b32 s49, {D_*D_*2}
    s_lshl_b32 s55, s56, 11      ; m0 base within stage buf
    s_cmp_lt_u32 s56, 6
    s_cbranch_scc1 G2_W6
    s_mov_b32 s46, 0
    s_mov_b32 s49, 0
    G2_W6:
    ; X voffset
    s_lshl_b32 s59, s12, 3
    s_add_u32 s59, s59, s56
    s_mul_i32 s58, s59, 331776
    v_lshl_add_u32 v122, v120, 4, s58
    s_lshl_b32 s52, s29, 12      ; X soffset (stage*4096)
    ; W voffset: c = w/2 ; krow = (w&1)*32 + lane/4
    s_and_b32 s58, s56, 1
    s_lshl_b32 s58, s58, 5
    v_lshrrev_b32 v121, 2, v120
    v_add_u32 v121, s58, v121
    v_mul_u32_u24 v121, 1152, v121
    v_and_b32 v123, 3, v120
    v_lshl_add_u32 v121, v123, 4, v121
    s_lshr_b32 s58, s56, 1
    s_lshl_b32 s58, s58, 6
    s_mul_i32 s57, s13, 192
    s_add_u32 s58, s58, s57
    v_add_u32 v124, s58, v121
    v_add_u32 v125, {16*1152}, v124
    s_mul_i32 s53, s29, {64*1152}
    """ + ("""
    s_lshl_b32 s58, s56, 11
    s_mul_i32 s57, s13, 12288
    s_add_u32 s58, s58, s57
    v_lshl_add_u32 v124, v120, 4, s58
    v_add_u32 v125, 1024, v124
    """ if "WLIN" in sys.argv else "") + f"""
    ; tr read addr
    v_lshrrev_b32 v121, 5, v120
    v_bfe_u32 v123, v120, 2, 2
    v_lshl_add_u32 v121, v121, 3, v123
    v_lshlrev_b32 v121, 6, v121
    v_bfe_u32 v123, v120, 4, 1
    v_lshl_add_u32 v121, v123, 5, v121
    v_and_b32 v123, 3, v120
    v_lshl_add_u32 v126, v123, 3, v121
    v_add_u32 v127, 36864, v126
    """)
    for i in range(48): e(f"v_mov_b32 v{i}, 0")
    lab = [0]
    def dma(slot):
        e(f"s_add_u32 m0, s54, {slot*12288}" if False else f"s_add_u32 m0, s55, {slot*12288}")
        e("s_nop 0")
        e(f"buffer_load_dwordx4 v124, s[44:47], s53 offen lds")
        e(f"s_add_u32 m0, s55, {slot*12288 + 1024}")
        e("s_nop 0")
        e(f"buffer_load_dwordx4 v125, s[44:47], s53 offen lds")
        if "WHOT" not in sys.argv: e(f"s_add_u32 s53, s53, {64*1152}")
        e("s_add_u32 s29, s29, 1")
    def xld(slot):
        for ks in range(4):
            if "NOX2" in sys.argv: continue
            r = XR + 16*slot + 4*ks
            e(f"buffer_load_dwordx4 v[{r}:{r+3}], v122, s[40:43], s52 offen offset:{ks*1024}")
        if "XHOT" not in sys.argv: e("s_add_u32 s52, s52, 4096")
    def reads(slot, ks):
        fs = WF + (ks & 1) * 12
        areg = 126 if slot < 3 else 127
        for c in range(3):
            for h2 in range(2):
                e(f"ds_read_b64_tr_b16 v[{fs+4*c+2*h2}:{fs+4*c+2*h2+1}], v{areg} offset:{(slot%3)*12288 + c*4096 + ks*1024 + h2*256}")
    e("""
    s_cmp_lt_u32 s56, 6
    s_cbranch_scc1 G2_PRO
    s_branch G2_PROB
    G2_PRO:
    """)
    def full(dummy):
        def dm(slot):
            if "NODMA2" in sys.argv: return
            if dummy:
                lab[0] += 1
                e("s_mov_b32 m0, 73728\ns_nop 0")
                e("buffer_load_dwordx4 v124, s[44:47], s53 offen lds")
                e("buffer_load_dwordx4 v125, s[44:47], s53 offen lds")
            else:
                dma(slot)
        tg = "B" if dummy else "A"
        if "G2T" in sys.argv:
            dm(0); dm(1); dm(2); xld(0)
            e("s_waitcnt vmcnt(8)")
            dm(3); xld(1); dm(4); xld(2)
        elif "G2U" in sys.argv:
            dm(0); dm(1); dm(2); xld(0); dm(3); xld(1)
            e("s_waitcnt vmcnt(14)")
            dm(4); xld(2)
        else:
            dm(0); dm(1); dm(2); xld(0); dm(3); xld(1); dm(4); xld(2)
        e("s_waitcnt vmcnt(18)\ns_barrier")
        if "TS" in sys.argv: e("s_memrealtime s[88:89]")
        reads(0, 0)
        e(f"G2_LOOP{tg}:")
        for u in range(6):
            e("s_waitcnt vmcnt(12)")
            for ks in range(4):
                if ks == 2:
                    e("s_waitcnt vmcnt(22)\ns_barrier")
                    dm((u + 5) % 6)
                if ks < 3: reads(u, ks + 1)
                else: reads((u + 1) % 6, 0)
                e("s_waitcnt lgkmcnt(6)")
                fs = WF + (ks & 1) * 12
                xr = XR + 16*(u%3) + 4*ks
                for c in range(3):
                    if "NOMF2" not in sys.argv: e(f"v_mfma_f32_32x32x16_bf16 v[{16*c}:{16*c+15}], v[{fs+4*c}:{fs+4*c+3}], v[{xr}:{xr+3}], v[{16*c}:{16*c+15}]")
            xld(u%3)
            GPK = 0
            for a_ in sys.argv:
                if a_.startswith("GP="): GPK = int(a_[3:])
            if GPK:
                lab[0] += 1
                e(f"s_cmp_lg_u32 s30, {GPK}\ns_cbranch_scc1 G2_NP{lab[0]}\ns_setprio 2\nG2_NP{lab[0]}:")
            e("s_sub_u32 s30, s30, 1\ns_cmp_eq_u32 s30, 0")
            e("s_cbranch_scc1 G2_EPI")
        e(f"s_branch G2_LOOP{tg}")
    full(False)
    e("G2_PROB:")
    full(True)
    e(f"""
    G2_EPI:
    """ + ("s_memrealtime s[90:91]\n" if "TS" in sys.argv else "") + ("s_setprio 3" if "PE" in sys.argv else "") + f"""
    s_waitcnt vmcnt(0) lgkmcnt(0)
    s_nop 15
    s_mul_i32 s29, s28, {S_*D_*2}
    s_add_u32 s29, s29, {WS_P}
    s_add_u32 s60, s10, s29
    s_addc_u32 s61, s11, 0
    s_and_b32 s61, s61, 0xffff
    s_mov_b32 s62, {S_*D_*2}
    s_mov_b32 s63, 0x00020000
    s_lshl_b32 s59, s12, 3
    s_add_u32 s59, s59, s56
    s_mul_i32 s59, s59, 18
    s_mul_i32 s58, s13, 3
    s_add_u32 s59, s59, s58
    s_lshl_b32 s59, s59, 11
    v_lshl_add_u32 v121, v120, 4, s59
    """)
    for c in range(3):
        for hf in range(2):
            t = 48 + 4*(2*c+hf)
            for i in range(4):
                r = 16*c + 8*hf + 2*i
                e(f"v_cvt_pk_bf16_f32 v{t+i}, v{r}, v{r+1}")
            if "NOST2" not in sys.argv: e(f"s_mov_b32 s58, {c*2048}\nbuffer_store_dwordx4 v[{t}:{t+3}], v121, s[60:63], s58 offen offset:{hf*1024}" + ("" if "NONP5" not in sys.argv else " sc0 sc1"))
    if "NONP5" not in sys.argv: e("s_branch G2_DONE")
    e(f"""
    s_waitcnt vmcnt(0) lgkmcnt(0)
    s_barrier
    s_cmp_lg_u32 s56, 0
    s_cbranch_scc1 G2_W
    s_mov_b32 s64, s10
    s_and_b32 s65, s11, 0xffff
    s_mov_b32 s66, {WS_SIZE}
    s_mov_b32 s67, 0x00020000
    s_mul_i32 s58, s12, 6
    s_add_u32 s58, s58, s13
    s_lshl_b32 s58, s58, 2
    s_add_u32 s58, s58, {WS_CNT}
    v_mov_b32 v122, s58
    v_mov_b32 v123, 1
    v_mov_b32 v124, 0
    s_mov_b64 exec, 1
    buffer_atomic_add v123, v122, s[64:67], 0 offen sc0 sc1
    s_waitcnt vmcnt(0)
    ds_write_b32 v124, v123
    s_mov_b64 exec, -1
    s_waitcnt lgkmcnt(0)
    G2_W:
    s_barrier
    v_mov_b32 v124, 0
    ds_read_b32 v123, v124
    s_waitcnt lgkmcnt(0)
    v_readfirstlane_b32 s58, v123
    s_mul_hi_u32 s59, s58, 0xcccccccd
    s_lshr_b32 s59, s59, 2
    s_mul_i32 s59, s59, 5
    s_sub_u32 s58, s58, s59
    s_cmp_lg_u32 s58, {NSPLIT-1}
    s_cbranch_scc1 G2_DONE
    s_add_u32 s60, s10, {WS_P}
    s_addc_u32 s61, s11, 0
    s_and_b32 s61, s61, 0xffff
    s_mov_b32 s62, {S_*D_*2*NSPLIT}
    v_add_u32 v122, 4096, v121
    """)
    for j in range(4):
        e(f"""
        s_add_u32 s28, s28, 1
        s_cmp_ge_u32 s28, {NSPLIT}
        s_cselect_b32 s28, 0, s28
        s_mul_i32 s{84+j}, s28, {S_*D_*2}
        """)
    def pld(idx):
        j, u = idx // 6, idx % 6
        r = 48 + 4*(idx % 16)
        e(f"buffer_load_dwordx4 v[{r}:{r+3}], v{121 + u//4}, s[60:63], s{84+j} offen offset:{(u%4)*1024} sc0 sc1")
    for idx in range(16): pld(idx)
    e("""
    v_lshrrev_b32 v124, 5, v120
    v_and_b32 v123, 31, v120
    v_lshlrev_b32 v124, 2, v124
    v_sub_u32 v123, v123, v124
    v_mov_b32 v124, 0x3f80
    v_mov_b32 v125, 0x3f800000
    """)
    for hf in range(2):
        for r in range(4):
            T = 16*hf + 8*(r//2) + 2*(r%2)
            e(f"v_cmp_eq_u32 vcc, {T}, v123")
            e(f"v_cndmask_b32 v{112+4*hf+r}, 0, v124, vcc")
            e(f"v_cmp_eq_u32 vcc, {T+1}, v123")
            e(f"v_cndmask_b32 v{112+4*hf+r}, v{112+4*hf+r}, v125, vcc")
    e("s_nop 1")
    for idx in range(24):
        u = idx % 6; c = u // 2; hf = u % 2
        r = 48 + 4*(idx % 16)
        e(f"s_waitcnt vmcnt({min(24, 16+idx) - idx - 1})")
        e(f"v_mfma_f32_32x32x16_bf16 v[{16*c}:{16*c+15}], v[{112+4*hf}:{115+4*hf}], v[{r}:{r+3}], v[{16*c}:{16*c+15}]")
        if idx + 16 < 24: pld(idx + 16)
    e("s_nop 15\ns_nop 3")
    for u in range(6):
        t = 48 + 4*u
        for i in range(4):
            e(f"v_cvt_pk_bf16_f32 v{t+i}, v{8*u+2*i}, v{8*u+2*i+1}")
        e(f"buffer_store_dwordx4 v[{t}:{t+3}], v{121 + u//4}, s[60:63], 0 offen offset:{(u%4)*1024}")
    e("G2_DONE:\ns_waitcnt vmcnt(0) lgkmcnt(0)")
    ts_end(e, "g")
    e("G2_END:\ns_endpgm")

def gen_fin(e):
    header(e, "fin_kernel")
    XO = 16; PR = 160; XR = 200; WF = 208
    e(f"""
    s_cmp_ge_u32 s2, 288
    s_cbranch_scc1 FN_END
    s_load_dwordx2 s[4:5], s[0:1], 0
    s_load_dwordx2 s[6:7], s[0:1], 56
    s_load_dwordx2 s[8:9], s[0:1], 16
    s_load_dwordx2 s[10:11], s[0:1], 72
    s_and_b32 s12, s2, 7
    s_lshr_b32 s13, s2, 3        ; j 0..35
    s_mul_i32 s14, s13, 57
    s_lshr_b32 s14, s14, 9       ; j/9
    s_mul_i32 s15, s14, 9
    s_sub_u32 s13, s13, s15      ; nt
    s_lshl_b32 s12, s12, 2
    s_add_u32 s12, s12, s14      ; mt
    v_and_b32 v230, 63, v0
    v_lshrrev_b32 v231, 6, v0
    s_nop 0
    v_readfirstlane_b32 s56, v231
    s_lshr_b32 s57, s56, 1       ; wm
    s_and_b32 s58, s56, 1        ; wn
    s_lshl_b32 s12, s12, 1
    s_add_u32 s12, s12, s57      ; rb
    s_lshl_b32 s14, s13, 1
    s_add_u32 s14, s14, s58      ; cb
    s_waitcnt lgkmcnt(0)
    s_add_u32 s40, s10, {WS_H}
    s_addc_u32 s41, s11, 0
    s_add_u32 s10, s10, {WS_P}
    s_addc_u32 s11, s11, 0
    """)
    srd(e, 40, 40, 41, 64*331776); srd(e, 44, 8, 9, D_*D_*2)
    srd(e, 16, 4, 5, S_*D_*2); srd(e, 20, 6, 7, S_*D_*2); srd(e, 24, 10, 11, S_*D_*2*NSPLIT)
    e(f"""
    v_lshrrev_b32 v231, 2, v230
    v_mul_u32_u24 v231, 1152, v231
    v_and_b32 v232, 3, v230
    v_lshl_add_u32 v231, v232, 4, v231
    s_lshl_b32 s15, s14, 6
    s_mul_i32 s59, s57, {288*1152}
    s_add_u32 s15, s15, s59
    v_add_u32 v231, s15, v231     ; W voffset
    s_mul_i32 s54, s58, 36864
    s_mul_i32 s59, s57, 18432
    s_add_u32 s54, s54, s59       ; m0 base
    s_mul_i32 s15, s12, 331776
    s_add_u32 s15, s15, {288*1024}
    v_lshl_add_u32 v232, v230, 4, s15   ; O voffset
    s_mov_b32 s53, 0
    """)
    for j in range(18):
        e(f"s_add_u32 m0, s54, {j*1024}\ns_nop 0")
        e("buffer_load_dwordx4 v231, s[44:47], s53 offen lds")
        e(f"s_add_u32 s53, s53, {16*1152}")
    for kk in range(36):
        if kk % 4 == 0: e(f"s_mov_b32 s52, {kk*1024}")
        e(f"buffer_load_dwordx4 v[{XO+4*kk}:{XO+4*kk+3}], v232, s[40:43], s52 offen offset:{(kk%4)*1024}")
    e(f"""
    v_lshrrev_b32 v233, 5, v230
    v_bfe_u32 v234, v230, 2, 2
    v_lshl_add_u32 v233, v233, 3, v234
    v_lshlrev_b32 v233, 6, v233
    v_bfe_u32 v234, v230, 4, 1
    v_lshl_add_u32 v233, v234, 5, v233
    v_and_b32 v234, 3, v230
    v_lshl_add_u32 v233, v234, 3, v233
    s_mul_i32 s59, s58, 36864
    v_add_u32 v233, s59, v233
    s_mul_i32 s15, s12, 18
    s_add_u32 s15, s15, s14
    s_lshl_b32 s15, s15, 11
    v_lshl_add_u32 v234, v230, 4, s15  ; P offset
    v_and_b32 v235, 31, v230
    s_lshl_b32 s15, s12, 5
    v_add_u32 v235, s15, v235
    v_mul_u32_u24 v235, 1152, v235
    v_lshrrev_b32 v236, 5, v230
    v_lshl_add_u32 v235, v236, 5, v235
    s_lshl_b32 s15, s14, 6
    v_add_u32 v235, s15, v235
    """)
    for i in range(16): e(f"v_mov_b32 v{i}, 0")
    def pl(i):
        e(f"s_mov_b32 s28, {(i//2)*S_*D_*2}")
        e(f"buffer_load_dwordx4 v[{PR+4*i}:{PR+4*i+3}], v234, s[24:27], s28 offen offset:{(i%2)*1024}")
    for i in range(8): pl(i)
    e("s_waitcnt vmcnt(44)\ns_barrier")
    for i in range(8, 2*NSPLIT): pl(i)
    e(f"buffer_load_dwordx4 v[{XR}:{XR+3}], v235, s[16:19], 0 offen")
    e(f"buffer_load_dwordx4 v[{XR+4}:{XR+7}], v235, s[16:19], 0 offen offset:16")
    NL = 2*NSPLIT + 2
    def rd(kk):
        fs = WF + 4*(kk % 4)
        for h2 in range(2):
            e(f"ds_read_b64_tr_b16 v[{fs+2*h2}:{fs+2*h2+1}], v233 offset:{kk*1024 + h2*256}")
    for kk in range(3): rd(kk)
    for kk in range(36):
        if kk + 3 < 36: rd(kk + 3)
        n = min(3, 35 - kk)
        e(f"s_waitcnt vmcnt({35-kk+NL}) lgkmcnt({2*n})")
        fs = WF + 4*(kk % 4)
        e(f"v_mfma_f32_32x32x16_bf16 v[0:15], v[{fs}:{fs+3}], v[{XO+4*kk}:{XO+4*kk+3}], v[0:15]")
    e("s_nop 15\ns_nop 3")
    T = 16
    for i in range(NSPLIT):
        e(f"s_waitcnt vmcnt({NL-2*i-2})")
        for d in range(8):
            r = PR + 8*i + d
            e(f"v_lshlrev_b32 v{T}, 16, v{r}")
            e(f"v_and_b32 v{T+1}, 0xffff0000, v{r}")
            e(f"v_add_f32 v{2*d}, v{2*d}, v{T}")
            e(f"v_add_f32 v{2*d+1}, v{2*d+1}, v{T+1}")
    e("s_nop 1")
    for j in range(8):
        e(f"v_permlane32_swap_b32 v{j}, v{8+j}")
    e("s_nop 1\ns_waitcnt vmcnt(0)")
    order = [0,1,2,3,8,9,10,11,4,5,6,7,12,13,14,15]
    for j in range(8):
        a, b_ = order[2*j], order[2*j+1]
        e(f"v_lshlrev_b32 v{T}, 16, v{XR+j}")
        e(f"v_and_b32 v{T+1}, 0xffff0000, v{XR+j}")
        e(f"v_add_f32 v{a}, v{a}, v{T}")
        e(f"v_add_f32 v{b_}, v{b_}, v{T+1}")
        e(f"v_cvt_pk_bf16_f32 v{XR+j}, v{a}, v{b_}")
    e(f"buffer_store_dwordx4 v[{XR}:{XR+3}], v235, s[20:23], 0 offen")
    e(f"buffer_store_dwordx4 v[{XR+4}:{XR+7}], v235, s[20:23], 0 offen offset:16")
    e("FN_END:\ns_endpgm")

def gen_fin2(e):
    header(e, "fin_kernel")
    NP = 5 if "NONP5" not in sys.argv else 1
    XO = 48; PR = 120; XR = 180; WF = 192; M = 230
    if "TSF" in sys.argv: e("s_memrealtime s[70:71]")
    e(f"""
    s_cmp_ge_u32 s2, 192
    s_cbranch_scc1 FN_END
    s_load_dwordx2 s[4:5], s[0:1], 0
    s_load_dwordx2 s[6:7], s[0:1], 56
    s_load_dwordx2 s[8:9], s[0:1], 16
    s_load_dwordx2 s[10:11], s[0:1], 72
    s_and_b32 s12, s2, 7
    s_lshr_b32 s13, s2, 3        ; j 0..23
    s_mul_i32 s14, s13, 43
    s_lshr_b32 s14, s14, 8       ; j/6
    s_mul_i32 s15, s14, 6
    s_sub_u32 s13, s13, s15      ; nt
    s_lshl_b32 s12, s12, 2
    s_add_u32 s12, s12, s14      ; mt
    v_and_b32 v{M}, 63, v0
    v_lshrrev_b32 v{M+1}, 6, v0
    s_nop 0
    v_readfirstlane_b32 s56, v{M+1}
    s_lshr_b32 s57, s56, 1       ; wm
    s_and_b32 s58, s56, 1        ; kh
    s_lshl_b32 s12, s12, 1
    s_add_u32 s12, s12, s57      ; rb
    s_waitcnt lgkmcnt(0)
    s_add_u32 s40, s10, {WS_H}
    s_addc_u32 s41, s11, 0
    s_add_u32 s10, s10, {WS_P}
    s_addc_u32 s11, s11, 0
    """)
    srd(e, 40, 40, 41, 64*331776); srd(e, 44, 8, 9, D_*D_*2)
    srd(e, 16, 4, 5, S_*D_*2); srd(e, 20, 6, 7, S_*D_*2); srd(e, 24, 10, 11, S_*D_*2*NP)
    e(f"""
    v_lshrrev_b32 v{M+1}, 2, v{M}
    v_mul_u32_u24 v{M+1}, 1152, v{M+1}
    v_and_b32 v{M+2}, 3, v{M}
    v_lshl_add_u32 v{M+1}, v{M+2}, 4, v{M+1}
    s_mul_i32 s15, s13, 192
    s_mul_i32 s59, s56, {9*18432}
    s_add_u32 s15, s15, s59
    v_add_u32 v{M+1}, s15, v{M+1}     ; W voffset
    s_mul_i32 s54, s56, 9216          ; m0 base
    s_mul_i32 s15, s12, 331776
    s_mul_i32 s59, s58, 18432
    s_add_u32 s15, s15, s59
    s_add_u32 s15, s15, {288*1024}
    v_lshl_add_u32 v{M+2}, v{M}, 4, s15   ; O voffset
    s_mov_b32 s53, 0
    """)
    for i in range(9):
        for c in range(3):
            e(f"s_add_u32 m0, s54, {c*36864 + i*1024 - c*64}\ns_nop 0")
            e(f"buffer_load_dwordx4 v{M+1}, s[44:47], s53 offen offset:{c*64} lds")
        e(f"s_add_u32 s53, s53, {16*1152}")
    for kk in range(18):
        if kk % 4 == 0: e(f"s_mov_b32 s52, {kk*1024}")
        e(f"buffer_load_dwordx4 v[{XO+4*kk}:{XO+4*kk+3}], v{M+2}, s[40:43], s52 offen offset:{(kk%4)*1024}")
    e(f"""
    s_mul_i32 s15, s12, 18
    s_mul_i32 s59, s13, 3
    s_add_u32 s15, s15, s59
    s_lshl_b32 s15, s15, 11
    s_mul_i32 s59, s58, 3072
    s_add_u32 s15, s15, s59
    v_lshl_add_u32 v{M+4}, v{M}, 4, s15  ; P offset
    """)
    for i in range(NP):
        e(f"s_mov_b32 s28, {i*S_*D_*2}")
        for j in range(3):
            r = PR + 12*i + 4*j
            e(f"buffer_load_dwordx4 v[{r}:{r+3}], v{M+4}, s[24:27], s28 offen offset:{j*1024}")
    e(f"""
    v_and_b32 v{M+5}, 31, v{M}
    s_lshl_b32 s15, s12, 5
    v_add_u32 v{M+5}, s15, v{M+5}
    v_mul_u32_u24 v{M+5}, 1152, v{M+5}
    v_lshrrev_b32 v{M+6}, 5, v{M}
    v_lshl_add_u32 v{M+5}, v{M+6}, 4, v{M+5}
    s_mul_i32 s15, s13, 192
    s_mul_i32 s59, s58, 96
    s_add_u32 s15, s15, s59
    v_add_u32 v{M+5}, s15, v{M+5}
    """)
    for j in range(3):
        e(f"buffer_load_dwordx4 v[{XR+4*j}:{XR+4*j+3}], v{M+5}, s[16:19], 0 offen offset:{j*32}")
    e(f"""
    v_lshrrev_b32 v{M+7}, 5, v{M}
    v_bfe_u32 v{M+8}, v{M}, 2, 2
    v_lshl_add_u32 v{M+7}, v{M+7}, 3, v{M+8}
    v_lshlrev_b32 v{M+7}, 6, v{M+7}
    v_bfe_u32 v{M+8}, v{M}, 4, 1
    v_lshl_add_u32 v{M+7}, v{M+8}, 5, v{M+7}
    v_and_b32 v{M+8}, 3, v{M}
    v_lshl_add_u32 v{M+7}, v{M+8}, 3, v{M+7}
    s_mul_i32 s59, s58, 18432
    v_add_u32 v{M+7}, s59, v{M+7}
    v_add_u32 v{M+8}, 36864, v{M+7}
    v_add_u32 v{M+9}, {2*36864}, v{M+7}
    s_mul_i32 s59, s56, 6144
    s_add_u32 s59, s59, 110592
    v_lshl_add_u32 v{M+10}, v{M}, 4, s59
    v_xor_b32 v{M+11}, 0, v{M+10}
    s_xor_b32 s60, s56, 1
    s_mul_i32 s60, s60, 6144
    s_add_u32 s60, s60, 110592
    v_lshl_add_u32 v{M+11}, v{M}, 4, s60
    """)
    for i in range(48): e(f"v_mov_b32 v{i}, 0")
    NL = 3*NP + 3
    e(f"s_waitcnt vmcnt({18+NL})\ns_barrier")
    if "TSF" in sys.argv: e("s_memrealtime s[72:73]")
    def rd(i):
        for c in range(3):
            fs = WF + 12*(i % 3) + 4*c
            for h2 in range(2):
                e(f"ds_read_b64_tr_b16 v[{fs+2*h2}:{fs+2*h2+1}], v{M+7+c} offset:{i*1024 + h2*256}")
    rd(0); rd(1)
    for i in range(18):
        if i + 2 < 18: rd(i + 2)
        n = min(2, 17 - i)
        e(f"s_waitcnt vmcnt({17-i+NL}) lgkmcnt({6*n})")
        for c in range(3):
            fs = WF + 12*(i % 3) + 4*c
            e(f"v_mfma_f32_32x32x16_bf16 v[{16*c}:{16*c+15}], v[{fs}:{fs+3}], v[{XO+4*i}:{XO+4*i+3}], v[{16*c}:{16*c+15}]")
    e("s_nop 15\ns_nop 3")
    if "TSF" in sys.argv: e("s_memrealtime s[74:75]")
    e("s_cmp_lg_u32 s58, 0\ns_cbranch_scc1 FN_K1")
    T = WF
    for kh in range(2):
        if kh: e("FN_K1:")
        own = 24*kh; oth = 24*(1-kh)
        for j in range(6):
            e(f"ds_write_b128 v{M+10}, v[{oth+4*j}:{oth+4*j+3}] offset:{j*1024}")
        e("s_waitcnt lgkmcnt(0)\ns_barrier")
        for j in range(6):
            e(f"ds_read_b128 v[{XO+4*j}:{XO+4*j+3}], v{M+11} offset:{j*1024}")
        for i in range(NP):
            e(f"s_waitcnt vmcnt({NL-3*i-3})")
            for d in range(12):
                r = PR + 12*i + d
                e(f"v_lshlrev_b32 v{T}, 16, v{r}")
                e(f"v_and_b32 v{T+1}, 0xffff0000, v{r}")
                e(f"v_add_f32 v{own+2*d}, v{own+2*d}, v{T}")
                e(f"v_add_f32 v{own+2*d+1}, v{own+2*d+1}, v{T+1}")
        e("s_waitcnt lgkmcnt(0)")
        for i in range(24):
            e(f"v_add_f32 v{own+i}, v{own+i}, v{XO+i}")
        e("s_nop 1")
        for j in range(3):
            for i in range(4):
                e(f"v_permlane32_swap_b32 v{own+8*j+i}, v{own+8*j+4+i}")
        e("s_nop 1\ns_waitcnt vmcnt(0)")
        for j in range(3):
            for d in range(4):
                a = own + 8*j + 2*d
                e(f"v_lshlrev_b32 v{T}, 16, v{XR+4*j+d}")
                e(f"v_and_b32 v{T+1}, 0xffff0000, v{XR+4*j+d}")
                e(f"v_add_f32 v{a}, v{a}, v{T}")
                e(f"v_add_f32 v{a+1}, v{a+1}, v{T+1}")
                e(f"v_cvt_pk_bf16_f32 v{XR+4*j+d}, v{a}, v{a+1}")
            e(f"buffer_store_dwordx4 v[{XR+4*j}:{XR+4*j+3}], v{M+5}, s[20:23], 0 offen offset:{j*32}")
        if "TSF" in sys.argv: e(f"""
        s_waitcnt vmcnt(0)
        s_memrealtime s[76:77]
        s_load_dwordx2 s[80:81], s[0:1], 72
        s_waitcnt lgkmcnt(0)
        s_add_u32 s80, s80, {60*MB}
        s_addc_u32 s81, s81, 0
        s_and_b32 s81, s81, 0xffff
        s_mov_b32 s82, 65536
        s_mov_b32 s83, 0x00020000
        v_mov_b32 v0, s70
        v_mov_b32 v1, s72
        v_mov_b32 v2, s74
        v_mov_b32 v3, s76
        s_lshl_b32 s3, s2, 2
        s_add_u32 s3, s3, s56
        s_lshl_b32 s3, s3, 4
        v_mov_b32 v4, s3
        buffer_store_dwordx4 v[0:3], v4, s[80:83], 0 offen
        """)
        e("s_endpgm")
    e("FN_END:\ns_endpgm")

def gen_red(e):
    header(e, "red_kernel")
    e(f"""
    s_cmp_ge_u32 s2, 288
    s_cbranch_scc1 RD_END
    s_load_dwordx2 s[4:5], s[0:1], 0
    s_load_dwordx2 s[6:7], s[0:1], 56
    s_load_dwordx2 s[10:11], s[0:1], 72
    s_lshl_b32 s3, s2, 8
    v_add_u32 v1, s3, v0
    v_lshrrev_b32 v2, 6, v1        ; blk
    v_bfe_u32 v3, v1, 1, 5         ; row
    v_and_b32 v4, 1, v1            ; half
    v_lshlrev_b32 v5, 11, v2
    v_lshl_add_u32 v5, v4, 10, v5
    v_lshl_add_u32 v5, v3, 4, v5   ; P offset
    s_mov_b32 s21, 3641
    v_mul_u32_u24 v6, s21, v2
    v_lshrrev_b32 v6, 16, v6       ; mb
    v_mul_u32_u24 v7, 18, v6
    v_sub_u32 v7, v2, v7           ; nb
    v_lshl_add_u32 v6, v6, 5, v3
    v_mul_u32_u24 v6, 1152, v6
    v_lshl_add_u32 v6, v7, 6, v6
    v_lshl_add_u32 v6, v4, 5, v6
    s_waitcnt lgkmcnt(0)
    s_add_u32 s10, s10, {WS_P}
    s_addc_u32 s11, s11, 0
    """)
    srd(e, 12, 4, 5, S_*D_*2); srd(e, 16, 6, 7, S_*D_*2); srd(e, 20, 10, 11, S_*D_*2*NSPLIT)
    e("buffer_load_dwordx4 v[8:11], v6, s[12:15], 0 offen")
    e("buffer_load_dwordx4 v[12:15], v6, s[12:15], 0 offen offset:16")
    for i in range(NSPLIT):
        e(f"s_mov_b32 s24, {i*S_*D_*2}")
        e(f"buffer_load_dwordx4 v[{16+8*i}:{19+8*i}], v5, s[20:23], s24 offen")
        e(f"buffer_load_dwordx4 v[{20+8*i}:{23+8*i}], v5, s[20:23], s24 offen offset:512")
    e(f"s_waitcnt vmcnt({2*NSPLIT})")
    A = 16 + 8*NSPLIT
    for j in range(8):
        e(f"v_lshlrev_b32 v{A+2*j}, 16, v{8+j}\nv_and_b32 v{A+2*j+1}, 0xffff0000, v{8+j}")
    T = A + 16
    for i in range(NSPLIT):
        e(f"s_waitcnt vmcnt({2*(NSPLIT-1-i)})")
        for h in range(2):
            for d in range(4):
                n = 8*(d>>1) + 4*h + 2*(d&1)
                r = 16 + 8*i + 4*h + d
                e(f"v_lshlrev_b32 v{T}, 16, v{r}")
                e(f"v_and_b32 v{T+1}, 0xffff0000, v{r}")
                e(f"v_add_f32 v{A+n}, v{A+n}, v{T}")
                e(f"v_add_f32 v{A+n+1}, v{A+n+1}, v{T+1}")
    for j in range(8):
        e(f"v_cvt_pk_bf16_f32 v{8+j}, v{A+2*j}, v{A+2*j+1}")
    e("buffer_store_dwordx4 v[8:11], v6, s[16:19], 0 offen")
    e("buffer_store_dwordx4 v[12:15], v6, s[16:19], 0 offen offset:16")
    e("RD_END:\ns_endpgm")

def gen_attn(e):
    header(e, "attn_kernel")
    KA = 112; VA = 114; DM = 122
    e(f"""
    s_cmp_ge_u32 s2, 256
    s_cbranch_scc1 AT_END
    s_load_dwordx2 s[10:11], s[0:1], 72
    s_and_b32 s4, s2, 7
    s_lshl_b32 s4, s4, 2
    s_bfe_u32 s5, s2, 0x20003
    s_add_u32 s4, s4, s5          ; head
    s_lshr_b32 s5, s2, 5          ; qblock
    v_and_b32 v127, 63, v0
    v_lshrrev_b32 v16, 6, v0
    s_nop 0
    v_readfirstlane_b32 s56, v16
    v_and_b32 v17, 31, v127      ; l32
    v_lshrrev_b32 v18, 5, v127   ; h
    s_and_b32 s57, s56, 7        ; qt
    s_lshr_b32 s58, s56, 3       ; kh
    s_waitcnt lgkmcnt(0)
    """)
    srd(e, 40, 10, 11, WS_SIZE)
    e(f"""
    s_lshl_b32 s6, s4, 11
    s_lshl_b32 s7, s5, 8
    s_add_u32 s6, s6, s7
    s_lshl_b32 s7, s57, 5
    s_add_u32 s6, s6, s7
    v_add_u32 v19, s6, v17
    v_lshlrev_b32 v19, 6, v19
    v_lshl_add_u32 v19, v18, 4, v19
    v_add_u32 v19, {WS_QP}, v19
    buffer_load_dwordx4 v[64:67], v19, s[40:43], 0 offen
    buffer_load_dwordx4 v[68:71], v19, s[40:43], 0 offen offset:32
    s_lshl_b32 s7, s4, 17
    s_add_u32 s7, s7, {WS_KP}
    s_lshl_b32 s8, s56, 11
    s_add_u32 s7, s7, s8
    v_lshrrev_b32 v20, 2, v127
    v_lshlrev_b32 v20, 6, v20
    v_and_b32 v21, 3, v127
    v_bfe_u32 v22, v127, 4, 2
    v_xor_b32 v21, v21, v22
    v_lshl_add_u32 v20, v21, 4, v20
    v_add_u32 v{DM}, s7, v20
    v_add_u32 v{DM+1}, 1024, v{DM}
    s_lshl_b32 s7, s4, 17
    s_add_u32 s7, s7, {WS_VT}
    s_lshl_b32 s8, s56, 1
    """)
    for j in range(2):
        e(f"""
        s_add_u32 s9, s8, {j}
        s_and_b32 s12, s9, 15
        v_xor_b32 v22, s12, v127
        s_lshl_b32 s9, s9, 12
        s_add_u32 s9, s9, s7
        v_lshl_add_u32 v{DM+2+j}, v22, 4, s9
        """)
    e("""
    v_bfe_u32 v20, v127, 2, 2
    v_lshlrev_b32 v21, 6, v17
    s_lshl_b32 s9, s58, 14
    v_add_u32 v21, s9, v21
    """)
    for ks in range(2):
        e(f"v_or_b32 v22, {2*ks}, v18")
        e("v_xor_b32 v22, v22, v20")
        e(f"v_lshl_add_u32 v{KA+ks}, v22, 4, v21")
    e("v_and_b32 v20, 15, v127\nv_lshlrev_b32 v21, 10, v17\ns_lshl_b32 s9, s58, 9\ns_add_u32 s9, s9, 32768\nv_add_u32 v21, s9, v21")
    for c in range(8):
        e(f"v_or_b32 v22, {2*c}, v18")
        e("v_xor_b32 v22, v22, v20")
        e(f"v_lshl_add_u32 v{VA+c}, v22, 4, v21")
    def dma():
        for j in range(2):
            e(f"s_add_u32 m0, s54, {j*1024}\ns_nop 0")
            e(f"buffer_load_dwordx4 v{DM+j}, s[40:43], s52 offen lds")
        for j in range(2):
            e(f"s_add_u32 m0, s54, {32768 + j*1024}\ns_nop 0")
            e(f"buffer_load_dwordx4 v{DM+2+j}, s[40:43], s53 offen lds")
    KF = [72, 80]; VF = [88, 96]; SB = [16, 32]; P = 104
    def kread(tile):
        kf = KF[tile & 1]
        for ks in range(2):
            e(f"ds_read_b128 v[{kf+4*ks}:{kf+3+4*ks}], v{KA+ks} offset:{tile*2048}")
    def vread(tile):
        vf = VF[tile & 1]
        for c in range(2):
            cc = 2*tile + c
            e(f"ds_read_b128 v[{vf+4*c}:{vf+3+4*c}], v{VA + (cc&7)} offset:{(cc>>3)*256}")
    def smfma(tile):
        kf = KF[tile & 1]; S = SB[tile & 1]
        e(f"v_mfma_f32_32x32x16_bf16 v[{S}:{S+15}], v[{kf}:{kf+3}], v[64:67], v[48:63]")
        e(f"v_mfma_f32_32x32x16_bf16 v[{S}:{S+15}], v[{kf+4}:{kf+7}], v[68:71], v[{S}:{S+15}]")
    AR = [KA, KA+1] + list(range(VA, VA+8))
    def maxchain(S):
        e(f"v_max3_f32 v{P}, v{S}, v{S+1}, v{S+2}")
        for i in range(3, 15, 2):
            e(f"v_max3_f32 v{P}, v{P}, v{S+i}, v{S+i+1}")
        e(f"v_max_f32 v{P}, v{P}, v{S+15}")
    def mainloop(fast, tg):
        e("s_lshl_b32 s54, s56, 11\ns_mov_b32 s52, 0\ns_mov_b32 s53, 0")
        for i in range(16):
            e(f"v_mov_b32 v{i}, 0")
            e(f"v_mov_b32 v{48+i}, 0")
        e("v_mov_b32 v126, 0xff800000\ns_mov_b64 s[34:35], -1")
        dma()
        e(f"s_mov_b32 s30, 0\nAT_LOOP{tg}:")
        e("s_add_u32 s52, s52, 32768\ns_add_u32 s53, s53, 1024\ns_xor_b32 s54, s54, 0x10000")
        dma()
        e("s_waitcnt vmcnt(4)\ns_barrier")
        kread(0); kread(1); vread(0)
        e("s_waitcnt lgkmcnt(4)")
        smfma(0)
        e(f"s_nop 7\ns_mov_b32 s31, 0\nAT_IN{tg}:")
        for tile in range(4):
            S = SB[tile & 1]; vf = VF[tile & 1]
            e("s_waitcnt lgkmcnt(2)")
            smfma(tile + 1)
            kread(tile + 2)
            vread(tile + 1)
            if not fast:
                maxchain(S)
                e(f"v_cmp_lt_f32 vcc, 0x41000000, v{P}")
                e("s_or_b64 vcc, vcc, s[34:35]")
                e(f"s_cbranch_vccnz AT_SLOW{tg}{tile}")
            elif tile == 0:
                e("s_cmp_lg_u32 s34, 0")
                e(f"s_cbranch_scc1 AT_SLOW{tg}{tile}")
            e(f"AT_F{tg}{tile}:")
            for i in range(16):
                e(f"v_exp_f32 v{S+i}, v{S+i}")
            for i in range(8):
                e(f"v_cvt_pk_bf16_f32 v{P+i}, v{S+2*i}, v{S+1+2*i}")
            e("s_waitcnt lgkmcnt(4)\ns_nop 1")
            e(f"v_mfma_f32_32x32x16_bf16 v[0:15], v[{vf}:{vf+3}], v[{P}:{P+3}], v[0:15]")
            e(f"v_mfma_f32_32x32x16_bf16 v[0:15], v[{vf+4}:{vf+7}], v[{P+4}:{P+7}], v[0:15]")
        e(f"v_add_u32 v{KA}, 8192, v{KA}\nv_add_u32 v{KA+1}, 8192, v{KA+1}")
        for r in range(VA, VA+8):
            e(f"v_add_u32 v{r}, 256, v{r}")
        e(f"s_add_u32 s31, s31, 1\ns_cmp_lt_u32 s31, 2\ns_cbranch_scc1 AT_IN{tg}")
        e(f"v_subrev_u32 v{KA}, 16384, v{KA}\nv_subrev_u32 v{KA+1}, 16384, v{KA+1}")
        for r in range(VA, VA+8):
            e(f"v_subrev_u32 v{r}, 512, v{r}")
        for r in AR:
            e(f"v_xor_b32 v{r}, 0x10000, v{r}")
        e("s_waitcnt lgkmcnt(0)\ns_barrier")
        e(f"s_add_u32 s30, s30, 1\ns_cmp_lt_u32 s30, 4\ns_cbranch_scc1 AT_LOOP{tg}")
        e(f"s_branch AT_FIN{tg}")
        for tile in range(4 if not fast else 1):
            S = SB[tile & 1]; S2 = SB[(tile & 1) ^ 1]
            e(f"AT_SLOW{tg}{tile}:")
            if fast: maxchain(S)
            e(f"v_mov_b32 v{P+1}, v{P}\ns_nop 1")
            e(f"v_permlane32_swap_b32 v{P}, v{P+1}")
            e("s_nop 1")
            e(f"v_max3_f32 v{P}, v{P}, v{P+1}, v126")
            e("v_mov_b32 v126, 0\ns_mov_b64 s[34:35], 0")
            e(f"v_exp_f32 v{P+1}, -v{P}")
            e("s_nop 7\ns_nop 7")
            for i in range(16):
                e(f"v_sub_f32 v{S+i}, v{S+i}, v{P}")
                e(f"v_sub_f32 v{48+i}, v{48+i}, v{P}")
                e(f"v_mul_f32 v{i}, v{i}, v{P+1}")
                e(f"v_sub_f32 v{S2+i}, v{S2+i}, v{P}")
            e(f"s_branch AT_F{tg}{tile}")
        e(f"AT_FIN{tg}:\ns_waitcnt vmcnt(0)\ns_nop 15")
    mainloop(True, "A")
    e("""
    s_barrier
    v_mov_b32 v16, 0x71800000
    v_cmp_nlt_f32 vcc, v10, v16
    s_cmp_lg_u64 vcc, 0
    s_cselect_b32 s6, 1, 0
    v_mov_b32 v16, s6
    s_lshl_b32 s6, s56, 2
    s_add_u32 s6, s6, 65536
    v_mov_b32 v17, s6
    ds_write_b32 v17, v16
    v_and_b32 v17, 15, v127
    v_lshlrev_b32 v17, 2, v17
    v_add_u32 v17, 65536, v17
    s_waitcnt lgkmcnt(0)
    s_barrier
    ds_read_b32 v16, v17
    s_waitcnt lgkmcnt(0)
    v_cmp_ne_u32 vcc, 0, v16
    s_cbranch_vccz AT_MERGE
    s_barrier
    """)
    mainloop(False, "B")
    e("AT_MERGE:")
    e("""
    s_lshl_b32 s6, s57, 6
    v_add_u32 v16, s6, v127
    v_lshlrev_b32 v16, 6, v16
    s_barrier
    s_cmp_eq_u32 s58, 0
    s_cbranch_scc1 AT_MRG
    ds_write_b128 v16, v[0:3]
    ds_write_b128 v16, v[4:7] offset:16
    ds_write_b128 v16, v[8:11] offset:32
    ds_write_b32 v16, v48 offset:48
    s_waitcnt lgkmcnt(0)
    s_barrier
    s_branch AT_END
    AT_MRG:
    s_barrier
    ds_read_b128 v[20:23], v16
    ds_read_b128 v[24:27], v16 offset:16
    ds_read_b128 v[28:31], v16 offset:32
    ds_read_b32 v32, v16 offset:48
    s_waitcnt lgkmcnt(0)
    v_min_f32 v33, v48, v32
    v_sub_f32 v34, v33, v48
    v_sub_f32 v35, v33, v32
    v_exp_f32 v34, v34
    v_exp_f32 v35, v35
    s_nop 1
    """)
    for i in range(12):
        e(f"v_mul_f32 v{i}, v{i}, v34")
        e(f"v_fmac_f32 v{i}, v{20+i}, v35")
    e(f"""
    v_and_b32 v17, 31, v127
    v_lshrrev_b32 v18, 5, v127
    v_rcp_f32 v33, v10
    s_lshl_b32 s6, s5, 8
    s_lshl_b32 s7, s57, 5
    s_add_u32 s6, s6, s7
    s_lshr_b32 s6, s6, 5
    s_mul_i32 s6, s6, 331776
    s_add_u32 s6, s6, {WS_H}
    v_lshl_add_u32 v19, v17, 4, s6
    s_mul_i32 s8, s4, 18
    s_add_u32 s8, s8, 4608
    v_lshl_add_u32 v41, v18, 2, s8
    """)
    for i in range(10):
        e(f"v_mul_f32 v{i}, v{i}, v33")
    def oaddr(dst, c):
        e(f"v_add_u32 v{dst}, {c}, v41")
        e(f"v_lshrrev_b32 v46, 3, v{dst}")
        e(f"v_and_b32 v{dst}, 7, v{dst}")
        e(f"v_lshl_add_u32 v{dst}, v{dst}, 1, v19")
        e(f"v_lshl_add_u32 v{dst}, v46, 9, v{dst}")
    for q in range(2):
        e(f"v_cvt_pk_bf16_f32 v{36+2*q}, v{4*q}, v{4*q+1}")
        e(f"v_cvt_pk_bf16_f32 v{37+2*q}, v{4*q+2}, v{4*q+3}")
        oaddr(42+2*q, 8*q); oaddr(43+2*q, 8*q+2)
        e(f"buffer_store_dword v{36+2*q}, v{42+2*q}, s[40:43], 0 offen")
        e(f"buffer_store_dword v{37+2*q}, v{43+2*q}, s[40:43], 0 offen")
    oaddr(47, 16)
    e("""
    v_cvt_pk_bf16_f32 v40, v8, v9
    v_cmp_eq_u32 vcc, 0, v18
    s_and_saveexec_b64 s[24:25], vcc
    s_cbranch_execz AT_SK
    buffer_store_dword v40, v47, s[40:43], 0 offen
    AT_SK:
    s_or_b64 exec, exec, s[24:25]
    AT_END:
    s_endpgm
    """)

def gen_attn8(e, standalone=True):
    if standalone: header(e, "attn_kernel")
    KA = 112; VA = 114; DM = 122
    e(f"""
    s_cmp_ge_u32 s2, 256
    s_cbranch_scc1 AT_END
    s_load_dwordx2 s[10:11], s[0:1], 72
    s_and_b32 s4, s2, 7
    s_lshl_b32 s4, s4, 2
    s_bfe_u32 s5, s2, 0x20003
    s_add_u32 s4, s4, s5          ; head
    s_lshr_b32 s5, s2, 5          ; qblock
    v_and_b32 v127, 63, v0
    v_lshrrev_b32 v16, 6, v0
    s_nop 0
    v_readfirstlane_b32 s56, v16
    v_and_b32 v17, 31, v127      ; l32
    v_lshrrev_b32 v18, 5, v127   ; h
    s_mov_b32 s57, s56           ; qt
    s_waitcnt lgkmcnt(0)
    """)
    srd(e, 40, 10, 11, WS_SIZE)
    e(f"""
    s_lshl_b32 s6, s4, 11
    s_lshl_b32 s7, s5, 8
    s_add_u32 s6, s6, s7
    s_lshl_b32 s7, s57, 5
    s_add_u32 s6, s6, s7
    v_add_u32 v19, s6, v17
    v_lshlrev_b32 v19, 6, v19
    v_lshl_add_u32 v19, v18, 4, v19
    v_add_u32 v19, {WS_QP}, v19
    buffer_load_dwordx4 v[64:67], v19, s[40:43], 0 offen
    buffer_load_dwordx4 v[68:71], v19, s[40:43], 0 offen offset:32
    """)
    def setup_old():
        e(f"""
        v_and_b32 v17, 31, v127
        v_lshrrev_b32 v18, 5, v127
    s_lshl_b32 s7, s4, 17
    s_add_u32 s7, s7, {WS_KP}
    s_lshl_b32 s8, s56, 11
    s_add_u32 s7, s7, s8
    v_lshrrev_b32 v20, 2, v127
    v_lshlrev_b32 v20, 6, v20
    v_and_b32 v21, 3, v127
    v_bfe_u32 v22, v127, 4, 2
    v_xor_b32 v21, v21, v22
    v_lshl_add_u32 v20, v21, 4, v20
    v_add_u32 v{DM}, s7, v20
    v_add_u32 v{DM+1}, 1024, v{DM}
    s_lshl_b32 s7, s4, 17
    s_add_u32 s7, s7, {WS_VT}
    s_lshl_b32 s8, s56, 2
    v_and_b32 v23, 31, v127
    """)
        for j in range(2):
            e(f"""
        s_add_u32 s9, s8, {2*j}
        v_add_u32 v20, s9, v18
        v_and_b32 v21, 15, v20
        v_xor_b32 v21, v21, v23
        v_lshlrev_b32 v20, 12, v20
        v_lshl_add_u32 v20, v21, 4, v20
        v_add_u32 v{DM+2+j}, s7, v20
        """)
        e("""
    v_bfe_u32 v20, v127, 2, 2
    v_lshlrev_b32 v21, 6, v17
    """)
        for ks in range(2):
            e(f"v_or_b32 v22, {2*ks}, v18")
            e("v_xor_b32 v22, v22, v20")
            e(f"v_lshl_add_u32 v{KA+ks}, v22, 4, v21")
        e("v_and_b32 v20, 15, v127\nv_lshlrev_b32 v21, 9, v17\nv_add_u32 v21, 16384, v21")
        for c in range(8):
            e(f"v_or_b32 v22, {2*c}, v18")
            e("v_xor_b32 v22, v22, v20")
            e(f"v_lshl_add_u32 v{VA+c}, v22, 4, v21")
    def setup_new():
        e(f"""
        v_and_b32 v17, 31, v127
        v_lshrrev_b32 v18, 5, v127
        s_lshl_b32 s7, s4, 17
        s_add_u32 s7, s7, {WS_KP}
        s_lshl_b32 s8, s56, 10
        s_add_u32 s7, s7, s8
        v_lshrrev_b32 v20, 2, v127
        v_lshlrev_b32 v20, 6, v20
        v_and_b32 v21, 3, v127
        v_bfe_u32 v22, v127, 4, 2
        v_xor_b32 v21, v21, v22
        v_lshl_add_u32 v20, v21, 4, v20
        v_add_u32 v{DM}, s7, v20
        s_lshl_b32 s7, s4, 17
        s_add_u32 s7, s7, {WS_VT}
        s_lshl_b32 s8, s56, 2
        v_lshrrev_b32 v20, 4, v127
        v_add_u32 v20, s8, v20
        v_and_b32 v21, 15, v20
        v_and_b32 v23, 15, v127
        v_xor_b32 v21, v21, v23
        v_lshlrev_b32 v20, 12, v20
        v_lshl_add_u32 v20, v21, 4, v20
        v_add_u32 v{DM+1}, s7, v20
        v_bfe_u32 v20, v127, 2, 2
        v_lshlrev_b32 v21, 6, v17
        """)
        for ks in range(2):
            e(f"v_or_b32 v22, {2*ks}, v18")
            e("v_xor_b32 v22, v22, v20")
            e(f"v_lshl_add_u32 v{KA+ks}, v22, 4, v21")
        e("v_and_b32 v20, 15, v127\nv_lshlrev_b32 v21, 8, v17\nv_add_u32 v21, 8192, v21")
        for c in range(8):
            e(f"v_or_b32 v22, {2*c}, v18")
            e("v_xor_b32 v22, v22, v20")
            e(f"v_lshl_add_u32 v{VA+c}, v22, 4, v21")
    RING = "NORING" not in sys.argv
    if RING: setup_new()
    else: setup_old()
    def dma():
        for j in range(2):
            e(f"s_add_u32 m0, s54, {j*1024}\ns_nop 0")
            e(f"buffer_load_dwordx4 v{DM+j}, s[40:43], s52 offen lds")
        for j in range(2):
            e(f"s_add_u32 m0, s54, {16384 + j*1024}\ns_nop 0")
            e(f"buffer_load_dwordx4 v{DM+2+j}, s[40:43], s53 offen lds")
    NPOLY = 0
    DPV = "NODPV" not in sys.argv
    for a_ in sys.argv:
        if a_.startswith("NPOLY="): NPOLY = int(a_[6:])
    e(f"s_mov_b32 s12, {hex(f2u(0.3365))}\ns_mov_b32 s13, s12\ns_mov_b32 s14, {hex(f2u(128.0/32767.0))}\ns_mov_b32 s15, s14")
    KF = [72, 80]; VF = [88, 96]; SB = [16, 32]; P = 104
    def kread(tile):
        kf = KF[tile & 1]
        for ks in range(2):
            e(f"ds_read_b128 v[{kf+4*ks}:{kf+3+4*ks}], v{KA+ks} offset:{tile*2048}")
    def vread(tile):
        vf = VF[tile & 1]
        for c in range(2):
            cc = 2*tile + c
            e(f"ds_read_b128 v[{vf+4*c}:{vf+3+4*c}], v{VA + (cc&7)} offset:{(cc>>3)*256}")
    def smfma(tile):
        kf = KF[tile & 1]; S = SB[tile & 1]
        e(f"v_mfma_f32_32x32x16_bf16 v[{S}:{S+15}], v[{kf}:{kf+3}], v[64:67], v[48:63]")
        e(f"v_mfma_f32_32x32x16_bf16 v[{S}:{S+15}], v[{kf+4}:{kf+7}], v[68:71], v[{S}:{S+15}]")
    AR = [KA, KA+1] + list(range(VA, VA+8))
    def maxchain(S):
        e(f"v_max3_f32 v{P}, v{S}, v{S+1}, v{S+2}")
        for i in range(3, 15, 2):
            e(f"v_max3_f32 v{P}, v{P}, v{S+i}, v{S+i+1}")
        e(f"v_max_f32 v{P}, v{P}, v{S+15}")
    def mainloop(fast, tg):
        e("s_lshl_b32 s54, s56, 11\ns_mov_b32 s52, 0\ns_mov_b32 s53, 0")
        for i in range(16):
            e(f"v_mov_b32 v{i}, 0")
            e(f"v_mov_b32 v{48+i}, 0")
        e("v_mov_b32 v126, 0xff800000\ns_mov_b64 s[34:35], -1")
        dpv = fast and DPV
        if dpv:
            for i in range(8): e(f"v_mov_b32 v{P+i}, 0\nv_mov_b32 v{VF[1]+i}, 0")
        dma()
        e(f"s_mov_b32 s30, 0\nAT_LOOP{tg}:")
        e("s_add_u32 s52, s52, 16384\ns_add_u32 s53, s53, 512\ns_xor_b32 s54, s54, 0x8000")
        if "ANODMA" not in sys.argv: dma()
        if "ANOVM" not in sys.argv: e("s_waitcnt vmcnt(4)")
        if "ANOBAR" not in sys.argv: e("s_barrier")
        if "TS" in sys.argv: e(f"s_cmp_lg_u32 s30, 0\ns_cbranch_scc1 AT_TS{tg}\ns_memrealtime s[88:89]\nAT_TS{tg}:\ns_cmp_lg_u32 s30, 4\ns_cbranch_scc1 AT_TU{tg}\ns_memrealtime s[90:91]\nAT_TU{tg}:")
        if dpv:
            kread(0); kread(1)
            e("s_waitcnt lgkmcnt(2)")
            smfma(0)
            e("s_waitcnt lgkmcnt(0)\ns_nop 7\ns_nop 7")
        else:
            kread(0); kread(1); vread(0)
            e("s_waitcnt lgkmcnt(4)")
            smfma(0)
        e(f"s_nop 7\ns_mov_b32 s31, 0\nAT_IN{tg}:")
        for tile in range(4):
            S = SB[tile & 1]; vf = VF[tile & 1]
            e("s_waitcnt lgkmcnt(2)")
            if dpv:
                kf = KF[(tile+1) & 1]; Sn = SB[(tile+1) & 1]; vp = VF[(tile+1) & 1]
                m1 = f"v_mfma_f32_32x32x16_bf16 v[{Sn}:{Sn+15}], v[{kf}:{kf+3}], v[64:67], v[48:63]"
                m2 = f"v_mfma_f32_32x32x16_bf16 v[{Sn}:{Sn+15}], v[{kf+4}:{kf+7}], v[68:71], v[{Sn}:{Sn+15}]"
                def exps(a, b):
                    for i in range(a, b): e(f"v_exp_f32 v{S+i}, v{S+i}")
                e(m1)
                if tile == 0:
                    e(m2); kread(tile + 2)
                    e("s_cmp_lg_u32 s34, 0")
                    e(f"s_cbranch_scc1 AT_SLOW{tg}{tile}")
                    e(f"AT_F{tg}{tile}:")
                    exps(0, 8)
                else:
                    exps(0, 4); e(m2); kread(tile + 2); exps(4, 8)
                e("s_waitcnt lgkmcnt(2)")
                e(f"v_mfma_f32_32x32x16_bf16 v[0:15], v[{vp}:{vp+3}], v[{P}:{P+3}], v[0:15]")
                exps(8, 12)
                e(f"v_mfma_f32_32x32x16_bf16 v[0:15], v[{vp+4}:{vp+7}], v[{P+4}:{P+7}], v[0:15]")
                vread(tile)
                exps(12, 16)
                for i in range(8):
                    e(f"v_cvt_pk_bf16_f32 v{P+i}, v{S+2*i}, v{S+1+2*i}")
                continue
            smfma(tile + 1)
            kread(tile + 2)
            vread(tile + 1)
            if not fast:
                maxchain(S)
                e(f"v_cmp_lt_f32 vcc, 0x41000000, v{P}")
                e("s_or_b64 vcc, vcc, s[34:35]")
                e(f"s_cbranch_vccnz AT_SLOW{tg}{tile}")
            elif tile == 0:
                e("s_cmp_lg_u32 s34, 0")
                e(f"s_cbranch_scc1 AT_SLOW{tg}{tile}")
            e(f"AT_F{tg}{tile}:")
            npo = NPOLY if fast else 0
            ex = [f"v_exp_f32 v{S+i}, v{S+i}" for i in range(16 - 2*npo)]
            po = []
            for g in range(npo // 2):
                pa = 8 - npo + 2*g
                if g == 0: TT = (P+4, P+6) if npo == 8 else (P, P+2)
                else: TT = (S + 2*(pa-2), S + 2*(pa-1))
                A_ = (S + 2*pa, S + 2*pa + 2)
                for t_, a_ in zip(TT, A_):
                    po.append(f"v_fract_f32 v{t_}, v{a_}"); po.append(f"v_fract_f32 v{t_+1}, v{a_+1}")
                for t_, a_ in zip(TT, A_):
                    po.append(f"v_pk_fma_f32 v[{t_}:{t_+1}], v[{t_}:{t_+1}], v[{t_}:{t_+1}], v[{t_}:{t_+1}] neg_lo:[0,0,1] neg_hi:[0,0,1]")
                for t_, a_ in zip(TT, A_):
                    po.append(f"v_pk_fma_f32 v[{a_}:{a_+1}], v[{t_}:{t_+1}], s[12:13], v[{a_}:{a_+1}]")
                for t_, a_ in zip(TT, A_):
                    po.append(f"v_pk_mul_f32 v[{a_}:{a_+1}], v[{a_}:{a_+1}], s[14:15] clamp")
                for k_, a_ in enumerate(A_):
                    po.append(f"v_cvt_pknorm_i16_f32 v{P+pa+k_}, v{a_}, v{a_+1}")
            ne, npp = len(ex), len(po)
            ie = ip = 0
            while ie < ne or ip < npp:
                if ie < ne: e(ex[ie]); ie += 1
                tgt = npp if ie >= ne else (ie * npp) // ne
                while ip < tgt: e(po[ip]); ip += 1
            for i in range(8 - npo):
                e(f"v_cvt_pk_bf16_f32 v{P+i}, v{S+2*i}, v{S+1+2*i}")
            e("s_waitcnt lgkmcnt(4)\ns_nop 1")
            e(f"v_mfma_f32_32x32x16_bf16 v[0:15], v[{vf}:{vf+3}], v[{P}:{P+3}], v[0:15]")
            e(f"v_mfma_f32_32x32x16_bf16 v[0:15], v[{vf+4}:{vf+7}], v[{P+4}:{P+7}], v[0:15]")
        e(f"v_add_u32 v{KA}, 8192, v{KA}\nv_add_u32 v{KA+1}, 8192, v{KA+1}")
        for r in range(VA, VA+8):
            e(f"v_add_u32 v{r}, 256, v{r}")
        e(f"s_add_u32 s31, s31, 1\ns_cmp_lt_u32 s31, 2\ns_cbranch_scc1 AT_IN{tg}")
        e(f"v_subrev_u32 v{KA}, 16384, v{KA}\nv_subrev_u32 v{KA+1}, 16384, v{KA+1}")
        for r in range(VA, VA+8):
            e(f"v_subrev_u32 v{r}, 512, v{r}")
        for r in AR:
            e(f"v_xor_b32 v{r}, 0x8000, v{r}")
        e("s_waitcnt lgkmcnt(0)")
        if "ANOBAR" not in sys.argv: e("s_barrier")
        e(f"s_add_u32 s30, s30, 1\ns_cmp_lt_u32 s30, 8\ns_cbranch_scc1 AT_LOOP{tg}")
        e(f"s_branch AT_FIN{tg}")
        for tile in range(4 if not fast else 1):
            S = SB[tile & 1]; S2 = SB[(tile & 1) ^ 1]
            e(f"AT_SLOW{tg}{tile}:")
            if fast: maxchain(S)
            e(f"v_mov_b32 v{P+1}, v{P}\ns_nop 1")
            e(f"v_permlane32_swap_b32 v{P}, v{P+1}")
            e("s_nop 1")
            e(f"v_max3_f32 v{P}, v{P}, v{P+1}, v126")
            e("v_mov_b32 v126, 0\ns_mov_b64 s[34:35], 0")
            e(f"v_exp_f32 v{P+1}, -v{P}")
            e(f"v_subrev_f32 v{P+2}, 0x42fe0000, v{P}")
            e("s_nop 7\ns_nop 7")
            for i in range(16):
                PM = P+2 if (fast and i >= 16 - 2*NPOLY) else P
                e(f"v_sub_f32 v{S+i}, v{S+i}, v{PM}")
                e(f"v_sub_f32 v{48+i}, v{48+i}, v{PM}")
                e(f"v_mul_f32 v{i}, v{i}, v{P+1}")
                e(f"v_sub_f32 v{S2+i}, v{S2+i}, v{PM}")
            if dpv: e(f"v_mov_b32 v{P}, 0\nv_mov_b32 v{P+1}, 0\nv_mov_b32 v{P+2}, 0")
            e(f"s_branch AT_F{tg}{tile}")
        e(f"AT_FIN{tg}:")
        if dpv:
            vp = VF[1]
            e(f"v_mfma_f32_32x32x16_bf16 v[0:15], v[{vp}:{vp+3}], v[{P}:{P+3}], v[0:15]")
            e(f"v_mfma_f32_32x32x16_bf16 v[0:15], v[{vp+4}:{vp+7}], v[{P+4}:{P+7}], v[0:15]")
            e("s_nop 15")
        e(f"s_waitcnt vmcnt(0)\ns_nop 15")
    def fastloop():
        tg = "A"
        def dma2(slot):
            e(f"s_add_u32 m0, s54, {slot*16384}\ns_nop 0")
            e(f"buffer_load_dwordx4 v{DM}, s[40:43], s52 offen lds")
            e(f"s_add_u32 m0, s54, {slot*16384 + 8192}\ns_nop 0")
            e(f"buffer_load_dwordx4 v{DM+1}, s[40:43], s53 offen lds")
            e("s_add_u32 s52, s52, 8192\ns_add_u32 s53, s53, 256")
        def kr(T):
            kf = KF[T & 1]; T %= 16
            for ks in range(2):
                e(f"ds_read_b128 v[{kf+4*ks}:{kf+3+4*ks}], v{KA+ks} offset:{(T>>2)*16384 + (T&3)*2048}")
        def vr(T):
            vf = VF[T & 1]
            for c in range(2):
                e(f"ds_read_b128 v[{vf+4*c}:{vf+3+4*c}], v{VA + 2*(T&3) + c} offset:{(T>>2)*16384}")
        e("s_lshl_b32 s54, s56, 10\ns_mov_b32 s52, 0\ns_mov_b32 s53, 0")
        for sl in range(3): dma2(sl)
        for i in range(16):
            e(f"v_mov_b32 v{i}, 0")
            e(f"v_mov_b32 v{48+i}, 0")
        e("v_mov_b32 v126, 0xff800000\ns_mov_b64 s[34:35], -1")
        for i in range(8): e(f"v_mov_b32 v{P+i}, 0\nv_mov_b32 v{VF[1]+i}, 0")
        e("s_mov_b32 s30, 0\ns_waitcnt vmcnt(4)\ns_barrier")
        if "TS" in sys.argv: e("s_memrealtime s[88:89]\ns_memrealtime s[90:91]")
        kr(0); kr(1)
        e("s_waitcnt lgkmcnt(2)")
        smfma(0)
        e("s_waitcnt lgkmcnt(0)\ns_nop 7\ns_nop 7\ns_nop 7")
        e("AT_LOOPA:")
        for T in range(16):
            S = SB[T & 1]
            kf = KF[(T+1) & 1]; Sn = SB[(T+1) & 1]; vp = VF[(T+1) & 1]
            m1 = f"v_mfma_f32_32x32x16_bf16 v[{Sn}:{Sn+15}], v[{kf}:{kf+3}], v[64:67], v[48:63]"
            m2 = f"v_mfma_f32_32x32x16_bf16 v[{Sn}:{Sn+15}], v[{kf+4}:{kf+7}], v[68:71], v[{Sn}:{Sn+15}]"
            def exps(a, b):
                for i in range(a, b): e(f"v_exp_f32 v{S+i}, v{S+i}")
            e("s_waitcnt lgkmcnt(2)")
            e(m1)
            if T == 0:
                e(m2); kr(T + 2)
                e("s_cmp_lg_u32 s34, 0")
                e("s_cbranch_scc1 AT_SLOWA0")
                e("AT_FA0:")
                exps(0, 8)
            else:
                exps(0, 4); e(m2)
                if (T & 3) == 1:
                    e("s_waitcnt vmcnt(2)\ns_barrier")
                    dma2(((T >> 2) + 3) & 3)
                kr(T + 2); exps(4, 8)
            e("s_waitcnt lgkmcnt(2)")
            e(f"v_mfma_f32_32x32x16_bf16 v[0:15], v[{vp}:{vp+3}], v[{P}:{P+3}], v[0:15]")
            exps(8, 12)
            e(f"v_mfma_f32_32x32x16_bf16 v[0:15], v[{vp+4}:{vp+7}], v[{P+4}:{P+7}], v[0:15]")
            vr(T)
            exps(12, 16)
            for i in range(8):
                e(f"v_cvt_pk_bf16_f32 v{P+i}, v{S+2*i}, v{S+1+2*i}")
        e("s_add_u32 s30, s30, 1\ns_cmp_lt_u32 s30, 4\ns_cbranch_scc1 AT_LOOPA")
        e("s_branch AT_FINA")
        S = SB[0]; S2 = SB[1]
        e("AT_SLOWA0:")
        maxchain(S)
        e(f"v_mov_b32 v{P+1}, v{P}\ns_nop 1")
        e(f"v_permlane32_swap_b32 v{P}, v{P+1}")
        e("s_nop 1")
        e(f"v_max3_f32 v{P}, v{P}, v{P+1}, v126")
        e("v_mov_b32 v126, 0\ns_mov_b64 s[34:35], 0")
        e("s_nop 7\ns_nop 7")
        for i in range(16):
            e(f"v_sub_f32 v{S+i}, v{S+i}, v{P}")
            e(f"v_sub_f32 v{48+i}, v{48+i}, v{P}")
            e(f"v_sub_f32 v{S2+i}, v{S2+i}, v{P}")
        e(f"v_mov_b32 v{P}, 0\nv_mov_b32 v{P+1}, 0")
        e("s_branch AT_FA0")
        e("AT_FINA:\ns_waitcnt lgkmcnt(0)\ns_nop 1")
        vp = VF[1]
        e(f"v_mfma_f32_32x32x16_bf16 v[0:15], v[{vp}:{vp+3}], v[{P}:{P+3}], v[0:15]")
        e(f"v_mfma_f32_32x32x16_bf16 v[0:15], v[{vp+4}:{vp+7}], v[{P+4}:{P+7}], v[0:15]")
        e("s_nop 15\ns_waitcnt vmcnt(0)\ns_nop 15")
    if RING: fastloop()
    else: mainloop(True, "A")
    e("""
    s_barrier
    v_mov_b32 v16, 0x71800000
    v_cmp_nlt_f32 vcc, v10, v16
    s_cmp_lg_u64 vcc, 0
    s_cselect_b32 s6, 1, 0
    v_mov_b32 v16, s6
    s_lshl_b32 s6, s56, 2
    s_add_u32 s6, s6, 65536
    v_mov_b32 v17, s6
    ds_write_b32 v17, v16
    v_and_b32 v17, 7, v127
    v_lshlrev_b32 v17, 2, v17
    v_add_u32 v17, 65536, v17
    s_waitcnt lgkmcnt(0)
    s_barrier
    ds_read_b32 v16, v17
    s_waitcnt lgkmcnt(0)
    v_cmp_ne_u32 vcc, 0, v16
    s_cbranch_vccz AT_MERGE
    s_barrier
    """)
    if RING: setup_old()
    mainloop(False, "B")
    e("AT_MERGE:")
    e(f"""
    v_and_b32 v17, 31, v127
    v_lshrrev_b32 v18, 5, v127
    v_rcp_f32 v33, v10
    s_lshl_b32 s6, s5, 8
    s_lshl_b32 s7, s57, 5
    s_add_u32 s6, s6, s7
    s_lshr_b32 s6, s6, 5
    s_mul_i32 s6, s6, 331776
    s_add_u32 s6, s6, {WS_H}
    v_lshl_add_u32 v19, v17, 4, s6
    s_mul_i32 s8, s4, 18
    s_add_u32 s8, s8, 4608
    v_lshl_add_u32 v41, v18, 2, s8
    """)
    for i in range(10):
        e(f"v_mul_f32 v{i}, v{i}, v33")
    def oaddr(dst, c):
        e(f"v_add_u32 v{dst}, {c}, v41")
        e(f"v_lshrrev_b32 v46, 3, v{dst}")
        e(f"v_and_b32 v{dst}, 7, v{dst}")
        e(f"v_lshl_add_u32 v{dst}, v{dst}, 1, v19")
        e(f"v_lshl_add_u32 v{dst}, v46, 9, v{dst}")
    for q in range(2):
        e(f"v_cvt_pk_bf16_f32 v{36+2*q}, v{4*q}, v{4*q+1}")
        e(f"v_cvt_pk_bf16_f32 v{37+2*q}, v{4*q+2}, v{4*q+3}")
        oaddr(42+2*q, 8*q); oaddr(43+2*q, 8*q+2)
        e(f"buffer_store_dword v{36+2*q}, v{42+2*q}, s[40:43], 0 offen")
        e(f"buffer_store_dword v{37+2*q}, v{43+2*q}, s[40:43], 0 offen")
    oaddr(47, 16)
    e("""
    v_cvt_pk_bf16_f32 v40, v8, v9
    v_cmp_eq_u32 vcc, 0, v18
    s_and_saveexec_b64 s[24:25], vcc
    s_cbranch_execz AT_SK
    buffer_store_dword v40, v47, s[40:43], 0 offen
    AT_SK:
    s_or_b64 exec, exec, s[24:25]
    s_waitcnt vmcnt(0)
    """)
    ts_end(e, "a")
    e("AT_END:\ns_endpgm")

def main():
    e = E()
    hdr = open("parallel_sum__mha_block__glu_gated_swiglu__prompt.s.ref").read().split("; Override")[0]
    txt = hdr
    txt += "; @launch kernel=ln_kernel grid=(704,1,1) block=(256,1,1) lds=0\n"
    txt += f"; @launch kernel=gemm1_kernel grid=(256,1,1) block=(512,1,1) lds=163840\n"
    txt += "; @launch kernel=attn_kernel grid=(512,1,1) block=(512,1,1) lds=77824\n"
    txt += "; @launch kernel=fin_kernel grid=(192,1,1) block=(256,1,1) lds=135168\n"
    txt += '.amdgcn_target "amdgcn-amd-amdhsa--gfx950"\n.text\n'
    gen_ln(e); gen_gemm1(e)
    header(e, "attn_kernel")
    if "TS" in sys.argv: e("s_memrealtime s[70:71]\ns_memtime s[80:81]\ns_mov_b32 s74, s2")
    if "MAPB" in sys.argv:
        e("""
        s_bfe_u32 s3, s2, 0x10003
        s_and_b32 s4, s2, 7
        s_lshr_b32 s2, s2, 4
        s_lshl_b32 s2, s2, 3
        s_or_b32 s2, s2, s4
        s_cmp_lg_u32 s3, 0
        s_cbranch_scc1 G2_START
        """)
    elif "MAPC" in sys.argv:
        e("""
        s_cmp_lt_u32 s2, 256
        s_cbranch_scc1 G2_START
        s_sub_u32 s2, s2, 256
        """)
    else:
        e("""
        s_cmp_lt_u32 s2, 256
        s_cbranch_scc1 AT_START
        s_sub_u32 s2, s2, 256
        s_branch G2_START
        AT_START:
        """)
    if "PA" in sys.argv: e("s_setprio 2")
    if "NOAT" in sys.argv: e("s_endpgm")
    gen_attn8(e, False); gen_gemm2h(e); gen_fin2(e)
    txt += e.text()
    txt += kd("ln_kernel", 80) + kd("gemm1_kernel", 256) + kd("attn_kernel", 128) + kd("fin_kernel", 244)
    open(OUT, "w").write(txt)
    print("wrote", len(txt))
main()
```
